```python
import torch

def _softmax(x, axis=-1):
    return torch.softmax(x, dim=axis)

def _gelu(x):
    return torch.nn.functional.gelu(x, approximate='tanh')

def _silu(x):
    return torch.nn.functional.silu(x)

def _sigmoid(x):
    return torch.sigmoid(x)

def _layernorm(x, axis=-1, eps=1e-05):
    m = x.mean(dim=axis, keepdim=True)
    v = x.var(dim=axis, keepdim=True, unbiased=False)
    return (x - m) / torch.sqrt(v + eps)

def _scatter_add(tgt, idx, src, axis=0):
    return tgt.clone().index_add_(axis, idx, src)

def _segment_sum(src, seg, n):
    out = torch.zeros((n,) + src.shape[1:], dtype=src.dtype)
    return out.index_add_(0, seg, src)

def _pad(x, pw):
    flat = tuple((v for pair in reversed(pw) for v in pair))
    return torch.nn.functional.pad(x, flat)
kernel_name = 'adaLN_cond__sliding_block_cached__dense_activation_silu__decode'

def setup_inputs():

    _w = lambda a: (lambda t: t.to(torch.bfloat16) if t.is_floating_point() else t)(torch.as_tensor(a))

    def _A_setup():
        B, Sq, D = (2, 1, 512)
        Hq, Hkv, Sk, Dh = (32, 8, 32768, 128)
        assert Hq % Hkv == 0, (Hq, Hkv)
        return {'x': _w((lambda *s: torch.randn(*s, dtype=torch.bfloat16) * 0.1)(B, Sq, D)), 'k_cache': _w((lambda *s: torch.randn(*s, dtype=torch.bfloat16) * 0.8)(B, Hkv, Sk, Dh)), 'v_cache': _w((lambda *s: torch.randn(*s, dtype=torch.bfloat16) * 3.2)(B, Hkv, Sk, Dh)), 'wq': _w((lambda *s: torch.randn(*s, dtype=torch.bfloat16) * 0.8)(D, Hq * Dh) * D ** (-0.5)), 'wo': _w((lambda *s: torch.randn(*s, dtype=torch.bfloat16) * 3.2)(Hq * Dh, D) * (Hq * Dh) ** (-0.5))}
    _A_in = _A_setup()

    def _B_setup():
        B, S, D, F = (2, 1, 512, 1792)
        return {'x': _w((lambda *s: torch.randn(*s, dtype=torch.bfloat16) * 0.1)(B, S, D)), 'w1': _w((lambda *s: torch.randn(*s, dtype=torch.bfloat16) * 3.2)(D, F) * D ** (-0.5)), 'w2': _w((lambda *s: torch.randn(*s, dtype=torch.bfloat16) * 3.2)(F, D) * F ** (-0.5))}
    _B_in = _B_setup()
    return {'A_x': _A_in['x'], 'A_k_cache': _A_in['k_cache'], 'A_v_cache': _A_in['v_cache'], 'A_wq': _A_in['wq'], 'A_wo': _A_in['wo'], 'B_x': _B_in['x'], 'B_w1': _B_in['w1'], 'B_w2': _B_in['w2'], 'c': _w((lambda *s: torch.randn(*s, dtype=torch.bfloat16) * 0.2)(2, 512) * 8.0), 'w_mod': _w((lambda *s: torch.randn(*s, dtype=torch.bfloat16) * 0.2)(512, 6 * 512) * 512 ** (-0.5) * 8.0)}

def reference(A_x, A_k_cache, A_v_cache, A_wq, A_wo, B_x, B_w1, B_w2, c, w_mod):

    def _A_ref(x, k_cache, v_cache, wq, wo):
        B, Sq, D = x.shape
        Hq, Dh = (32, 128)
        Hkv, Sk = (k_cache.shape[1], k_cache.shape[2])
        W = min(4096, max(256, Sk // 4))
        rep = Hq // Hkv
        q = (lambda x, *d: x.permute(*d))((x @ wq).reshape(B, Sq, Hq, Dh), 0, 2, 1, 3)
        k = (lambda x, n, axis: torch.repeat_interleave(x, n, dim=axis))(k_cache[:, :, Sk - W:, :], rep, axis=1)
        v = (lambda x, n, axis: torch.repeat_interleave(x, n, dim=axis))(v_cache[:, :, Sk - W:, :], rep, axis=1)
        scores = torch.einsum('bhqd,bhkd->bhqk', q, k) * Dh ** (-0.5)
        p = _softmax(scores, axis=-1)
        o = torch.einsum('bhqk,bhkd->bhqd', p, v)
        return (lambda x, *d: x.permute(*d))(o, 0, 2, 1, 3).reshape(B, Sq, Hq * Dh) @ wo

    def _B_ref(x, w1, w2):
        h = torch.einsum('bsd,df->bsf', x, w1)
        h = _silu(h)
        out = torch.einsum('bsf,fd->bsd', h, w2)
        return out
    x = A_x
    mod = (_silu(c) @ w_mod).reshape(c.shape[0], 6, 1, -1)
    sa, ca, ga, sb, cb, gb = (mod[:, 0].clone(), mod[:, 1].clone(), mod[:, 2].clone(), mod[:, 3].clone(), mod[:, 4].clone(), mod[:, 5].clone())
    h = _layernorm(x, axis=-1) * (1 + ca) + sa
    x = x + ga * _A_ref(h, A_k_cache, A_v_cache, A_wq, A_wo)
    h = _layernorm(x, axis=-1) * (1 + cb) + sb
    x = x + gb * _B_ref(h, B_w1, B_w2)
    return x
```

```python
import re

TRANS = ("v_exp_f32", "v_log_f32", "v_rcp_f32", "v_rsq_f32", "v_sqrt_f32", "v_sin_f32", "v_cos_f32", "v_rcp_iflag_f32")
RMW = ("v_fmac_f32", "v_dot2c_f32_bf16", "v_fmac_f32_e32", "v_writelane_b32")

def regs(tok):
    tok = tok.strip()
    tok = tok.lstrip("-")
    if tok.startswith("abs(") or tok.startswith("|"):
        tok = tok.replace("abs(", "").replace(")", "").replace("|", "")
    m = re.fullmatch(r"([vsa])(\d+)", tok)
    if m: return {(m.group(1), int(m.group(2)))}
    m = re.fullmatch(r"([vsa])\[(\d+):(\d+)\]", tok)
    if m: return {(m.group(1), i) for i in range(int(m.group(2)), int(m.group(3)) + 1)}
    if tok == "vcc": return {("s", 106), ("s", 107)}
    if tok == "vcc_lo": return {("s", 106)}
    if tok == "vcc_hi": return {("s", 107)}
    if tok == "exec": return {("s", 126), ("s", 127)}
    if tok == "exec_lo": return {("s", 126)}
    if tok == "exec_hi": return {("s", 127)}
    if tok == "m0": return {("s", 124)}
    return set()

class Ins:
    def __init__(self, text):
        self.text = text
        t = text.split(";")[0].strip()
        self.label = t.endswith(":")
        self.dir = t.startswith(".")
        self.empty = (t == "")
        self.mn = ""; self.w = set(); self.r = set(); self.ws = 1
        self.kind = ""; self.dpp = False; self.srcc = set(); self.srcab = set(); self.data = set(); self.lds = False
        if self.label or self.dir or self.empty:
            self.ws = 0; return
        parts = t.split(None, 1)
        mn = parts[0]; self.mn = mn
        rest = parts[1] if len(parts) > 1 else ""
        ops = [o.strip() for o in rest.split(",")] if rest else []
        mods = ""
        if ops:
            last = ops[-1].split(None, 1)
        m = re.search(r"\s(quad_perm|row_|offen|offset|op_sel|bound_ctrl|sc0|sc1|nt|lds|bank_mask|dst_sel|src0_sel|src1_sel|glc|bitop3|neg_|clamp|wave_|cbsz|abid|blgp|mul:|div:)", " " + rest)
        if m:
            mods = (" " + rest)[m.start():]; rest2 = (" " + rest)[:m.start()]
        else:
            rest2 = rest
        ops = [o.strip() for o in rest2.split(",") if o.strip()]
        self.mods = mods; self.ops = ops
        if mn == "s_nop":
            self.ws = int(ops[0], 0) + 1; self.kind = "nop"; return
        if mn.startswith("s_"):
            self.kind = "salu"
            if mn.startswith(("s_cmp", "s_waitcnt", "s_barrier", "s_cbranch", "s_branch", "s_endpgm", "s_sleep", "s_setprio", "s_bitcmp")):
                for o in ops: self.r |= regs(o)
            else:
                if ops: self.w |= regs(ops[0])
                for o in ops[1:]: self.r |= regs(o)
                if "saveexec" in mn: self.w |= regs("exec")
            return
        if mn.startswith("v_mfma"):
            self.kind = "mfma"
            self.w = regs(ops[0]); self.srcab = regs(ops[1]) | regs(ops[2]); self.srcc = regs(ops[3]); self.r = self.srcab | self.srcc
            self.passes = 4 if "16x16" in mn else 8
            self.cop = ops[3]; self.dop = ops[0]
            return
        if mn.startswith("v_"):
            self.kind = "valu"
            self.dpp = ("quad_perm" in mods) or ("row_" in mods and "row_mask" in mods) or mn.endswith("_dpp")
            self.trans = mn.replace("_e32", "").replace("_e64", "") in TRANS
            self.perm = mn.startswith("v_permlane")
            self.rl = mn.startswith(("v_readfirstlane", "v_readlane"))
            self.sdwa = "sdwa" in mn or "op_sel" in mods
            if self.perm:
                self.w = regs(ops[0]) | regs(ops[1]); self.r = set(self.w); return
            self.w = regs(ops[0])
            for o in ops[1:]: self.r |= regs(o)
            base = mn.replace("_e32", "").replace("_e64", "").replace("_dpp", "")
            if base in RMW or (self.dpp and ("row_mask:0xf" not in mods or "bank_mask:0xf" not in mods or "bound_ctrl" not in mods)):
                self.r |= {x for x in self.w if x[0] != "s"}
            if base.startswith("v_cndmask") and len(ops) == 3: self.r |= regs("vcc")
            return
        if mn.startswith(("buffer_", "global_")):
            self.kind = "vmem"
            self.lds = (" lds" in mods) or ("_lds_" in mn)
            if "store" in mn or "atomic" in mn:
                if mn.startswith("buffer_"):
                    self.data = regs(ops[0])
                else:
                    self.data = regs(ops[1])
                for o in ops: self.r |= regs(o)
                self.wide = mn.endswith(("x3", "x4"))
            elif self.lds:
                for o in ops: self.r |= regs(o)
                self.r |= regs("m0")
            elif mn in ("buffer_wbl2", "buffer_inv"):
                pass
            else:
                self.w = regs(ops[0])
                for o in ops[1:]: self.r |= regs(o)
            return
        if mn.startswith("ds_"):
            self.kind = "ds"
            if "read" in mn or "bpermute" in mn or "swizzle" in mn or "permute" in mn:
                self.w = regs(ops[0])
                for o in ops[1:]: self.r |= regs(o)
            else:
                for o in ops: self.r |= regs(o)
            return
        raise ValueError("unknown instr: " + text)

def need(p, c):
    n = 0
    vw = {x for x in p.w if x[0] != "s"}; sw = {x for x in p.w if x[0] == "s"}
    if p.kind == "valu":
        if vw & c.r:
            if c.kind == "valu":
                if c.rl: n = max(n, 1)
                if c.dpp or c.perm: n = max(n, 2)
                if p.trans and not c.trans: n = max(n, 1)
                if p.trans and c.trans: n = max(n, 1)
                if p.sdwa: n = max(n, 1)
            if c.kind == "mfma": n = max(n, 2)
        if p.sdwa and c.kind == "valu" and (vw & c.w): n = max(n, 1)
        if sw & c.r:
            if c.kind == "valu": n = max(n, 4 if (c.rl or c.mn.startswith("v_writelane")) else 2)
            if c.kind == "vmem": n = max(n, 5)
            if c.kind == "salu": n = max(n, 1) if not c.mn.startswith("s_cbranch") else n
        if (sw & regs("exec")):
            if c.kind == "valu" and (c.dpp): n = max(n, 5)
            if c.kind == "valu" and (c.perm or c.rl): n = max(n, 4)
            if c.kind == "mfma": n = max(n, 4)
    if p.kind == "mfma":
        P = p.passes
        full = {4: 8, 8: 12}[P]; ovl = {4: 6, 8: 10}[P]; war = {4: 3, 8: 7}[P]
        if c.kind == "mfma":
            if p.w & c.srcab: n = max(n, full)
            if p.w & c.srcc:
                if not (c.cop == p.dop and c.passes == P): n = max(n, ovl)
            elif p.w & c.w: n = max(n, ovl)
        elif c.kind in ("valu", "vmem", "ds"):
            if p.w & (c.r | c.w): n = max(n, full)
            if c.kind == "valu" and (p.srcc & c.w): n = max(n, war)
    if p.kind == "vmem" and getattr(p, "wide", False):
        if p.data & c.w: n = max(n, 2 if c.kind in ("valu", "mfma") else 1)
    if p.kind == "salu":
        if (sw & regs("m0")) and c.kind == "vmem" and c.lds: n = max(n, 1)
        if (sw & regs("m0")) and c.kind == "valu" and ("s", 124) in c.r: n = max(n, 1)
    return n

def required_nops(hist, c):
    dist = 0; add = 0
    for p in reversed(hist):
        if p.ws == 0: continue
        if dist >= 20: break
        nn = need(p, c)
        if nn > dist: add = max(add, nn - dist)
        dist += p.ws
    return add

class Asm:
    def __init__(self):
        self.ins = []
        self.nops = 0
    def __call__(self, text):
        for line in text.split("\n"):
            self.emit(line.strip())
    def emit(self, line):
        i = Ins(line)
        if i.ws and i.kind != "nop":
            k = required_nops(self.ins[-40:], i)
            if k:
                self.ins.append(Ins(f"s_nop {k-1}")); self.nops += k
        self.ins.append(i)
    def check_branches(self):
        labels = {}
        for idx, i in enumerate(self.ins):
            if i.label: labels[i.text.split(";")[0].strip()[:-1]] = idx
        bad = []
        for idx, i in enumerate(self.ins):
            if i.mn.startswith(("s_cbranch", "s_branch")):
                tgt = labels[i.ops[0]]
                hist = [x for x in self.ins[max(0, idx - 40): idx + 1]]
                seq = []
                j = tgt
                cnt = 0
                while j < len(self.ins) and cnt < 20:
                    c = self.ins[j]
                    if c.ws and c.kind != "nop":
                        k = required_nops(hist + seq, c)
                        if k: bad.append((i.text, c.text, k))
                    seq.append(c); cnt += c.ws
                    if c.mn in ("s_branch", "s_endpgm"): break
                    j += 1
        return bad
    def text(self):
        out = []
        for i in self.ins:
            if i.label or i.dir or i.empty: out.append(i.text)
            else: out.append("    " + i.text)
        return "\n".join(out) + "\n"
```

```python
import sys
from asmlib import Asm
NAME = "adaLN_cond__sliding_block_cached__dense_activation_silu__decode"

EPOCH = 0
MODP = 0x1000
QP   = 0x20000
OPA  = 0x60000
OPB  = 0xA0000
STA  = 0xE0000
STB  = 0xE2000
YA   = 0xE4000
YB   = 0xF8000
AP   = 0x110000
MP   = 0x120000
WS_USED = 0x160000
DBG  = 0x200000
OB = OPB - OPA; SB = STB - STA; YBO = YB - YA

LK = 0; LV = 65536; S0 = 131072; S1 = 147456
HS = S0; QL = S0 + 512; PAR = S0 + 1792; TAGL = S0 + 2816; MX = S0 + 2944; LS = S0 + 3008; PX = S0 + 3072; RED = S0 + 5120

LOG2E = 1.4426950408889634
import struct
def f2u(x): return struct.unpack("<I", struct.pack("<f", x))[0]
SC = f2u(128 ** -0.5 * LOG2E)

class Regs:
    def __init__(self, start=1, kind="v"):
        self.n = start; self.kind = kind; self.hi = start
    def a(self, cnt=1, al=None):
        al = al or (1 if cnt == 1 else 2)
        self.n = (self.n + al - 1) // al * al
        r = self.n; self.n += cnt; self.hi = max(self.hi, self.n)
        return r
def v(r, n=1): return f"v{r}" if n == 1 else f"v[{r}:{r+n-1}]"
def s(r, n=1): return f"s{r}" if n == 1 else f"s[{r}:{r+n-1}]"

def gen(THR=6, ROT=5, dbg=False, NA=64, NT=200000, CODE_PF=True, ntw="nt"):
    A = Asm()
    hdr = []
    hdr.append("; @launch grid=(256,1,1) block=(320,1,1) lds=163840")
    A('.amdgcn_target "amdgcn-amd-amdhsa--gfx950"')
    A(".text"); A(f".globl {NAME}_kernel"); A(".p2align 8"); A(f".type {NAME}_kernel,@function"); A(f"{NAME}_kernel:")
    sW, sX8, sR = 3, 36, 37
    sKO, sT0, sT1, sT2, sT3 = 38, 39, 40, 41, 42
    sTAG, sCNT, sB, sS = 43, 44, 45, 46
    sE0 = 48
    sM0, sM1 = 50, 52
    sDB = 54; sAB = 55; sJ = 56; sFB = 57; sT4 = 58; sT5 = 59
    sST = 60
    srdK, srdV, srdWS, srdW, srdW2, srdX, srdO = 8, 12, 16, 20, 24, 28, 32
    nst = [0]
    def stamp(idx):
        if dbg:
            A(f"s_memrealtime {s(sST,2)}"); A("s_waitcnt lgkmcnt(0)"); A(f"v_writelane_b32 v255, s{sST}, {idx}")
    def stamp_flush():
        if dbg:
            A("s_mov_b64 exec, -1")
            A(f"s_mul_i32 s{sST}, s2, 5"); A(f"s_add_u32 s{sST}, s{sST}, s{sW}"); A(f"s_lshl_b32 s{sST}, s{sST}, 7"); A(f"s_add_u32 s{sST}, s{sST}, {DBG}")
            A("v_and_b32 v254, 63, v0"); A("v_lshlrev_b32 v254, 2, v254")
            setexec(0xffffffff)
            A(f"buffer_store_dword v255, v254, {s(srdWS,4)}, s{sST} offen")
    def setexec(m):
        lo, hi = m & 0xffffffff, m >> 32
        if m == (1 << 64) - 1: A("s_mov_b64 exec, -1")
        elif hi == 0 and lo < 0x80000000: A(f"s_mov_b64 exec, {hex(lo)}")
        else: A(f"s_mov_b32 exec_lo, {hex(lo)}"); A(f"s_mov_b32 exec_hi, {hex(hi)}")
    def srd_tail(r, nbytes):
        A(f"s_mov_b32 s{r+2}, {nbytes}"); A(f"s_mov_b32 s{r+3}, 0x20000")

    if dbg:
        A(f"s_memrealtime {s(sST+2,2)}")
    A("s_cmp_ge_u32 s2, 256"); A("s_cbranch_scc1 L_end")
    A("v_lshrrev_b32 v1, 6, v0")
    A(f"s_load_dwordx2 {s(srdWS,2)}, s[0:1], 96")
    A(f"s_load_dwordx2 {s(srdX,2)}, s[0:1], 0")
    A(f"v_readfirstlane_b32 s{sW}, v1")
    A(f"s_and_b32 s{sX8}, s2, 7"); A(f"s_lshr_b32 s{sR}, s2, 3")
    A("v_and_b32 v1, 63, v0")
    A(f"s_lshr_b32 s{sB}, s{sR}, 4"); A(f"s_and_b32 s{sS}, s{sR}, 15")
    A(f"s_cmp_eq_u32 s{sW}, 4"); A("s_cbranch_scc1 L_helper")

    R = Regs(2)
    vL = 1
    vG = R.a(); vN = R.a(); vKo = R.a(); vVo = R.a(); vT0 = R.a(); vT1 = R.a(); vT2 = R.a(); vT3 = R.a()
    A(f"s_load_dwordx2 {s(srdK,2)}, s[0:1], 8")
    A(f"s_load_dwordx2 {s(srdV,2)}, s[0:1], 16")
    A(f"v_lshrrev_b32 v{vG}, 4, v{vL}"); A(f"v_and_b32 v{vN}, 15, v{vL}")
    A(f"s_lshl_b32 s{sT0}, s{sW}, 2")
    A(f"v_add_u32 v{vT0}, s{sT0}, v{vG}")
    A(f"v_xor_b32 v{vT1}, v{vT0}, v{vN}")
    A(f"v_lshlrev_b32 v{vT1}, 4, v{vT1}")
    A(f"v_lshl_or_b32 v{vKo}, v{vG}, 8, v{vT1}")
    A(f"s_lshl_b32 s{sKO}, s{sB}, 26"); A(f"s_lshl_b32 s{sT1}, s{sX8}, 23"); A(f"s_add_u32 s{sKO}, s{sKO}, s{sT1}")
    A(f"s_lshl_b32 s{sT1}, s{sS}, 16"); A(f"s_add_u32 s{sKO}, s{sKO}, s{sT1}"); A(f"s_add_u32 s{sKO}, s{sKO}, {28672*256}")
    A(f"s_mul_i32 s{sT1}, s2, {ROT}"); A(f"s_add_u32 s{sT1}, s{sT1}, s{sW}"); A(f"s_and_b32 s{sT1}, s{sT1}, 63"); A(f"s_lshl_b32 s{sT1}, s{sT1}, 10")
    A(f"s_lshl_b32 m0, s{sW}, 10")
    srd_tail(srdK, 65536); srd_tail(srdV, 65536)
    A("s_waitcnt lgkmcnt(0)")
    A(f"s_add_u32 s{srdK}, s{srdK}, s{sKO}"); A(f"s_addc_u32 s{srdK+1}, s{srdK+1}, 0")
    A("L_kloop:")
    A(f"s_waitcnt vmcnt({THR-1})")
    A(f"buffer_load_dwordx4 v{vKo}, {s(srdK,4)}, s{sT1} offen nt lds")
    A(f"s_add_u32 s{sT1}, s{sT1}, 4096"); A(f"s_and_b32 s{sT1}, s{sT1}, 0xffff")
    A("s_add_u32 m0, m0, 4096"); A(f"s_cmp_lt_u32 m0, {LV}"); A("s_cbranch_scc1 L_kloop")
    A("s_branch L_main2")

    A("L_helper:")
    H = Regs(2)
    srdWM, srdWQ, srdC, srdCode = 8, 12, 20, 24
    hG = H.a(); hN = H.a(); hWM = H.a(); hWQ = H.a(); hT0 = H.a(); hT1 = H.a(); hT2 = H.a(); hT3 = H.a()
    hE = H.a(); hC = H.a(2); hX0 = H.a(4, 4); hX1 = H.a(4, 4); hXa = H.a(); hXb = H.a()
    hTR = H.a(4); hA = H.a(16, 4); hB = H.a(64, 4); hBq = H.a(64, 4); hD = H.a(16, 4); hF = H.a(4, 4)
    hP = hB + 32; hPr = hA
    hM = H.a(4); hU = H.a(12, 4); hL16 = H.a(); hAcc = H.a(); hDum = H.a()
    A("s_setprio 3")
    A(f"s_load_dwordx2 {s(srdWM,2)}, s[0:1], 72")
    A(f"s_load_dwordx2 {s(srdWQ,2)}, s[0:1], 24")
    A(f"s_load_dwordx2 {s(srdC,2)}, s[0:1], 64")
    A(f"v_lshrrev_b32 v{hG}, 4, v{vL}"); A(f"v_and_b32 v{hN}, 15, v{vL}")
    A(f"v_and_b32 v{hT0}, 7, v{vL}"); A(f"v_lshlrev_b32 v{hT1}, 1, v{hG}"); A(f"v_xor_b32 v{hT0}, v{hT0}, v{hT1}"); A(f"v_lshlrev_b32 v{hT0}, 4, v{hT0}")
    A(f"v_lshrrev_b32 v{hT1}, 3, v{vL}")
    A(f"v_lshl_or_b32 v{hWQ}, v{hT1}, 13, v{hT0}")
    A(f"v_mul_u32_u24 v{hWM}, 6144, v{hT1}"); A(f"v_add_u32 v{hWM}, v{hWM}, v{hT0}")
    sCL, sRP, sPROD = sT4, sT5, sT3
    A(f"s_lshl_b32 s{sT0}, s{sR}, 3"); A(f"s_add_u32 s{sT0}, s{sT0}, s{sX8}")
    A(f"s_add_u32 s{sT1}, s{sT0}, 64"); A(f"s_sub_u32 s{sT2}, s{sT0}, 192")
    A(f"s_cmp_ge_u32 s{sR}, 24"); A(f"s_cselect_b32 s{sT0}, s{sT2}, s{sT1}")
    A(f"s_lshr_b32 s{sCL}, s{sT0}, 2"); A(f"s_and_b32 s{sRP}, s{sT0}, 3")
    A(f"s_lshr_b32 s{sPROD}, s{sR}, 3")
    A(f"v_and_b32 v{hT0}, 1, v{hN}"); A(f"v_lshlrev_b32 v{hT0}, 10, v{hT0}")
    A(f"v_lshrrev_b32 v{hT1}, 1, v{hN}"); A(f"v_lshl_or_b32 v{hT0}, v{hT1}, 5, v{hT0}"); A(f"v_lshl_or_b32 v{hT0}, v{hG}, 3, v{hT0}")
    A(f"v_lshlrev_b32 v{hL16}, 4, v{vL}")
    A(f"v_mov_b32 v{hT2}, 0")
    srd_tail(srdWS, WS_USED if not dbg else 0x400000); srd_tail(srdWM, 512*6144); srd_tail(srdWQ, 512*8192); srd_tail(srdC, 2048); srd_tail(srdX, 2048)
    A(f"s_lshl_b32 s{sT0}, s{sRP}, 8")
    A(f"s_mul_i32 s{sT1}, s{sRP}, {128*6144}"); A(f"s_lshl_b32 s{sT2}, s{sCL}, 7"); A(f"s_add_u32 s{sT1}, s{sT1}, s{sT2}")
    A(f"s_mov_b32 m0, {S0}")
    A("s_waitcnt lgkmcnt(0)")
    A(f"buffer_load_dword v{hE}, v{hT2}, {s(srdWS,4)}, 0 offen sc1")
    A(f"s_cmp_eq_u32 s{sPROD}, 2"); A("s_cbranch_scc1 L_h_nomodld")
    A(f"buffer_load_dwordx2 {v(hC,2)}, v{hT0}, {s(srdC,4)}, s{sT0} offen")
    A("L_h_modld:")
    A(f"buffer_load_dwordx4 v{hWM}, {s(srdWM,4)}, s{sT1} offen {ntw} lds")
    A(f"s_add_u32 s{sT1}, s{sT1}, {8*6144}"); A("s_add_u32 m0, m0, 1024"); A(f"s_cmp_lt_u32 m0, {S1}"); A("s_cbranch_scc1 L_h_modld")
    A("L_h_nomodld:")
    nclr = 0
    for i in range(4): A(f"v_mov_b32 v{hF+i}, -1")
    A(f"s_lshl_b32 s{sT0}, s{sX8}, 15"); A(f"s_lshl_b32 s{sT1}, s{sR}, 10"); A(f"s_add_u32 s{sT0}, s{sT0}, s{sT1}"); A(f"s_add_u32 s{sT0}, s{sT0}, {OPA}")
    A(f"buffer_store_dwordx4 {v(hF,4)}, v{hL16}, {s(srdWS,4)}, s{sT0} offen sc1")
    A(f"s_add_u32 s{sT0}, s{sT0}, {OB}")
    A(f"buffer_store_dwordx4 {v(hF,4)}, v{hL16}, {s(srdWS,4)}, s{sT0} offen sc1")
    A(f"s_cmp_lg_u32 s{sS}, 0"); A("s_cbranch_scc1 L_h_c1")
    A(f"v_and_b32 v{hT0}, 31, v{vL}"); A(f"v_lshlrev_b32 v{hT0}, 4, v{hT0}"); A(f"v_lshrrev_b32 v{hT1}, 5, v{vL}"); A(f"v_lshl_or_b32 v{hT0}, v{hT1}, 13, v{hT0}")
    A(f"s_lshl_b32 s{sT0}, s{sX8}, 10"); A(f"s_lshl_b32 s{sT1}, s{sB}, 9"); A(f"s_add_u32 s{sT0}, s{sT0}, s{sT1}"); A(f"s_add_u32 s{sT0}, s{sT0}, {STA}")
    A(f"buffer_store_dwordx4 {v(hF,4)}, v{hT0}, {s(srdWS,4)}, s{sT0} offen sc1")
    A("L_h_c1:")
    A(f"s_cmp_ge_u32 s{sR}, 16"); A("s_cbranch_scc1 L_h_c2")
    A(f"s_lshl_b32 s{sT0}, s{sX8}, 4"); A(f"s_add_u32 s{sT0}, s{sT0}, s{sR}"); A(f"s_mul_i32 s{sT0}, s{sT0}, 640"); A(f"s_add_u32 s{sT0}, s{sT0}, {YA}")
    setexec(0xffffffffff)
    A(f"buffer_store_dwordx4 {v(hF,4)}, v{hL16}, {s(srdWS,4)}, s{sT0} offen sc1")
    A(f"s_add_u32 s{sT0}, s{sT0}, {YBO}")
    A(f"buffer_store_dwordx4 {v(hF,4)}, v{hL16}, {s(srdWS,4)}, s{sT0} offen sc1")
    A("s_mov_b64 exec, -1")
    A("L_h_c2:")
    A(f"s_cmp_lt_u32 s{sR}, 24"); A("s_cbranch_scc1 L_h_c3")
    A(f"s_lshl_b32 s{sT1}, s{sCL}, 2"); A(f"s_add_u32 s{sT1}, s{sT1}, s{sRP}")
    A(f"s_lshl_b32 s{sT0}, s{sT1}, 10"); A(f"s_add_u32 s{sT0}, s{sT0}, {AP}")
    A(f"buffer_store_dwordx4 {v(hF,4)}, v{hL16}, {s(srdWS,4)}, s{sT0} offen sc1")
    A(f"s_lshl_b32 s{sT0}, s{sT1}, 12"); A(f"s_add_u32 s{sT0}, s{sT0}, {MP}")
    for i in range(4):
        A(f"buffer_store_dwordx4 {v(hF,4)}, v{hL16}, {s(srdWS,4)}, s{sT0} offen offset:{i*1024} sc1")
    A("L_h_c3:")
    A(f"s_lshl_b32 s{sT1}, s{sPROD}, 20"); A(f"s_lshl_b32 s{sT2}, s{sX8}, 10"); A(f"s_add_u32 s{sT1}, s{sT1}, s{sT2}")
    A(f"s_and_b32 s{sT2}, s{sR}, 7"); A(f"s_lshl_b32 s{sT2}, s{sT2}, 7"); A(f"s_add_u32 s{sT1}, s{sT1}, s{sT2}")
    A(f"s_mov_b32 m0, {S1}")
    A(f"buffer_load_dwordx4 {v(hX0,4)}, v{hL16}, {s(srdX,4)}, 0 offen")
    A(f"buffer_load_dwordx4 {v(hX1,4)}, v{hL16}, {s(srdX,4)}, 0 offen offset:1024")
    A(f"v_lshlrev_b32 v{hT1}, 2, v{vL}"); A(f"s_lshl_b32 s{sT0}, s{sPROD}, 8")
    A(f"buffer_load_dword v{hXa}, v{hT1}, {s(srdX,4)}, s{sT0} offen")
    A(f"buffer_load_dword v{hXb}, v{hT1}, {s(srdX,4)}, s{sT0} offen offset:1024")
    A("L_h_wqld:")
    A(f"buffer_load_dwordx4 v{hWQ}, {s(srdWQ,4)}, s{sT1} offen {ntw} lds")
    A(f"s_add_u32 s{sT1}, s{sT1}, {8*8192}"); A("s_add_u32 m0, m0, 1024"); A(f"s_cmp_lt_u32 m0, {S1+16384}"); A("s_cbranch_scc1 L_h_wqld")
    if CODE_PF:
        A(f"s_getpc_b64 {s(srdCode,2)}")
        A("L_pc:")
        A(f"s_sub_u32 s{srdCode}, s{srdCode}, L_pc-{NAME}_kernel"); A(f"s_subb_u32 s{srdCode+1}, s{srdCode+1}, 0")
        srd_tail(srdCode, f"L_code_end-{NAME}_kernel")
        A(f"v_lshlrev_b32 v{hT1}, 7, v{vL}"); A(f"s_lshl_b32 s{sT0}, s{sR}, 9")
        A("s_mov_b64 exec, 0xf")
        A(f"buffer_load_dword v{hDum}, v{hT1}, {s(srdCode,4)}, s{sT0} offen")
        A("s_mov_b64 exec, -1")
    NY = 20 + (1 if CODE_PF else 0)
    def tr128_base(dst4, t0, t1, lbase):
        A(f"v_lshrrev_b32 v{t0}, 2, v{vL}")
        A(f"v_bfe_u32 v{t1}, v{vL}, 3, 2")
        A(f"v_lshlrev_b32 v{t1}, 5, v{t1}"); A(f"v_lshl_or_b32 v{t0}, v{t0}, 7, v{t1}")
        A(f"v_and_b32 v{t1}, 3, v{vL}"); A(f"v_lshl_or_b32 v{t0}, v{t1}, 3, v{t0}")
        A(f"v_add_u32 v{dst4}, {lbase}, v{t0}")
        for t in range(1, 4): A(f"v_xor_b32 v{dst4+t}, {32*t}, v{dst4}")
    def tr128_read(dst, base4, off):
        for sg in range(4):
            for t in range(4):
                for u in range(2):
                    d = dst + (sg*4 + t)*4 + 2*u
                    A(f"ds_read_b64_tr_b16 {v(d,2)}, v{base4+t} offset:{off + (32*sg + 16*u)*128}")
    tr128_base(hTR, hT0, hT1, S0)
    stamp(1)
    A(f"s_cmp_eq_u32 s{sPROD}, 2"); A("s_cbranch_scc1 L_h_nomod")
    A(f"s_waitcnt vmcnt({16+4+NY})")
    A(f"v_lshlrev_b32 v{hU+0}, 16, v{hC}"); A(f"v_and_b32 v{hU+1}, 0xffff0000, v{hC}")
    A(f"v_lshlrev_b32 v{hU+2}, 16, v{hC+1}"); A(f"v_and_b32 v{hU+3}, 0xffff0000, v{hC+1}")
    for i in range(4): A(f"v_mul_f32 v{hU+4+i}, {hex(f2u(-LOG2E))}, v{hU+i}")
    for i in range(4): A(f"v_exp_f32 v{hU+4+i}, v{hU+4+i}")
    for i in range(4): A(f"v_add_f32 v{hU+4+i}, 1.0, v{hU+4+i}")
    for i in range(4): A(f"v_rcp_f32 v{hU+4+i}, v{hU+4+i}")
    for i in range(4): A(f"v_mul_f32 v{hU+i}, v{hU+i}, v{hU+4+i}")
    A(f"v_cvt_pk_bf16_f32 v{hA}, v{hU}, v{hU+1}"); A(f"v_cvt_pk_bf16_f32 v{hA+1}, v{hU+2}, v{hU+3}")
    for sg in range(4):
        for q in range(4):
            sh = 4*sg + 2*(q >> 1)
            if sh == 0: continue
            A(f"v_mov_b32_dpp v{hA+4*sg+q}, v{hA+(q&1)} row_shl:{sh} row_mask:0xf bank_mask:0xf bound_ctrl:1")
    A(f"s_cmp_ge_u32 s{sR}, 24"); A("s_cbranch_scc1 L_h_w7")
    A(f"s_waitcnt vmcnt({NY+4})")
    A("L_h_w7:")
    A(f"s_waitcnt vmcnt({NY+7})")
    stamp(2)
    tr128_read(hB, hTR, 0)
    A(f"v_readfirstlane_b32 s{sTAG}, v{hE}")
    A(f"s_add_u32 s{sTAG}, s{sTAG}, 0x9E3779B1")
    for t in range(4):
        A(f"s_waitcnt lgkmcnt(0)") if t == 0 else None
    for sg in range(4):
        for t in range(4):
            c = "0" if sg == 0 else v(hD+4*t, 4)
            A(f"v_mfma_f32_16x16x32_bf16 {v(hD+4*t,4)}, {v(hA+4*sg,4)}, {v(hB+(sg*4+t)*4,4)}, {c}")
    A(f"s_lshl_b32 s{sT0}, s{sCL}, 2"); A(f"s_add_u32 s{sT0}, s{sT0}, s{sRP}"); A(f"s_lshl_b32 s{sT0}, s{sT0}, 9"); A(f"s_add_u32 s{sT0}, s{sT0}, {MODP}")
    A(f"v_lshlrev_b32 v{hT0}, 3, v{vL}")
    for t in range(4): A(f"v_mov_b32 v{hU+2*t+1}, s{sTAG}")
    for t in range(4): A(f"v_cvt_pk_bf16_f32 v{hU+2*t}, v{hD+4*t}, v{hD+4*t+1}")
    A(f"s_waitcnt vmcnt({NY})")
    A("s_mov_b64 exec, 0xffff")
    for t in range(4):
        A(f"buffer_store_dwordx2 {v(hU+2*t,2)}, v{hT0}, {s(srdWS,4)}, s{sT0} offen offset:{t*128} sc1")
    A("s_mov_b64 exec, -1")
    A("s_branch L_h_moddone")
    A("L_h_nomod:")
    A("s_waitcnt vmcnt(0)")
    A(f"v_readfirstlane_b32 s{sTAG}, v{hE}")
    A(f"s_add_u32 s{sTAG}, s{sTAG}, 0x9E3779B1")
    A("L_h_moddone:")
    stamp(3)
    hGa = hT2; hGr = hT3
    A(f"v_lshrrev_b32 v{hT0}, 5, v{vL}"); A(f"v_and_b32 v{hT1}, 31, v{vL}"); A(f"v_lshlrev_b32 v{hT1}, 4, v{hT1}"); A(f"v_lshl_or_b32 v{hGa}, v{hT0}, 11, v{hT1}")
    A(f"s_lshl_b32 s{sT0}, s{sPROD}, 12"); A(f"s_add_u32 s{sT0}, s{sT0}, {MODP}"); A(f"s_add_u32 s{sT1}, s{sT0}, {8*2048}")
    A(f"v_lshlrev_b32 v{hT0}, 14, v{hG}"); A(f"v_lshl_or_b32 v{hGr}, v{hN}, 4, v{hT0}")
    A(f"s_lshr_b32 s{sT2}, s{sR}, 1"); A(f"s_lshl_b32 s{sT2}, s{sT2}, 11"); A(f"s_and_b32 s{sT4}, s{sR}, 1"); A(f"s_lshl_b32 s{sT4}, s{sT4}, 8")
    A(f"s_add_u32 s{sT2}, s{sT2}, s{sT4}"); A(f"s_add_u32 s{sT2}, s{sT2}, {MODP + 16*2048}")
    A(f"s_mov_b32 s{sCNT}, 0")
    def modp_loads():
        for rp in range(4):
            A(f"buffer_load_dwordx4 {v(hP+4*rp,4)}, v{hGa}, {s(srdWS,4)}, s{sT0} offen offset:{rp*512} sc1")
            A(f"buffer_load_dwordx4 {v(hP+16+4*rp,4)}, v{hGa}, {s(srdWS,4)}, s{sT1} offen offset:{rp*512} sc1")
    modp_loads()
    A(f"s_waitcnt vmcnt({NY-20+12})")
    tr128_read(hBq, hTR, S1 - S0)
    def unpack(dst, src, n):
        for i in range(n):
            A(f"v_lshlrev_b32 v{dst+2*i}, 16, v{src+i}"); A(f"v_and_b32 v{dst+2*i+1}, 0xffff0000, v{src+i}")
    def allreduce64(regs, op, tmp):
        for pat in ("quad_perm:[1,0,3,2]", "quad_perm:[2,3,0,1]", "row_half_mirror", "row_mirror"):
            for r in regs: A(f"{op}_dpp v{r}, v{r}, v{r} {pat} row_mask:0xf bank_mask:0xf bound_ctrl:1")
        for sw in ("v_permlane16_swap_b32", "v_permlane32_swap_b32"):
            for i, r in enumerate(regs): A(f"v_mov_b32 v{tmp+i}, v{r}")
            for i, r in enumerate(regs): A(f"{sw} v{tmp+i}, v{r}")
            for i, r in enumerate(regs): A(f"{op} v{r}, v{r}, v{tmp+i}")
    xs = hB
    unpack(xs, hX0, 4); unpack(xs+8, hX1, 4)
    for b in range(2):
        A(f"v_add_f32 v{hM+b}, v{xs+8*b}, v{xs+8*b+1}")
        for i in range(2, 8): A(f"v_add_f32 v{hM+b}, v{hM+b}, v{xs+8*b+i}")
    allreduce64([hM, hM+1], "v_add_f32", hU)
    for b in range(2): A(f"v_mul_f32 v{hM+b}, {hex(f2u(1/512))}, v{hM+b}")
    for b in range(2):
        for i in range(8): A(f"v_sub_f32 v{xs+8*b+i}, v{xs+8*b+i}, v{hM+b}")
        A(f"v_mul_f32 v{hM+2+b}, v{xs+8*b}, v{xs+8*b}")
        for i in range(1, 8): A(f"v_fmac_f32 v{hM+2+b}, v{xs+8*b+i}, v{xs+8*b+i}")
    allreduce64([hM+2, hM+3], "v_add_f32", hU)
    A(f"v_mov_b32 v{hU}, {hex(f2u(1e-5))}")
    for b in range(2): A(f"v_fmac_f32 v{hU+b}, {hex(f2u(1/512))}, v{hM+2+b}") if b == 0 else None
    A(f"v_mov_b32 v{hU+1}, {hex(f2u(1e-5))}"); A(f"v_fmac_f32 v{hU+1}, {hex(f2u(1/512))}, v{hM+3}")
    for b in range(2): A(f"v_rsq_f32 v{hM+2+b}, v{hU+b}")
    xn = hB + 16
    unpack(xn, hXa, 1); unpack(xn+2, hXb, 1)
    for b in range(2):
        for c in range(2):
            A(f"v_sub_f32 v{xn+2*b+c}, v{xn+2*b+c}, v{hM+b}"); A(f"v_mul_f32 v{xn+2*b+c}, v{xn+2*b+c}, v{hM+2+b}")
    def tagcheck(rs):
        A(f"v_xor_b32 v{hAcc}, s{sTAG}, v{rs[0]}")
        for r in rs[1:]: A(f"v_bitop3_b32 v{hAcc}, v{r}, s{sTAG}, v{hAcc} bitop3:0xbe")
        A(f"v_cmp_ne_u32 vcc, 0, v{hAcc}")
    A("L_h_p1:")
    A("s_waitcnt vmcnt(0)")
    tagcheck([hP+4*i+k for i in range(8) for k in (1, 3)])
    A("s_cbranch_vccz L_h_p1ok")
    A(f"s_add_u32 s{sCNT}, s{sCNT}, 1"); A(f"s_cmp_gt_u32 s{sCNT}, {NT}"); A("s_cbranch_scc1 L_h_p1ok")
    modp_loads()
    A("s_branch L_h_p1")
    A("L_h_p1ok:")
    stamp(4)
    def sum_granules(dst, src, n, stride):
        t = hB + 24
        for i in range(n):
            for c in range(2):
                d = src + i*stride + 2*c
                if i == 0:
                    A(f"v_lshlrev_b32 v{dst+2*c}, 16, v{d}"); A(f"v_and_b32 v{dst+2*c+1}, 0xffff0000, v{d}")
                else:
                    A(f"v_lshlrev_b32 v{t}, 16, v{d}"); A(f"v_and_b32 v{t+1}, 0xffff0000, v{d}")
                    A(f"v_add_f32 v{dst+2*c}, v{dst+2*c}, v{t}"); A(f"v_add_f32 v{dst+2*c+1}, v{dst+2*c+1}, v{t+1}")
    sum_granules(hU, hP, 4, 4); sum_granules(hU+4, hP+16, 4, 4)
    for c in range(2):
        for b in range(2):
            A(f"v_add_f32 v{hU+4+2*c+b}, 1.0, v{hU+4+2*c+b}")
            A(f"v_fmac_f32 v{hU+2*c+b}, v{xn+2*b+c}, v{hU+4+2*c+b}")
    A(f"v_cvt_pk_bf16_f32 v{hU+8}, v{hU}, v{hU+2}"); A(f"v_cvt_pk_bf16_f32 v{hU+9}, v{hU+1}, v{hU+3}")
    A(f"v_bfe_u32 v{hT0}, v{vL}, 1, 2"); A(f"v_lshlrev_b32 v{hT0}, 4, v{hT0}"); A(f"v_lshl_or_b32 v{hT0}, v{hG}, 6, v{hT0}")
    A(f"v_and_b32 v{hT1}, 8, v{vL}"); A(f"v_or_b32 v{hT0}, v{hT0}, v{hT1}"); A(f"v_and_b32 v{hT1}, 1, v{vL}"); A(f"v_lshl_or_b32 v{hT0}, v{hT1}, 2, v{hT0}")
    A(f"v_add_u32 v{hT0}, {HS}, v{hT0}")
    A(f"ds_write_b32 v{hT0}, v{hU+8}"); A(f"ds_write_b32 v{hT0}, v{hU+9} offset:256")
    A(f"v_bfe_u32 v{hT1}, v{vL}, 2, 1"); A(f"v_lshlrev_b32 v{hT1}, 8, v{hT1}"); A(f"v_lshl_or_b32 v{hT1}, v{hG}, 4, v{hT1}"); A(f"v_add_u32 v{hT1}, {HS}, v{hT1}")
    A("s_waitcnt lgkmcnt(0)")
    for sg in range(4): A(f"ds_read_b128 {v(hA+4*sg,4)}, v{hT1} offset:{64*sg}")
    A(f"v_and_b32 v{hT0}, 1, v{hG}"); A(f"v_lshlrev_b32 v{hT0}, 14, v{hT0}"); A(f"v_lshrrev_b32 v{hT1}, 1, v{hG}"); A(f"v_lshl_or_b32 v{hT0}, v{hT1}, 7, v{hT0}"); A(f"v_lshl_or_b32 v{hT0}, v{hN}, 3, v{hT0}")
    A(f"s_lshl_b32 s{sT0}, s{sX8}, 15"); A(f"s_lshl_b32 s{sT1}, s{sPROD}, 12"); A(f"s_add_u32 s{sT0}, s{sT0}, s{sT1}")
    A(f"s_and_b32 s{sT1}, s{sR}, 7"); A(f"s_lshl_b32 s{sT1}, s{sT1}, 9"); A(f"s_add_u32 s{sT0}, s{sT0}, s{sT1}"); A(f"s_add_u32 s{sT0}, s{sT0}, {QP}")
    A(f"v_mov_b32 v{hU+1}, s{sTAG}"); A(f"v_mov_b32 v{hU+3}, s{sTAG}")
    A("s_waitcnt lgkmcnt(0)")
    for sg in range(4):
        for t in range(4):
            c = "0" if sg == 0 else v(hD+4*t, 4)
            A(f"v_mfma_f32_16x16x32_bf16 {v(hD+4*t,4)}, {v(hA+4*sg,4)}, {v(hBq+(sg*4+t)*4,4)}, {c}")
    A(f"v_mov_b32 v{hU}, v{hD}"); A(f"v_mov_b32 v{hU+2}, v{hD+8}")
    A(f"v_mov_b32_dpp v{hU}, v{hD+4} quad_perm:[0,1,2,3] row_mask:0xc bank_mask:0xf")
    A(f"v_mov_b32_dpp v{hU+2}, v{hD+12} quad_perm:[0,1,2,3] row_mask:0xc bank_mask:0xf")
    A(f"buffer_store_dwordx2 {v(hU,2)}, v{hT0}, {s(srdWS,4)}, s{sT0} offen sc1")
    A(f"buffer_store_dwordx2 {v(hU+2,2)}, v{hT0}, {s(srdWS,4)}, s{sT0} offen offset:256 sc1")
    stamp(5)
    A(f"s_lshl_b32 s{sT0}, s{sX8}, 15"); A(f"s_lshl_b32 s{sT1}, s{sB}, 14"); A(f"s_add_u32 s{sT0}, s{sT0}, s{sT1}"); A(f"s_add_u32 s{sT0}, s{sT0}, {QP}")
    A(f"s_add_u32 s{sT1}, s{sT0}, 4096"); A(f"s_add_u32 s{sT4}, s{sT0}, 8192"); A(f"s_add_u32 s{sT5}, s{sT0}, 12288")
    A(f"s_mov_b32 s{sCNT}, 0")
    hP = hBq
    for i in range(16): A(f"v_mov_b32 v{hPr+i}, s{sTAG}")
    A("L_h_p2:")
    A(f"s_cmp_ge_u32 s{sR}, 16"); A("s_cbranch_scc1 L_h_p2a")
    for rp in range(4):
        A(f"buffer_load_dwordx4 {v(hPr+4*rp,4)}, v{hGr}, {s(srdWS,4)}, s{sT2} offen offset:{rp*512} sc1")
    A("L_h_p2a:")
    for rho, so in enumerate((sT0, sT1, sT4, sT5)):
        for h4 in range(4):
            A(f"buffer_load_dwordx4 {v(hP+(rho*4+h4)*4,4)}, v{hL16}, {s(srdWS,4)}, s{so} offen offset:{h4*1024} sc1")
    A("s_waitcnt vmcnt(0)")
    tagcheck([hP+4*i+k for i in range(16) for k in (1, 3)] + [hPr+4*i+k for i in range(4) for k in (1, 3)])
    A("s_cbranch_vccz L_h_p2ok")
    A(f"s_add_u32 s{sCNT}, s{sCNT}, 1"); A(f"s_cmp_le_u32 s{sCNT}, {NT}"); A("s_cbranch_scc1 L_h_p2")
    A("L_h_p2ok:")
    stamp(6)
    A(f"v_lshlrev_b32 v{hT0}, 2, v{vL}"); A(f"v_add_u32 v{hT0}, {QL}, v{hT0}")
    for h4 in range(4):
        for k in (0, 2):
            d = hP + h4*4 + k
            A(f"v_add_f32 v{d}, v{d}, v{d+16}"); A(f"v_add_f32 v{d+32}, v{d+32}, v{d+48}"); A(f"v_add_f32 v{d}, v{d}, v{d+32}")
        A(f"v_cvt_pk_bf16_f32 v{hU+h4}, v{hP+h4*4}, v{hP+h4*4+2}")
        A(f"ds_write_b32 v{hT0}, v{hU+h4} offset:{h4*288}")
    A(f"v_mov_b32 v{hT0}, {TAGL}"); A(f"v_mov_b32 v{hT1}, s{sTAG}"); A(f"ds_write_b32 v{hT0}, v{hT1}")
    A(f"s_cmp_ge_u32 s{sR}, 16"); A("s_cbranch_scc1 L_h_end")
    sum_granules(hU, hPr, 4, 4)
    A(f"v_cmp_eq_u32 vcc, 2, v{hG}"); A(f"v_cndmask_b32 v{hT0}, 0, 1.0, vcc")
    def round_pairs():
        A(f"v_cvt_pk_bf16_f32 v{hU+4}, v{hU}, v{hU+2}"); A(f"v_cvt_pk_bf16_f32 v{hU+5}, v{hU+1}, v{hU+3}")
        for b in range(2):
            A(f"v_lshlrev_b32 v{hU+b}, 16, v{hU+4+b}"); A(f"v_and_b32 v{hU+2+b}, 0xffff0000, v{hU+4+b}")
    round_pairs()
    for i in range(4): A(f"v_add_f32 v{hU+i}, v{hU+i}, v{hT0}")
    round_pairs()
    A(f"v_lshlrev_b32 v{hT0}, 8, v{hG}"); A(f"v_lshl_or_b32 v{hT0}, v{hN}, 3, v{hT0}"); A(f"v_add_u32 v{hT0}, {PAR}, v{hT0}")
    A(f"v_mov_b32 v{hU+6}, v{hU}"); A(f"v_mov_b32 v{hU+7}, v{hU+2}"); A(f"v_mov_b32 v{hU+8}, v{hU+1}"); A(f"v_mov_b32 v{hU+9}, v{hU+3}")
    A(f"ds_write_b64 v{hT0}, {v(hU+6,2)}"); A(f"ds_write_b64 v{hT0}, {v(hU+8,2)} offset:128")
    A(f"v_bfe_u32 v{hT0}, v{hN}, 1, 2"); A(f"v_lshlrev_b32 v{hT0}, 4, v{hT0}"); A(f"v_and_b32 v{hT1}, 8, v{hN}"); A(f"v_or_b32 v{hT0}, v{hT0}, v{hT1}")
    A(f"v_and_b32 v{hT1}, 1, v{hN}"); A(f"v_lshl_or_b32 v{hT0}, v{hT1}, 2, v{hT0}"); A(f"v_and_b32 v{hT1}, 1, v{hG}"); A(f"v_lshl_or_b32 v{hT0}, v{hT1}, 6, v{hT0}")
    A(f"s_lshl_b32 s{sT0}, s{sX8}, 4"); A(f"s_add_u32 s{sT0}, s{sT0}, s{sR}"); A(f"s_mul_i32 s{sT0}, s{sT0}, 640"); A(f"s_add_u32 s{sT0}, s{sT0}, {YA}"); A(f"s_add_u32 s{sT1}, s{sT0}, {YBO}")
    setexec(0xffffffff0000)
    for b in range(2): A(f"buffer_store_dword v{hU+4+b}, v{hT0}, {s(srdWS,4)}, s{sT0} offen offset:{256+128*b}")
    for b in range(2): A(f"buffer_store_dword v{hU+4+b}, v{hT0}, {s(srdWS,4)}, s{sT1} offen offset:{256+128*b} sc1")
    A("s_mov_b64 exec, -1")
    A("L_h_end:")
    A("s_waitcnt lgkmcnt(0)")
    stamp(7)
    A("s_barrier")
    if dbg:
        A(f"v_writelane_b32 v255, s{sST+2}, 0")
    stamp_flush()
    A("s_endpgm")

    A("L_main2:")
    stamp(1)
    A(f"v_and_b32 v{vT0}, 7, v{vT0}"); A(f"v_lshlrev_b32 v{vT0}, 1, v{vT0}"); A(f"v_xor_b32 v{vT0}, v{vT0}, v{vN}"); A(f"v_lshlrev_b32 v{vT0}, 4, v{vT0}")
    A(f"v_lshl_or_b32 v{vVo}, v{vG}, 8, v{vT0}")
    A(f"s_add_u32 s{srdV}, s{srdV}, s{sKO}"); A(f"s_addc_u32 s{srdV+1}, s{srdV+1}, 0")
    A(f"s_load_dwordx2 {s(srdO,2)}, s[0:1], 80")
    A(f"s_load_dwordx2 {s(srdW2,2)}, s[0:1], 56")
    A(f"s_cmp_lt_u32 s{sR}, 16"); A(f"s_cselect_b32 s{sT0}, 32, 48")
    A(f"s_load_dwordx2 {s(srdW,2)}, s[0:1], s{sT0}")
    A("L_vloop:")
    A(f"s_waitcnt vmcnt({THR-1})")
    A(f"buffer_load_dwordx4 v{vVo}, {s(srdV,4)}, s{sT1} offen nt lds")
    A(f"s_add_u32 s{sT1}, s{sT1}, 4096"); A(f"s_and_b32 s{sT1}, s{sT1}, 0xffff")
    A("s_add_u32 m0, m0, 4096"); A(f"s_cmp_lt_u32 m0, {S0}"); A("s_cbranch_scc1 L_vloop")
    stamp(2)
    srd_tail(srdWS, WS_USED if not dbg else 0x400000); srd_tail(srdX, 2048); srd_tail(srdO, 2048); srd_tail(srdW2, 1792*1024)
    A(f"s_mov_b32 s{sT0}, {512*3584}"); A(f"s_cmp_lt_u32 s{sR}, 16"); A(f"s_cselect_b32 s{srdW+2}, {4096*1024}, s{sT0}"); A(f"s_mov_b32 s{srdW+3}, 0x20000")
    vKa = R.a(4); vQa = R.a(); vVa = R.a(2); vQ = R.a(16, 4); vKb = R.a(64, 4); vS = R.a(16, 4); vM = R.a(); vMc = R.a(); vLs = R.a(); vU = R.a(8, 4)
    vP = R.a(32, 4); vO = R.a(8, 4); vVb = R.a(40, 4); vH4 = R.a(); vC3 = R.a()
    A(f"v_and_b32 v{vH4}, 3, v{vN}")
    A(f"v_xor_b32 v{vT0}, v{vG}, v{vN}"); A(f"v_lshlrev_b32 v{vT0}, 4, v{vT0}"); A(f"v_lshl_or_b32 v{vT0}, v{vN}, 8, v{vT0}")
    A(f"s_lshl_b32 s{sT0}, s{sW}, 14"); A(f"v_add_u32 v{vKa}, s{sT0}, v{vT0}")
    for sg in range(1, 4): A(f"v_xor_b32 v{vKa+sg}, {64*sg}, v{vKa}")
    A(f"v_mul_u32_u24 v{vQa}, 288, v{vH4}"); A(f"v_lshl_add_u32 v{vQa}, v{vG}, 4, v{vQa}"); A(f"v_add_u32 v{vQa}, {QL}, v{vQa}")
    A(f"v_lshrrev_b32 v{vT0}, 2, v{vL}"); A(f"v_and_b32 v{vT1}, 7, v{vT0}"); A(f"v_lshlrev_b32 v{vT1}, 5, v{vT1}"); A(f"v_lshl_or_b32 v{vT0}, v{vT0}, 8, v{vT1}")
    A(f"v_and_b32 v{vC3}, 3, v{vL}"); A(f"v_lshl_or_b32 v{vT0}, v{vC3}, 3, v{vT0}")
    vTRV = R.a()
    A(f"v_mov_b32 v{vTRV}, v{vT0}")
    A(f"s_lshl_b32 s{sT0}, s{sW}, 6"); A(f"v_xor_b32 v{vT0}, s{sT0}, v{vT0}"); A(f"v_add_u32 v{vVa}, {LV}, v{vT0}"); A(f"v_xor_b32 v{vVa+1}, 32, v{vVa}")
    A(f"v_cmp_gt_u32 {s(sM0,2)}, 4, v{vN}")
    A("s_waitcnt lgkmcnt(0)")
    A("s_barrier")
    stamp(3)
    for sg in range(4): A(f"ds_read_b128 {v(vQ+4*sg,4)}, v{vQa} offset:{64*sg}")
    for t in range(4):
        for sg in range(4): A(f"ds_read_b128 {v(vKb+(t*4+sg)*4,4)}, v{vKa+sg} offset:{t*4096}")
    for t in range(4):
        A(f"s_waitcnt lgkmcnt({12-4*t})")
        for sg in range(4):
            c = "0" if sg == 0 else v(vS+4*t, 4)
            A(f"v_mfma_f32_16x16x32_bf16 {v(vS+4*t,4)}, {v(vKb+(t*4+sg)*4,4)}, {v(vQ+4*sg,4)}, {c}")
    A(f"v_lshlrev_b32 v{vT2}, 4, v{vH4}"); A(f"v_add_u32 v{vT2}, {MX}, v{vT2}"); A(f"s_lshl_b32 s{sT0}, s{sW}, 2"); A(f"v_add_u32 v{vT3}, s{sT0}, v{vT2}")
    A(f"v_max3_f32 v{vM}, v{vS}, v{vS+1}, v{vS+2}")
    for i in range(3, 15, 2): A(f"v_max3_f32 v{vM}, v{vM}, v{vS+i}, v{vS+i+1}")
    A(f"v_max_f32 v{vM}, v{vM}, v{vS+15}")
    def xg_allreduce(r, op, t):
        for sw in ("v_permlane16_swap_b32", "v_permlane32_swap_b32"):
            A(f"v_mov_b32 v{t}, v{r}"); A(f"{sw} v{t}, v{r}"); A(f"{op} v{r}, v{r}, v{t}")
    xg_allreduce(vM, "v_max_f32", vT0)
    A(f"ds_write_b32 v{vT3}, v{vM}")
    A("s_waitcnt lgkmcnt(0)")
    A("s_barrier")
    stamp(4)
    A(f"ds_read_b128 {v(vU,4)}, v{vT2}")
    A(f"s_cmp_lt_u32 s{sR}, 16"); A("s_cbranch_scc0 L_pv_plain")

    def pv_section(X, tag):
        A(f"s_mov_b32 s{sT2}, {hex(SC)}")
        A("s_waitcnt lgkmcnt(0)")
        A(f"v_max3_f32 v{vM}, v{vU}, v{vU+1}, v{vU+2}"); A(f"v_max_f32 v{vM}, v{vM}, v{vU+3}")
        A(f"v_mul_f32 v{vMc}, s{sT2}, v{vM}")
        for i in range(16): A(f"v_fma_f32 v{vS+i}, v{vS+i}, s{sT2}, -v{vMc}")
        for i in range(16): A(f"v_exp_f32 v{vS+i}, v{vS+i}")
        for i in range(8): A(f"v_cvt_pk_bf16_f32 v{vU+i}, v{vS+2*i}, v{vS+2*i+1}")
        A(f"s_lshl_b32 s{sT0}, s{sW}, 9"); A(f"v_lshlrev_b32 v{vT0}, 6, v{vG}"); A(f"v_lshl_or_b32 v{vT0}, v{vH4}, 4, v{vT0}"); A(f"v_add_u32 v{vT0}, {PX}, v{vT0}")
        A(f"v_add_u32 v{vT1}, s{sT0}, v{vT0}")
        A(f"s_mov_b64 exec, {s(sM0,2)}")
        A(f"ds_write_b128 v{vT1}, {v(vU,4)}"); A(f"ds_write_b128 v{vT1}, {v(vU+4,4)} offset:256")
        A("s_mov_b64 exec, -1")
        for i in range(0, 16, 4):
            A(f"v_add_f32 v{vS+i}, v{vS+i}, v{vS+i+1}"); A(f"v_add_f32 v{vS+i+2}, v{vS+i+2}, v{vS+i+3}"); A(f"v_add_f32 v{vS+i}, v{vS+i}, v{vS+i+2}")
        A(f"v_add_f32 v{vS}, v{vS}, v{vS+4}"); A(f"v_add_f32 v{vS+8}, v{vS+8}, v{vS+12}"); A(f"v_add_f32 v{vLs}, v{vS}, v{vS+8}")
        xg_allreduce(vLs, "v_add_f32", vS)
        A(f"ds_write_b32 v{vT3}, v{vLs} offset:{LS-MX}")
        k0 = (16 - THR) // 2
        A("s_waitcnt lgkmcnt(0)")
        A("s_barrier")
        stamp(5)
        for k in range(8): A(f"ds_read_b128 {v(vP+4*k,4)}, v{vT0} offset:{k*256}")
        A(f"ds_read_b128 {v(vU,4)}, v{vT2} offset:{LS-MX}")
        def vreads(k, dst):
            for t in range(2):
                for u in range(2):
                    A(f"ds_read_b64_tr_b16 {v(dst+4*t+2*u,2)}, v{vVa+t} offset:{(32*k+16*u)*256}")
        def vmfma(k, src):
            for t in range(2):
                c = "0" if k == 0 else v(vO+4*t, 4)
                A(f"v_mfma_f32_16x16x32_bf16 {v(vO+4*t,4)}, {v(src+4*t,4)}, {v(vP+4*k,4)}, {c}")
        k = 0
        while k < k0:
            n = min(k0 - k, 3 if k == 0 else 5)
            for i in range(n): vreads(k+i, vVb+8*i)
            A("s_waitcnt lgkmcnt(0)")
            if k == 0:
                A(f"v_add_f32 v{vU}, v{vU}, v{vU+1}"); A(f"v_add_f32 v{vU+2}, v{vU+2}, v{vU+3}"); A(f"v_add_f32 v{vLs}, v{vU}, v{vU+2}")
                A(f"v_rcp_f32 v{vM}, v{vLs}")
            for i in range(n): vmfma(k+i, vVb+8*i)
            k += n
        A(f"s_lshl_b32 s{sT0}, s{sX8}, 15"); A(f"s_lshl_b32 s{sT1}, s{sR}, 10"); A(f"s_add_u32 s{sT0}, s{sT0}, s{sT1}"); A(f"s_lshl_b32 s{sT1}, s{sW}, 8"); A(f"s_add_u32 s{sT0}, s{sT0}, s{sT1}")
        A(f"s_add_u32 s{sT0}, s{sT0}, {OPA}"); A(f"s_add_u32 s{sT1}, s{sT0}, {OB}")
        A(f"v_lshlrev_b32 v{vT0}, 6, v{vN}"); A(f"v_lshl_or_b32 v{vT0}, v{vG}, 4, v{vT0}")
        A(f"s_lshl_b32 s{sT2}, s{sX8}, 10"); A(f"s_lshl_b32 s{sT3}, s{sB}, 9"); A(f"s_add_u32 s{sT2}, s{sT2}, s{sT3}"); A(f"s_lshl_b32 s{sT3}, s{sS}, 3"); A(f"s_add_u32 s{sT2}, s{sT2}, s{sT3}")
        A(f"s_add_u32 s{sT2}, s{sT2}, {STA}"); A(f"s_add_u32 s{sT3}, s{sT2}, {SB}")
        A(f"v_lshlrev_b32 v{vT1}, 7, v{vN}")
        A(f"v_mov_b32 v{vU+4}, v{vMc}"); A(f"v_mov_b32 v{vU+5}, v{vLs}")
        A(f"s_lshl_b64 {s(sM1,2)}, 1, s{sW}")
        for kk in range(k0, 8):
            A(f"s_waitcnt vmcnt({X + 14 - 2*kk})")
            A("s_barrier")
            dst = vVb + 8*((kk - k0) % 2 + 3)
            vreads(kk, dst)
            A("s_waitcnt lgkmcnt(0)")
            vmfma(kk, dst)
        stamp(6)
        A(f"s_mov_b64 exec, {s(sM1,2)}")
        A(f"buffer_store_dwordx2 {v(vU+4,2)}, v{vT1}, {s(srdWS,4)}, s{sT2} offen")
        A("s_mov_b64 exec, -1")
        for i in range(8): A(f"v_mul_f32 v{vO+i}, v{vO+i}, v{vM}")
        for i in range(4): A(f"v_cvt_pk_bf16_f32 v{vU+i}, v{vO+2*i}, v{vO+2*i+1}")
        A(f"s_mov_b64 exec, {s(sM0,2)}")
        A(f"buffer_store_dwordx4 {v(vU,4)}, v{vT0}, {s(srdWS,4)}, s{sT0} offen")
        A(f"buffer_store_dwordx4 {v(vU,4)}, v{vT0}, {s(srdWS,4)}, s{sT1} offen sc1")
        A(f"s_mov_b64 exec, {s(sM1,2)}")
        A(f"buffer_store_dwordx2 {v(vU+4,2)}, v{vT1}, {s(srdWS,4)}, s{sT3} offen sc1")
        A("s_mov_b64 exec, -1")
        stamp(7)

    vWo = R.a()
    A(f"v_and_b32 v{vT0}, 7, v{vL}"); A(f"v_lshlrev_b32 v{vT1}, 1, v{vG}"); A(f"v_xor_b32 v{vT0}, v{vT0}, v{vT1}"); A(f"v_lshlrev_b32 v{vT0}, 4, v{vT0}")
    A(f"v_lshrrev_b32 v{vT1}, 3, v{vL}"); A(f"v_lshl_or_b32 v{vWo}, v{vT1}, 10, v{vT0}")
    A(f"s_lshl_b32 s{sT0}, s{sX8}, 19"); A(f"s_lshr_b32 s{sT1}, s{sR}, 3"); A(f"s_lshl_b32 s{sT1}, s{sT1}, 18"); A(f"s_add_u32 s{sT0}, s{sT0}, s{sT1}")
    A(f"s_lshl_b32 s{sT1}, s{sW}, 16"); A(f"s_add_u32 s{sT0}, s{sT0}, s{sT1}"); A(f"s_and_b32 s{sT1}, s{sR}, 7"); A(f"s_lshl_b32 s{sT1}, s{sT1}, 7"); A(f"s_add_u32 s{sT0}, s{sT0}, s{sT1}")
    A(f"s_lshl_b32 m0, s{sW}, 13")
    for i in range(8):
        A(f"buffer_load_dwordx4 v{vWo}, {s(srdW,4)}, s{sT0} offen {ntw} lds")
        if i < 7: A(f"s_add_u32 s{sT0}, s{sT0}, 8192"); A("s_add_u32 m0, m0, 1024")
    pv_section(8, "t1")
    tB = vKb; tA = vQ; tD = vS; tSt = vVb; tW = vVb + 8; tTR = vVb + 12; tAa = vVb + 16; tSa = vVb + 17; tX = vVb + 18; tPar = vVb + 20; tY = vVb + 24
    A(f"s_and_b32 s{sAB}, s{sW}, 1")
    A(f"s_lshr_b32 s{sT0}, s{sW}, 1"); A(f"s_lshr_b32 s{sT1}, s{sR}, 3"); A(f"s_lshl_b32 s{sT1}, s{sT1}, 1"); A(f"s_add_u32 s{sT1}, s{sT1}, s{sT0}")
    A(f"v_lshlrev_b32 v{tAa}, 10, v{vN}"); A(f"v_lshl_or_b32 v{tAa}, v{vG}, 4, v{tAa}")
    A(f"v_lshlrev_b32 v{tSa}, 5, v{vG}")
    A(f"s_lshl_b32 s{sT2}, s{sX8}, 15"); A(f"s_lshl_b32 s{sT3}, s{sAB}, 14"); A(f"s_add_u32 s{sT2}, s{sT2}, s{sT3}"); A(f"s_lshl_b32 s{sT3}, s{sT1}, 6"); A(f"s_add_u32 s{sT2}, s{sT2}, s{sT3}"); A(f"s_add_u32 s{sT2}, s{sT2}, {OPA}")
    A(f"s_lshl_b32 s{sT3}, s{sX8}, 10"); A(f"s_lshl_b32 s{sT4}, s{sAB}, 9"); A(f"s_add_u32 s{sT3}, s{sT3}, s{sT4}"); A(f"s_lshl_b32 s{sT4}, s{sT1}, 7"); A(f"s_add_u32 s{sT3}, s{sT3}, s{sT4}"); A(f"s_add_u32 s{sT3}, s{sT3}, {STA}")
    def t1_loads():
        for k in range(4): A(f"buffer_load_dwordx4 {v(tA+4*k,4)}, v{tAa}, {s(srdWS,4)}, s{sT2} offen offset:{256*k} sc1")
        for k in range(2): A(f"buffer_load_dwordx4 {v(tSt+4*k,4)}, v{tSa}, {s(srdWS,4)}, s{sT3} offen offset:{16*k} sc1")
    A(f"v_and_b32 v{vT0}, 7, v{vL}"); A(f"v_lshl_or_b32 v{vT2}, v{vT0}, 2, v{vG}")
    A(f"v_lshlrev_b32 v{vT1}, 1, v{vT2}"); A(f"s_lshl_b32 s{sT4}, s{sAB}, 10"); A(f"s_lshl_b32 s{sT5}, s{sR}, 6"); A(f"s_add_u32 s{sT4}, s{sT4}, s{sT5}")
    A(f"buffer_load_ushort v{tX}, v{vT1}, {s(srdX,4)}, s{sT4} offen")
    A("s_waitcnt vmcnt(5)")
    A("s_barrier")
    t1_loads()
    A(f"s_lshl_b32 s{sT0}, s{sT0}, 14")
    tr128_base(tTR, vT0, vT1, 0)
    for t in range(4): A(f"v_add_u32 v{tTR+t}, s{sT0}, v{tTR+t}")
    tr128_read(tB, tTR, 0)
    A(f"s_lshl_b32 s{sT4}, s{sAB}, 7"); A(f"s_add_u32 s{sT4}, s{sT4}, {PAR}"); A(f"v_lshl_add_u32 v{vT3}, v{vT2}, 2, s{sT4}")
    A(f"ds_read_b32 v{tPar}, v{vT3}"); A(f"ds_read_b32 v{tPar+1}, v{vT3} offset:512"); A(f"ds_read_b32 v{tPar+2}, v{vT3} offset:768")
    A(f"v_mov_b32 v{vT3}, {TAGL}"); A(f"ds_read_b32 v{tPar+3}, v{vT3}")
    A(f"s_mov_b32 s{sCNT}, 0")
    def sentcheck(rs, acc):
        A(f"v_max3_u32 v{acc}, v{rs[0]}, v{rs[1]}, v{rs[2]}")
        i = 3
        while i < len(rs):
            if i + 1 < len(rs): A(f"v_max3_u32 v{acc}, v{acc}, v{rs[i]}, v{rs[i+1]}"); i += 2
            else: A(f"v_max_u32 v{acc}, v{acc}, v{rs[i]}"); i += 1
        A(f"v_cmp_eq_u32 vcc, -1, v{acc}")
    def poll(lbl, loads, rs, acc, switch=None):
        A(f"{lbl}:")
        A("s_waitcnt vmcnt(0)")
        sentcheck(rs, acc)
        A(f"s_cbranch_vccz {lbl}_ok")
        A(f"s_add_u32 s{sCNT}, s{sCNT}, 1")
        if switch:
            A(f"s_cmp_eq_u32 s{sCNT}, {NA}"); A(f"s_cbranch_scc0 {lbl}_ns")
            for sr, d in switch: A(f"s_add_u32 s{sr}, s{sr}, {d}")
            A(f"{lbl}_ns:")
        A(f"s_cmp_gt_u32 s{sCNT}, {NT}"); A(f"s_cbranch_scc1 {lbl}_ok")
        loads()
        A(f"s_branch {lbl}")
        A(f"{lbl}_ok:")
    stamp(8)
    poll("L_t1p", t1_loads, list(range(tA, tA+16)) + list(range(tSt, tSt+8)), vT0, [(sT2, OB), (sT3, SB)])
    stamp(9)
    A("s_waitcnt lgkmcnt(0)")
    mf = []
    for k in range(4):
        for t in range(4):
            c = "0" if k == 0 else v(tD+4*t, 4)
            mf.append(f"v_mfma_f32_16x16x32_bf16 {v(tD+4*t,4)}, {v(tA+4*k,4)}, {v(tB+(k*4+t)*4,4)}, {c}")
    va = []
    va.append(f"v_max3_f32 v{vM}, v{tSt}, v{tSt+2}, v{tSt+4}"); va.append(f"v_max_f32 v{vM}, v{vM}, v{tSt+6}")
    for sw in ("v_permlane16_swap_b32", "v_permlane32_swap_b32"):
        va += [f"v_mov_b32 v{vT0}, v{vM}", None, f"{sw} v{vT0}, v{vM}", f"v_max_f32 v{vM}, v{vM}, v{vT0}"]
    for r in range(4): va.append(f"v_sub_f32 v{tW+r}, v{tSt+2*r}, v{vM}")
    for r in range(4): va.append(f"v_exp_f32 v{tW+r}, v{tW+r}")
    for r in range(4): va.append(f"v_mul_f32 v{tW+r}, v{tW+r}, v{tSt+2*r+1}")
    va += [f"v_add_f32 v{vLs}, v{tW}, v{tW+1}", f"v_add_f32 v{vT1}, v{tW+2}, v{tW+3}", f"v_add_f32 v{vLs}, v{vLs}, v{vT1}"]
    for sw in ("v_permlane16_swap_b32", "v_permlane32_swap_b32"):
        va += [f"v_mov_b32 v{vT0}, v{vLs}", None, f"{sw} v{vT0}, v{vLs}", f"v_add_f32 v{vLs}, v{vLs}, v{vT0}"]
    va.append(f"v_rcp_f32 v{vLs}, v{vLs}")
    vi = 0
    for m in mf:
        A(m)
        cnt = 0
        while vi < len(va) and cnt < 2:
            if va[vi] is None: vi += 1; break
            A(va[vi]); vi += 1; cnt += 1
    while vi < len(va):
        if va[vi]: A(va[vi])
        vi += 1
    A(f"v_lshrrev_b32 v{vT0}, 5, v{vL}"); A(f"v_and_b32 v{vT1}, 31, v{vL}"); A(f"v_lshlrev_b32 v{vT1}, 2, v{vT1}"); A(f"v_lshl_or_b32 v{vT3}, v{vT0}, 12, v{vT1}")
    A(f"s_and_b32 s{sT0}, s{sR}, 7"); A(f"s_lshl_b32 s{sT0}, s{sT0}, 13"); A(f"s_lshl_b32 s{sT1}, s{sAB}, 11"); A(f"s_add_u32 s{sT0}, s{sT0}, s{sT1}")
    A(f"s_lshl_b32 s{sT1}, s{sX8}, 8"); A(f"s_add_u32 s{sT0}, s{sT0}, s{sT1}"); A(f"s_lshr_b32 s{sT1}, s{sR}, 3"); A(f"s_lshl_b32 s{sT1}, s{sT1}, 7"); A(f"s_add_u32 s{sT0}, s{sT0}, s{sT1}"); A(f"s_add_u32 s{sT0}, s{sT0}, {AP}")
    A(f"s_lshl_b32 s{sT1}, s{sAB}, 8"); A(f"s_add_u32 s{sT1}, s{sT1}, {RED}"); A(f"v_lshl_add_u32 v{vT1}, v{vL}, 2, s{sT1}")
    for t in range(4):
        A(f"v_mul_f32 v{vU+t}, v{tD+4*t}, v{tW}")
        for r in range(1, 4): A(f"v_fmac_f32 v{vU+t}, v{tD+4*t+r}, v{tW+r}")
    def reduce4(u):
        A(f"v_permlane32_swap_b32 v{u}, v{u+2}"); A(f"v_permlane32_swap_b32 v{u+1}, v{u+3}")
        A(f"v_add_f32 v{u}, v{u}, v{u+2}"); A(f"v_add_f32 v{u+1}, v{u+1}, v{u+3}")
        A(f"v_permlane16_swap_b32 v{u}, v{u+1}")
        A(f"v_add_f32 v{u}, v{u}, v{u+1}")
    reduce4(vU)
    A(f"v_mul_f32 v{vU}, v{vU}, v{vLs}")
    A(f"s_cmp_lt_u32 s{sW}, 2"); A("s_cbranch_scc1 L_t1_lo")
    A(f"ds_write_b32 v{vT1}, v{vU}")
    A("s_waitcnt lgkmcnt(0)")
    A("s_barrier")
    if dbg: A(f"v_writelane_b32 v255, s{sST+2}, 0")
    stamp_flush()
    A("s_endpgm")
    A("L_t1_lo:")
    A("s_barrier")
    A(f"ds_read_b32 v{vU+1}, v{vT1}")
    A(f"s_lshl_b32 s{sT2}, s{sR}, 12"); A(f"s_lshl_b32 s{sT3}, s{sAB}, 11"); A(f"s_add_u32 s{sT2}, s{sT2}, s{sT3}"); A(f"s_add_u32 s{sT2}, s{sT2}, {AP}")
    A(f"v_lshlrev_b32 v{tAa}, 4, v{vL}")
    A("s_waitcnt lgkmcnt(0)")
    A(f"v_add_f32 v{vU}, v{vU}, v{vU+1}")
    A(f"buffer_store_dword v{vU}, v{vT3}, {s(srdWS,4)}, s{sT0} offen sc1")
    stamp(10)
    def red_loads():
        for q in range(2): A(f"buffer_load_dwordx4 {v(tA+4*q,4)}, v{tAa}, {s(srdWS,4)}, s{sT2} offen offset:{1024*q} sc1")
    red_loads()
    A(f"v_and_b32 v{vT0}, 3, v{vL}"); A(f"v_lshlrev_b32 v{vT0}, 4, v{vT0}"); A(f"v_bfe_u32 v{vT1}, v{vL}, 2, 1"); A(f"v_lshl_or_b32 v{vT0}, v{vT1}, 3, v{vT0}")
    A(f"v_and_b32 v{vT1}, 1, v{vG}"); A(f"v_lshl_or_b32 v{vT0}, v{vT1}, 6, v{vT0}"); A(f"v_lshrrev_b32 v{vT1}, 1, v{vG}"); A(f"v_lshl_or_b32 v{tY}, v{vT1}, 2, v{vT0}")
    A(f"s_lshl_b32 s{sT0}, s{sX8}, 4"); A(f"s_add_u32 s{sT0}, s{sT0}, s{sR}"); A(f"s_mul_i32 s{sT0}, s{sT0}, 640"); A(f"s_add_u32 s{sT0}, s{sT0}, {YA}")
    A(f"s_lshl_b32 s{sT1}, s{sAB}, 3"); A(f"s_add_u32 s{sT4}, s{sT0}, s{sT1}"); A(f"s_add_u32 s{sT5}, s{sT4}, {YBO}")
    A(f"s_lshl_b32 s{sT1}, s{sAB}, 7"); A(f"s_add_u32 s{sT0}, s{sT0}, s{sT1}"); A(f"s_add_u32 s{sT1}, s{sT0}, {YBO}")
    A(f"v_lshrrev_b32 v{tY+1}, 1, v{vL}")
    A(f"v_lshlrev_b32 v{tX}, 16, v{tX}")
    A(f"v_and_b32 v{vT0}, 8, v{vL}"); A(f"v_cmp_ne_u32 {s(sM0,2)}, 0, v{vT0}")
    A(f"v_and_b32 v{vT0}, 16, v{vL}"); A(f"v_cmp_ne_u32 {s(sM1,2)}, 0, v{vT0}")
    A(f"s_mov_b32 s{sCNT}, 0")
    poll("L_rdp", red_loads, list(range(tA, tA+8)), vT0)
    stamp(11)
    for i in range(4): A(f"v_add_f32 v{vU+i}, v{tA+i}, v{tA+4+i}")
    reduce4(vU)
    A(f"v_add_f32_dpp v{vU}, v{vU}, v{vU} row_ror:8 row_mask:0xf bank_mask:0xf bound_ctrl:1")
    A(f"v_fmac_f32 v{tX}, v{tPar}, v{vU}")
    A(f"v_mul_f32 v{vU}, v{tX}, v{tPar+1}")
    A(f"v_mul_f32 v{vU+4}, v{tX}, v{tX}")
    A(f"v_mov_b32 v{vU+1}, v{vU}")
    A(f"v_cndmask_b32 v{vU+4}, v{tX}, v{vU+4}, {s(sM0,2)}")
    A(f"v_permlane16_swap_b32 v{vU}, v{vU+1}")
    A(f"v_add_f32_dpp v{vU+4}, v{vU+4}, v{vU+4} quad_perm:[1,0,3,2] row_mask:0xf bank_mask:0xf bound_ctrl:1")
    A(f"v_cvt_pk_bf16_f32 v{vU+2}, v{vU}, v{vU+1}")
    A(f"v_lshlrev_b32 v{vT0}, 16, v{vU+2}")
    A(f"v_add_f32_dpp v{vU+4}, v{vU+4}, v{vU+4} quad_perm:[2,3,0,1] row_mask:0xf bank_mask:0xf bound_ctrl:1")
    A(f"v_and_b32 v{vT1}, 0xffff0000, v{vU+2}")
    A(f"v_sub_f32 v{vU}, v{vU}, v{vT0}")
    A(f"v_add_f32_dpp v{vU+4}, v{vU+4}, v{vU+4} row_half_mirror row_mask:0xf bank_mask:0xf bound_ctrl:1")
    A(f"v_sub_f32 v{vU+1}, v{vU+1}, v{vT1}")
    A(f"v_mov_b32 v{vU+5}, v{vU+4}")
    A(f"v_cvt_pk_bf16_f32 v{vU+3}, v{vU}, v{vU+1}")
    A(f"v_permlane16_swap_b32 v{vU+5}, v{vU+4}")
    A(f"v_cndmask_b32 v{vU+2}, v{vU+2}, v{vU+3}, {s(sM1,2)}")
    A(f"v_add_f32 v{vU+4}, v{vU+4}, v{vU+5}")
    setexec(0x00ff00ff00ff00ff)
    A(f"buffer_store_dword v{vU+2}, v{tY}, {s(srdWS,4)}, s{sT0} offen")
    A("s_mov_b64 exec, -1")
    A(f"v_mov_b32 v{vU+5}, v{vU+4}")
    A(f"v_permlane32_swap_b32 v{vU+5}, v{vU+4}")
    A(f"v_add_f32 v{vU+4}, v{vU+4}, v{vU+5}")
    A("s_mov_b64 exec, 0x101")
    A(f"buffer_store_dword v{vU+4}, v{tY+1}, {s(srdWS,4)}, s{sT4} offen offset:512")
    A(f"buffer_store_dword v{vU+4}, v{tY+1}, {s(srdWS,4)}, s{sT5} offen offset:512 sc1")
    setexec(0x00ff00ff00ff00ff)
    A(f"buffer_store_dword v{vU+2}, v{tY}, {s(srdWS,4)}, s{sT1} offen sc1")
    A("s_mov_b64 exec, -1")
    stamp(12)
    A(f"s_lshl_b32 s{sT0}, s{sR}, 1"); A(f"s_sub_u32 s{sT0}, s{sX8}, s{sT0}"); A(f"s_and_b32 s{sT0}, s{sT0}, 7"); A(f"s_cmp_eq_u32 s{sT0}, s{sAB}"); A("s_cbranch_scc0 L_fin_end")
    A(f"s_lshl_b32 s{sT0}, s{sR}, 1"); A(f"s_add_u32 s{sT0}, s{sT0}, s{sAB}"); A(f"s_mul_i32 s{sT2}, s{sT0}, 7168"); A(f"s_add_u32 s{sT2}, s{sT2}, {MP}"); A(f"s_add_u32 s{sT3}, s{sT2}, 4096")
    def fin_loads():
        for q in range(7):
            A(f"buffer_load_dwordx4 {v(tB+4*q,4)}, v{tAa}, {s(srdWS,4)}, s{sT2 if q < 4 else sT3} offen offset:{1024*(q%4)} sc1")
    fin_loads()
    A(f"v_lshlrev_b32 v{vT3}, 1, v{vT2}")
    A(f"s_lshl_b32 s{sT4}, s{sAB}, 10"); A(f"s_lshl_b32 s{sT5}, s{sR}, 6"); A(f"s_add_u32 s{sT4}, s{sT4}, s{sT5}")
    A(f"s_mov_b32 s{sCNT}, 0")
    poll("L_fnp", fin_loads, list(range(tB, tB+28)), vT0)
    stamp(13)
    for i in range(4):
        A(f"v_add_f32 v{tB+i}, v{tB+i}, v{tB+4+i}"); A(f"v_add_f32 v{tB+8+i}, v{tB+8+i}, v{tB+12+i}"); A(f"v_add_f32 v{tB+16+i}, v{tB+16+i}, v{tB+20+i}")
    for i in range(4):
        A(f"v_add_f32 v{tB+i}, v{tB+i}, v{tB+8+i}"); A(f"v_add_f32 v{tB+16+i}, v{tB+16+i}, v{tB+24+i}")
    for i in range(4): A(f"v_add_f32 v{vU+i}, v{tB+i}, v{tB+16+i}")
    reduce4(vU)
    A(f"v_add_f32_dpp v{vU}, v{vU}, v{vU} row_ror:8 row_mask:0xf bank_mask:0xf bound_ctrl:1")
    A(f"v_fmac_f32 v{tX}, v{tPar+2}, v{vU}")
    A(f"v_mov_b32 v{vU+1}, v{tX}")
    A(f"v_permlane16_swap_b32 v{tX}, v{vU+1}")
    A(f"v_cvt_pk_bf16_f32 v{vU+2}, v{tX}, v{vU+1}")
    setexec(0x000000ff000000ff)
    A(f"buffer_store_dword v{vU+2}, v{vT3}, {s(srdO,4)}, s{sT4} offen")
    A(f"s_cmp_lg_u32 s{sT0}, 0"); A("s_cbranch_scc1 L_fin_end")
    A("s_mov_b64 exec, 1")
    A(f"v_mov_b32 v{vT0}, 0")
    A(f"buffer_store_dword v{tPar+3}, v{vT0}, {s(srdWS,4)}, 0 offen sc1")
    A("L_fin_end:")
    stamp(14)
    if dbg: A(f"v_writelane_b32 v255, s{sST+2}, 0")
    stamp_flush()
    A("s_endpgm")

    A("L_pv_plain:")
    pv_section(0, "pl")
    A(f"s_sub_u32 s{sT0}, s{sR}, 16"); A(f"s_cmp_lt_u32 s{sT0}, 7"); A("s_cbranch_scc0 L_fin_end")
    mW1 = vKb; mW2 = vKb + 32; mB = vQ; mD = vS; mSt = vVb; mC = vVb + 4; mR = vVb + 8; mA = vVb + 16; mYa = vVb + 24; mSa = vVb + 25; mXw = vVb + 26; mXr = vVb + 27; mH = vVb + 28; mD2 = vP
    A(f"s_mul_i32 s{sJ}, s{sX8}, 7"); A(f"s_add_u32 s{sJ}, s{sJ}, s{sT0}")
    A(f"v_and_b32 v{vT0}, 1, v{vG}"); A(f"v_lshlrev_b32 v{vT0}, 1, v{vT0}"); A(f"v_xor_b32 v{vT0}, v{vT0}, v{vC3}"); A(f"v_lshlrev_b32 v{vT0}, 4, v{vT0}")
    A(f"v_lshrrev_b32 v{vT1}, 2, v{vL}"); A(f"v_mul_u32_u24 v{vT1}, 3584, v{vT1}"); A(f"v_add_u32 v{vT0}, v{vT0}, v{vT1}")
    A(f"s_mul_i32 s{sT0}, s{sW}, {128*3584}"); A(f"s_lshl_b32 s{sT1}, s{sJ}, 6"); A(f"s_add_u32 s{sT0}, s{sT0}, s{sT1}")
    A(f"s_lshl_b32 m0, s{sW}, 13")
    for i in range(8):
        A(f"buffer_load_dwordx4 v{vT0}, {s(srdW,4)}, s{sT0} offen {ntw} lds")
        A(f"s_add_u32 s{sT0}, s{sT0}, {16*3584}"); A("s_add_u32 m0, m0, 1024")
    A(f"v_lshlrev_b32 v{vT1}, 1, v{vG}"); A(f"v_xor_b32 v{vT1}, v{vT1}, v{vN}"); A(f"v_lshlrev_b32 v{vT1}, 4, v{vT1}"); A(f"v_lshl_or_b32 v{vT1}, v{vG}, 10, v{vT1}")
    A(f"v_xor_b32 v{vT2}, 128, v{vT1}")
    A(f"s_lshl_b32 s{sT0}, s{sJ}, 15"); A(f"s_lshl_b32 s{sT1}, s{sW}, 8"); A(f"s_add_u32 s{sT0}, s{sT0}, s{sT1}")
    A(f"s_add_u32 m0, m0, {32768-8192}")
    for i in range(8):
        A(f"buffer_load_dwordx4 v{vT1 if i%2==0 else vT2}, {s(srdW2,4)}, s{sT0} offen {ntw} lds")
        if i < 7: A(f"s_add_u32 s{sT0}, s{sT0}, 4096"); A("s_add_u32 m0, m0, 1024")
    A(f"v_lshlrev_b32 v{mYa}, 6, v{vH4}"); A(f"v_lshl_or_b32 v{mYa}, v{vG}, 4, v{mYa}")
    A(f"v_lshrrev_b32 v{vT0}, 1, v{vN}"); A(f"v_mul_u32_u24 v{mSa}, 640, v{vT0}"); A(f"v_and_b32 v{vT1}, 1, v{vN}"); A(f"v_lshl_add_u32 v{mSa}, v{vT1}, 3, v{mSa}")
    A(f"s_mul_i32 s{sT3}, s{sX8}, {16*640}"); A(f"s_add_u32 s{sT3}, s{sT3}, {YA}"); A(f"s_mul_i32 s{sT2}, s{sW}, {4*640}"); A(f"s_add_u32 s{sT2}, s{sT2}, s{sT3}"); A(f"s_add_u32 s{sT4}, s{sT3}, {8*640}")
    def x_loads():
        for k in range(4): A(f"buffer_load_dwordx4 {v(mB+4*k,4)}, v{mYa}, {s(srdWS,4)}, s{sT2} offen offset:{640*k+256} sc1")
    def y_loads():
        for k in range(4): A(f"buffer_load_dwordx4 {v(mB+4*k,4)}, v{mYa}, {s(srdWS,4)}, s{sT2} offen offset:{640*k} sc1")
        A(f"buffer_load_dwordx2 {v(mSt,2)}, v{mSa}, {s(srdWS,4)}, s{sT3} offen offset:512 sc1")
        A(f"buffer_load_dwordx2 {v(mSt+2,2)}, v{mSa}, {s(srdWS,4)}, s{sT4} offen offset:512 sc1")
    x_loads()
    A(f"v_lshlrev_b32 v{mXw}, 8, v{vH4}"); A(f"v_lshl_or_b32 v{mXw}, v{vG}, 4, v{mXw}"); A(f"s_lshl_b32 s{sT0}, s{sW}, 6"); A(f"s_add_u32 s{sT0}, s{sT0}, {RED}"); A(f"v_add_u32 v{mXw}, s{sT0}, v{mXw}")
    A(f"v_lshrrev_b32 v{mXr}, 3, v{vN}"); A(f"v_lshlrev_b32 v{mXr}, 10, v{mXr}"); A(f"v_lshl_or_b32 v{mXr}, v{vT1}, 9, v{mXr}"); A(f"v_lshl_or_b32 v{mXr}, v{vG}, 4, v{mXr}")
    A(f"v_and_b32 v{vT0}, 3, v{vT0}"); A(f"v_lshl_or_b32 v{mXr}, v{vT0}, 2, v{mXr}"); A(f"v_add_u32 v{mXr}, {RED}, v{mXr}")
    A(f"v_lshrrev_b32 v{vT0}, 2, v{vL}"); A(f"v_lshlrev_b32 v{vT0}, 6, v{vT0}"); A(f"v_and_b32 v{vT1}, 1, v{vG}"); A(f"v_lshl_or_b32 v{vT0}, v{vT1}, 5, v{vT0}"); A(f"v_lshl_or_b32 v{vT0}, v{vC3}, 3, v{vT0}")
    A(f"s_lshl_b32 s{sT0}, s{sW}, 13"); A(f"v_add_u32 v{mA}, s{sT0}, v{vT0}"); A(f"v_xor_b32 v{mA+1}, 32, v{mA}")
    A("s_waitcnt vmcnt(12)")
    for sg in range(4):
        for t in range(2):
            for u in range(2):
                A(f"ds_read_b64_tr_b16 {v(mW1+(t*4+sg)*4+2*u,2)}, v{mA+t} offset:{(32*sg+16*u)*64}")
    A(f"s_add_u32 s{sT0}, s{sT0}, 32768"); A(f"v_add_u32 v{vT0}, s{sT0}, v{vTRV}")
    A("s_waitcnt lgkmcnt(0)")
    for t in range(8): A(f"v_xor_b32 v{mA+t}, {32*t}, v{vT0}")
    A("s_waitcnt vmcnt(4)")
    for t in range(8):
        for u in range(2):
            A(f"ds_read_b64_tr_b16 {v(mW2+4*t+2*u,2)}, v{mA+t} offset:{16*u*256}")
    A(f"s_mov_b32 s{sCNT}, 0")
    sw = [(sT2, YBO), (sT3, YBO), (sT4, YBO)]
    poll("L_mxp", x_loads, list(range(mB, mB+16)), vT0, sw)
    def mlp_pass(red_off, valu=()):
        va = list(valu); vi = 0
        for sg in range(4):
            for t in range(2):
                c = "0" if sg == 0 else v(mD+4*t, 4)
                A(f"v_mfma_f32_16x16x32_bf16 {v(mD+4*t,4)}, {v(mW1+(t*4+sg)*4,4)}, {v(mB+4*sg,4)}, {c}")
                for _ in range(2):
                    if vi < len(va): A(va[vi]); vi += 1
        while vi < len(va): A(va[vi]); vi += 1
        A(f"s_mov_b64 exec, {s(sM0,2)}")
        for t in range(2): A(f"ds_write_b128 v{mXw}, {v(mD+4*t,4)} offset:{red_off + t*1024}")
        A("s_mov_b64 exec, -1")
        A("s_waitcnt lgkmcnt(0)")
        A("s_barrier")
        for cw in range(4): A(f"ds_read2_b32 {v(mR+2*cw,2)}, v{mXr if red_off == 0 else vT3} offset0:{16*cw} offset1:{16*cw+64}")
    A("s_waitcnt lgkmcnt(0)")
    mlp_pass(0)
    A(f"s_cmp_ge_u32 s{sCNT}, {NA}"); A(f"s_cselect_b32 s{sCNT}, {NA}, 0")
    y_loads()
    A(f"v_add_u32 v{vT3}, 2048, v{mXr}")
    A(f"v_mul_u32_u24 v{vT2}, 7168, v{vN}"); A(f"v_lshl_add_u32 v{vT2}, v{vG}, 4, v{vT2}")
    A(f"s_mul_i32 s{sT0}, s{sW}, {4*14336}"); A(f"s_lshl_b32 s{sT1}, s{sJ}, 7"); A(f"s_add_u32 s{sT0}, s{sT0}, s{sT1}"); A(f"s_add_u32 s{sT0}, s{sT0}, {MP}")
    A(f"v_cmp_gt_u32 {s(sM1,2)}, 2, v{vN}")
    A("s_waitcnt lgkmcnt(0)")
    for j in range(2):
        A(f"v_add_f32 v{mC+j}, v{mR+j}, v{mR+2+j}"); A(f"v_add_f32 v{mR+4+j}, v{mR+4+j}, v{mR+6+j}"); A(f"v_add_f32 v{mC+j}, v{mC+j}, v{mR+4+j}")
    stamp(8)
    poll("L_myp", y_loads, list(range(mB, mB+16)) + list(range(mSt, mSt+4)), vT0, sw)
    stamp(9)
    va = [f"v_add_f32 v{mSt}, v{mSt}, v{mSt+2}", f"v_add_f32 v{mSt+1}, v{mSt+1}, v{mSt+3}"]
    for ro in (2, 4, 8):
        va += [f"v_add_f32_dpp v{mSt+i}, v{mSt+i}, v{mSt+i} row_ror:{ro} row_mask:0xf bank_mask:0xf bound_ctrl:1" for i in range(2)]
    va += [f"v_mul_f32 v{mSt}, {hex(f2u(1/512))}, v{mSt}", f"v_mov_b32 v{mSt+2}, {hex(f2u(1e-5))}",
           f"v_fmac_f32 v{mSt+2}, {hex(f2u(1/512))}, v{mSt+1}", f"v_fma_f32 v{mSt+2}, -v{mSt}, v{mSt}, v{mSt+2}",
           f"v_rsq_f32 v{mSt+2}, v{mSt+2}", f"v_mul_f32 v{mC}, v{mC}, v{mSt}"]
    mlp_pass(2048, va)
    A("s_waitcnt lgkmcnt(0)")
    A(f"v_add_f32 v{mR}, v{mR}, v{mR+1}"); A(f"v_add_f32 v{mR+2}, v{mR+2}, v{mR+3}"); A(f"v_add_f32 v{mR+4}, v{mR+4}, v{mR+5}"); A(f"v_add_f32 v{mR+6}, v{mR+6}, v{mR+7}")
    A(f"v_add_f32 v{mR}, v{mR}, v{mR+2}"); A(f"v_add_f32 v{mR+4}, v{mR+4}, v{mR+6}"); A(f"v_sub_f32 v{mR}, v{mR}, v{mC}"); A(f"v_add_f32 v{mR}, v{mR}, v{mR+4}")
    A(f"v_fma_f32 v{mR}, v{mR}, v{mSt+2}, v{mC+1}")
    A(f"v_mul_f32 v{mR+1}, {hex(f2u(-LOG2E))}, v{mR}"); A(f"v_exp_f32 v{mR+1}, v{mR+1}"); A(f"v_add_f32 v{mR+1}, 1.0, v{mR+1}"); A(f"v_rcp_f32 v{mR+1}, v{mR+1}")
    A(f"v_mul_f32 v{mR}, v{mR}, v{mR+1}")
    A(f"v_mov_b32_dpp v{mR+1}, v{mR} row_shl:2 row_mask:0xf bank_mask:0xf bound_ctrl:1")
    A(f"v_cvt_pk_bf16_f32 v{mH}, v{mR}, v{mR+1}")
    for q in range(1, 4): A(f"v_mov_b32_dpp v{mH+q}, v{mH} row_shl:{4*q} row_mask:0xf bank_mask:0xf bound_ctrl:1")
    for t in range(8):
        A(f"v_mfma_f32_16x16x32_bf16 {v(mD2+4*t,4)}, {v(mW2+4*t,4)}, {v(mH,4)}, 0")
    A(f"s_mov_b64 exec, {s(sM1,2)}")
    for t in range(8):
        A(f"buffer_store_dwordx4 {v(mD2+4*t,4)}, v{vT2}, {s(srdWS,4)}, s{sT0} offen offset:{64*(t&1)} sc1")
        if t & 1 and t < 7: A(f"s_add_u32 s{sT0}, s{sT0}, 14336")
    A("s_mov_b64 exec, -1")
    stamp(10)
    A("s_branch L_fin_end")
    A("L_end:"); A("s_endpgm")
    A("L_code_end:")
    A('.section .rodata,"a"'); A(".p2align 6"); A(f".amdhsa_kernel {NAME}_kernel")
    nv = 256 if dbg else max(R.hi, H.hi)
    nv_al = (nv + 3) // 4 * 4
    for l in (f"next_free_vgpr {nv}", "next_free_sgpr 96", f"accum_offset {nv_al}", "group_segment_fixed_size 0", "kernarg_size 104", "user_sgpr_count 2", "user_sgpr_kernarg_segment_ptr 1", "system_sgpr_workgroup_id_x 1", "float_denorm_mode_32 3"):
        A(".amdhsa_" + l)
    A(".end_amdhsa_kernel")
    bad = A.check_branches()
    if bad:
        for b in bad: print("BRANCH HAZARD", b, file=sys.stderr)
    txt = A.text()
    print(f"main regs {R.hi}, helper regs {H.hi}, nops {A.nops}, instrs {sum(1 for i in A.ins if i.ws)}", file=sys.stderr)
    return "\n".join(hdr) + "\n" + txt

if __name__ == "__main__":
    out = sys.argv[1] if len(sys.argv) > 1 else "k.s"
    kw = {}
    for a in sys.argv[2:]:
        k, val = a.split("=")
        kw[k] = val if k == "ntw" else int(val)
    open(out, "w").write(gen(**kw))
```

```python
import sys
from asmlib import Asm
NAME = "adaLN_cond__sliding_block_cached__dense_activation_silu__decode"

EPOCH = 0
MODP = 0x1000
QP   = 0x20000
OPA  = 0x60000
OPB  = 0xA0000
STA  = 0xE0000
STB  = 0xE2000
YA   = 0xE4000
YB   = 0xF8000
AP   = 0x110000
MP   = 0x120000
WS_USED = 0x160000
DBG  = 0x200000
OB = OPB - OPA; SB = STB - STA; YBO = YB - YA

LK = 0; LV = 65536; S0 = 131072; S1 = 147456
HS = S0; QL = S0 + 512; PAR = S0 + 1792; TAGL = S0 + 2816; MX = S0 + 2944; LS = S0 + 3008; PX = S0 + 3072; RED = S0 + 5120

LOG2E = 1.4426950408889634
import struct
def f2u(x): return struct.unpack("<I", struct.pack("<f", x))[0]
SC = f2u(128 ** -0.5 * LOG2E)

class Regs:
    def __init__(self, start=1, kind="v"):
        self.n = start; self.kind = kind; self.hi = start
    def a(self, cnt=1, al=None):
        al = al or (1 if cnt == 1 else 2)
        self.n = (self.n + al - 1) // al * al
        r = self.n; self.n += cnt; self.hi = max(self.hi, self.n)
        return r
def v(r, n=1): return f"v{r}" if n == 1 else f"v[{r}:{r+n-1}]"
def s(r, n=1): return f"s{r}" if n == 1 else f"s[{r}:{r+n-1}]"

def gen(THR=6, ROT=5, dbg=False, NA=64, NT=200000, CODE_PF=True, ntw="nt", DUR=0):
    A = Asm()
    hdr = []
    hdr.append("; @launch grid=(256,1,1) block=(320,1,1) lds=163840")
    A('.amdgcn_target "amdgcn-amd-amdhsa--gfx950"')
    A(".text"); A(f".globl {NAME}_kernel"); A(".p2align 8"); A(f".type {NAME}_kernel,@function"); A(f"{NAME}_kernel:")
    sW, sX8, sR = 3, 36, 37
    sKO, sT0, sT1, sT2, sT3 = 38, 39, 40, 41, 42
    sTAG, sCNT, sB, sS = 43, 44, 45, 46
    sE0 = 48
    sM0, sM1 = 50, 52
    sDB = 54; sAB = 55; sJ = 56; sFB = 57; sT4 = 58; sT5 = 59
    sST = 60
    srdK, srdV, srdWS, srdW, srdW2, srdX, srdO = 8, 12, 16, 20, 24, 28, 32
    nst = [0]
    def stamp(idx, wait=False):
        if dbg:
            A(f"s_memrealtime {s(64+2*idx,2)}")
            if wait: A("s_waitcnt lgkmcnt(0)")
    def stamp_flush():
        if dbg:
            A("s_waitcnt lgkmcnt(0)")
            for i in range(1, 15): A(f"v_writelane_b32 v255, s{64+2*i}, {i}")
            A("s_mov_b64 exec, -1")
            A(f"s_mul_i32 s{sST}, s2, 5"); A(f"s_add_u32 s{sST}, s{sST}, s{sW}"); A(f"s_lshl_b32 s{sST}, s{sST}, 7"); A(f"s_add_u32 s{sST}, s{sST}, {DBG}")
            A("v_and_b32 v254, 63, v0"); A("v_lshlrev_b32 v254, 2, v254")
            setexec(0xffffffff)
            A(f"buffer_store_dword v255, v254, {s(srdWS,4)}, s{sST} offen")
    def setexec(m):
        lo, hi = m & 0xffffffff, m >> 32
        if m == (1 << 64) - 1: A("s_mov_b64 exec, -1")
        elif hi == 0 and lo < 0x80000000: A(f"s_mov_b64 exec, {hex(lo)}")
        else: A(f"s_mov_b32 exec_lo, {hex(lo)}"); A(f"s_mov_b32 exec_hi, {hex(hi)}")
    def srd_tail(r, nbytes):
        A(f"s_mov_b32 s{r+2}, {nbytes}"); A(f"s_mov_b32 s{r+3}, 0x20000")

    if dbg or DUR:
        A(f"s_memrealtime {s(sST+2,2)}")
    if DUR:
        A("s_load_dwordx2 s[92:93], s[0:1], 88")
    A("s_cmp_ge_u32 s2, 256"); A("s_cbranch_scc1 L_end")
    A("v_lshrrev_b32 v1, 6, v0")
    A(f"s_load_dwordx2 {s(srdWS,2)}, s[0:1], 96")
    A(f"s_load_dwordx2 {s(srdX,2)}, s[0:1], 0")
    A(f"v_readfirstlane_b32 s{sW}, v1")
    A(f"s_and_b32 s{sX8}, s2, 7"); A(f"s_lshr_b32 s{sR}, s2, 3")
    A("v_and_b32 v1, 63, v0")
    A(f"s_lshr_b32 s{sB}, s{sR}, 4"); A(f"s_and_b32 s{sS}, s{sR}, 15")
    A(f"s_cmp_eq_u32 s{sW}, 4"); A("s_cbranch_scc1 L_helper")

    R = Regs(2)
    vL = 1
    vG = R.a(); vN = R.a(); vKo = R.a(); vVo = R.a(); vT0 = R.a(); vT1 = R.a(); vT2 = R.a(); vT3 = R.a()
    A(f"s_load_dwordx2 {s(srdK,2)}, s[0:1], 8")
    A(f"s_load_dwordx2 {s(srdV,2)}, s[0:1], 16")
    A(f"v_lshrrev_b32 v{vG}, 4, v{vL}"); A(f"v_and_b32 v{vN}, 15, v{vL}")
    A(f"s_lshl_b32 s{sT0}, s{sW}, 2")
    A(f"v_add_u32 v{vT0}, s{sT0}, v{vG}")
    A(f"v_xor_b32 v{vT1}, v{vT0}, v{vN}")
    A(f"v_lshlrev_b32 v{vT1}, 4, v{vT1}")
    A(f"v_lshl_or_b32 v{vKo}, v{vG}, 8, v{vT1}")
    A(f"s_lshl_b32 s{sKO}, s{sB}, 26"); A(f"s_lshl_b32 s{sT1}, s{sX8}, 23"); A(f"s_add_u32 s{sKO}, s{sKO}, s{sT1}")
    A(f"s_lshl_b32 s{sT1}, s{sS}, 16"); A(f"s_add_u32 s{sKO}, s{sKO}, s{sT1}"); A(f"s_add_u32 s{sKO}, s{sKO}, {28672*256}")
    A(f"s_mul_i32 s{sT1}, s2, {ROT}"); A(f"s_add_u32 s{sT1}, s{sT1}, s{sW}"); A(f"s_and_b32 s{sT1}, s{sT1}, 63"); A(f"s_lshl_b32 s{sT1}, s{sT1}, 10")
    A(f"s_lshl_b32 m0, s{sW}, 10")
    srd_tail(srdK, 65536); srd_tail(srdV, 65536)
    A("s_waitcnt lgkmcnt(0)")
    A(f"s_add_u32 s{srdK}, s{srdK}, s{sKO}"); A(f"s_addc_u32 s{srdK+1}, s{srdK+1}, 0")
    A("L_kloop:")
    A(f"s_waitcnt vmcnt({THR-1})")
    A(f"buffer_load_dwordx4 v{vKo}, {s(srdK,4)}, s{sT1} offen nt lds")
    A(f"s_add_u32 s{sT1}, s{sT1}, 4096"); A(f"s_and_b32 s{sT1}, s{sT1}, 0xffff")
    A("s_add_u32 m0, m0, 4096"); A(f"s_cmp_lt_u32 m0, {LV}"); A("s_cbranch_scc1 L_kloop")
    A("s_branch L_main2")

    A("L_helper:")
    H = Regs(2)
    srdWM, srdWQ, srdC, srdCode = 8, 12, 20, 24
    hG = H.a(); hN = H.a(); hWM = H.a(); hWQ = H.a(); hT0 = H.a(); hT1 = H.a(); hT2 = H.a(); hT3 = H.a()
    hE = H.a(); hC = H.a(2); hX0 = H.a(4, 4); hX1 = H.a(4, 4); hXa = H.a(); hXb = H.a()
    hTR = H.a(4); hA = H.a(16, 4); hB = H.a(64, 4); hBq = H.a(64, 4); hD = H.a(16, 4); hF = H.a(4, 4)
    hP = hB + 32; hPr = hA
    hM = H.a(4); hU = H.a(12, 4); hL16 = H.a(); hAcc = H.a(); hDum = H.a()
    A("s_setprio 3")
    A(f"s_load_dwordx2 {s(srdWM,2)}, s[0:1], 72")
    A(f"s_load_dwordx2 {s(srdWQ,2)}, s[0:1], 24")
    A(f"s_load_dwordx2 {s(srdC,2)}, s[0:1], 64")
    A(f"v_lshrrev_b32 v{hG}, 4, v{vL}"); A(f"v_and_b32 v{hN}, 15, v{vL}")
    A(f"v_and_b32 v{hT0}, 7, v{vL}"); A(f"v_lshlrev_b32 v{hT1}, 1, v{hG}"); A(f"v_xor_b32 v{hT0}, v{hT0}, v{hT1}"); A(f"v_lshlrev_b32 v{hT0}, 4, v{hT0}")
    A(f"v_lshrrev_b32 v{hT1}, 3, v{vL}")
    A(f"v_lshl_or_b32 v{hWQ}, v{hT1}, 13, v{hT0}")
    A(f"v_mul_u32_u24 v{hWM}, 6144, v{hT1}"); A(f"v_add_u32 v{hWM}, v{hWM}, v{hT0}")
    sCL, sRP, sPROD = sT4, sT5, sT3
    A(f"s_lshl_b32 s{sT0}, s{sR}, 3"); A(f"s_add_u32 s{sT0}, s{sT0}, s{sX8}")
    A(f"s_add_u32 s{sT1}, s{sT0}, 64"); A(f"s_sub_u32 s{sT2}, s{sT0}, 192")
    A(f"s_cmp_ge_u32 s{sR}, 24"); A(f"s_cselect_b32 s{sT0}, s{sT2}, s{sT1}")
    A(f"s_lshr_b32 s{sCL}, s{sT0}, 2"); A(f"s_and_b32 s{sRP}, s{sT0}, 3")
    A(f"s_lshr_b32 s{sPROD}, s{sR}, 3")
    A(f"v_and_b32 v{hT0}, 1, v{hN}"); A(f"v_lshlrev_b32 v{hT0}, 10, v{hT0}")
    A(f"v_lshrrev_b32 v{hT1}, 1, v{hN}"); A(f"v_lshl_or_b32 v{hT0}, v{hT1}, 5, v{hT0}"); A(f"v_lshl_or_b32 v{hT0}, v{hG}, 3, v{hT0}")
    A(f"v_lshlrev_b32 v{hL16}, 4, v{vL}")
    A(f"v_mov_b32 v{hT2}, 0")
    srd_tail(srdWS, WS_USED if not dbg else 0x400000); srd_tail(srdWM, 512*6144); srd_tail(srdWQ, 512*8192); srd_tail(srdC, 2048); srd_tail(srdX, 2048)
    A(f"s_lshl_b32 s{sT0}, s{sRP}, 8")
    A(f"s_mul_i32 s{sT1}, s{sRP}, {128*6144}"); A(f"s_lshl_b32 s{sT2}, s{sCL}, 7"); A(f"s_add_u32 s{sT1}, s{sT1}, s{sT2}")
    A(f"s_mov_b32 m0, {S0}")
    A("s_waitcnt lgkmcnt(0)")
    A(f"buffer_load_dword v{hE}, v{hT2}, {s(srdWS,4)}, 0 offen sc1")
    A(f"s_cmp_eq_u32 s{sPROD}, 2"); A("s_cbranch_scc1 L_h_nomodld")
    A(f"buffer_load_dwordx2 {v(hC,2)}, v{hT0}, {s(srdC,4)}, s{sT0} offen")
    A("L_h_modld:")
    A(f"buffer_load_dwordx4 v{hWM}, {s(srdWM,4)}, s{sT1} offen {ntw} lds")
    A(f"s_add_u32 s{sT1}, s{sT1}, {8*6144}"); A("s_add_u32 m0, m0, 1024"); A(f"s_cmp_lt_u32 m0, {S1}"); A("s_cbranch_scc1 L_h_modld")
    A("L_h_nomodld:")
    nclr = 0
    for i in range(4): A(f"v_mov_b32 v{hF+i}, -1")
    A(f"s_lshl_b32 s{sT0}, s{sX8}, 15"); A(f"s_lshl_b32 s{sT1}, s{sR}, 10"); A(f"s_add_u32 s{sT0}, s{sT0}, s{sT1}"); A(f"s_add_u32 s{sT0}, s{sT0}, {OPA}")
    A(f"buffer_store_dwordx4 {v(hF,4)}, v{hL16}, {s(srdWS,4)}, s{sT0} offen sc1")
    A(f"s_add_u32 s{sT0}, s{sT0}, {OB}")
    A(f"buffer_store_dwordx4 {v(hF,4)}, v{hL16}, {s(srdWS,4)}, s{sT0} offen sc1")
    A(f"s_cmp_lg_u32 s{sS}, 0"); A("s_cbranch_scc1 L_h_c1")
    A(f"v_and_b32 v{hT0}, 31, v{vL}"); A(f"v_lshlrev_b32 v{hT0}, 4, v{hT0}"); A(f"v_lshrrev_b32 v{hT1}, 5, v{vL}"); A(f"v_lshl_or_b32 v{hT0}, v{hT1}, 13, v{hT0}")
    A(f"s_lshl_b32 s{sT0}, s{sX8}, 10"); A(f"s_lshl_b32 s{sT1}, s{sB}, 9"); A(f"s_add_u32 s{sT0}, s{sT0}, s{sT1}"); A(f"s_add_u32 s{sT0}, s{sT0}, {STA}")
    A(f"buffer_store_dwordx4 {v(hF,4)}, v{hT0}, {s(srdWS,4)}, s{sT0} offen sc1")
    A("L_h_c1:")
    A(f"s_cmp_ge_u32 s{sR}, 16"); A("s_cbranch_scc1 L_h_c2")
    A(f"s_lshl_b32 s{sT0}, s{sX8}, 4"); A(f"s_add_u32 s{sT0}, s{sT0}, s{sR}"); A(f"s_mul_i32 s{sT0}, s{sT0}, 640"); A(f"s_add_u32 s{sT0}, s{sT0}, {YA}")
    setexec(0xffffffffff)
    A(f"buffer_store_dwordx4 {v(hF,4)}, v{hL16}, {s(srdWS,4)}, s{sT0} offen sc1")
    A(f"s_add_u32 s{sT0}, s{sT0}, {YBO}")
    A(f"buffer_store_dwordx4 {v(hF,4)}, v{hL16}, {s(srdWS,4)}, s{sT0} offen sc1")
    A("s_mov_b64 exec, -1")
    A("L_h_c2:")
    A(f"s_cmp_lt_u32 s{sR}, 24"); A("s_cbranch_scc1 L_h_c3")
    A(f"s_lshl_b32 s{sT1}, s{sCL}, 2"); A(f"s_add_u32 s{sT1}, s{sT1}, s{sRP}")
    A(f"s_lshl_b32 s{sT0}, s{sT1}, 10"); A(f"s_add_u32 s{sT0}, s{sT0}, {AP}")
    A(f"buffer_store_dwordx4 {v(hF,4)}, v{hL16}, {s(srdWS,4)}, s{sT0} offen sc1")
    A(f"s_lshl_b32 s{sT0}, s{sT1}, 12"); A(f"s_add_u32 s{sT0}, s{sT0}, {MP}")
    for i in range(4):
        A(f"buffer_store_dwordx4 {v(hF,4)}, v{hL16}, {s(srdWS,4)}, s{sT0} offen offset:{i*1024} sc1")
    A("L_h_c3:")
    A(f"s_lshl_b32 s{sT1}, s{sPROD}, 20"); A(f"s_lshl_b32 s{sT2}, s{sX8}, 10"); A(f"s_add_u32 s{sT1}, s{sT1}, s{sT2}")
    A(f"s_and_b32 s{sT2}, s{sR}, 7"); A(f"s_lshl_b32 s{sT2}, s{sT2}, 7"); A(f"s_add_u32 s{sT1}, s{sT1}, s{sT2}")
    A(f"s_mov_b32 m0, {S1}")
    A(f"buffer_load_dwordx4 {v(hX0,4)}, v{hL16}, {s(srdX,4)}, 0 offen")
    A(f"buffer_load_dwordx4 {v(hX1,4)}, v{hL16}, {s(srdX,4)}, 0 offen offset:1024")
    A(f"v_lshlrev_b32 v{hT1}, 2, v{vL}"); A(f"s_lshl_b32 s{sT0}, s{sPROD}, 8")
    A(f"buffer_load_dword v{hXa}, v{hT1}, {s(srdX,4)}, s{sT0} offen")
    A(f"buffer_load_dword v{hXb}, v{hT1}, {s(srdX,4)}, s{sT0} offen offset:1024")
    A("L_h_wqld:")
    A(f"buffer_load_dwordx4 v{hWQ}, {s(srdWQ,4)}, s{sT1} offen {ntw} lds")
    A(f"s_add_u32 s{sT1}, s{sT1}, {8*8192}"); A("s_add_u32 m0, m0, 1024"); A(f"s_cmp_lt_u32 m0, {S1+16384}"); A("s_cbranch_scc1 L_h_wqld")
    if CODE_PF:
        A(f"s_getpc_b64 {s(srdCode,2)}")
        A("L_pc:")
        A(f"s_sub_u32 s{srdCode}, s{srdCode}, L_pc-{NAME}_kernel"); A(f"s_subb_u32 s{srdCode+1}, s{srdCode+1}, 0")
        srd_tail(srdCode, f"L_code_end-{NAME}_kernel")
        A(f"v_lshlrev_b32 v{hT1}, 7, v{vL}"); A(f"s_lshl_b32 s{sT0}, s{sR}, 9")
        A("s_mov_b64 exec, 0xf")
        A(f"buffer_load_dword v{hDum}, v{hT1}, {s(srdCode,4)}, s{sT0} offen")
        A("s_mov_b64 exec, -1")
    NY = 20 + (1 if CODE_PF else 0)
    def tr128_base(dst4, t0, t1, lbase):
        A(f"v_lshrrev_b32 v{t0}, 2, v{vL}")
        A(f"v_bfe_u32 v{t1}, v{vL}, 3, 2")
        A(f"v_lshlrev_b32 v{t1}, 5, v{t1}"); A(f"v_lshl_or_b32 v{t0}, v{t0}, 7, v{t1}")
        A(f"v_and_b32 v{t1}, 3, v{vL}"); A(f"v_lshl_or_b32 v{t0}, v{t1}, 3, v{t0}")
        A(f"v_add_u32 v{dst4}, {lbase}, v{t0}")
        for t in range(1, 4): A(f"v_xor_b32 v{dst4+t}, {32*t}, v{dst4}")
    def tr128_read(dst, base4, off):
        for sg in range(4):
            for t in range(4):
                for u in range(2):
                    d = dst + (sg*4 + t)*4 + 2*u
                    A(f"ds_read_b64_tr_b16 {v(d,2)}, v{base4+t} offset:{off + (32*sg + 16*u)*128}")
    tr128_base(hTR, hT0, hT1, S0)
    stamp(1)
    A(f"s_cmp_eq_u32 s{sPROD}, 2"); A("s_cbranch_scc1 L_h_nomod")
    A(f"s_waitcnt vmcnt({16+4+NY})")
    A(f"v_lshlrev_b32 v{hU+0}, 16, v{hC}"); A(f"v_and_b32 v{hU+1}, 0xffff0000, v{hC}")
    A(f"v_lshlrev_b32 v{hU+2}, 16, v{hC+1}"); A(f"v_and_b32 v{hU+3}, 0xffff0000, v{hC+1}")
    for i in range(4): A(f"v_mul_f32 v{hU+4+i}, {hex(f2u(-LOG2E))}, v{hU+i}")
    for i in range(4): A(f"v_exp_f32 v{hU+4+i}, v{hU+4+i}")
    for i in range(4): A(f"v_add_f32 v{hU+4+i}, 1.0, v{hU+4+i}")
    for i in range(4): A(f"v_rcp_f32 v{hU+4+i}, v{hU+4+i}")
    for i in range(4): A(f"v_mul_f32 v{hU+i}, v{hU+i}, v{hU+4+i}")
    A(f"v_cvt_pk_bf16_f32 v{hA}, v{hU}, v{hU+1}"); A(f"v_cvt_pk_bf16_f32 v{hA+1}, v{hU+2}, v{hU+3}")
    for sg in range(4):
        for q in range(4):
            sh = 4*sg + 2*(q >> 1)
            if sh == 0: continue
            A(f"v_mov_b32_dpp v{hA+4*sg+q}, v{hA+(q&1)} row_shl:{sh} row_mask:0xf bank_mask:0xf bound_ctrl:1")
    A(f"s_cmp_ge_u32 s{sR}, 24"); A("s_cbranch_scc1 L_h_w7")
    A(f"s_waitcnt vmcnt({NY+4})")
    A("L_h_w7:")
    A(f"s_waitcnt vmcnt({NY+7})")
    stamp(2)
    tr128_read(hB, hTR, 0)
    A(f"v_readfirstlane_b32 s{sTAG}, v{hE}")
    A(f"s_add_u32 s{sTAG}, s{sTAG}, 0x9E3779B1")
    for t in range(4):
        A(f"s_waitcnt lgkmcnt(0)") if t == 0 else None
    for sg in range(4):
        for t in range(4):
            c = "0" if sg == 0 else v(hD+4*t, 4)
            A(f"v_mfma_f32_16x16x32_bf16 {v(hD+4*t,4)}, {v(hA+4*sg,4)}, {v(hB+(sg*4+t)*4,4)}, {c}")
    A(f"s_lshl_b32 s{sT0}, s{sCL}, 2"); A(f"s_add_u32 s{sT0}, s{sT0}, s{sRP}"); A(f"s_lshl_b32 s{sT0}, s{sT0}, 9"); A(f"s_add_u32 s{sT0}, s{sT0}, {MODP}")
    A(f"v_lshlrev_b32 v{hT0}, 3, v{vL}")
    for t in range(4): A(f"v_mov_b32 v{hU+2*t+1}, s{sTAG}")
    for t in range(4): A(f"v_cvt_pk_bf16_f32 v{hU+2*t}, v{hD+4*t}, v{hD+4*t+1}")
    A(f"s_waitcnt vmcnt({NY})")
    A("s_mov_b64 exec, 0xffff")
    for t in range(4):
        A(f"buffer_store_dwordx2 {v(hU+2*t,2)}, v{hT0}, {s(srdWS,4)}, s{sT0} offen offset:{t*128} sc1")
    A("s_mov_b64 exec, -1")
    A("s_branch L_h_moddone")
    A("L_h_nomod:")
    A("s_waitcnt vmcnt(0)")
    A(f"v_readfirstlane_b32 s{sTAG}, v{hE}")
    A(f"s_add_u32 s{sTAG}, s{sTAG}, 0x9E3779B1")
    A("L_h_moddone:")
    stamp(3)
    hGa = hT2; hGr = hT3
    A(f"v_lshrrev_b32 v{hT0}, 5, v{vL}"); A(f"v_and_b32 v{hT1}, 31, v{vL}"); A(f"v_lshlrev_b32 v{hT1}, 4, v{hT1}"); A(f"v_lshl_or_b32 v{hGa}, v{hT0}, 11, v{hT1}")
    A(f"s_lshl_b32 s{sT0}, s{sPROD}, 12"); A(f"s_add_u32 s{sT0}, s{sT0}, {MODP}"); A(f"s_add_u32 s{sT1}, s{sT0}, {8*2048}")
    A(f"v_lshlrev_b32 v{hT0}, 14, v{hG}"); A(f"v_lshl_or_b32 v{hGr}, v{hN}, 4, v{hT0}")
    A(f"s_lshr_b32 s{sT2}, s{sR}, 1"); A(f"s_lshl_b32 s{sT2}, s{sT2}, 11"); A(f"s_and_b32 s{sT4}, s{sR}, 1"); A(f"s_lshl_b32 s{sT4}, s{sT4}, 8")
    A(f"s_add_u32 s{sT2}, s{sT2}, s{sT4}"); A(f"s_add_u32 s{sT2}, s{sT2}, {MODP + 16*2048}")
    A(f"s_mov_b32 s{sCNT}, 0")
    def modp_loads():
        for rp in range(4):
            A(f"buffer_load_dwordx4 {v(hP+4*rp,4)}, v{hGa}, {s(srdWS,4)}, s{sT0} offen offset:{rp*512} sc1")
            A(f"buffer_load_dwordx4 {v(hP+16+4*rp,4)}, v{hGa}, {s(srdWS,4)}, s{sT1} offen offset:{rp*512} sc1")
    modp_loads()
    A(f"s_waitcnt vmcnt({NY-20+12})")
    tr128_read(hBq, hTR, S1 - S0)
    def unpack(dst, src, n):
        for i in range(n):
            A(f"v_lshlrev_b32 v{dst+2*i}, 16, v{src+i}"); A(f"v_and_b32 v{dst+2*i+1}, 0xffff0000, v{src+i}")
    def allreduce64(regs, op, tmp):
        for pat in ("quad_perm:[1,0,3,2]", "quad_perm:[2,3,0,1]", "row_half_mirror", "row_mirror"):
            for r in regs: A(f"{op}_dpp v{r}, v{r}, v{r} {pat} row_mask:0xf bank_mask:0xf bound_ctrl:1")
        for sw in ("v_permlane16_swap_b32", "v_permlane32_swap_b32"):
            for i, r in enumerate(regs): A(f"v_mov_b32 v{tmp+i}, v{r}")
            for i, r in enumerate(regs): A(f"{sw} v{tmp+i}, v{r}")
            for i, r in enumerate(regs): A(f"{op} v{r}, v{r}, v{tmp+i}")
    xs = hB
    unpack(xs, hX0, 4); unpack(xs+8, hX1, 4)
    for b in range(2):
        A(f"v_add_f32 v{hM+b}, v{xs+8*b}, v{xs+8*b+1}")
        for i in range(2, 8): A(f"v_add_f32 v{hM+b}, v{hM+b}, v{xs+8*b+i}")
    allreduce64([hM, hM+1], "v_add_f32", hU)
    for b in range(2): A(f"v_mul_f32 v{hM+b}, {hex(f2u(1/512))}, v{hM+b}")
    for b in range(2):
        for i in range(8): A(f"v_sub_f32 v{xs+8*b+i}, v{xs+8*b+i}, v{hM+b}")
        A(f"v_mul_f32 v{hM+2+b}, v{xs+8*b}, v{xs+8*b}")
        for i in range(1, 8): A(f"v_fmac_f32 v{hM+2+b}, v{xs+8*b+i}, v{xs+8*b+i}")
    allreduce64([hM+2, hM+3], "v_add_f32", hU)
    A(f"v_mov_b32 v{hU}, {hex(f2u(1e-5))}")
    for b in range(2): A(f"v_fmac_f32 v{hU+b}, {hex(f2u(1/512))}, v{hM+2+b}") if b == 0 else None
    A(f"v_mov_b32 v{hU+1}, {hex(f2u(1e-5))}"); A(f"v_fmac_f32 v{hU+1}, {hex(f2u(1/512))}, v{hM+3}")
    for b in range(2): A(f"v_rsq_f32 v{hM+2+b}, v{hU+b}")
    xn = hB + 16
    unpack(xn, hXa, 1); unpack(xn+2, hXb, 1)
    for b in range(2):
        for c in range(2):
            A(f"v_sub_f32 v{xn+2*b+c}, v{xn+2*b+c}, v{hM+b}"); A(f"v_mul_f32 v{xn+2*b+c}, v{xn+2*b+c}, v{hM+2+b}")
    def tagcheck(rs):
        A(f"v_xor_b32 v{hAcc}, s{sTAG}, v{rs[0]}")
        for r in rs[1:]: A(f"v_bitop3_b32 v{hAcc}, v{r}, s{sTAG}, v{hAcc} bitop3:0xbe")
        A(f"v_cmp_ne_u32 vcc, 0, v{hAcc}")
    A("L_h_p1:")
    A("s_waitcnt vmcnt(0)")
    tagcheck([hP+4*i+k for i in range(8) for k in (1, 3)])
    A("s_cbranch_vccz L_h_p1ok")
    A(f"s_add_u32 s{sCNT}, s{sCNT}, 1"); A(f"s_cmp_gt_u32 s{sCNT}, {NT}"); A("s_cbranch_scc1 L_h_p1ok")
    modp_loads()
    A("s_branch L_h_p1")
    A("L_h_p1ok:")
    stamp(4)
    def sum_granules(dst, src, n, stride):
        t = hB + 24
        for i in range(n):
            for c in range(2):
                d = src + i*stride + 2*c
                if i == 0:
                    A(f"v_lshlrev_b32 v{dst+2*c}, 16, v{d}"); A(f"v_and_b32 v{dst+2*c+1}, 0xffff0000, v{d}")
                else:
                    A(f"v_lshlrev_b32 v{t}, 16, v{d}"); A(f"v_and_b32 v{t+1}, 0xffff0000, v{d}")
                    A(f"v_add_f32 v{dst+2*c}, v{dst+2*c}, v{t}"); A(f"v_add_f32 v{dst+2*c+1}, v{dst+2*c+1}, v{t+1}")
    sum_granules(hU, hP, 4, 4); sum_granules(hU+4, hP+16, 4, 4)
    for c in range(2):
        for b in range(2):
            A(f"v_add_f32 v{hU+4+2*c+b}, 1.0, v{hU+4+2*c+b}")
            A(f"v_fmac_f32 v{hU+2*c+b}, v{xn+2*b+c}, v{hU+4+2*c+b}")
    A(f"v_cvt_pk_bf16_f32 v{hU+8}, v{hU}, v{hU+2}"); A(f"v_cvt_pk_bf16_f32 v{hU+9}, v{hU+1}, v{hU+3}")
    A(f"v_bfe_u32 v{hT0}, v{vL}, 1, 2"); A(f"v_lshlrev_b32 v{hT0}, 4, v{hT0}"); A(f"v_lshl_or_b32 v{hT0}, v{hG}, 6, v{hT0}")
    A(f"v_and_b32 v{hT1}, 8, v{vL}"); A(f"v_or_b32 v{hT0}, v{hT0}, v{hT1}"); A(f"v_and_b32 v{hT1}, 1, v{vL}"); A(f"v_lshl_or_b32 v{hT0}, v{hT1}, 2, v{hT0}")
    A(f"v_add_u32 v{hT0}, {HS}, v{hT0}")
    A(f"ds_write_b32 v{hT0}, v{hU+8}"); A(f"ds_write_b32 v{hT0}, v{hU+9} offset:256")
    A(f"v_bfe_u32 v{hT1}, v{vL}, 2, 1"); A(f"v_lshlrev_b32 v{hT1}, 8, v{hT1}"); A(f"v_lshl_or_b32 v{hT1}, v{hG}, 4, v{hT1}"); A(f"v_add_u32 v{hT1}, {HS}, v{hT1}")
    A("s_waitcnt lgkmcnt(0)")
    for sg in range(4): A(f"ds_read_b128 {v(hA+4*sg,4)}, v{hT1} offset:{64*sg}")
    A(f"v_and_b32 v{hT0}, 1, v{hG}"); A(f"v_lshlrev_b32 v{hT0}, 14, v{hT0}"); A(f"v_lshrrev_b32 v{hT1}, 1, v{hG}"); A(f"v_lshl_or_b32 v{hT0}, v{hT1}, 7, v{hT0}"); A(f"v_lshl_or_b32 v{hT0}, v{hN}, 3, v{hT0}")
    A(f"s_lshl_b32 s{sT0}, s{sX8}, 15"); A(f"s_lshl_b32 s{sT1}, s{sPROD}, 12"); A(f"s_add_u32 s{sT0}, s{sT0}, s{sT1}")
    A(f"s_and_b32 s{sT1}, s{sR}, 7"); A(f"s_lshl_b32 s{sT1}, s{sT1}, 9"); A(f"s_add_u32 s{sT0}, s{sT0}, s{sT1}"); A(f"s_add_u32 s{sT0}, s{sT0}, {QP}")
    A(f"v_mov_b32 v{hU+1}, s{sTAG}"); A(f"v_mov_b32 v{hU+3}, s{sTAG}")
    A("s_waitcnt lgkmcnt(0)")
    for sg in range(4):
        for t in range(4):
            c = "0" if sg == 0 else v(hD+4*t, 4)
            A(f"v_mfma_f32_16x16x32_bf16 {v(hD+4*t,4)}, {v(hA+4*sg,4)}, {v(hBq+(sg*4+t)*4,4)}, {c}")
    A(f"v_mov_b32 v{hU}, v{hD}"); A(f"v_mov_b32 v{hU+2}, v{hD+8}")
    A(f"v_mov_b32_dpp v{hU}, v{hD+4} quad_perm:[0,1,2,3] row_mask:0xc bank_mask:0xf")
    A(f"v_mov_b32_dpp v{hU+2}, v{hD+12} quad_perm:[0,1,2,3] row_mask:0xc bank_mask:0xf")
    A(f"buffer_store_dwordx2 {v(hU,2)}, v{hT0}, {s(srdWS,4)}, s{sT0} offen sc1")
    A(f"buffer_store_dwordx2 {v(hU+2,2)}, v{hT0}, {s(srdWS,4)}, s{sT0} offen offset:256 sc1")
    stamp(5)
    A(f"s_lshl_b32 s{sT0}, s{sX8}, 15"); A(f"s_lshl_b32 s{sT1}, s{sB}, 14"); A(f"s_add_u32 s{sT0}, s{sT0}, s{sT1}"); A(f"s_add_u32 s{sT0}, s{sT0}, {QP}")
    A(f"s_add_u32 s{sT1}, s{sT0}, 4096"); A(f"s_add_u32 s{sT4}, s{sT0}, 8192"); A(f"s_add_u32 s{sT5}, s{sT0}, 12288")
    A(f"s_mov_b32 s{sCNT}, 0")
    hP = hBq
    for i in range(16): A(f"v_mov_b32 v{hPr+i}, s{sTAG}")
    A("L_h_p2:")
    A(f"s_cmp_ge_u32 s{sR}, 16"); A("s_cbranch_scc1 L_h_p2a")
    for rp in range(4):
        A(f"buffer_load_dwordx4 {v(hPr+4*rp,4)}, v{hGr}, {s(srdWS,4)}, s{sT2} offen offset:{rp*512} sc1")
    A("L_h_p2a:")
    for rho, so in enumerate((sT0, sT1, sT4, sT5)):
        for h4 in range(4):
            A(f"buffer_load_dwordx4 {v(hP+(rho*4+h4)*4,4)}, v{hL16}, {s(srdWS,4)}, s{so} offen offset:{h4*1024} sc1")
    A("s_waitcnt vmcnt(0)")
    tagcheck([hP+4*i+k for i in range(16) for k in (1, 3)] + [hPr+4*i+k for i in range(4) for k in (1, 3)])
    A("s_cbranch_vccz L_h_p2ok")
    A(f"s_add_u32 s{sCNT}, s{sCNT}, 1"); A(f"s_cmp_le_u32 s{sCNT}, {NT}"); A("s_cbranch_scc1 L_h_p2")
    A("L_h_p2ok:")
    stamp(6)
    A(f"v_lshlrev_b32 v{hT0}, 2, v{vL}"); A(f"v_add_u32 v{hT0}, {QL}, v{hT0}")
    for h4 in range(4):
        for k in (0, 2):
            d = hP + h4*4 + k
            A(f"v_add_f32 v{d}, v{d}, v{d+16}"); A(f"v_add_f32 v{d+32}, v{d+32}, v{d+48}"); A(f"v_add_f32 v{d}, v{d}, v{d+32}")
        A(f"v_cvt_pk_bf16_f32 v{hU+h4}, v{hP+h4*4}, v{hP+h4*4+2}")
        A(f"ds_write_b32 v{hT0}, v{hU+h4} offset:{h4*288}")
    A(f"v_mov_b32 v{hT0}, {TAGL}"); A(f"v_mov_b32 v{hT1}, s{sTAG}"); A(f"ds_write_b32 v{hT0}, v{hT1}")
    A(f"s_cmp_ge_u32 s{sR}, 16"); A("s_cbranch_scc1 L_h_end")
    sum_granules(hU, hPr, 4, 4)
    A(f"v_cmp_eq_u32 vcc, 2, v{hG}"); A(f"v_cndmask_b32 v{hT0}, 0, 1.0, vcc")
    def round_pairs():
        A(f"v_cvt_pk_bf16_f32 v{hU+4}, v{hU}, v{hU+2}"); A(f"v_cvt_pk_bf16_f32 v{hU+5}, v{hU+1}, v{hU+3}")
        for b in range(2):
            A(f"v_lshlrev_b32 v{hU+b}, 16, v{hU+4+b}"); A(f"v_and_b32 v{hU+2+b}, 0xffff0000, v{hU+4+b}")
    round_pairs()
    for i in range(4): A(f"v_add_f32 v{hU+i}, v{hU+i}, v{hT0}")
    round_pairs()
    A(f"v_lshlrev_b32 v{hT0}, 8, v{hG}"); A(f"v_lshl_or_b32 v{hT0}, v{hN}, 3, v{hT0}"); A(f"v_add_u32 v{hT0}, {PAR}, v{hT0}")
    A(f"v_mov_b32 v{hU+6}, v{hU}"); A(f"v_mov_b32 v{hU+7}, v{hU+2}"); A(f"v_mov_b32 v{hU+8}, v{hU+1}"); A(f"v_mov_b32 v{hU+9}, v{hU+3}")
    A(f"ds_write_b64 v{hT0}, {v(hU+6,2)}"); A(f"ds_write_b64 v{hT0}, {v(hU+8,2)} offset:128")
    A(f"v_bfe_u32 v{hT0}, v{hN}, 1, 2"); A(f"v_lshlrev_b32 v{hT0}, 4, v{hT0}"); A(f"v_and_b32 v{hT1}, 8, v{hN}"); A(f"v_or_b32 v{hT0}, v{hT0}, v{hT1}")
    A(f"v_and_b32 v{hT1}, 1, v{hN}"); A(f"v_lshl_or_b32 v{hT0}, v{hT1}, 2, v{hT0}"); A(f"v_and_b32 v{hT1}, 1, v{hG}"); A(f"v_lshl_or_b32 v{hT0}, v{hT1}, 6, v{hT0}")
    A(f"s_lshl_b32 s{sT0}, s{sX8}, 4"); A(f"s_add_u32 s{sT0}, s{sT0}, s{sR}"); A(f"s_mul_i32 s{sT0}, s{sT0}, 640"); A(f"s_add_u32 s{sT0}, s{sT0}, {YA}"); A(f"s_add_u32 s{sT1}, s{sT0}, {YBO}")
    setexec(0xffffffff0000)
    for b in range(2): A(f"buffer_store_dword v{hU+4+b}, v{hT0}, {s(srdWS,4)}, s{sT0} offen offset:{256+128*b}")
    for b in range(2): A(f"buffer_store_dword v{hU+4+b}, v{hT0}, {s(srdWS,4)}, s{sT1} offen offset:{256+128*b} sc1")
    A("s_mov_b64 exec, -1")
    A("L_h_end:")
    A("s_waitcnt lgkmcnt(0)")
    stamp(7)
    A("s_barrier")
    if dbg:
        A(f"v_writelane_b32 v255, s{sST+2}, 0")
    stamp_flush()
    A("s_endpgm")

    A("L_main2:")
    stamp(1)
    A(f"v_and_b32 v{vT0}, 7, v{vT0}"); A(f"v_lshlrev_b32 v{vT0}, 1, v{vT0}"); A(f"v_xor_b32 v{vT0}, v{vT0}, v{vN}"); A(f"v_lshlrev_b32 v{vT0}, 4, v{vT0}")
    A(f"v_lshl_or_b32 v{vVo}, v{vG}, 8, v{vT0}")
    A(f"s_add_u32 s{srdV}, s{srdV}, s{sKO}"); A(f"s_addc_u32 s{srdV+1}, s{srdV+1}, 0")
    A(f"s_load_dwordx2 {s(srdO,2)}, s[0:1], 80")
    A(f"s_load_dwordx2 {s(srdW2,2)}, s[0:1], 56")
    A(f"s_cmp_lt_u32 s{sR}, 16"); A(f"s_cselect_b32 s{sT0}, 32, 48")
    A(f"s_load_dwordx2 {s(srdW,2)}, s[0:1], s{sT0}")
    A("L_vloop:")
    A(f"s_waitcnt vmcnt({THR-1})")
    A(f"buffer_load_dwordx4 v{vVo}, {s(srdV,4)}, s{sT1} offen nt lds")
    A(f"s_add_u32 s{sT1}, s{sT1}, 4096"); A(f"s_and_b32 s{sT1}, s{sT1}, 0xffff")
    A("s_add_u32 m0, m0, 4096"); A(f"s_cmp_lt_u32 m0, {S0}"); A("s_cbranch_scc1 L_vloop")
    stamp(2)
    srd_tail(srdWS, WS_USED if not dbg else 0x400000); srd_tail(srdX, 2048); srd_tail(srdO, 2048); srd_tail(srdW2, 1792*1024)
    A(f"s_mov_b32 s{sT0}, {512*3584}"); A(f"s_cmp_lt_u32 s{sR}, 16"); A(f"s_cselect_b32 s{srdW+2}, {4096*1024}, s{sT0}"); A(f"s_mov_b32 s{srdW+3}, 0x20000")
    vKa = R.a(4); vQa = R.a(); vVa = R.a(2); vQ = R.a(16, 4); vKb = R.a(64, 4); vS = R.a(16, 4); vM = R.a(); vMc = R.a(); vLs = R.a(); vU = R.a(8, 4)
    vP = R.a(32, 4); vO = R.a(8, 4); vVb = R.a(40, 4); vH4 = R.a(); vC3 = R.a()
    A(f"v_and_b32 v{vH4}, 3, v{vN}")
    A(f"v_xor_b32 v{vT0}, v{vG}, v{vN}"); A(f"v_lshlrev_b32 v{vT0}, 4, v{vT0}"); A(f"v_lshl_or_b32 v{vT0}, v{vN}, 8, v{vT0}")
    A(f"s_lshl_b32 s{sT0}, s{sW}, 14"); A(f"v_add_u32 v{vKa}, s{sT0}, v{vT0}")
    for sg in range(1, 4): A(f"v_xor_b32 v{vKa+sg}, {64*sg}, v{vKa}")
    A(f"v_mul_u32_u24 v{vQa}, 288, v{vH4}"); A(f"v_lshl_add_u32 v{vQa}, v{vG}, 4, v{vQa}"); A(f"v_add_u32 v{vQa}, {QL}, v{vQa}")
    A(f"v_lshrrev_b32 v{vT0}, 2, v{vL}"); A(f"v_and_b32 v{vT1}, 7, v{vT0}"); A(f"v_lshlrev_b32 v{vT1}, 5, v{vT1}"); A(f"v_lshl_or_b32 v{vT0}, v{vT0}, 8, v{vT1}")
    A(f"v_and_b32 v{vC3}, 3, v{vL}"); A(f"v_lshl_or_b32 v{vT0}, v{vC3}, 3, v{vT0}")
    vTRV = R.a()
    A(f"v_mov_b32 v{vTRV}, v{vT0}")
    A(f"s_lshl_b32 s{sT0}, s{sW}, 6"); A(f"v_xor_b32 v{vT0}, s{sT0}, v{vT0}"); A(f"v_add_u32 v{vVa}, {LV}, v{vT0}"); A(f"v_xor_b32 v{vVa+1}, 32, v{vVa}")
    A(f"v_cmp_gt_u32 {s(sM0,2)}, 4, v{vN}")
    A("s_waitcnt lgkmcnt(0)")
    A("s_barrier")
    stamp(3, True)
    for sg in range(4): A(f"ds_read_b128 {v(vQ+4*sg,4)}, v{vQa} offset:{64*sg}")
    for t in range(4):
        for sg in range(4): A(f"ds_read_b128 {v(vKb+(t*4+sg)*4,4)}, v{vKa+sg} offset:{t*4096}")
    for t in range(4):
        A(f"s_waitcnt lgkmcnt({12-4*t})")
        for sg in range(4):
            c = "0" if sg == 0 else v(vS+4*t, 4)
            A(f"v_mfma_f32_16x16x32_bf16 {v(vS+4*t,4)}, {v(vKb+(t*4+sg)*4,4)}, {v(vQ+4*sg,4)}, {c}")
    A(f"v_lshlrev_b32 v{vT2}, 4, v{vH4}"); A(f"v_add_u32 v{vT2}, {MX}, v{vT2}"); A(f"s_lshl_b32 s{sT0}, s{sW}, 2"); A(f"v_add_u32 v{vT3}, s{sT0}, v{vT2}")
    A(f"v_max3_f32 v{vM}, v{vS}, v{vS+1}, v{vS+2}")
    for i in range(3, 15, 2): A(f"v_max3_f32 v{vM}, v{vM}, v{vS+i}, v{vS+i+1}")
    A(f"v_max_f32 v{vM}, v{vM}, v{vS+15}")
    def xg_allreduce(r, op, t):
        for sw in ("v_permlane16_swap_b32", "v_permlane32_swap_b32"):
            A(f"v_mov_b32 v{t}, v{r}"); A(f"{sw} v{t}, v{r}"); A(f"{op} v{r}, v{r}, v{t}")
    xg_allreduce(vM, "v_max_f32", vT0)
    A(f"ds_write_b32 v{vT3}, v{vM}")
    A("s_waitcnt lgkmcnt(0)")
    A("s_barrier")
    stamp(4)
    A(f"ds_read_b128 {v(vU,4)}, v{vT2}")
    A(f"s_cmp_lt_u32 s{sR}, 16"); A("s_cbranch_scc0 L_pv_plain")

    def pv_section(X, tag):
        A(f"s_mov_b32 s{sT2}, {hex(SC)}")
        A("s_waitcnt lgkmcnt(0)")
        A(f"v_max3_f32 v{vM}, v{vU}, v{vU+1}, v{vU+2}"); A(f"v_max_f32 v{vM}, v{vM}, v{vU+3}")
        A(f"v_mul_f32 v{vMc}, s{sT2}, v{vM}")
        for i in range(16): A(f"v_fma_f32 v{vS+i}, v{vS+i}, s{sT2}, -v{vMc}")
        for i in range(16): A(f"v_exp_f32 v{vS+i}, v{vS+i}")
        for i in range(8): A(f"v_cvt_pk_bf16_f32 v{vU+i}, v{vS+2*i}, v{vS+2*i+1}")
        A(f"s_lshl_b32 s{sT0}, s{sW}, 9"); A(f"v_lshlrev_b32 v{vT0}, 6, v{vG}"); A(f"v_lshl_or_b32 v{vT0}, v{vH4}, 4, v{vT0}"); A(f"v_add_u32 v{vT0}, {PX}, v{vT0}")
        A(f"v_add_u32 v{vT1}, s{sT0}, v{vT0}")
        A(f"s_mov_b64 exec, {s(sM0,2)}")
        A(f"ds_write_b128 v{vT1}, {v(vU,4)}"); A(f"ds_write_b128 v{vT1}, {v(vU+4,4)} offset:256")
        A("s_mov_b64 exec, -1")
        for i in range(0, 16, 4):
            A(f"v_add_f32 v{vS+i}, v{vS+i}, v{vS+i+1}"); A(f"v_add_f32 v{vS+i+2}, v{vS+i+2}, v{vS+i+3}"); A(f"v_add_f32 v{vS+i}, v{vS+i}, v{vS+i+2}")
        A(f"v_add_f32 v{vS}, v{vS}, v{vS+4}"); A(f"v_add_f32 v{vS+8}, v{vS+8}, v{vS+12}"); A(f"v_add_f32 v{vLs}, v{vS}, v{vS+8}")
        xg_allreduce(vLs, "v_add_f32", vS)
        A(f"ds_write_b32 v{vT3}, v{vLs} offset:{LS-MX}")
        k0 = (16 - THR) // 2
        A("s_waitcnt lgkmcnt(0)")
        A("s_barrier")
        stamp(5)
        for k in range(8): A(f"ds_read_b128 {v(vP+4*k,4)}, v{vT0} offset:{k*256}")
        A(f"ds_read_b128 {v(vU,4)}, v{vT2} offset:{LS-MX}")
        def vreads(k, dst):
            for t in range(2):
                for u in range(2):
                    A(f"ds_read_b64_tr_b16 {v(dst+4*t+2*u,2)}, v{vVa+t} offset:{(32*k+16*u)*256}")
        def vmfma(k, src):
            for t in range(2):
                c = "0" if k == 0 else v(vO+4*t, 4)
                A(f"v_mfma_f32_16x16x32_bf16 {v(vO+4*t,4)}, {v(src+4*t,4)}, {v(vP+4*k,4)}, {c}")
        k = 0
        while k < k0:
            n = min(k0 - k, 3 if k == 0 else 5)
            for i in range(n): vreads(k+i, vVb+8*i)
            A("s_waitcnt lgkmcnt(0)")
            if k == 0:
                A(f"v_add_f32 v{vU}, v{vU}, v{vU+1}"); A(f"v_add_f32 v{vU+2}, v{vU+2}, v{vU+3}"); A(f"v_add_f32 v{vLs}, v{vU}, v{vU+2}")
                A(f"v_rcp_f32 v{vM}, v{vLs}")
            for i in range(n): vmfma(k+i, vVb+8*i)
            k += n
        A(f"s_lshl_b32 s{sT0}, s{sX8}, 15"); A(f"s_lshl_b32 s{sT1}, s{sR}, 10"); A(f"s_add_u32 s{sT0}, s{sT0}, s{sT1}"); A(f"s_lshl_b32 s{sT1}, s{sW}, 8"); A(f"s_add_u32 s{sT0}, s{sT0}, s{sT1}")
        A(f"s_add_u32 s{sT0}, s{sT0}, {OPA}"); A(f"s_add_u32 s{sT1}, s{sT0}, {OB}")
        A(f"v_lshlrev_b32 v{vT0}, 6, v{vN}"); A(f"v_lshl_or_b32 v{vT0}, v{vG}, 4, v{vT0}")
        A(f"s_lshl_b32 s{sT2}, s{sX8}, 10"); A(f"s_lshl_b32 s{sT3}, s{sB}, 9"); A(f"s_add_u32 s{sT2}, s{sT2}, s{sT3}"); A(f"s_lshl_b32 s{sT3}, s{sS}, 3"); A(f"s_add_u32 s{sT2}, s{sT2}, s{sT3}")
        A(f"s_add_u32 s{sT2}, s{sT2}, {STA}"); A(f"s_add_u32 s{sT3}, s{sT2}, {SB}")
        A(f"v_lshlrev_b32 v{vT1}, 7, v{vN}")
        A(f"v_mov_b32 v{vU+4}, v{vMc}"); A(f"v_mov_b32 v{vU+5}, v{vLs}")
        A(f"s_lshl_b64 {s(sM1,2)}, 1, s{sW}")
        for kk in range(k0, 8):
            A(f"s_waitcnt vmcnt({X + 14 - 2*kk})")
            A("s_barrier")
            dst = vVb + 8*((kk - k0) % 2 + 3)
            vreads(kk, dst)
            A("s_waitcnt lgkmcnt(0)")
            vmfma(kk, dst)
        stamp(6)
        A(f"s_mov_b64 exec, {s(sM1,2)}")
        A(f"buffer_store_dwordx2 {v(vU+4,2)}, v{vT1}, {s(srdWS,4)}, s{sT2} offen")
        A("s_mov_b64 exec, -1")
        for i in range(8): A(f"v_mul_f32 v{vO+i}, v{vO+i}, v{vM}")
        for i in range(4): A(f"v_cvt_pk_bf16_f32 v{vU+i}, v{vO+2*i}, v{vO+2*i+1}")
        A(f"s_mov_b64 exec, {s(sM0,2)}")
        A(f"buffer_store_dwordx4 {v(vU,4)}, v{vT0}, {s(srdWS,4)}, s{sT0} offen")
        A(f"buffer_store_dwordx4 {v(vU,4)}, v{vT0}, {s(srdWS,4)}, s{sT1} offen sc1")
        A(f"s_mov_b64 exec, {s(sM1,2)}")
        A(f"buffer_store_dwordx2 {v(vU+4,2)}, v{vT1}, {s(srdWS,4)}, s{sT3} offen sc1")
        A("s_mov_b64 exec, -1")
        stamp(7)

    vWo = R.a()
    A(f"v_and_b32 v{vT0}, 7, v{vL}"); A(f"v_lshlrev_b32 v{vT1}, 1, v{vG}"); A(f"v_xor_b32 v{vT0}, v{vT0}, v{vT1}"); A(f"v_lshlrev_b32 v{vT0}, 4, v{vT0}")
    A(f"v_lshrrev_b32 v{vT1}, 3, v{vL}"); A(f"v_lshl_or_b32 v{vWo}, v{vT1}, 10, v{vT0}")
    A(f"s_lshl_b32 s{sT0}, s{sX8}, 19"); A(f"s_lshr_b32 s{sT1}, s{sR}, 3"); A(f"s_lshl_b32 s{sT1}, s{sT1}, 18"); A(f"s_add_u32 s{sT0}, s{sT0}, s{sT1}")
    A(f"s_lshl_b32 s{sT1}, s{sW}, 16"); A(f"s_add_u32 s{sT0}, s{sT0}, s{sT1}"); A(f"s_and_b32 s{sT1}, s{sR}, 7"); A(f"s_lshl_b32 s{sT1}, s{sT1}, 7"); A(f"s_add_u32 s{sT0}, s{sT0}, s{sT1}")
    A(f"s_lshl_b32 m0, s{sW}, 13")
    for i in range(8):
        A(f"buffer_load_dwordx4 v{vWo}, {s(srdW,4)}, s{sT0} offen {ntw} lds")
        if i < 7: A(f"s_add_u32 s{sT0}, s{sT0}, 8192"); A("s_add_u32 m0, m0, 1024")
    pv_section(8, "t1")
    tB = vKb; tA = vQ; tD = vS; tSt = vVb; tW = vVb + 8; tTR = vVb + 12; tAa = vVb + 16; tSa = vVb + 17; tX = vVb + 18; tPar = vVb + 20; tY = vVb + 24
    A(f"s_and_b32 s{sAB}, s{sW}, 1")
    A(f"s_lshr_b32 s{sT0}, s{sW}, 1"); A(f"s_lshr_b32 s{sT1}, s{sR}, 3"); A(f"s_lshl_b32 s{sT1}, s{sT1}, 1"); A(f"s_add_u32 s{sT1}, s{sT1}, s{sT0}")
    A(f"v_lshlrev_b32 v{tAa}, 10, v{vN}"); A(f"v_lshl_or_b32 v{tAa}, v{vG}, 4, v{tAa}")
    A(f"v_lshlrev_b32 v{tSa}, 5, v{vG}")
    A(f"s_lshl_b32 s{sT2}, s{sX8}, 15"); A(f"s_lshl_b32 s{sT3}, s{sAB}, 14"); A(f"s_add_u32 s{sT2}, s{sT2}, s{sT3}"); A(f"s_lshl_b32 s{sT3}, s{sT1}, 6"); A(f"s_add_u32 s{sT2}, s{sT2}, s{sT3}"); A(f"s_add_u32 s{sT2}, s{sT2}, {OPA}")
    A(f"s_lshl_b32 s{sT3}, s{sX8}, 10"); A(f"s_lshl_b32 s{sT4}, s{sAB}, 9"); A(f"s_add_u32 s{sT3}, s{sT3}, s{sT4}"); A(f"s_lshl_b32 s{sT4}, s{sT1}, 7"); A(f"s_add_u32 s{sT3}, s{sT3}, s{sT4}"); A(f"s_add_u32 s{sT3}, s{sT3}, {STA}")
    def t1_loads():
        for k in range(4): A(f"buffer_load_dwordx4 {v(tA+4*k,4)}, v{tAa}, {s(srdWS,4)}, s{sT2} offen offset:{256*k} sc1")
        for k in range(2): A(f"buffer_load_dwordx4 {v(tSt+4*k,4)}, v{tSa}, {s(srdWS,4)}, s{sT3} offen offset:{16*k} sc1")
    A(f"v_and_b32 v{vT0}, 7, v{vL}"); A(f"v_lshl_or_b32 v{vT2}, v{vT0}, 2, v{vG}")
    A(f"v_lshlrev_b32 v{vT1}, 1, v{vT2}"); A(f"s_lshl_b32 s{sT4}, s{sAB}, 10"); A(f"s_lshl_b32 s{sT5}, s{sR}, 6"); A(f"s_add_u32 s{sT4}, s{sT4}, s{sT5}")
    A(f"buffer_load_ushort v{tX}, v{vT1}, {s(srdX,4)}, s{sT4} offen")
    A("s_waitcnt vmcnt(5)")
    A("s_barrier")
    t1_loads()
    A(f"s_lshl_b32 s{sT0}, s{sT0}, 14")
    tr128_base(tTR, vT0, vT1, 0)
    for t in range(4): A(f"v_add_u32 v{tTR+t}, s{sT0}, v{tTR+t}")
    tr128_read(tB, tTR, 0)
    A(f"s_lshl_b32 s{sT4}, s{sAB}, 7"); A(f"s_add_u32 s{sT4}, s{sT4}, {PAR}"); A(f"v_lshl_add_u32 v{vT3}, v{vT2}, 2, s{sT4}")
    A(f"ds_read_b32 v{tPar}, v{vT3}"); A(f"ds_read_b32 v{tPar+1}, v{vT3} offset:512"); A(f"ds_read_b32 v{tPar+2}, v{vT3} offset:768")
    A(f"v_mov_b32 v{vT3}, {TAGL}"); A(f"ds_read_b32 v{tPar+3}, v{vT3}")
    A(f"s_mov_b32 s{sCNT}, 0")
    def sentcheck(rs, acc):
        A(f"v_max3_u32 v{acc}, v{rs[0]}, v{rs[1]}, v{rs[2]}")
        i = 3
        while i < len(rs):
            if i + 1 < len(rs): A(f"v_max3_u32 v{acc}, v{acc}, v{rs[i]}, v{rs[i+1]}"); i += 2
            else: A(f"v_max_u32 v{acc}, v{acc}, v{rs[i]}"); i += 1
        A(f"v_cmp_eq_u32 vcc, -1, v{acc}")
    def poll(lbl, loads, rs, acc, switch=None):
        A(f"{lbl}:")
        A("s_waitcnt vmcnt(0)")
        sentcheck(rs, acc)
        A(f"s_cbranch_vccz {lbl}_ok")
        A(f"s_add_u32 s{sCNT}, s{sCNT}, 1")
        if switch:
            A(f"s_cmp_eq_u32 s{sCNT}, {NA}"); A(f"s_cbranch_scc0 {lbl}_ns")
            for sr, d in switch: A(f"s_add_u32 s{sr}, s{sr}, {d}")
            A(f"{lbl}_ns:")
        A(f"s_cmp_gt_u32 s{sCNT}, {NT}"); A(f"s_cbranch_scc1 {lbl}_ok")
        loads()
        A(f"s_branch {lbl}")
        A(f"{lbl}_ok:")
    stamp(8)
    poll("L_t1p", t1_loads, list(range(tA, tA+16)) + list(range(tSt, tSt+8)), vT0, [(sT2, OB), (sT3, SB)])
    stamp(9)
    A("s_waitcnt lgkmcnt(0)")
    mf = []
    for k in range(4):
        for t in range(4):
            c = "0" if k == 0 else v(tD+4*t, 4)
            mf.append(f"v_mfma_f32_16x16x32_bf16 {v(tD+4*t,4)}, {v(tA+4*k,4)}, {v(tB+(k*4+t)*4,4)}, {c}")
    va = []
    va.append(f"v_max3_f32 v{vM}, v{tSt}, v{tSt+2}, v{tSt+4}"); va.append(f"v_max_f32 v{vM}, v{vM}, v{tSt+6}")
    for sw in ("v_permlane16_swap_b32", "v_permlane32_swap_b32"):
        va += [f"v_mov_b32 v{vT0}, v{vM}", None, f"{sw} v{vT0}, v{vM}", f"v_max_f32 v{vM}, v{vM}, v{vT0}"]
    for r in range(4): va.append(f"v_sub_f32 v{tW+r}, v{tSt+2*r}, v{vM}")
    for r in range(4): va.append(f"v_exp_f32 v{tW+r}, v{tW+r}")
    for r in range(4): va.append(f"v_mul_f32 v{tW+r}, v{tW+r}, v{tSt+2*r+1}")
    va += [f"v_add_f32 v{vLs}, v{tW}, v{tW+1}", f"v_add_f32 v{vT1}, v{tW+2}, v{tW+3}", f"v_add_f32 v{vLs}, v{vLs}, v{vT1}"]
    for sw in ("v_permlane16_swap_b32", "v_permlane32_swap_b32"):
        va += [f"v_mov_b32 v{vT0}, v{vLs}", None, f"{sw} v{vT0}, v{vLs}", f"v_add_f32 v{vLs}, v{vLs}, v{vT0}"]
    va.append(f"v_rcp_f32 v{vLs}, v{vLs}")
    vi = 0
    for m in mf:
        A(m)
        cnt = 0
        while vi < len(va) and cnt < 2:
            if va[vi] is None: vi += 1; break
            A(va[vi]); vi += 1; cnt += 1
    while vi < len(va):
        if va[vi]: A(va[vi])
        vi += 1
    A(f"v_lshrrev_b32 v{vT0}, 5, v{vL}"); A(f"v_and_b32 v{vT1}, 31, v{vL}"); A(f"v_lshlrev_b32 v{vT1}, 2, v{vT1}"); A(f"v_lshl_or_b32 v{vT3}, v{vT0}, 12, v{vT1}")
    A(f"s_and_b32 s{sT0}, s{sR}, 7"); A(f"s_lshl_b32 s{sT0}, s{sT0}, 13"); A(f"s_lshl_b32 s{sT1}, s{sAB}, 11"); A(f"s_add_u32 s{sT0}, s{sT0}, s{sT1}")
    A(f"s_lshl_b32 s{sT1}, s{sX8}, 8"); A(f"s_add_u32 s{sT0}, s{sT0}, s{sT1}"); A(f"s_lshr_b32 s{sT1}, s{sR}, 3"); A(f"s_lshl_b32 s{sT1}, s{sT1}, 7"); A(f"s_add_u32 s{sT0}, s{sT0}, s{sT1}"); A(f"s_add_u32 s{sT0}, s{sT0}, {AP}")
    A(f"s_lshl_b32 s{sT1}, s{sAB}, 8"); A(f"s_add_u32 s{sT1}, s{sT1}, {RED}"); A(f"v_lshl_add_u32 v{vT1}, v{vL}, 2, s{sT1}")
    for t in range(4):
        A(f"v_mul_f32 v{vU+t}, v{tD+4*t}, v{tW}")
        for r in range(1, 4): A(f"v_fmac_f32 v{vU+t}, v{tD+4*t+r}, v{tW+r}")
    def reduce4(u):
        A(f"v_permlane32_swap_b32 v{u}, v{u+2}"); A(f"v_permlane32_swap_b32 v{u+1}, v{u+3}")
        A(f"v_add_f32 v{u}, v{u}, v{u+2}"); A(f"v_add_f32 v{u+1}, v{u+1}, v{u+3}")
        A(f"v_permlane16_swap_b32 v{u}, v{u+1}")
        A(f"v_add_f32 v{u}, v{u}, v{u+1}")
    reduce4(vU)
    A(f"v_mul_f32 v{vU}, v{vU}, v{vLs}")
    A(f"s_cmp_lt_u32 s{sW}, 2"); A("s_cbranch_scc1 L_t1_lo")
    A(f"ds_write_b32 v{vT1}, v{vU}")
    A("s_waitcnt lgkmcnt(0)")
    A("s_barrier")
    if dbg: A(f"v_writelane_b32 v255, s{sST+2}, 0")
    stamp_flush()
    A("s_endpgm")
    A("L_t1_lo:")
    A("s_barrier")
    A(f"ds_read_b32 v{vU+1}, v{vT1}")
    A(f"s_lshl_b32 s{sT2}, s{sR}, 12"); A(f"s_lshl_b32 s{sT3}, s{sAB}, 11"); A(f"s_add_u32 s{sT2}, s{sT2}, s{sT3}"); A(f"s_add_u32 s{sT2}, s{sT2}, {AP}")
    A(f"v_lshlrev_b32 v{tAa}, 4, v{vL}")
    A("s_waitcnt lgkmcnt(0)")
    A(f"v_add_f32 v{vU}, v{vU}, v{vU+1}")
    A(f"buffer_store_dword v{vU}, v{vT3}, {s(srdWS,4)}, s{sT0} offen sc1")
    stamp(10)
    def red_loads():
        for q in range(2): A(f"buffer_load_dwordx4 {v(tA+4*q,4)}, v{tAa}, {s(srdWS,4)}, s{sT2} offen offset:{1024*q} sc1")
    red_loads()
    A(f"v_and_b32 v{vT0}, 3, v{vL}"); A(f"v_lshlrev_b32 v{vT0}, 4, v{vT0}"); A(f"v_bfe_u32 v{vT1}, v{vL}, 2, 1"); A(f"v_lshl_or_b32 v{vT0}, v{vT1}, 3, v{vT0}")
    A(f"v_and_b32 v{vT1}, 1, v{vG}"); A(f"v_lshl_or_b32 v{vT0}, v{vT1}, 6, v{vT0}"); A(f"v_lshrrev_b32 v{vT1}, 1, v{vG}"); A(f"v_lshl_or_b32 v{tY}, v{vT1}, 2, v{vT0}")
    A(f"s_lshl_b32 s{sT0}, s{sX8}, 4"); A(f"s_add_u32 s{sT0}, s{sT0}, s{sR}"); A(f"s_mul_i32 s{sT0}, s{sT0}, 640"); A(f"s_add_u32 s{sT0}, s{sT0}, {YA}")
    A(f"s_lshl_b32 s{sT1}, s{sAB}, 3"); A(f"s_add_u32 s{sT4}, s{sT0}, s{sT1}"); A(f"s_add_u32 s{sT5}, s{sT4}, {YBO}")
    A(f"s_lshl_b32 s{sT1}, s{sAB}, 7"); A(f"s_add_u32 s{sT0}, s{sT0}, s{sT1}"); A(f"s_add_u32 s{sT1}, s{sT0}, {YBO}")
    A(f"v_lshrrev_b32 v{tY+1}, 1, v{vL}")
    A(f"v_lshlrev_b32 v{tX}, 16, v{tX}")
    A(f"v_and_b32 v{vT0}, 8, v{vL}"); A(f"v_cmp_ne_u32 {s(sM0,2)}, 0, v{vT0}")
    A(f"v_and_b32 v{vT0}, 16, v{vL}"); A(f"v_cmp_ne_u32 {s(sM1,2)}, 0, v{vT0}")
    A(f"s_mov_b32 s{sCNT}, 0")
    poll("L_rdp", red_loads, list(range(tA, tA+8)), vT0)
    stamp(11)
    for i in range(4): A(f"v_add_f32 v{vU+i}, v{tA+i}, v{tA+4+i}")
    reduce4(vU)
    A(f"v_add_f32_dpp v{vU}, v{vU}, v{vU} row_ror:8 row_mask:0xf bank_mask:0xf bound_ctrl:1")
    A(f"v_fmac_f32 v{tX}, v{tPar}, v{vU}")
    A(f"v_mul_f32 v{vU}, v{tX}, v{tPar+1}")
    A(f"v_mul_f32 v{vU+4}, v{tX}, v{tX}")
    A(f"v_mov_b32 v{vU+1}, v{vU}")
    A(f"v_cndmask_b32 v{vU+4}, v{tX}, v{vU+4}, {s(sM0,2)}")
    A(f"v_permlane16_swap_b32 v{vU}, v{vU+1}")
    A(f"v_add_f32_dpp v{vU+4}, v{vU+4}, v{vU+4} quad_perm:[1,0,3,2] row_mask:0xf bank_mask:0xf bound_ctrl:1")
    A(f"v_cvt_pk_bf16_f32 v{vU+2}, v{vU}, v{vU+1}")
    A(f"v_lshlrev_b32 v{vT0}, 16, v{vU+2}")
    A(f"v_add_f32_dpp v{vU+4}, v{vU+4}, v{vU+4} quad_perm:[2,3,0,1] row_mask:0xf bank_mask:0xf bound_ctrl:1")
    A(f"v_and_b32 v{vT1}, 0xffff0000, v{vU+2}")
    A(f"v_sub_f32 v{vU}, v{vU}, v{vT0}")
    A(f"v_add_f32_dpp v{vU+4}, v{vU+4}, v{vU+4} row_half_mirror row_mask:0xf bank_mask:0xf bound_ctrl:1")
    A(f"v_sub_f32 v{vU+1}, v{vU+1}, v{vT1}")
    A(f"v_mov_b32 v{vU+5}, v{vU+4}")
    A(f"v_cvt_pk_bf16_f32 v{vU+3}, v{vU}, v{vU+1}")
    A(f"v_permlane16_swap_b32 v{vU+5}, v{vU+4}")
    A(f"v_cndmask_b32 v{vU+2}, v{vU+2}, v{vU+3}, {s(sM1,2)}")
    A(f"v_add_f32 v{vU+4}, v{vU+4}, v{vU+5}")
    setexec(0x00ff00ff00ff00ff)
    A(f"buffer_store_dword v{vU+2}, v{tY}, {s(srdWS,4)}, s{sT0} offen")
    A("s_mov_b64 exec, -1")
    A(f"v_mov_b32 v{vU+5}, v{vU+4}")
    A(f"v_permlane32_swap_b32 v{vU+5}, v{vU+4}")
    A(f"v_add_f32 v{vU+4}, v{vU+4}, v{vU+5}")
    A("s_mov_b64 exec, 0x101")
    A(f"buffer_store_dword v{vU+4}, v{tY+1}, {s(srdWS,4)}, s{sT4} offen offset:512")
    A(f"buffer_store_dword v{vU+4}, v{tY+1}, {s(srdWS,4)}, s{sT5} offen offset:512 sc1")
    setexec(0x00ff00ff00ff00ff)
    A(f"buffer_store_dword v{vU+2}, v{tY}, {s(srdWS,4)}, s{sT1} offen sc1")
    A("s_mov_b64 exec, -1")
    stamp(12)
    A(f"s_lshl_b32 s{sT0}, s{sR}, 1"); A(f"s_sub_u32 s{sT0}, s{sX8}, s{sT0}"); A(f"s_and_b32 s{sT0}, s{sT0}, 7"); A(f"s_cmp_eq_u32 s{sT0}, s{sAB}"); A("s_cbranch_scc0 L_fin_end")
    A(f"s_lshl_b32 s{sT0}, s{sR}, 1"); A(f"s_add_u32 s{sT0}, s{sT0}, s{sAB}"); A(f"s_mul_i32 s{sT2}, s{sT0}, 7168"); A(f"s_add_u32 s{sT2}, s{sT2}, {MP}"); A(f"s_add_u32 s{sT3}, s{sT2}, 4096")
    def fin_loads():
        for q in range(7):
            A(f"buffer_load_dwordx4 {v(tB+4*q,4)}, v{tAa}, {s(srdWS,4)}, s{sT2 if q < 4 else sT3} offen offset:{1024*(q%4)} sc1")
    fin_loads()
    A(f"v_lshlrev_b32 v{vT3}, 1, v{vT2}")
    A(f"s_lshl_b32 s{sT4}, s{sAB}, 10"); A(f"s_lshl_b32 s{sT5}, s{sR}, 6"); A(f"s_add_u32 s{sT4}, s{sT4}, s{sT5}")
    A(f"s_mov_b32 s{sCNT}, 0")
    poll("L_fnp", fin_loads, list(range(tB, tB+28)), vT0)
    stamp(13)
    for i in range(4):
        A(f"v_add_f32 v{tB+i}, v{tB+i}, v{tB+4+i}"); A(f"v_add_f32 v{tB+8+i}, v{tB+8+i}, v{tB+12+i}"); A(f"v_add_f32 v{tB+16+i}, v{tB+16+i}, v{tB+20+i}")
    for i in range(4):
        A(f"v_add_f32 v{tB+i}, v{tB+i}, v{tB+8+i}"); A(f"v_add_f32 v{tB+16+i}, v{tB+16+i}, v{tB+24+i}")
    for i in range(4): A(f"v_add_f32 v{vU+i}, v{tB+i}, v{tB+16+i}")
    reduce4(vU)
    A(f"v_add_f32_dpp v{vU}, v{vU}, v{vU} row_ror:8 row_mask:0xf bank_mask:0xf bound_ctrl:1")
    A(f"v_fmac_f32 v{tX}, v{tPar+2}, v{vU}")
    A(f"v_mov_b32 v{vU+1}, v{tX}")
    A(f"v_permlane16_swap_b32 v{tX}, v{vU+1}")
    A(f"v_cvt_pk_bf16_f32 v{vU+2}, v{tX}, v{vU+1}")
    setexec(0x000000ff000000ff)
    A(f"buffer_store_dword v{vU+2}, v{vT3}, {s(srdO,4)}, s{sT4} offen")
    A(f"s_cmp_lg_u32 s{sT0}, 0"); A("s_cbranch_scc1 L_fin_end")
    A("s_mov_b64 exec, 1")
    A(f"v_mov_b32 v{vT0}, 0")
    A(f"buffer_store_dword v{tPar+3}, v{vT0}, {s(srdWS,4)}, 0 offen sc1")
    A("L_fin_end:")
    if DUR:
        A(f"s_memrealtime {s(sST,2)}"); A("s_mov_b32 s94, 256"); A("s_mov_b32 s95, 0x20000"); A("s_waitcnt lgkmcnt(0)")
        A("s_mov_b64 exec, 1"); A(f"s_not_b32 s{sST+2}, s{sST+2}"); A(f"v_mov_b32 v2, s{sST+2}"); A(f"v_mov_b32 v3, s{sST}"); A("v_mov_b32 v4, 0")
        A("buffer_atomic_umax v2, v4, s[92:95], 0 offen"); A("buffer_atomic_umax v3, v4, s[92:95], 0 offen offset:4")
    stamp(14)
    if dbg: A(f"v_writelane_b32 v255, s{sST+2}, 0")
    stamp_flush()
    A("s_endpgm")

    A("L_pv_plain:")
    pv_section(0, "pl")
    A(f"s_sub_u32 s{sT0}, s{sR}, 16"); A(f"s_cmp_lt_u32 s{sT0}, 7"); A("s_cbranch_scc0 L_fin_end")
    mW1 = vKb; mW2 = vKb + 32; mB = vQ; mD = vS; mSt = vVb; mC = vVb + 4; mR = vVb + 8; mA = vVb + 16; mYa = vVb + 24; mSa = vVb + 25; mXw = vVb + 26; mXr = vVb + 27; mH = vVb + 28; mD2 = vP
    A(f"s_mul_i32 s{sJ}, s{sX8}, 7"); A(f"s_add_u32 s{sJ}, s{sJ}, s{sT0}")
    A(f"v_and_b32 v{vT0}, 1, v{vG}"); A(f"v_lshlrev_b32 v{vT0}, 1, v{vT0}"); A(f"v_xor_b32 v{vT0}, v{vT0}, v{vC3}"); A(f"v_lshlrev_b32 v{vT0}, 4, v{vT0}")
    A(f"v_lshrrev_b32 v{vT1}, 2, v{vL}"); A(f"v_mul_u32_u24 v{vT1}, 3584, v{vT1}"); A(f"v_add_u32 v{vT0}, v{vT0}, v{vT1}")
    A(f"s_mul_i32 s{sT0}, s{sW}, {128*3584}"); A(f"s_lshl_b32 s{sT1}, s{sJ}, 6"); A(f"s_add_u32 s{sT0}, s{sT0}, s{sT1}")
    A(f"s_lshl_b32 m0, s{sW}, 13")
    for i in range(8):
        A(f"buffer_load_dwordx4 v{vT0}, {s(srdW,4)}, s{sT0} offen {ntw} lds")
        A(f"s_add_u32 s{sT0}, s{sT0}, {16*3584}"); A("s_add_u32 m0, m0, 1024")
    A(f"v_lshlrev_b32 v{vT1}, 1, v{vG}"); A(f"v_xor_b32 v{vT1}, v{vT1}, v{vN}"); A(f"v_lshlrev_b32 v{vT1}, 4, v{vT1}"); A(f"v_lshl_or_b32 v{vT1}, v{vG}, 10, v{vT1}")
    A(f"v_xor_b32 v{vT2}, 128, v{vT1}")
    A(f"s_lshl_b32 s{sT0}, s{sJ}, 15"); A(f"s_lshl_b32 s{sT1}, s{sW}, 8"); A(f"s_add_u32 s{sT0}, s{sT0}, s{sT1}")
    A(f"s_add_u32 m0, m0, {32768-8192}")
    for i in range(8):
        A(f"buffer_load_dwordx4 v{vT1 if i%2==0 else vT2}, {s(srdW2,4)}, s{sT0} offen {ntw} lds")
        if i < 7: A(f"s_add_u32 s{sT0}, s{sT0}, 4096"); A("s_add_u32 m0, m0, 1024")
    A(f"v_lshlrev_b32 v{mYa}, 6, v{vH4}"); A(f"v_lshl_or_b32 v{mYa}, v{vG}, 4, v{mYa}")
    A(f"v_lshrrev_b32 v{vT0}, 1, v{vN}"); A(f"v_mul_u32_u24 v{mSa}, 640, v{vT0}"); A(f"v_and_b32 v{vT1}, 1, v{vN}"); A(f"v_lshl_add_u32 v{mSa}, v{vT1}, 3, v{mSa}")
    A(f"s_mul_i32 s{sT3}, s{sX8}, {16*640}"); A(f"s_add_u32 s{sT3}, s{sT3}, {YA}"); A(f"s_mul_i32 s{sT2}, s{sW}, {4*640}"); A(f"s_add_u32 s{sT2}, s{sT2}, s{sT3}"); A(f"s_add_u32 s{sT4}, s{sT3}, {8*640}")
    def x_loads():
        for k in range(4): A(f"buffer_load_dwordx4 {v(mB+4*k,4)}, v{mYa}, {s(srdWS,4)}, s{sT2} offen offset:{640*k+256} sc1")
    def y_loads():
        for k in range(4): A(f"buffer_load_dwordx4 {v(mB+4*k,4)}, v{mYa}, {s(srdWS,4)}, s{sT2} offen offset:{640*k} sc1")
        A(f"buffer_load_dwordx2 {v(mSt,2)}, v{mSa}, {s(srdWS,4)}, s{sT3} offen offset:512 sc1")
        A(f"buffer_load_dwordx2 {v(mSt+2,2)}, v{mSa}, {s(srdWS,4)}, s{sT4} offen offset:512 sc1")
    x_loads()
    A(f"v_lshlrev_b32 v{mXw}, 8, v{vH4}"); A(f"v_lshl_or_b32 v{mXw}, v{vG}, 4, v{mXw}"); A(f"s_lshl_b32 s{sT0}, s{sW}, 6"); A(f"s_add_u32 s{sT0}, s{sT0}, {RED}"); A(f"v_add_u32 v{mXw}, s{sT0}, v{mXw}")
    A(f"v_lshrrev_b32 v{mXr}, 3, v{vN}"); A(f"v_lshlrev_b32 v{mXr}, 10, v{mXr}"); A(f"v_lshl_or_b32 v{mXr}, v{vT1}, 9, v{mXr}"); A(f"v_lshl_or_b32 v{mXr}, v{vG}, 4, v{mXr}")
    A(f"v_and_b32 v{vT0}, 3, v{vT0}"); A(f"v_lshl_or_b32 v{mXr}, v{vT0}, 2, v{mXr}"); A(f"v_add_u32 v{mXr}, {RED}, v{mXr}")
    A(f"v_lshrrev_b32 v{vT0}, 2, v{vL}"); A(f"v_lshlrev_b32 v{vT0}, 6, v{vT0}"); A(f"v_and_b32 v{vT1}, 1, v{vG}"); A(f"v_lshl_or_b32 v{vT0}, v{vT1}, 5, v{vT0}"); A(f"v_lshl_or_b32 v{vT0}, v{vC3}, 3, v{vT0}")
    A(f"s_lshl_b32 s{sT0}, s{sW}, 13"); A(f"v_add_u32 v{mA}, s{sT0}, v{vT0}"); A(f"v_xor_b32 v{mA+1}, 32, v{mA}")
    A("s_waitcnt vmcnt(12)")
    for sg in range(4):
        for t in range(2):
            for u in range(2):
                A(f"ds_read_b64_tr_b16 {v(mW1+(t*4+sg)*4+2*u,2)}, v{mA+t} offset:{(32*sg+16*u)*64}")
    A(f"s_add_u32 s{sT0}, s{sT0}, 32768"); A(f"v_add_u32 v{vT0}, s{sT0}, v{vTRV}")
    A("s_waitcnt lgkmcnt(0)")
    for t in range(8): A(f"v_xor_b32 v{mA+t}, {32*t}, v{vT0}")
    A("s_waitcnt vmcnt(4)")
    for t in range(8):
        for u in range(2):
            A(f"ds_read_b64_tr_b16 {v(mW2+4*t+2*u,2)}, v{mA+t} offset:{16*u*256}")
    A(f"s_mov_b32 s{sCNT}, 0")
    sw = [(sT2, YBO), (sT3, YBO), (sT4, YBO)]
    poll("L_mxp", x_loads, list(range(mB, mB+16)), vT0, sw)
    def mlp_pass(red_off, valu=()):
        va = list(valu); vi = 0
        for sg in range(4):
            for t in range(2):
                c = "0" if sg == 0 else v(mD+4*t, 4)
                A(f"v_mfma_f32_16x16x32_bf16 {v(mD+4*t,4)}, {v(mW1+(t*4+sg)*4,4)}, {v(mB+4*sg,4)}, {c}")
                for _ in range(2):
                    if vi < len(va): A(va[vi]); vi += 1
        while vi < len(va): A(va[vi]); vi += 1
        A(f"s_mov_b64 exec, {s(sM0,2)}")
        for t in range(2): A(f"ds_write_b128 v{mXw}, {v(mD+4*t,4)} offset:{red_off + t*1024}")
        A("s_mov_b64 exec, -1")
        A("s_waitcnt lgkmcnt(0)")
        A("s_barrier")
        for cw in range(4): A(f"ds_read2_b32 {v(mR+2*cw,2)}, v{mXr if red_off == 0 else vT3} offset0:{16*cw} offset1:{16*cw+64}")
    A("s_waitcnt lgkmcnt(0)")
    mlp_pass(0)
    A(f"s_cmp_ge_u32 s{sCNT}, {NA}"); A(f"s_cselect_b32 s{sCNT}, {NA}, 0")
    y_loads()
    A(f"v_add_u32 v{vT3}, 2048, v{mXr}")
    A(f"v_mul_u32_u24 v{vT2}, 7168, v{vN}"); A(f"v_lshl_add_u32 v{vT2}, v{vG}, 4, v{vT2}")
    A(f"s_mul_i32 s{sT0}, s{sW}, {4*14336}"); A(f"s_lshl_b32 s{sT1}, s{sJ}, 7"); A(f"s_add_u32 s{sT0}, s{sT0}, s{sT1}"); A(f"s_add_u32 s{sT0}, s{sT0}, {MP}")
    A(f"v_cmp_gt_u32 {s(sM1,2)}, 2, v{vN}")
    A("s_waitcnt lgkmcnt(0)")
    for j in range(2):
        A(f"v_add_f32 v{mC+j}, v{mR+j}, v{mR+2+j}"); A(f"v_add_f32 v{mR+4+j}, v{mR+4+j}, v{mR+6+j}"); A(f"v_add_f32 v{mC+j}, v{mC+j}, v{mR+4+j}")
    stamp(8)
    poll("L_myp", y_loads, list(range(mB, mB+16)) + list(range(mSt, mSt+4)), vT0, sw)
    stamp(9)
    va = [f"v_add_f32 v{mSt}, v{mSt}, v{mSt+2}", f"v_add_f32 v{mSt+1}, v{mSt+1}, v{mSt+3}"]
    for ro in (2, 4, 8):
        va += [f"v_add_f32_dpp v{mSt+i}, v{mSt+i}, v{mSt+i} row_ror:{ro} row_mask:0xf bank_mask:0xf bound_ctrl:1" for i in range(2)]
    va += [f"v_mul_f32 v{mSt}, {hex(f2u(1/512))}, v{mSt}", f"v_mov_b32 v{mSt+2}, {hex(f2u(1e-5))}",
           f"v_fmac_f32 v{mSt+2}, {hex(f2u(1/512))}, v{mSt+1}", f"v_fma_f32 v{mSt+2}, -v{mSt}, v{mSt}, v{mSt+2}",
           f"v_rsq_f32 v{mSt+2}, v{mSt+2}", f"v_mul_f32 v{mC}, v{mC}, v{mSt}"]
    mlp_pass(2048, va)
    A("s_waitcnt lgkmcnt(0)")
    A(f"v_add_f32 v{mR}, v{mR}, v{mR+1}"); A(f"v_add_f32 v{mR+2}, v{mR+2}, v{mR+3}"); A(f"v_add_f32 v{mR+4}, v{mR+4}, v{mR+5}"); A(f"v_add_f32 v{mR+6}, v{mR+6}, v{mR+7}")
    A(f"v_add_f32 v{mR}, v{mR}, v{mR+2}"); A(f"v_add_f32 v{mR+4}, v{mR+4}, v{mR+6}"); A(f"v_sub_f32 v{mR}, v{mR}, v{mC}"); A(f"v_add_f32 v{mR}, v{mR}, v{mR+4}")
    A(f"v_fma_f32 v{mR}, v{mR}, v{mSt+2}, v{mC+1}")
    A(f"v_mul_f32 v{mR+1}, {hex(f2u(-LOG2E))}, v{mR}"); A(f"v_exp_f32 v{mR+1}, v{mR+1}"); A(f"v_add_f32 v{mR+1}, 1.0, v{mR+1}"); A(f"v_rcp_f32 v{mR+1}, v{mR+1}")
    A(f"v_mul_f32 v{mR}, v{mR}, v{mR+1}")
    A(f"v_mov_b32_dpp v{mR+1}, v{mR} row_shl:2 row_mask:0xf bank_mask:0xf bound_ctrl:1")
    A(f"v_cvt_pk_bf16_f32 v{mH}, v{mR}, v{mR+1}")
    for q in range(1, 4): A(f"v_mov_b32_dpp v{mH+q}, v{mH} row_shl:{4*q} row_mask:0xf bank_mask:0xf bound_ctrl:1")
    for t in range(8):
        A(f"v_mfma_f32_16x16x32_bf16 {v(mD2+4*t,4)}, {v(mW2+4*t,4)}, {v(mH,4)}, 0")
    A(f"s_mov_b64 exec, {s(sM1,2)}")
    for t in range(8):
        A(f"buffer_store_dwordx4 {v(mD2+4*t,4)}, v{vT2}, {s(srdWS,4)}, s{sT0} offen offset:{64*(t&1)} sc1")
        if t & 1 and t < 7: A(f"s_add_u32 s{sT0}, s{sT0}, 14336")
    A("s_mov_b64 exec, -1")
    stamp(10)
    A("s_branch L_fin_end")
    A("L_end:"); A("s_endpgm")
    A("L_code_end:")
    A('.section .rodata,"a"'); A(".p2align 6"); A(f".amdhsa_kernel {NAME}_kernel")
    nv = 256 if dbg else max(R.hi, H.hi)
    nv_al = (nv + 3) // 4 * 4
    for l in (f"next_free_vgpr {nv}", "next_free_sgpr 96", f"accum_offset {nv_al}", "group_segment_fixed_size 0", "kernarg_size 104", "user_sgpr_count 2", "user_sgpr_kernarg_segment_ptr 1", "system_sgpr_workgroup_id_x 1", "float_denorm_mode_32 3"):
        A(".amdhsa_" + l)
    A(".end_amdhsa_kernel")
    bad = A.check_branches()
    if bad:
        for b in bad: print("BRANCH HAZARD", b, file=sys.stderr)
    txt = A.text()
    print(f"main regs {R.hi}, helper regs {H.hi}, nops {A.nops}, instrs {sum(1 for i in A.ins if i.ws)}", file=sys.stderr)
    return "\n".join(hdr) + "\n" + txt

if __name__ == "__main__":
    out = sys.argv[1] if len(sys.argv) > 1 else "k.s"
    kw = {}
    for a in sys.argv[2:]:
        k, val = a.split("=")
        kw[k] = val if k == "ntw" else int(val)
    open(out, "w").write(gen(**kw))
```

```python
import sys, struct
from asmlib import Asm
NAME = "adaLN_cond__sliding_block_cached__dense_activation_silu__decode"

EPOCH = 0
MODP = 0x1000
QPA  = 0x20000
QPB  = 0x60000
OPA  = 0xA0000
OPB  = 0xE0000
STA  = 0x120000
STB  = 0x122000
YA   = 0x124000
YB   = 0x138000
AP   = 0x150000
MP   = 0x170000
WS_USED = 0x1B0000
DBG  = 0x200000
QP = QPB
QB = QPB - QPA; OB = OPB - OPA; SB = STB - STA; YBO = YB - YA

LK = 0; LV = 65536; S0 = 131072; S1 = 147456
SM = LV + 49152
FL = S0
ML = S0 + 64
ZA = S0 + 256
HS = S0 + 512; QL = S0 + 1024; PAR = S0 + 2304; TAGL = S0 + 3328; PX = S0 + 3584; RED = S0 + 5632

LOG2E = 1.4426950408889634
def f2u(x): return struct.unpack("<I", struct.pack("<f", x))[0]
SC = f2u(128 ** -0.5 * LOG2E)

class Regs:
    def __init__(self, start=1):
        self.n = start; self.hi = start
    def a(self, cnt=1, al=None):
        al = al or (1 if cnt == 1 else 2)
        self.n = (self.n + al - 1) // al * al
        r = self.n; self.n += cnt; self.hi = max(self.hi, self.n)
        return r
def v(r, n=1): return f"v{r}" if n == 1 else f"v[{r}:{r+n-1}]"
def s(r, n=1): return f"s{r}" if n == 1 else f"s[{r}:{r+n-1}]"

def gen(T=28, T0=16, TK=24, P1G=6, KF=0, T2=32, TM=24, RA=1, RX=2, dbg=False, NA=64, NT=200000, CODE_PF=1, ntw="nt", DUR=0, QLOC=1, NOH=0, NOW=0, NOCLR=0):
    A = Asm()
    hdr = []
    hdr.append("; @launch grid=(256,1,1) block=(384,1,1) lds=163840")
    A('.amdgcn_target "amdgcn-amd-amdhsa--gfx950"')
    A(".text"); A(f".globl {NAME}_kernel"); A(".p2align 8"); A(f".type {NAME}_kernel,@function"); A(f"{NAME}_kernel:")
    sWV, sX8, sR = 3, 36, 37
    sKO, sT0, sT1, sT2, sT3 = 38, 39, 40, 41, 42
    sTAG, sCNT, sB, sS, sW = 43, 44, 45, 46, 47
    sM0, sM1, sM2 = 48, 50, 52
    sAB = 54; sJ = 55; sT4 = 56; sT5 = 57; sT6 = 58; sT7 = 59
    sST = 60
    srdWS, srdX = 16, 28
    vL = 1
    WSN = WS_USED if not dbg else 0x400000
    def stamp(idx):
        if dbg: A(f"s_memrealtime {s(64+2*idx,2)}")
    def stamp_flush():
        if dbg:
            A("s_waitcnt lgkmcnt(0)")
            A("s_mov_b64 exec, -1")
            A(f"v_writelane_b32 v255, s{sST+2}, 0")
            for i in range(1, 15): A(f"v_writelane_b32 v255, s{64+2*i}, {i}")
            A(f"s_mul_i32 s{sST}, s2, 6"); A(f"s_add_u32 s{sST}, s{sST}, s{sWV}"); A(f"s_lshl_b32 s{sST}, s{sST}, 7"); A(f"s_add_u32 s{sST}, s{sST}, {DBG}")
            A("v_and_b32 v254, 63, v0"); A("v_lshlrev_b32 v254, 2, v254")
            A("s_mov_b64 exec, 0xffff")
            A(f"buffer_store_dword v255, v254, {s(srdWS,4)}, s{sST} offen")
    def setexec(m):
        lo, hi = m & 0xffffffff, m >> 32
        if m == (1 << 64) - 1: A("s_mov_b64 exec, -1")
        elif hi == 0 and lo < 0x80000000: A(f"s_mov_b64 exec, {hex(lo)}")
        else: A(f"s_mov_b32 exec_lo, {hex(lo)}"); A(f"s_mov_b32 exec_hi, {hex(hi)}")
    def srd_tail(r, nbytes):
        A(f"s_mov_b32 s{r+2}, {nbytes}"); A(f"s_mov_b32 s{r+3}, 0x20000")
    lab = [0]
    def spin(va, off, vt, n=1, sleep=0):
        lab[0] += 1; L = f"L_spin{lab[0]}"
        A(f"{L}:")
        if n == 1: A(f"ds_read_b32 v{vt}, v{va} offset:{off}")
        else: A(f"ds_read_b128 {v(vt,4)}, v{va} offset:{off}")
        A("s_waitcnt lgkmcnt(0)")
        if n == 4:
            A(f"v_min3_u32 v{vt}, v{vt}, v{vt+1}, v{vt+2}"); A(f"v_min_u32 v{vt}, v{vt}, v{vt+3}")
        A(f"v_cmp_eq_u32 vcc, 0, v{vt}")
        if sleep:
            A(f"s_cbranch_vccz {L}_ok"); A(f"s_sleep {sleep}"); A(f"s_branch {L}"); A(f"{L}_ok:")
        else:
            A(f"s_cbranch_vccnz {L}")
    def smul_add(dst, terms, const=0, tmp=sT7):
        first = True
        for (r, op, k) in terms:
            d = dst if first else tmp
            A(f"s_lshl_b32 s{d}, s{r}, {k}" if op == "shl" else f"s_mul_i32 s{d}, s{r}, {k}")
            if not first: A(f"s_add_u32 s{dst}, s{dst}, s{tmp}")
            first = False
        if const: A(f"s_add_u32 s{dst}, s{dst}, {const}")

    if dbg or DUR: A(f"s_memrealtime {s(sST+2,2)}")
    if DUR: A("s_load_dwordx2 s[92:93], s[0:1], 88")
    A("s_cmp_ge_u32 s2, 256"); A("s_cbranch_scc1 L_end")
    A("v_lshrrev_b32 v1, 6, v0")
    A(f"s_and_b32 s{sX8}, s2, 7"); A(f"s_lshr_b32 s{sR}, s2, 3")
    A(f"v_readfirstlane_b32 s{sWV}, v1")
    A("v_and_b32 v1, 63, v0")
    A("v_lshrrev_b32 v2, 4, v1"); A("v_and_b32 v3, 15, v1")
    vG, vN = 2, 3
    A(f"s_lshr_b32 s{sB}, s{sR}, 4"); A(f"s_and_b32 s{sS}, s{sR}, 15")
    sRHO = 35; sCL = 34; sRP = 33
    A(f"s_lshr_b32 s{sRHO}, s{sR}, 3")
    A(f"s_cmp_lg_u32 s{sWV}, 0"); A("s_cbranch_scc1 L_notloader")

    def prod_decode():
        A(f"s_add_u32 s{sT1}, s2, 64"); A(f"s_sub_u32 s{sT2}, s2, 192")
        A(f"s_cmp_ge_u32 s{sR}, 24"); A(f"s_cselect_b32 s{sT0}, s{sT2}, s{sT1}")
        A(f"s_lshr_b32 s{sCL}, s{sT0}, 2"); A(f"s_and_b32 s{sRP}, s{sT0}, 3")

    Lr = Regs(4)
    srdWM, srdWQ, srdK, srdV, srdW, srdW2 = 8, 12, 20, 24, 4, 28
    lWM = Lr.a(4); lWQ = Lr.a(4); lK = Lr.a(4); lV = Lr.a(2); lW = Lr.a(4); lW1 = Lr.a(4); lT0 = Lr.a(); lT1 = Lr.a(); lF = Lr.a(); lOne = Lr.a(); lS = Lr.a(4, 4)
    A("s_setprio 3")
    A(f"s_load_dwordx2 {s(srdWM,2)}, s[0:1], 72")
    A(f"s_load_dwordx2 {s(srdWQ,2)}, s[0:1], 24")
    A(f"s_load_dwordx2 {s(srdK,2)}, s[0:1], 8")
    A(f"s_load_dwordx2 {s(srdV,2)}, s[0:1], 16")
    prod_decode()
    A(f"v_and_b32 v{lT0}, 7, v{vL}"); A(f"v_lshlrev_b32 v{lT1}, 1, v{vG}"); A(f"v_xor_b32 v{lT0}, v{lT0}, v{lT1}"); A(f"v_lshlrev_b32 v{lT0}, 4, v{lT0}")
    A(f"v_lshrrev_b32 v{lT1}, 3, v{vL}")
    A(f"v_mul_u32_u24 v{lWM}, 6144, v{lT1}"); A(f"v_add_u32 v{lWM}, v{lWM}, v{lT0}")
    for j in range(1, 4): A(f"v_add_u32 v{lWM+j}, {j*(8*6144-1024)}, v{lWM}")
    A(f"v_lshl_or_b32 v{lWQ}, v{lT1}, 13, v{lT0}")
    for j in range(1, 4): A(f"v_add_u32 v{lWQ+j}, {j*(8*8192-1024)}, v{lWQ}")
    srd_tail(srdWM, 512*6144); srd_tail(srdWQ, 512*8192)
    smul_add(sT0, [(sRP, "mul", 128*6144), (sCL, "shl", 7)])
    A(f"s_and_b32 s{sT2}, s{sR}, 7")
    smul_add(sT1, [(sRHO, "shl", 20), (sX8, "shl", 10), (sT2, "shl", 7)])
    A("s_barrier")
    def group(srd, vr, so, wait, nt="nt"):
        if (NOW & 1 and srd == srdWM and vr[0] == lWM) or (NOW & 2 and srd == srdWQ): return
        for j in range(4):
            if wait is not None: A(f"s_waitcnt vmcnt({wait})")
            A(f"buffer_load_dwordx4 v{vr[j]}, {s(srd,4)}, s{so} offen offset:{j*1024} {nt} lds")
    def kv_setup():
        smul_add(sKO, [(sB, "shl", 26), (sX8, "shl", 23), (sS, "shl", 16)], 28672*256)
        A(f"s_add_u32 s{srdK}, s{srdK}, s{sKO}"); A(f"s_addc_u32 s{srdK+1}, s{srdK+1}, 0")
        A(f"s_add_u32 s{srdV}, s{srdV}, s{sKO}"); A(f"s_addc_u32 s{srdV+1}, s{srdV+1}, 0")
        srd_tail(srdK, 65536); srd_tail(srdV, 65536)
        for j in range(4):
            A(f"v_add_u32 v{lT0}, {4*j}, v{vG}"); A(f"v_xor_b32 v{lT0}, v{lT0}, v{vN}"); A(f"v_lshlrev_b32 v{lT0}, 4, v{lT0}"); A(f"v_lshl_or_b32 v{lK+j}, v{vG}, 8, v{lT0}")
        smul_add(sT2, [(sR, "mul", RA), (sX8, "mul", RX)]); A(f"s_and_b32 s{sT2}, s{sT2}, 15"); A(f"s_lshl_b32 s{sT2}, s{sT2}, 12")
        A(f"v_mov_b32 v{lF}, {FL}"); A(f"v_mov_b32 v{lOne}, 1")
    def block(kind, wait):
        srd, vr, so, base, st = (srdWM, lWM, sT0, SM, 6144) if kind == "m" else (srdWQ, lWQ, sT1, S1, 8192)
        A(f"s_mov_b32 m0, {base}")
        for gi in range(4):
            group(srd, [vr+j for j in range(4)], so, wait, ntw)
            if gi < 3: A(f"s_add_u32 s{so}, s{so}, {32*st}"); A("s_add_u32 m0, m0, 4096")
    def flag(off, cnt):
        A(f"s_waitcnt vmcnt({cnt})"); A(f"ds_write_b32 v{lF}, v{lOne} offset:{off}")
    kr = [lK+j for j in range(4)]
    def kfirst(wait):
        if not KF: return
        A("s_mov_b32 m0, 0")
        for gi in range(KF):
            group(srdK, kr, sT2, wait)
            A(f"s_add_u32 s{sT2}, s{sT2}, 4096"); A(f"s_and_b32 s{sT2}, s{sT2}, 0xffff")
            if gi < KF-1: A("s_add_u32 m0, m0, 4096")
    assert T0 <= 16
    A(f"s_cmp_ge_u32 s{sR}, 24")
    A("s_waitcnt lgkmcnt(0)")
    A("s_cbranch_scc0 L_l_wqfirst")
    block("m", None if T0 == 16 else T0-1); kv_setup()
    if KF >= 4:
        kfirst(T0-1); flag(0, 4*KF); stamp(7); block("q", T0-1)
    else:
        kfirst(T0-1); block("q", T0-1); flag(0, 16); stamp(7)
    A("s_branch L_l_k")
    A("L_l_wqfirst:")
    if KF:
        kv_setup(); kfirst(T0-1); block("q", T0-1)
    else:
        block("q", None if T0 == 16 else T0-1); kv_setup()
    A(f"s_cmp_eq_u32 s{sRHO}, 2"); A("s_cbranch_scc1 L_l_k")
    block("m", T0-1); flag(0, 16)
    A("L_l_k:")
    A(f"s_mov_b32 m0, {KF*4096}")
    stamp(1)
    def kvloop(name, srd, vr, end, TT):
        A(f"{name}:")
        group(srd, vr, sT2, TT-1)
        A(f"s_add_u32 s{sT2}, s{sT2}, 4096"); A(f"s_and_b32 s{sT2}, s{sT2}, 0xffff")
        A("s_add_u32 m0, m0, 4096"); A(f"s_cmp_lt_u32 m0, {end}"); A(f"s_cbranch_scc1 {name}")
    gq = KF + (TK + 3) // 4
    kvloop("L_k1", srdK, kr, gq*4096, TK)
    flag(4, TK-1)
    stamp(2)
    if P1G > gq:
        kvloop("L_k2", srdK, kr, P1G*4096, TK)
    A(f"ds_write_b32 v{lF}, v{lOne} offset:36")
    A(f"s_cmp_lt_u32 s{sR}, 16"); A(f"s_cselect_b32 s{sT0}, 32, 48")
    A(f"s_load_dwordx2 {s(srdW,2)}, s[0:1], s{sT0}")
    A(f"s_load_dwordx2 {s(srdW2,2)}, s[0:1], 56")
    if dbg: A(f"s_load_dwordx2 {s(srdWS,2)}, s[0:1], 96")
    A(f"v_lshlrev_b32 v{lT0}, 1, v{vG}"); A(f"v_xor_b32 v{lT0}, v{lT0}, v{vN}"); A(f"v_lshlrev_b32 v{lT0}, 4, v{lT0}")
    A(f"v_lshl_or_b32 v{lV}, v{vG}, 8, v{lT0}"); A(f"v_xor_b32 v{lV+1}, 128, v{lV}")
    A(f"v_lshl_or_b32 v{lW}, v{vG}, 10, v{lT0}"); A(f"v_xor_b32 v{lT0}, 128, v{lW}")
    A(f"v_add_u32 v{lW+1}, 3072, v{lT0}"); A(f"v_add_u32 v{lW+2}, 6144, v{lW}"); A(f"v_add_u32 v{lW+3}, 9216, v{lT0}")
    A(f"v_and_b32 v{lT0}, 1, v{vG}"); A(f"v_lshlrev_b32 v{lT0}, 1, v{lT0}"); A(f"v_and_b32 v{lT1}, 3, v{vL}"); A(f"v_xor_b32 v{lT0}, v{lT0}, v{lT1}"); A(f"v_lshlrev_b32 v{lT0}, 4, v{lT0}")
    A(f"v_lshrrev_b32 v{lT1}, 2, v{vL}"); A(f"v_mul_u32_u24 v{lT1}, 3584, v{lT1}"); A(f"v_add_u32 v{lW1}, v{lT0}, v{lT1}")
    for j in range(1, 4): A(f"v_add_u32 v{lW1+j}, {j*(16*3584-1024)}, v{lW1}")
    A(f"s_mov_b32 s{sT0}, {512*3584}"); A(f"s_cmp_lt_u32 s{sR}, 16"); A(f"s_cselect_b32 s{srdW+2}, {4096*1024}, s{sT0}"); A(f"s_mov_b32 s{srdW+3}, 0x20000")
    srd_tail(srdW2, 1792*1024)
    if dbg: srd_tail(srdWS, WSN)
    kvloop("L_k3", srdK, kr, LV, TK)
    stamp(3)
    vr = [lV, lV+1, lV, lV+1]
    gv = (T + 3) // 4
    kvloop("L_v1", srdV, vr, LV + gv*4096, T)
    flag(8, T-1)
    stamp(4)
    kvloop("L_v2", srdV, vr, SM, T)
    spin(lF, 32, lS)
    kvloop("L_v3", srdV, vr, S0, T)
    stamp(5)
    k0 = (64 - T) // 8
    A(f"s_cmp_lt_u32 s{sR}, 16"); A("s_cbranch_scc1 L_l_t1")
    A(f"s_sub_u32 s{sT0}, s{sR}, 16"); A(f"s_cmp_lt_u32 s{sT0}, 7"); A("s_cbranch_scc1 L_l_mlp")
    A("s_barrier")
    for k in range(k0, 8):
        A(f"s_waitcnt vmcnt({56-8*k})"); A("s_barrier")
    A("L_l_end:")
    if DUR == 2:
        A("s_cmp_lt_u32 s2, 8"); A("s_cbranch_scc0 L_l_nd")
        A("s_mov_b32 s94, 256"); A("s_mov_b32 s95, 0x20000"); A("s_getreg_b32 s60, hwreg(HW_REG_XCC_ID)")
        A("s_lshl_b32 s61, s2, 2"); A("v_mov_b32 v4, s61"); A("v_mov_b32 v5, s62"); A("v_mov_b32 v6, s60")
        A("s_mov_b64 exec, 1")
        A("buffer_store_dword v5, v4, s[92:95], 0 offen"); A("buffer_store_dword v6, v4, s[92:95], 0 offen offset:32")
        A("L_l_nd:")
    stamp(6)
    stamp_flush()
    A("s_endpgm")
    def post_v(groups, TT, marks):
        A("s_barrier")
        n = 0; k = k0; total = 4*len(groups)
        pend = sorted(marks)
        for gi in range(len(groups) + 1):
            while k < 8 and (64 + n - TT >= 8*k + 8 or gi == len(groups)):
                A(f"s_waitcnt vmcnt({64 + n - 8*k - 8})"); A("s_barrier"); k += 1
            while pend and k == 8 and (n - TT >= pend[0] or gi == len(groups)):
                A(f"s_waitcnt vmcnt({n - pend[0]})"); A("s_barrier"); pend.pop(0)
            if gi < len(groups):
                groups[gi](TT - 1); n += 4
    A("L_l_t1:")
    spin(lF, 16, lS, 4)
    A(f"s_lshr_b32 s{sT1}, s{sR}, 2"); A(f"s_and_b32 s{sT2}, s{sR}, 3")
    smul_add(sT0, [(sX8, "shl", 19), (sT1, "shl", 17), (sT2, "shl", 8)])
    A("s_mov_b32 m0, 0")
    wr = [lW+j for j in range(4)]
    def wog(i):
        def f(w):
            group(srdW, wr, sT0, w, ntw)
            if i < 7: A(f"s_add_u32 s{sT0}, s{sT0}, 16384"); A("s_add_u32 m0, m0, 4096")
        return f
    post_v([wog(i) for i in range(8)], T2, [32])
    A("s_branch L_l_end")
    A("L_l_mlp:")
    spin(lF, 16, lS, 4)
    A(f"s_mul_i32 s{sJ}, s{sX8}, 7"); A(f"s_add_u32 s{sJ}, s{sJ}, s{sT0}")
    A(f"s_lshl_b32 s{sT0}, s{sJ}, 6"); A(f"s_lshl_b32 s{sT1}, s{sJ}, 15")
    A("s_mov_b32 m0, 0")
    def w1g(i):
        def f(w):
            group(srdW, [lW1+j for j in range(4)], sT0, w, ntw)
            A(f"s_add_u32 s{sT0}, s{sT0}, {64*3584}"); A("s_add_u32 m0, m0, 4096")
        return f
    def w2g(i):
        def f(w):
            group(srdW2, wr, sT1, w, ntw)
            if i < 7:
                A(f"s_add_u32 s{sT1}, s{sT1}, 16384" if i % 2 == 0 else f"s_sub_u32 s{sT1}, s{sT1}, {16384-256}"); A("s_add_u32 m0, m0, 4096")
        return f
    post_v([w1g(i) for i in range(8)] + [w2g(i) for i in range(8)], TM, [32, 64])
    A("s_branch L_l_end")

    A("L_notloader:")
    A(f"s_load_dwordx2 {s(srdWS,2)}, s[0:1], 96")
    A(f"s_load_dwordx2 {s(srdX,2)}, s[0:1], 0")
    A(f"s_cmp_lg_u32 s{sWV}, 1"); A("s_cbranch_scc1 L_compute")

    H = Regs(4)
    srdC, srdCode = 20, 24
    hT0 = H.a(); hT1 = H.a(); hT2 = H.a(); hT3 = H.a()
    hE = H.a(); hC = H.a(2); hX0 = H.a(4, 4); hX1 = H.a(4, 4); hXa = H.a(); hXb = H.a()
    hTR = H.a(4); hA = H.a(16, 4); hB = H.a(64, 4); hBq = H.a(64, 4); hD = H.a(16, 4); hF = H.a(4, 4)
    hP = hB + 32; hPr = hA
    hM = H.a(4); hU = H.a(12, 4); hL16 = H.a(); hAcc = H.a(); hDum = H.a(); hFl = H.a(); hOne = H.a()
    hG, hN = vG, vN
    A("s_setprio 2")
    A(f"s_load_dwordx2 {s(srdC,2)}, s[0:1], 64")
    prod_decode()
    A(f"v_and_b32 v{hT0}, 1, v{hN}"); A(f"v_lshlrev_b32 v{hT0}, 10, v{hT0}")
    A(f"v_lshrrev_b32 v{hT1}, 1, v{hN}"); A(f"v_lshl_or_b32 v{hT0}, v{hT1}, 5, v{hT0}"); A(f"v_lshl_or_b32 v{hT0}, v{hG}, 3, v{hT0}")
    A(f"v_lshlrev_b32 v{hL16}, 4, v{vL}"); A(f"v_mov_b32 v{hT2}, 0"); A(f"v_lshlrev_b32 v{hT3}, 2, v{vL}")
    A(f"v_mov_b32 v{hFl}, {FL}"); A(f"v_mov_b32 v{hOne}, 1")
    srd_tail(srdWS, WSN); srd_tail(srdC, 2048); srd_tail(srdX, 2048)
    A(f"s_lshl_b32 s{sT0}, s{sRP}, 8"); A(f"s_lshl_b32 s{sT1}, s{sRHO}, 8")
    for i in range(4): A(f"v_mov_b32 v{hF+i}, -1")
    A("s_barrier")
    A("s_waitcnt lgkmcnt(0)")
    if NOH:
        A(f"ds_write_b32 v{hFl}, v{hOne} offset:32"); A(f"ds_write_b32 v{hFl}, v{hOne} offset:12"); A("s_branch L_h_end")
    A(f"buffer_load_dword v{hE}, v{hT2}, {s(srdWS,4)}, 0 offen sc1")
    A(f"buffer_load_dwordx2 {v(hC,2)}, v{hT0}, {s(srdC,4)}, s{sT0} offen")
    A(f"buffer_load_dwordx4 {v(hX0,4)}, v{hL16}, {s(srdX,4)}, 0 offen")
    A(f"buffer_load_dwordx4 {v(hX1,4)}, v{hL16}, {s(srdX,4)}, 0 offen offset:1024")
    A(f"buffer_load_dword v{hXa}, v{hT3}, {s(srdX,4)}, s{sT1} offen")
    A(f"buffer_load_dword v{hXb}, v{hT3}, {s(srdX,4)}, s{sT1} offen offset:1024")
    if NOCLR: A("s_branch L_h_c3")
    smul_add(sT0, [(sX8, "shl", 15), (sR, "shl", 10)], OPA)
    A(f"buffer_store_dwordx4 {v(hF,4)}, v{hL16}, {s(srdWS,4)}, s{sT0} offen sc1")
    A(f"s_add_u32 s{sT0}, s{sT0}, {OB}")
    A(f"buffer_store_dwordx4 {v(hF,4)}, v{hL16}, {s(srdWS,4)}, s{sT0} offen sc1")
    A(f"s_cmp_lt_u32 s{sR}, 24"); A("s_cbranch_scc1 L_h_c1")
    A(f"s_sub_u32 s{sT1}, s2, 192")
    A(f"s_lshl_b32 s{sT0}, s{sT1}, 11"); A(f"s_add_u32 s{sT0}, s{sT0}, {AP}")
    for i in range(2): A(f"buffer_store_dwordx4 {v(hF,4)}, v{hL16}, {s(srdWS,4)}, s{sT0} offen offset:{i*1024} sc1")
    A(f"s_lshl_b32 s{sT0}, s{sT1}, 12"); A(f"s_add_u32 s{sT0}, s{sT0}, {MP}")
    for i in range(4): A(f"buffer_store_dwordx4 {v(hF,4)}, v{hL16}, {s(srdWS,4)}, s{sT0} offen offset:{i*1024} sc1")
    A("L_h_c1:")
    A(f"s_cmp_lg_u32 s{sS}, 0"); A("s_cbranch_scc1 L_h_c2")
    A(f"v_and_b32 v{hT0}, 31, v{vL}"); A(f"v_lshlrev_b32 v{hT0}, 4, v{hT0}"); A(f"v_lshrrev_b32 v{hT1}, 5, v{vL}"); A(f"v_lshl_or_b32 v{hT0}, v{hT1}, 13, v{hT0}")
    smul_add(sT0, [(sX8, "shl", 10), (sB, "shl", 9)], STA)
    A(f"buffer_store_dwordx4 {v(hF,4)}, v{hT0}, {s(srdWS,4)}, s{sT0} offen sc1")
    A("L_h_c2:")
    A(f"s_cmp_ge_u32 s{sR}, 16"); A("s_cbranch_scc1 L_h_c3")
    smul_add(sT0, [(sX8, "mul", 16*640), (sR, "mul", 640)], YA)
    setexec(0xffffffffff)
    A(f"buffer_store_dwordx4 {v(hF,4)}, v{hL16}, {s(srdWS,4)}, s{sT0} offen sc1")
    A(f"s_add_u32 s{sT0}, s{sT0}, {YBO}")
    A(f"buffer_store_dwordx4 {v(hF,4)}, v{hL16}, {s(srdWS,4)}, s{sT0} offen sc1")
    A("s_mov_b64 exec, -1")
    A("L_h_c3:")
    if CODE_PF:
        A(f"s_getpc_b64 {s(srdCode,2)}")
        A("L_pc:")
        A(f"s_sub_u32 s{srdCode}, s{srdCode}, L_pc-{NAME}_kernel"); A(f"s_subb_u32 s{srdCode+1}, s{srdCode+1}, 0")
        srd_tail(srdCode, f"L_code_end-{NAME}_kernel")
        A(f"v_lshlrev_b32 v{hT1}, 7, v{vL}"); A(f"s_lshl_b32 s{sT0}, s{sR}, 9")
        A("s_mov_b64 exec, 0xf")
        A(f"buffer_load_dword v{hDum}, v{hT1}, {s(srdCode,4)}, s{sT0} offen")
        A("s_mov_b64 exec, -1")
    NPF = 1 if CODE_PF else 0
    def tr128_base(dst4, t0, t1, lbase):
        A(f"v_lshrrev_b32 v{t0}, 2, v{vL}"); A(f"v_bfe_u32 v{t1}, v{vL}, 3, 2")
        A(f"v_lshlrev_b32 v{t1}, 5, v{t1}"); A(f"v_lshl_or_b32 v{t0}, v{t0}, 7, v{t1}")
        A(f"v_and_b32 v{t1}, 3, v{vL}"); A(f"v_lshl_or_b32 v{t0}, v{t1}, 3, v{t0}")
        A(f"v_add_u32 v{dst4}, {lbase}, v{t0}")
        for t in range(1, 4): A(f"v_xor_b32 v{dst4+t}, {32*t}, v{dst4}")
    def tr128_read(dst, base4, off):
        for sg in range(4):
            for t in range(4):
                for u in range(2):
                    A(f"ds_read_b64_tr_b16 {v(dst + (sg*4 + t)*4 + 2*u, 2)}, v{base4+t} offset:{off + (32*sg + 16*u)*128}")
    tr128_base(hTR, hT0, hT1, SM)
    stamp(1)
    A(f"s_waitcnt vmcnt({4+(0 if NOCLR else 2)+NPF})")
    A(f"v_readfirstlane_b32 s{sTAG}, v{hE}")
    A(f"s_add_u32 s{sTAG}, s{sTAG}, 0x9E3779B1")
    def mod_block(foff):
        A(f"v_lshlrev_b32 v{hU+0}, 16, v{hC}"); A(f"v_and_b32 v{hU+1}, 0xffff0000, v{hC}")
        A(f"v_lshlrev_b32 v{hU+2}, 16, v{hC+1}"); A(f"v_and_b32 v{hU+3}, 0xffff0000, v{hC+1}")
        for i in range(4): A(f"v_mul_f32 v{hU+4+i}, {hex(f2u(-LOG2E))}, v{hU+i}")
        for i in range(4): A(f"v_exp_f32 v{hU+4+i}, v{hU+4+i}")
        for i in range(4): A(f"v_add_f32 v{hU+4+i}, 1.0, v{hU+4+i}")
        for i in range(4): A(f"v_rcp_f32 v{hU+4+i}, v{hU+4+i}")
        for i in range(4): A(f"v_mul_f32 v{hU+i}, v{hU+i}, v{hU+4+i}")
        A(f"v_cvt_pk_bf16_f32 v{hA}, v{hU}, v{hU+1}"); A(f"v_cvt_pk_bf16_f32 v{hA+1}, v{hU+2}, v{hU+3}")
        for sg in range(4):
            for q in range(4):
                sh = 4*sg + 2*(q >> 1)
                if sh: A(f"v_mov_b32_dpp v{hA+4*sg+q}, v{hA+(q&1)} row_shl:{sh} row_mask:0xf bank_mask:0xf bound_ctrl:1")
        smul_add(sT0, [(sCL, "shl", 11), (sRP, "shl", 9)], MODP)
        A(f"v_lshlrev_b32 v{hT0}, 3, v{vL}")
        for t in range(4): A(f"v_mov_b32 v{hU+2*t+1}, s{sTAG}")
        spin(hFl, foff, hT1)
        stamp(2)
        tr128_read(hB, hTR, 0)
        A(f"ds_write_b32 v{hFl}, v{hOne} offset:32")
        for sg in range(4):
            A(f"s_waitcnt lgkmcnt({0 if dbg else min(15, 25-8*sg)})")
            for t in range(4):
                A(f"v_mfma_f32_16x16x32_bf16 {v(hD+4*t,4)}, {v(hA+4*sg,4)}, {v(hB+(sg*4+t)*4,4)}, {'0' if sg == 0 else v(hD+4*t,4)}")
        A(f"s_waitcnt vmcnt({NPF})")
        for t in range(4): A(f"v_cvt_pk_bf16_f32 v{hU+2*t}, v{hD+4*t}, v{hD+4*t+1}")
        A("s_mov_b64 exec, 0xffff")
        for t in range(4):
            A(f"buffer_store_dwordx2 {v(hU+2*t,2)}, v{hT0}, {s(srdWS,4)}, s{sT0} offen offset:{t*128} sc1")
        A("s_mov_b64 exec, -1")
        stamp(3)
    A(f"s_cmp_lt_u32 s{sR}, 24"); A("s_cbranch_scc1 L_h_m1")
    mod_block(0)
    A("s_branch L_h_m1b")
    A("L_h_m1:")
    A(f"s_waitcnt vmcnt({NPF+(0 if NOCLR else 2)})")
    A("L_h_m1b:")
    hGa = hT2; hGr = hT3
    A(f"v_lshrrev_b32 v{hT0}, 5, v{vL}"); A(f"v_and_b32 v{hT1}, 31, v{vL}"); A(f"v_lshlrev_b32 v{hT1}, 4, v{hT1}"); A(f"v_lshl_or_b32 v{hGa}, v{hT0}, 11, v{hT1}")
    A(f"s_lshl_b32 s{sT0}, s{sRHO}, 12"); A(f"s_add_u32 s{sT0}, s{sT0}, {MODP}"); A(f"s_add_u32 s{sT1}, s{sT0}, {8*2048}")
    A(f"v_lshlrev_b32 v{hT0}, 14, v{hG}"); A(f"v_lshl_or_b32 v{hGr}, v{hN}, 4, v{hT0}")
    A(f"s_lshr_b32 s{sT4}, s{sR}, 1"); A(f"s_and_b32 s{sT5}, s{sR}, 1")
    smul_add(sT2, [(sT4, "shl", 11), (sT5, "shl", 8)], MODP + 16*2048)
    A(f"s_mov_b32 s{sCNT}, 0")
    def modp_loads():
        for rp in range(4):
            A(f"buffer_load_dwordx4 {v(hP+4*rp,4)}, v{hGa}, {s(srdWS,4)}, s{sT0} offen offset:{rp*512} sc1")
            A(f"buffer_load_dwordx4 {v(hP+16+4*rp,4)}, v{hGa}, {s(srdWS,4)}, s{sT1} offen offset:{rp*512} sc1")
    def unpack(dst, src, n):
        for i in range(n):
            A(f"v_lshlrev_b32 v{dst+2*i}, 16, v{src+i}"); A(f"v_and_b32 v{dst+2*i+1}, 0xffff0000, v{src+i}")
    def allreduce64(regs, op, tmp):
        for pat in ("quad_perm:[1,0,3,2]", "quad_perm:[2,3,0,1]", "row_half_mirror", "row_mirror"):
            for r in regs: A(f"{op}_dpp v{r}, v{r}, v{r} {pat} row_mask:0xf bank_mask:0xf bound_ctrl:1")
        for sw in ("v_permlane16_swap_b32", "v_permlane32_swap_b32"):
            for i, r in enumerate(regs): A(f"v_mov_b32 v{tmp+i}, v{r}")
            for i, r in enumerate(regs): A(f"{sw} v{tmp+i}, v{r}")
            for i, r in enumerate(regs): A(f"{op} v{r}, v{r}, v{tmp+i}")
    xs = hBq
    unpack(xs, hX0, 4); unpack(xs+8, hX1, 4)
    for b in range(2):
        A(f"v_add_f32 v{hM+b}, v{xs+8*b}, v{xs+8*b+1}")
        for i in range(2, 8): A(f"v_add_f32 v{hM+b}, v{hM+b}, v{xs+8*b+i}")
    allreduce64([hM, hM+1], "v_add_f32", hU)
    for b in range(2): A(f"v_mul_f32 v{hM+b}, {hex(f2u(1/512))}, v{hM+b}")
    for b in range(2):
        for i in range(8): A(f"v_sub_f32 v{xs+8*b+i}, v{xs+8*b+i}, v{hM+b}")
        A(f"v_mul_f32 v{hM+2+b}, v{xs+8*b}, v{xs+8*b}")
        for i in range(1, 8): A(f"v_fmac_f32 v{hM+2+b}, v{xs+8*b+i}, v{xs+8*b+i}")
    allreduce64([hM+2, hM+3], "v_add_f32", hU)
    for b in range(2): A(f"v_mov_b32 v{hU+b}, {hex(f2u(1e-5))}"); A(f"v_fmac_f32 v{hU+b}, {hex(f2u(1/512))}, v{hM+2+b}")
    for b in range(2): A(f"v_rsq_f32 v{hM+2+b}, v{hU+b}")
    xn = H.a(4)
    unpack(xn, hXa, 1); unpack(xn+2, hXb, 1)
    for b in range(2):
        for c in range(2):
            A(f"v_sub_f32 v{xn+2*b+c}, v{xn+2*b+c}, v{hM+b}"); A(f"v_mul_f32 v{xn+2*b+c}, v{xn+2*b+c}, v{hM+2+b}")
    A(f"s_cmp_lt_u32 s{sR}, 16"); A(f"s_cselect_b32 s{sT4}, 0, 4"); A(f"v_add_u32 v{hAcc}, s{sT4}, v{hFl}")
    spin(hAcc, 0, hT1)
    tr128_read(hBq, hTR, S1 - SM)
    A(f"s_cmp_lt_u32 s{sR}, 16"); A("s_cbranch_scc1 L_h_m2")
    A(f"ds_write_b32 v{hFl}, v{hOne} offset:32")
    A("s_branch L_h_m3")
    A("L_h_m2:")
    mod_block(4)
    A("L_h_m3:")
    A(f"s_lshl_b32 s{sT0}, s{sRHO}, 12"); A(f"s_add_u32 s{sT0}, s{sT0}, {MODP}"); A(f"s_add_u32 s{sT1}, s{sT0}, {8*2048}")
    spin(hFl, 36, hT1)
    stamp(10)
    modp_loads()
    hHa = H.a(); hHr = H.a(); hQa = H.a()
    A(f"v_bfe_u32 v{hT0}, v{vL}, 1, 2"); A(f"v_lshlrev_b32 v{hT0}, 4, v{hT0}"); A(f"v_lshl_or_b32 v{hT0}, v{hG}, 6, v{hT0}")
    A(f"v_and_b32 v{hT1}, 8, v{vL}"); A(f"v_or_b32 v{hT0}, v{hT0}, v{hT1}"); A(f"v_and_b32 v{hT1}, 1, v{vL}"); A(f"v_lshl_or_b32 v{hT0}, v{hT1}, 2, v{hT0}")
    A(f"v_add_u32 v{hHa}, {HS}, v{hT0}")
    A(f"v_bfe_u32 v{hT1}, v{vL}, 2, 1"); A(f"v_lshlrev_b32 v{hT1}, 8, v{hT1}"); A(f"v_lshl_or_b32 v{hT1}, v{hG}, 4, v{hT1}"); A(f"v_add_u32 v{hHr}, {HS}, v{hT1}")
    A(f"v_and_b32 v{hT0}, 1, v{hG}"); A(f"v_lshlrev_b32 v{hT0}, 14, v{hT0}"); A(f"v_lshrrev_b32 v{hT1}, 1, v{hG}"); A(f"v_lshl_or_b32 v{hT0}, v{hT1}, 7, v{hT0}"); A(f"v_lshl_or_b32 v{hQa}, v{hN}, 3, v{hT0}")
    A(f"s_and_b32 s{sT4}, s{sR}, 7")
    smul_add(sT6, [(sX8, "shl", 15), (sRHO, "shl", 12), (sT4, "shl", 9)], QPA)
    def tagcheck(rs):
        A(f"v_xor_b32 v{hAcc}, s{sTAG}, v{rs[0]}")
        for r in rs[1:]: A(f"v_bitop3_b32 v{hAcc}, v{r}, s{sTAG}, v{hAcc} bitop3:0xbe")
        A(f"v_cmp_ne_u32 vcc, 0, v{hAcc}")
    A("L_h_p1:")
    A("s_waitcnt vmcnt(0)")
    tagcheck([hP+4*i+k for i in range(8) for k in (1, 3)])
    A("s_cbranch_vccz L_h_p1ok")
    A(f"s_add_u32 s{sCNT}, s{sCNT}, 1"); A(f"s_cmp_gt_u32 s{sCNT}, {NT}"); A("s_cbranch_scc1 L_h_p1ok")
    modp_loads()
    A("s_branch L_h_p1")
    A("L_h_p1ok:")
    stamp(4)
    if dbg: A(f"s_mov_b32 s80, s{sCNT}")
    def sum_granules(dst, src, n, stride):
        t = hB + 24
        for i in range(n):
            for c in range(2):
                d = src + i*stride + 2*c
                if i == 0:
                    A(f"v_lshlrev_b32 v{dst+2*c}, 16, v{d}"); A(f"v_and_b32 v{dst+2*c+1}, 0xffff0000, v{d}")
                else:
                    A(f"v_lshlrev_b32 v{t}, 16, v{d}"); A(f"v_and_b32 v{t+1}, 0xffff0000, v{d}")
                    A(f"v_add_f32 v{dst+2*c}, v{dst+2*c}, v{t}"); A(f"v_add_f32 v{dst+2*c+1}, v{dst+2*c+1}, v{t+1}")
    sum_granules(hU, hP, 4, 4); sum_granules(hU+4, hP+16, 4, 4)
    for c in range(2):
        for b in range(2):
            A(f"v_add_f32 v{hU+4+2*c+b}, 1.0, v{hU+4+2*c+b}")
            A(f"v_fmac_f32 v{hU+2*c+b}, v{xn+2*b+c}, v{hU+4+2*c+b}")
    A(f"v_cvt_pk_bf16_f32 v{hU+8}, v{hU}, v{hU+2}"); A(f"v_cvt_pk_bf16_f32 v{hU+9}, v{hU+1}, v{hU+3}")
    A(f"ds_write_b32 v{hHa}, v{hU+8}"); A(f"ds_write_b32 v{hHa}, v{hU+9} offset:256")
    for sg in range(4): A(f"ds_read_b128 {v(hA+4*sg,4)}, v{hHr} offset:{64*sg}")
    A(f"v_mov_b32 v{hU+1}, s{sTAG}"); A(f"v_mov_b32 v{hU+3}, s{sTAG}")
    A(f"s_add_u32 s{sT5}, s{sT6}, {QB}")
    for sg in range(4):
        A(f"s_waitcnt lgkmcnt({0 if dbg else 3-sg})")
        for t in range(4):
            c = "0" if sg == 0 else v(hD+4*t, 4)
            A(f"v_mfma_f32_16x16x32_bf16 {v(hD+4*t,4)}, {v(hA+4*sg,4)}, {v(hBq+(sg*4+t)*4,4)}, {c}")
    smul_add(sT0, [(sX8, "shl", 15), (sB, "shl", 14)], QPA if QLOC else QPB)
    A(f"s_add_u32 s{sT1}, s{sT0}, 4096"); A(f"s_add_u32 s{sT3}, s{sT0}, 8192"); A(f"s_add_u32 s{sT4}, s{sT0}, 12288")
    A(f"s_mov_b32 s{sCNT}, 0")
    A(f"v_mov_b32 v{hU}, v{hD}"); A(f"v_mov_b32 v{hU+2}, v{hD+8}")
    A(f"v_mov_b32_dpp v{hU}, v{hD+4} quad_perm:[0,1,2,3] row_mask:0xc bank_mask:0xf")
    A(f"v_mov_b32_dpp v{hU+2}, v{hD+12} quad_perm:[0,1,2,3] row_mask:0xc bank_mask:0xf")
    if QLOC:
        A(f"buffer_store_dwordx2 {v(hU,2)}, v{hQa}, {s(srdWS,4)}, s{sT6} offen")
        A(f"buffer_store_dwordx2 {v(hU+2,2)}, v{hQa}, {s(srdWS,4)}, s{sT6} offen offset:256")
    A(f"buffer_store_dwordx2 {v(hU,2)}, v{hQa}, {s(srdWS,4)}, s{sT5} offen sc1")
    A(f"buffer_store_dwordx2 {v(hU+2,2)}, v{hQa}, {s(srdWS,4)}, s{sT5} offen offset:256 sc1")
    stamp(5)
    hP = hBq
    for i in range(16): A(f"v_mov_b32 v{hPr+i}, s{sTAG}")
    A(f"v_lshlrev_b32 v{hT0}, 2, v{vL}"); A(f"v_add_u32 v{hT0}, {QL}, v{hT0}")
    A("L_h_p2:")
    A(f"s_cmp_ge_u32 s{sR}, 16"); A("s_cbranch_scc1 L_h_p2a")
    for rp in range(4):
        A(f"buffer_load_dwordx4 {v(hPr+4*rp,4)}, v{hGr}, {s(srdWS,4)}, s{sT2} offen offset:{rp*512} sc1")
    A("L_h_p2a:")
    for rho, so in enumerate((sT0, sT1, sT3, sT4)):
        for h4 in range(4):
            A(f"buffer_load_dwordx4 {v(hP+(rho*4+h4)*4,4)}, v{hL16}, {s(srdWS,4)}, s{so} offen offset:{h4*1024} sc1")
    A("s_waitcnt vmcnt(0)")
    tagcheck([hP+4*i+k for i in range(16) for k in (1, 3)] + [hPr+4*i+k for i in range(4) for k in (1, 3)])
    A("s_cbranch_vccz L_h_p2ok")
    A(f"s_add_u32 s{sCNT}, s{sCNT}, 1")
    if QLOC:
        A(f"s_cmp_eq_u32 s{sCNT}, {max(NA//8,1)}"); A("s_cbranch_scc0 L_h_p2n")
        for so in (sT0, sT1, sT3, sT4): A(f"s_add_u32 s{so}, s{so}, {QB}")
        A("L_h_p2n:")
    A(f"s_cmp_le_u32 s{sCNT}, {NT}"); A("s_cbranch_scc1 L_h_p2")
    A("L_h_p2ok:")
    stamp(6)
    if dbg: A(f"s_mov_b32 s82, s{sCNT}")
    for h4 in range(4):
        for k in (0, 2):
            d = hP + h4*4 + k
            A(f"v_add_f32 v{d}, v{d}, v{d+16}"); A(f"v_add_f32 v{d+32}, v{d+32}, v{d+48}"); A(f"v_add_f32 v{d}, v{d}, v{d+32}")
        A(f"v_cvt_pk_bf16_f32 v{hU+h4}, v{hP+h4*4}, v{hP+h4*4+2}")
        A(f"ds_write_b32 v{hT0}, v{hU+h4} offset:{h4*288}")
    A(f"ds_write_b32 v{hFl}, v{hOne} offset:12")
    A(f"v_mov_b32 v{hT0}, {TAGL}"); A(f"v_mov_b32 v{hT1}, s{sTAG}"); A(f"ds_write_b32 v{hT0}, v{hT1}")
    A(f"s_cmp_ge_u32 s{sR}, 16"); A("s_cbranch_scc1 L_h_end")
    sum_granules(hU, hPr, 4, 4)
    A(f"v_cmp_eq_u32 vcc, 2, v{hG}"); A(f"v_cndmask_b32 v{hT0}, 0, 1.0, vcc")
    def round_pairs():
        A(f"v_cvt_pk_bf16_f32 v{hU+4}, v{hU}, v{hU+2}"); A(f"v_cvt_pk_bf16_f32 v{hU+5}, v{hU+1}, v{hU+3}")
        for b in range(2):
            A(f"v_lshlrev_b32 v{hU+b}, 16, v{hU+4+b}"); A(f"v_and_b32 v{hU+2+b}, 0xffff0000, v{hU+4+b}")
    round_pairs()
    for i in range(4): A(f"v_add_f32 v{hU+i}, v{hU+i}, v{hT0}")
    round_pairs()
    A(f"v_lshlrev_b32 v{hT0}, 8, v{hG}"); A(f"v_lshl_or_b32 v{hT0}, v{hN}, 3, v{hT0}"); A(f"v_add_u32 v{hT0}, {PAR}, v{hT0}")
    A(f"v_mov_b32 v{hU+6}, v{hU}"); A(f"v_mov_b32 v{hU+7}, v{hU+2}"); A(f"v_mov_b32 v{hU+8}, v{hU+1}"); A(f"v_mov_b32 v{hU+9}, v{hU+3}")
    A(f"ds_write_b64 v{hT0}, {v(hU+6,2)}"); A(f"ds_write_b64 v{hT0}, {v(hU+8,2)} offset:128")
    A(f"v_bfe_u32 v{hT0}, v{hN}, 1, 2"); A(f"v_lshlrev_b32 v{hT0}, 4, v{hT0}"); A(f"v_and_b32 v{hT1}, 8, v{hN}"); A(f"v_or_b32 v{hT0}, v{hT0}, v{hT1}")
    A(f"v_and_b32 v{hT1}, 1, v{hN}"); A(f"v_lshl_or_b32 v{hT0}, v{hT1}, 2, v{hT0}"); A(f"v_and_b32 v{hT1}, 1, v{hG}"); A(f"v_lshl_or_b32 v{hT0}, v{hT1}, 6, v{hT0}")
    smul_add(sT0, [(sX8, "mul", 16*640), (sR, "mul", 640)], YA); A(f"s_add_u32 s{sT1}, s{sT0}, {YBO}")
    setexec(0xffffffff0000)
    for b in range(2): A(f"buffer_store_dword v{hU+4+b}, v{hT0}, {s(srdWS,4)}, s{sT0} offen offset:{256+128*b}")
    for b in range(2): A(f"buffer_store_dword v{hU+4+b}, v{hT0}, {s(srdWS,4)}, s{sT1} offen offset:{256+128*b} sc1")
    A("L_h_end:")
    A("s_waitcnt lgkmcnt(0)")
    stamp(7)
    stamp_flush()
    A("s_endpgm")

    A("L_compute:")
    R = Regs(4)
    srdO = 32
    vT0 = R.a(); vT1 = R.a(); vT2 = R.a(); vT3 = R.a(); vFl = R.a(); vH4 = R.a(); vC3 = R.a(); vGm = R.a()
    vKa = R.a(4); vQa = R.a(4); vVa = R.a(2); vTRV = R.a(); vMLw = R.a(); vMLr = R.a(); vPw = R.a(); vPr = R.a(); vOa = R.a(); vSa = R.a()
    vM = R.a(); vLs = R.a(); vMc = R.a(); vU = R.a(8, 4); vS = R.a(4, 4); vSt = R.a(2, 2)
    vKb = R.a(64, 4); vQ = R.a(64, 4); vO = R.a(8, 4); vX = R.a(24, 4)
    vP = vKb; vVb = vKb + 32
    A(f"s_sub_u32 s{sW}, s{sWV}, 2")
    A(f"s_cmp_lg_u32 s{sW}, 0"); A("s_cbranch_scc1 L_c_b0")
    A(f"v_lshlrev_b32 v{vT0}, 4, v{vL}"); A(f"v_add_u32 v{vT0}, {FL}, v{vT0}")
    A(f"v_subrev_u32 v{vT1}, 4, v{vL}"); A(f"v_cmp_gt_u32 vcc, 8, v{vT1}"); A(f"v_cndmask_b32 v{vU}, 0, -1, vcc")
    for i in range(1, 4): A(f"v_mov_b32 v{vU+i}, v{vU}")
    setexec(0xffffffff)
    A(f"ds_write_b128 v{vT0}, {v(vU,4)}")
    A("s_mov_b64 exec, -1")
    A("s_waitcnt lgkmcnt(0)")
    A("L_c_b0:")
    A("s_barrier")
    A(f"s_load_dwordx2 {s(srdO,2)}, s[0:1], 80")
    A(f"v_mov_b32 v{vFl}, {FL}")
    A(f"v_and_b32 v{vH4}, 3, v{vN}"); A(f"v_lshrrev_b32 v{vGm}, 2, v{vN}"); A(f"v_and_b32 v{vC3}, 3, v{vL}")
    A(f"v_xor_b32 v{vT0}, v{vG}, v{vN}"); A(f"v_lshlrev_b32 v{vT0}, 4, v{vT0}"); A(f"v_lshl_or_b32 v{vT0}, v{vN}, 8, v{vT0}")
    A(f"s_lshl_b32 s{sT0}, s{sW}, 14"); A(f"v_add_u32 v{vKa}, s{sT0}, v{vT0}")
    for sg in range(1, 4): A(f"v_xor_b32 v{vKa+sg}, {64*sg}, v{vKa}")
    A(f"v_mul_u32_u24 v{vT0}, 288, v{vH4}"); A(f"v_lshl_add_u32 v{vT0}, v{vG}, 4, v{vT0}"); A(f"v_add_u32 v{vT0}, {QL}, v{vT0}"); A(f"v_mov_b32 v{vT1}, {ZA}")
    for gm_ in range(4):
        A(f"v_cmp_eq_u32 vcc, {gm_}, v{vGm}"); A(f"v_cndmask_b32 v{vQa+gm_}, v{vT1}, v{vT0}, vcc")
    A(f"v_lshrrev_b32 v{vT0}, 2, v{vL}"); A(f"v_and_b32 v{vT1}, 7, v{vT0}"); A(f"v_lshlrev_b32 v{vT1}, 5, v{vT1}"); A(f"v_lshl_or_b32 v{vT0}, v{vT0}, 8, v{vT1}")
    A(f"v_lshl_or_b32 v{vTRV}, v{vC3}, 3, v{vT0}")
    A(f"s_lshl_b32 s{sT0}, s{sW}, 6"); A(f"v_xor_b32 v{vT0}, s{sT0}, v{vTRV}"); A(f"v_add_u32 v{vVa}, {LV}, v{vT0}"); A(f"v_xor_b32 v{vVa+1}, 32, v{vVa}")
    A(f"v_lshlrev_b32 v{vT0}, 5, v{vH4}"); A(f"v_add_u32 v{vMLr}, {ML}, v{vT0}"); A(f"s_lshl_b32 s{sT0}, s{sW}, 3"); A(f"v_add_u32 v{vMLw}, s{sT0}, v{vMLr}")
    A(f"v_lshlrev_b32 v{vT0}, 6, v{vG}"); A(f"v_lshl_or_b32 v{vT0}, v{vH4}, 4, v{vT0}"); A(f"v_add_u32 v{vPr}, {PX}, v{vT0}")
    A(f"v_lshrrev_b32 v{vT0}, 1, v{vGm}"); A(f"v_and_b32 v{vT1}, 1, v{vGm}"); A(f"v_lshlrev_b32 v{vT1}, 3, v{vT1}"); A(f"v_lshl_or_b32 v{vT0}, v{vT0}, 8, v{vT1}")
    A(f"s_lshl_b32 s{sT0}, s{sW}, 9"); A(f"v_add3_u32 v{vPw}, v{vT0}, s{sT0}, v{vPr}")
    A(f"v_lshlrev_b32 v{vOa}, 6, v{vN}"); A(f"v_lshl_or_b32 v{vOa}, v{vG}, 4, v{vOa}"); A(f"v_lshlrev_b32 v{vSa}, 7, v{vN}")
    A(f"v_cmp_gt_u32 {s(sM0,2)}, 4, v{vN}")
    A(f"s_lshl_b64 {s(sM1,2)}, 1, s{sW}")
    sOA, sOB, sSA, sSB = 4, 5, 6, 7
    smul_add(sOA, [(sX8, "shl", 15), (sR, "shl", 10), (sW, "shl", 8)], OPA); A(f"s_add_u32 s{sOB}, s{sOA}, {OB}")
    smul_add(sSA, [(sX8, "shl", 10), (sB, "shl", 9), (sS, "shl", 3)], STA); A(f"s_add_u32 s{sSB}, s{sSA}, {SB}")
    sSC = 8
    A(f"s_mov_b32 s{sSC}, {hex(SC)}")
    srd_tail(srdWS, WSN); srd_tail(srdX, 2048); srd_tail(srdO, 2048)
    A(f"s_lshl_b32 s{sT0}, s{sW}, 2"); A(f"v_add_u32 v{vT2}, s{sT0}, v{vFl}"); A(f"v_mov_b32 v{vT3}, 1")
    stamp(1)
    spin(vFl, 8, vT0, sleep=2)
    for t in range(4):
        for sg in range(4): A(f"ds_read_b128 {v(vKb+(t*4+sg)*4,4)}, v{vKa+sg} offset:{t*4096}")
    A(f"ds_write_b32 v{vT2}, v{vT3} offset:16")
    stamp(2)
    spin(vFl, 12, vT0, sleep=1)
    stamp(3)
    for t in range(4):
        for sg in range(4): A(f"ds_read_b128 {v(vQ+(t*4+sg)*4,4)}, v{vQa+t} offset:{64*sg}")
    for t in range(4):
        for sg in range(4):
            i = t*4 + sg
            if dbg: A("s_waitcnt lgkmcnt(0)") if i == 0 else None
            elif i % 2 == 0: A(f"s_waitcnt lgkmcnt({14-i})")
            A(f"v_mfma_f32_16x16x32_bf16 {v(vS,4)}, {v(vKb+i*4,4)}, {v(vQ+i*4,4)}, {'0' if i == 0 else v(vS,4)}")
    def red_all(r, op, t):
        for ro in (4, 8): A(f"{op}_dpp v{r}, v{r}, v{r} row_ror:{ro} row_mask:0xf bank_mask:0xf bound_ctrl:1")
        for sw in ("v_permlane16_swap_b32", "v_permlane32_swap_b32"):
            A(f"v_mov_b32 v{t}, v{r}"); A(f"{sw} v{t}, v{r}"); A(f"{op} v{r}, v{r}, v{t}")
    A(f"v_max3_f32 v{vM}, v{vS}, v{vS+1}, v{vS+2}"); A(f"v_max_f32 v{vM}, v{vM}, v{vS+3}")
    red_all(vM, "v_max_f32", vT0)
    A(f"v_mul_f32 v{vSt}, s{sSC}, v{vM}")
    for i in range(4): A(f"v_fma_f32 v{vS+i}, v{vS+i}, s{sSC}, -v{vSt}")
    for i in range(4): A(f"v_exp_f32 v{vS+i}, v{vS+i}")
    A(f"v_add_f32 v{vT0}, v{vS}, v{vS+1}"); A(f"v_add_f32 v{vT1}, v{vS+2}, v{vS+3}"); A(f"v_add_f32 v{vSt+1}, v{vT0}, v{vT1}")
    red_all(vSt+1, "v_add_f32", vT0)
    A("s_mov_b64 exec, 0xf")
    A(f"ds_write_b64 v{vMLw}, {v(vSt,2)}")
    A("s_mov_b64 exec, -1")
    A(f"s_mov_b32 s{sCNT}, 0")
    A("L_c_ml:")
    A(f"ds_read_b128 {v(vU,4)}, v{vMLr}"); A(f"ds_read_b128 {v(vU+4,4)}, v{vMLr} offset:16")
    A(f"s_add_u32 s{sCNT}, s{sCNT}, 1"); A(f"s_cmp_gt_u32 s{sCNT}, {NT}"); A("s_cbranch_scc1 L_c_mlok")
    A("s_waitcnt lgkmcnt(0)")
    A(f"v_max3_u32 v{vT0}, v{vU+1}, v{vU+3}, v{vU+5}"); A(f"v_max_u32 v{vT0}, v{vT0}, v{vU+7}")
    A(f"v_cmp_eq_u32 vcc, -1, v{vT0}")
    A("s_cbranch_vccnz L_c_ml")
    A("L_c_mlok:")
    A("s_waitcnt lgkmcnt(0)")
    A(f"v_max3_f32 v{vMc}, v{vU}, v{vU+2}, v{vU+4}"); A(f"v_max_f32 v{vMc}, v{vMc}, v{vU+6}")
    for i in range(4): A(f"v_sub_f32 v{vU+2*i}, v{vU+2*i}, v{vMc}")
    A(f"v_sub_f32 v{vT0}, v{vSt}, v{vMc}")
    for i in range(4): A(f"v_exp_f32 v{vU+2*i}, v{vU+2*i}")
    A(f"v_exp_f32 v{vT0}, v{vT0}")
    A(f"v_mul_f32 v{vLs}, v{vU}, v{vU+1}")
    for i in range(1, 4): A(f"v_fmac_f32 v{vLs}, v{vU+2*i}, v{vU+2*i+1}")
    A(f"v_rcp_f32 v{vT1}, v{vLs}")
    A(f"v_mov_b32 v{vSt}, v{vMc}"); A(f"v_mov_b32 v{vSt+1}, v{vLs}")
    A(f"v_mul_f32 v{vT0}, v{vT0}, v{vT1}")
    for i in range(4): A(f"v_mul_f32 v{vS+i}, v{vS+i}, v{vT0}")
    A(f"v_cvt_pk_bf16_f32 v{vU}, v{vS}, v{vS+1}"); A(f"v_cvt_pk_bf16_f32 v{vU+1}, v{vS+2}, v{vS+3}")
    A(f"ds_write_b64 v{vPw}, {v(vU,2)}")
    A(f"s_mov_b64 exec, {s(sM1,2)}")
    A(f"buffer_store_dwordx2 {v(vSt,2)}, v{vSa}, {s(srdWS,4)}, s{sSA} offen")
    A(f"buffer_store_dwordx2 {v(vSt,2)}, v{vSa}, {s(srdWS,4)}, s{sSB} offen sc1")
    A("s_mov_b64 exec, -1")
    stamp(4)
    tAa = vX; tSa = vX + 1; tX = vX + 2; tCol = vX + 3; tPar = vX + 4; tY = vX + 8; tAP = vX + 10; tL16 = vX + 11; tTR = vX + 12; tW = vX + 16
    mYa = vX; mSa = vX + 1; mXw = vX + 2; mXr = vX + 3; mXr2 = vX + 4; mMP = vX + 5; mA1 = vX + 6; mA2 = vX + 8
    sA0, sA1, sA2, sA3, sA4, sA5, sA6, sA7, sA8 = 9, 10, 11, 12, 13, 14, 15, 20, 21
    A(f"v_mov_b32 v{mMP}, 0")
    A(f"s_cmp_lt_u32 s{sR}, 16"); A("s_cbranch_scc0 L_c_nt1")
    A(f"s_and_b32 s{sAB}, s{sW}, 1"); A(f"s_lshr_b32 s{sT0}, s{sW}, 1"); A(f"s_lshr_b32 s{sT1}, s{sR}, 2"); A(f"s_and_b32 s{sT2}, s{sR}, 3")
    A(f"v_lshlrev_b32 v{tAa}, 10, v{vN}"); A(f"v_lshl_or_b32 v{tAa}, v{vG}, 4, v{tAa}"); A(f"v_lshlrev_b32 v{tSa}, 5, v{vG}")
    smul_add(sA0, [(sX8, "shl", 15), (sAB, "shl", 14), (sT1, "shl", 6)], OPA)
    smul_add(sA1, [(sX8, "shl", 10), (sAB, "shl", 9), (sT1, "shl", 7)], STA)
    A(f"v_and_b32 v{vT0}, 7, v{vL}"); A(f"v_lshl_or_b32 v{tCol}, v{vT0}, 2, v{vG}")
    A(f"v_lshlrev_b32 v{vT1}, 1, v{tCol}")
    smul_add(sA7, [(sAB, "shl", 10), (sR, "shl", 6)])
    A(f"buffer_load_ushort v{tX}, v{vT1}, {s(srdX,4)}, s{sA7} offen")
    A(f"s_lshl_b32 s{sT3}, s{sT0}, 7"); A(f"v_xor_b32 v{tTR}, s{sT3}, v{vTRV}")
    for t in range(1, 4): A(f"v_xor_b32 v{tTR+t}, {32*t}, v{tTR}")
    A(f"v_lshrrev_b32 v{vT0}, 5, v{vL}"); A(f"v_and_b32 v{vT1}, 31, v{vL}"); A(f"v_lshlrev_b32 v{vT1}, 2, v{vT1}"); A(f"v_lshl_or_b32 v{tAP}, v{vT0}, 13, v{vT1}")
    smul_add(sA2, [(sT2, "shl", 15), (sT0, "shl", 14), (sAB, "shl", 12), (sX8, "shl", 9), (sT1, "shl", 7)], AP)
    smul_add(sA3, [(sR, "shl", 13), (sAB, "shl", 12)], AP)
    A(f"v_lshlrev_b32 v{tL16}, 4, v{vL}")
    A(f"v_lshlrev_b32 v{vT0}, 4, v{vC3}"); A(f"v_bfe_u32 v{vT1}, v{vL}, 2, 1"); A(f"v_lshl_or_b32 v{vT0}, v{vT1}, 3, v{vT0}")
    A(f"v_and_b32 v{vT1}, 1, v{vG}"); A(f"v_lshl_or_b32 v{vT0}, v{vT1}, 6, v{vT0}"); A(f"v_lshrrev_b32 v{vT1}, 1, v{vG}"); A(f"v_lshl_or_b32 v{tY}, v{vT1}, 2, v{vT0}")
    A(f"v_lshrrev_b32 v{tY+1}, 1, v{vL}")
    smul_add(sT4, [(sX8, "mul", 16*640), (sR, "mul", 640)], YA)
    smul_add(sA4, [(sAB, "shl", 7)]); A(f"s_add_u32 s{sA4}, s{sA4}, s{sT4}")
    smul_add(sA5, [(sAB, "shl", 3)]); A(f"s_add_u32 s{sA5}, s{sA5}, s{sT4}")
    A(f"s_lshl_b32 s{sT4}, s{sR}, 1"); A(f"s_add_u32 s{sA8}, s{sT4}, s{sAB}"); A(f"s_mul_i32 s{sA6}, s{sA8}, 7168"); A(f"s_add_u32 s{sA6}, s{sA6}, {MP}")
    A(f"s_sub_u32 s{sJ}, s{sX8}, s{sT4}"); A(f"s_and_b32 s{sJ}, s{sJ}, 7")
    A("s_branch L_c_roledone")
    A("L_c_nt1:")
    A(f"s_sub_u32 s{sT0}, s{sR}, 16"); A(f"s_mul_i32 s{sJ}, s{sX8}, 7"); A(f"s_add_u32 s{sJ}, s{sJ}, s{sT0}")
    A(f"v_lshlrev_b32 v{mYa}, 6, v{vH4}"); A(f"v_lshl_or_b32 v{mYa}, v{vG}, 4, v{mYa}")
    A(f"v_lshrrev_b32 v{vT0}, 1, v{vN}"); A(f"v_mul_u32_u24 v{mSa}, 640, v{vT0}"); A(f"v_and_b32 v{vT1}, 1, v{vN}"); A(f"v_lshl_add_u32 v{mSa}, v{vT1}, 3, v{mSa}")
    smul_add(sA1, [(sX8, "mul", 16*640)], YA); smul_add(sA0, [(sW, "mul", 4*640)]); A(f"s_add_u32 s{sA0}, s{sA0}, s{sA1}"); A(f"s_add_u32 s{sA2}, s{sA1}, {8*640}")
    A(f"v_lshlrev_b32 v{mXw}, 8, v{vH4}"); A(f"v_lshl_or_b32 v{mXw}, v{vG}, 4, v{mXw}"); smul_add(sT0, [(sW, "shl", 6)], RED); A(f"v_add_u32 v{mXw}, s{sT0}, v{mXw}")
    A(f"v_lshrrev_b32 v{mXr}, 3, v{vN}"); A(f"v_lshlrev_b32 v{mXr}, 10, v{mXr}"); A(f"v_lshl_or_b32 v{mXr}, v{vT1}, 9, v{mXr}"); A(f"v_lshl_or_b32 v{mXr}, v{vG}, 4, v{mXr}")
    A(f"v_and_b32 v{vT0}, 3, v{vT0}"); A(f"v_lshl_or_b32 v{mXr}, v{vT0}, 2, v{mXr}"); A(f"v_add_u32 v{mXr}, {RED}, v{mXr}"); A(f"v_add_u32 v{mXr2}, 2048, v{mXr}")
    A(f"v_lshrrev_b32 v{vT0}, 2, v{vL}"); A(f"v_lshlrev_b32 v{vT0}, 6, v{vT0}"); A(f"v_and_b32 v{vT1}, 1, v{vG}"); A(f"v_lshl_or_b32 v{vT0}, v{vT1}, 5, v{vT0}"); A(f"v_lshl_or_b32 v{vT0}, v{vC3}, 3, v{vT0}")
    A(f"s_lshl_b32 s{sT0}, s{sW}, 13"); A(f"v_add_u32 v{mA1}, s{sT0}, v{vT0}"); A(f"v_xor_b32 v{mA1+1}, 32, v{mA1}")
    A(f"s_add_u32 s{sT0}, s{sT0}, 32768"); A(f"v_add_u32 v{mA2}, s{sT0}, v{vTRV}")
    for t in range(1, 8): A(f"v_xor_b32 v{mA2+t}, {32*t}, v{mA2}")
    A(f"v_mul_u32_u24 v{mMP}, 7168, v{vN}"); A(f"v_lshl_add_u32 v{mMP}, v{vG}, 4, v{mMP}")
    smul_add(sA3, [(sW, "mul", 4*14336), (sJ, "shl", 7)], MP)
    for i in range(1, 4): A(f"s_add_u32 s{sA3+i}, s{sA3}, {14336*i}")
    A(f"v_cmp_gt_u32 {s(sM2,2)}, 2, v{vN}")
    A("L_c_roledone:")
    A("s_waitcnt lgkmcnt(0)")
    A("s_barrier")
    stamp(5)
    for k in range(8): A(f"ds_read_b128 {v(vP+4*k,4)}, v{vPr} offset:{k*256}")
    def vreads(k, dst):
        for t in range(2):
            for u in range(2):
                A(f"ds_read_b64_tr_b16 {v(dst+4*t+2*u,2)}, v{vVa+t} offset:{(32*k+16*u)*256}")
    def vmfma(k, src):
        for t in range(2):
            A(f"v_mfma_f32_16x16x32_bf16 {v(vO+4*t,4)}, {v(src+4*t,4)}, {v(vP+4*k,4)}, {'0' if k == 0 else v(vO+4*t,4)}")
    for k in range(k0): vreads(k, vVb+8*k)
    for k in range(k0):
        A(f"s_waitcnt lgkmcnt({0 if dbg else min(15, 4*(k0-1-k))})")
        vmfma(k, vVb+8*k)
    for k in range(k0, 8):
        A("s_barrier")
        dst = vVb + 8*((k - k0) % 2)
        vreads(k, dst)
        if k == 7: A(f"s_mov_b64 exec, -1")
        A(f"s_waitcnt lgkmcnt({0 if dbg else 2})")
        A(f"v_mfma_f32_16x16x32_bf16 {v(vO,4)}, {v(dst,4)}, {v(vP+4*k,4)}, {v(vO,4)}")
        A("s_waitcnt lgkmcnt(0)")
        A(f"v_mfma_f32_16x16x32_bf16 {v(vO+4,4)}, {v(dst+4,4)}, {v(vP+4*k,4)}, {v(vO+4,4)}")
    stamp(6)
    A(f"s_cmp_lt_u32 s{sR}, 16")
    for i in range(4): A(f"v_cvt_pk_bf16_f32 v{vU+i}, v{vO+2*i}, v{vO+2*i+1}")
    A(f"s_mov_b64 exec, {s(sM0,2)}")
    A(f"buffer_store_dwordx4 {v(vU,4)}, v{vOa}, {s(srdWS,4)}, s{sOA} offen")
    A(f"buffer_store_dwordx4 {v(vU,4)}, v{vOa}, {s(srdWS,4)}, s{sOB} offen sc1")
    A("s_mov_b64 exec, -1")
    stamp(7)
    A("s_cbranch_scc0 L_c_other")

    tB = vKb; tA = vQ; tSt = vQ + 16; tD = vQ + 24; tR = vQ + 40
    def t1_loads():
        for k in range(4): A(f"buffer_load_dwordx4 {v(tA+4*k,4)}, v{tAa}, {s(srdWS,4)}, s{sA0} offen offset:{256*k} sc1")
        for k in range(2): A(f"buffer_load_dwordx4 {v(tSt+4*k,4)}, v{tSa}, {s(srdWS,4)}, s{sA1} offen offset:{16*k} sc1")
    t1_loads()
    smul_add(sT4, [(sAB, "shl", 7)], PAR); A(f"v_lshl_add_u32 v{vT3}, v{tCol}, 2, s{sT4}")
    A(f"ds_read_b32 v{tPar}, v{vT3}"); A(f"ds_read_b32 v{tPar+1}, v{vT3} offset:512"); A(f"ds_read_b32 v{tPar+2}, v{vT3} offset:768")
    A(f"v_mov_b32 v{vT3}, {TAGL}"); A(f"ds_read_b32 v{tPar+3}, v{vT3}")
    A(f"v_and_b32 v{vT0}, 8, v{vL}"); A(f"v_cmp_ne_u32 {s(sM0,2)}, 0, v{vT0}")
    A(f"v_and_b32 v{vT0}, 16, v{vL}"); A(f"v_cmp_ne_u32 {s(sM1,2)}, 0, v{vT0}")
    A(f"s_mov_b32 s{sCNT}, 0")
    A("s_barrier")
    for k in range(4):
        for t in range(4):
            for u in range(2):
                A(f"ds_read_b64_tr_b16 {v(tB+(k*4+t)*4+2*u,2)}, v{tTR+t} offset:{(32*k+16*u)*256}")
    def sentcheck(rs, acc):
        if len(rs) == 2: A(f"v_max_u32 v{acc}, v{rs[0]}, v{rs[1]}"); i = 2
        else: A(f"v_max3_u32 v{acc}, v{rs[0]}, v{rs[1]}, v{rs[2]}"); i = 3
        while i < len(rs):
            if i + 1 < len(rs): A(f"v_max3_u32 v{acc}, v{acc}, v{rs[i]}, v{rs[i+1]}"); i += 2
            else: A(f"v_max_u32 v{acc}, v{acc}, v{rs[i]}"); i += 1
        A(f"v_cmp_eq_u32 vcc, -1, v{acc}")
    retry = []
    def poll(lbl, loads, rs, acc, switch=None):
        A(f"{lbl}:")
        A("s_waitcnt vmcnt(0)")
        sentcheck(rs, acc)
        A(f"s_cbranch_vccnz {lbl}_re")
        A(f"{lbl}_ok:")
        def blk():
            A(f"{lbl}_re:")
            A(f"s_add_u32 s{sCNT}, s{sCNT}, 1")
            if switch:
                A(f"s_cmp_eq_u32 s{sCNT}, {NA}"); A(f"s_cselect_b32 s{sT7}, 1, 0")
                for sr, d in switch: A(f"s_mul_i32 s{sT6}, s{sT7}, {d}"); A(f"s_add_u32 s{sr}, s{sr}, s{sT6}")
            A(f"s_cmp_gt_u32 s{sCNT}, {NT}"); A(f"s_cbranch_scc1 {lbl}_ok")
            loads()
            A(f"s_branch {lbl}")
        retry.append(blk)
    stamp(8)
    poll("L_t1p", t1_loads, [tA+3, tA+7, tA+11, tA+15, tSt+1, tSt+3, tSt+5, tSt+7], vT0, [(sA0, OB), (sA1, SB)])
    stamp(9)
    A("s_waitcnt lgkmcnt(0)")
    mf = []
    for k in range(4):
        for t in range(4):
            mf.append(f"v_mfma_f32_16x16x32_bf16 {v(tD+4*t,4)}, {v(tA+4*k,4)}, {v(tB+(k*4+t)*4,4)}, {'0' if k == 0 else v(tD+4*t,4)}")
    va = [f"v_max3_f32 v{vM}, v{tSt}, v{tSt+2}, v{tSt+4}", f"v_max_f32 v{vM}, v{vM}, v{tSt+6}"]
    for sw in ("v_permlane16_swap_b32", "v_permlane32_swap_b32"):
        va += [f"v_mov_b32 v{vT0}, v{vM}", None, f"v_lshlrev_b32 v{tX}, 16, v{tX}" if "16" in sw else f"v_mov_b32 v{vT2}, 0", f"{sw} v{vT0}, v{vM}", None, f"v_max_f32 v{vM}, v{vM}, v{vT0}"]
    for r in range(4): va.append(f"v_sub_f32 v{tW+r}, v{tSt+2*r}, v{vM}")
    for r in range(4): va += [f"v_exp_f32 v{tW+r}, v{tW+r}", None]
    for r in range(4): va.append(f"v_mul_f32 v{tW+r}, v{tW+r}, v{tSt+2*r+1}")
    post = [f"v_add_f32 v{vLs}, v{tW}, v{tW+1}", f"v_add_f32 v{vT1}, v{tW+2}, v{tW+3}", f"v_add_f32 v{vLs}, v{vLs}, v{vT1}"]
    va += post
    vi = 0
    for m in mf:
        A(m)
        cnt = 0
        while vi < len(va) and cnt < 2:
            if va[vi] is None: vi += 1; break
            A(va[vi]); vi += 1; cnt += 1
    while vi < len(va):
        if va[vi]: A(va[vi])
        vi += 1
    side = [f"v_mov_b32 v{vT0}, v{vLs}", None, None, f"v_permlane16_swap_b32 v{vT0}, v{vLs}", f"v_add_f32 v{vLs}, v{vLs}, v{vT0}", f"v_mov_b32 v{vT0}, v{vLs}", None, None,
            f"v_permlane32_swap_b32 v{vT0}, v{vLs}", f"v_add_f32 v{vLs}, v{vLs}, v{vT0}", f"v_rcp_f32 v{vLs}, v{vLs}"]
    for x in side[:1]: A(x)
    si = 1
    for t in (0, 2, 1, 3):
        for r in range(4):
            A(f"v_mul_f32 v{vU+t}, v{tD+4*t}, v{tW}" if r == 0 else f"v_fmac_f32 v{vU+t}, v{tD+4*t+r}, v{tW+r}")
            if si < len(side):
                if side[si]: A(side[si])
                si += 1
    def reduce4(u):
        A(f"v_permlane32_swap_b32 v{u}, v{u+2}"); A(f"v_permlane32_swap_b32 v{u+1}, v{u+3}")
        A(f"v_add_f32 v{u}, v{u}, v{u+2}"); A(f"v_add_f32 v{u+1}, v{u+1}, v{u+3}")
        A(f"v_permlane16_swap_b32 v{u}, v{u+1}")
        A(f"v_add_f32 v{u}, v{u}, v{u+1}")
    reduce4(vU)
    A(f"s_cmp_lt_u32 s{sW}, 2")
    A(f"v_mul_f32 v{vU}, v{vU}, v{vLs}")
    A(f"buffer_store_dword v{vU}, v{tAP}, {s(srdWS,4)}, s{sA2} offen sc1")
    stamp(10)
    A("s_cbranch_scc0 L_fin_end")
    def red_loads():
        for q in range(4): A(f"buffer_load_dwordx4 {v(tA+4*q,4)}, v{tL16}, {s(srdWS,4)}, s{sA3} offen offset:{1024*q} sc1")
    red_loads()
    A(f"s_add_u32 s{sT1}, s{sA4}, {YBO}"); A(f"s_add_u32 s{sT5}, s{sA5}, {YBO}"); A(f"s_add_u32 s{sT3}, s{sA6}, 4096")
    A(f"s_mov_b32 s{sCNT}, 0")
    poll("L_rdp", red_loads, [tA+3, tA+7, tA+11, tA+15], vT0)
    stamp(11)
    for i in range(4): A(f"v_add_f32 v{tA+i}, v{tA+i}, v{tA+4+i}")
    for i in range(4): A(f"v_add_f32 v{tA+8+i}, v{tA+8+i}, v{tA+12+i}")
    for i in (0, 2, 1, 3): A(f"v_add_f32 v{vU+i}, v{tA+i}, v{tA+8+i}")
    reduce4(vU)
    A(f"v_add_f32_dpp v{vU}, v{vU}, v{vU} row_ror:8 row_mask:0xf bank_mask:0xf bound_ctrl:1")
    A(f"v_fmac_f32 v{tX}, v{tPar}, v{vU}")
    A(f"v_mul_f32 v{vU}, v{tX}, v{tPar+1}")
    A(f"v_mul_f32 v{vU+4}, v{tX}, v{tX}")
    A(f"v_mov_b32 v{vU+1}, v{vU}")
    A(f"v_cndmask_b32 v{vU+4}, v{tX}, v{vU+4}, {s(sM0,2)}")
    A(f"v_permlane16_swap_b32 v{vU}, v{vU+1}")
    A(f"v_add_f32_dpp v{vU+4}, v{vU+4}, v{vU+4} quad_perm:[1,0,3,2] row_mask:0xf bank_mask:0xf bound_ctrl:1")
    A(f"v_cvt_pk_bf16_f32 v{vU+2}, v{vU}, v{vU+1}")
    A(f"v_lshlrev_b32 v{vT0}, 16, v{vU+2}")
    A(f"v_add_f32_dpp v{vU+4}, v{vU+4}, v{vU+4} quad_perm:[2,3,0,1] row_mask:0xf bank_mask:0xf bound_ctrl:1")
    A(f"v_and_b32 v{vT1}, 0xffff0000, v{vU+2}")
    A(f"v_sub_f32 v{vU}, v{vU}, v{vT0}")
    A(f"v_add_f32_dpp v{vU+4}, v{vU+4}, v{vU+4} row_half_mirror row_mask:0xf bank_mask:0xf bound_ctrl:1")
    A(f"v_sub_f32 v{vU+1}, v{vU+1}, v{vT1}")
    A(f"v_mov_b32 v{vU+5}, v{vU+4}")
    A(f"v_cvt_pk_bf16_f32 v{vU+3}, v{vU}, v{vU+1}")
    A(f"v_permlane16_swap_b32 v{vU+5}, v{vU+4}")
    A(f"v_cndmask_b32 v{vU+2}, v{vU+2}, v{vU+3}, {s(sM1,2)}")
    A(f"v_add_f32 v{vU+4}, v{vU+4}, v{vU+5}")
    setexec(0x00ff00ff00ff00ff)
    A(f"buffer_store_dword v{vU+2}, v{tY}, {s(srdWS,4)}, s{sA4} offen")
    A("s_mov_b64 exec, -1")
    A(f"v_mov_b32 v{vU+5}, v{vU+4}")
    A(f"v_permlane32_swap_b32 v{vU+5}, v{vU+4}")
    A(f"v_add_f32 v{vU+4}, v{vU+4}, v{vU+5}")
    A("s_mov_b64 exec, 0x101")
    A(f"buffer_store_dword v{vU+4}, v{tY+1}, {s(srdWS,4)}, s{sA5} offen offset:512")
    A(f"buffer_store_dword v{vU+4}, v{tY+1}, {s(srdWS,4)}, s{sT5} offen offset:512 sc1")
    setexec(0x00ff00ff00ff00ff)
    A(f"buffer_store_dword v{vU+2}, v{tY}, {s(srdWS,4)}, s{sT1} offen sc1")
    A("s_mov_b64 exec, -1")
    stamp(12)
    A(f"s_cmp_eq_u32 s{sJ}, s{sAB}"); A("s_cbranch_scc0 L_fin_end")
    def fin_loads():
        for q in range(7):
            A(f"buffer_load_dwordx4 {v(tB+4*q,4)}, v{tL16}, {s(srdWS,4)}, s{sA6 if q < 4 else sT3} offen offset:{1024*(q%4)} sc1")
    fin_loads()
    A(f"v_lshlrev_b32 v{vT3}, 1, v{tCol}")
    A(f"s_mov_b32 s{sCNT}, 0")
    poll("L_fnp", fin_loads, [tB+4*q+3 for q in range(7)], vT0)
    stamp(13)
    for i in range(4):
        A(f"v_add_f32 v{tB+i}, v{tB+i}, v{tB+4+i}"); A(f"v_add_f32 v{tB+8+i}, v{tB+8+i}, v{tB+12+i}"); A(f"v_add_f32 v{tB+16+i}, v{tB+16+i}, v{tB+20+i}")
    for i in range(4):
        A(f"v_add_f32 v{tB+i}, v{tB+i}, v{tB+8+i}"); A(f"v_add_f32 v{tB+16+i}, v{tB+16+i}, v{tB+24+i}")
    for i in (0, 2, 1, 3): A(f"v_add_f32 v{vU+i}, v{tB+i}, v{tB+16+i}")
    reduce4(vU)
    A(f"v_add_f32_dpp v{vU}, v{vU}, v{vU} row_ror:8 row_mask:0xf bank_mask:0xf bound_ctrl:1")
    A(f"v_fmac_f32 v{tX}, v{tPar+2}, v{vU}")
    A(f"v_mov_b32 v{vU+1}, v{tX}")
    A(f"s_cmp_lg_u32 s{sA8}, 0")
    A(f"v_permlane16_swap_b32 v{tX}, v{vU+1}")
    A(f"v_cvt_pk_bf16_f32 v{vU+2}, v{tX}, v{vU+1}")
    setexec(0x000000ff000000ff)
    A(f"buffer_store_dword v{vU+2}, v{vT3}, {s(srdO,4)}, s{sA7} offen")
    if DUR == 1:
        A(f"s_memrealtime {s(sST,2)}"); A("s_mov_b32 s94, 256"); A("s_mov_b32 s95, 0x20000"); A("s_waitcnt lgkmcnt(0)")
        A("s_mov_b64 exec, 1"); A(f"s_not_b32 s{sST+2}, s{sST+2}"); A(f"v_mov_b32 v4, s{sST+2}"); A(f"v_mov_b32 v5, s{sST}"); A("v_mov_b32 v6, 0")
        A("buffer_atomic_umax v4, v6, s[92:95], 0 offen"); A("buffer_atomic_umax v5, v6, s[92:95], 0 offen offset:4")
        A(f"s_cmp_lg_u32 s{sA8}, 0")
    A("s_cbranch_scc1 L_fin_end")
    A("s_mov_b64 exec, 1")
    A(f"buffer_store_dword v{tPar+3}, v{vT2}, {s(srdWS,4)}, 0 offen sc1")
    A("L_fin_end:")
    stamp(14)
    stamp_flush()
    A("s_endpgm")
    for blk in retry: blk()
    retry.clear()

    A("L_c_other:")
    A(f"s_sub_u32 s{sT0}, s{sR}, 16"); A(f"s_cmp_lt_u32 s{sT0}, 7"); A("s_cbranch_scc0 L_fin_end")
    mW1 = vKb; mW2 = vKb + 32; mB = vQ; mD = vQ + 16; mSt = vQ + 24; mC = vQ + 28; mR = vQ + 32; mH = vQ + 40; mD2 = vKb
    def x_loads():
        for k in range(4): A(f"buffer_load_dwordx4 {v(mB+4*k,4)}, v{mYa}, {s(srdWS,4)}, s{sA0} offen offset:{640*k+256} sc1")
    def y_loads():
        for k in range(4): A(f"buffer_load_dwordx4 {v(mB+4*k,4)}, v{mYa}, {s(srdWS,4)}, s{sA0} offen offset:{640*k} sc1")
        A(f"buffer_load_dwordx2 {v(mSt,2)}, v{mSa}, {s(srdWS,4)}, s{sA1} offen offset:512 sc1")
        A(f"buffer_load_dwordx2 {v(mSt+2,2)}, v{mSa}, {s(srdWS,4)}, s{sA2} offen offset:512 sc1")
    x_loads()
    A(f"s_mov_b32 s{sCNT}, 0")
    A("s_barrier")
    for sg in range(4):
        for t in range(2):
            for u in range(2):
                A(f"ds_read_b64_tr_b16 {v(mW1+(t*4+sg)*4+2*u,2)}, v{mA1+t} offset:{(32*sg+16*u)*64}")
    A("s_barrier")
    for t in range(8):
        for u in range(2):
            A(f"ds_read_b64_tr_b16 {v(mW2+4*t+2*u,2)}, v{mA2+t} offset:{16*u*256}")
    sw = [(sA0, YBO), (sA1, YBO), (sA2, YBO)]
    poll("L_mxp", x_loads, list(range(mB, mB+16)), vT0, sw)
    def mlp_pass(red_off, rd, valu=()):
        va = list(valu); vi = 0
        for sg in range(4):
            for t in range(2):
                A(f"v_mfma_f32_16x16x32_bf16 {v(mD+4*t,4)}, {v(mW1+(t*4+sg)*4,4)}, {v(mB+4*sg,4)}, {'0' if sg == 0 else v(mD+4*t,4)}")
                for _ in range(2):
                    if vi < len(va): A(va[vi]); vi += 1
        while vi < len(va): A(va[vi]); vi += 1
        A(f"s_mov_b64 exec, {s(sM0,2)}")
        for t in range(2): A(f"ds_write_b128 v{mXw}, {v(mD+4*t,4)} offset:{red_off + t*1024}")
        A("s_mov_b64 exec, -1")
        A("s_waitcnt lgkmcnt(0)")
        A("s_barrier")
        for cw in range(4): A(f"ds_read2_b32 {v(mR+2*cw,2)}, v{rd} offset0:{16*cw} offset1:{16*cw+64}")
    A("s_waitcnt lgkmcnt(0)")
    mlp_pass(0, mXr)
    A(f"s_cmp_ge_u32 s{sCNT}, {NA}"); A(f"s_cselect_b32 s{sCNT}, {NA}, 0")
    y_loads()
    A("s_waitcnt lgkmcnt(0)")
    for j in range(2):
        A(f"v_add_f32 v{mC+j}, v{mR+j}, v{mR+2+j}"); A(f"v_add_f32 v{mR+4+j}, v{mR+4+j}, v{mR+6+j}"); A(f"v_add_f32 v{mC+j}, v{mC+j}, v{mR+4+j}")
    stamp(8)
    poll("L_myp", y_loads, list(range(mB, mB+16)) + list(range(mSt, mSt+4)), vT0, sw)
    stamp(9)
    va = [f"v_add_f32 v{mSt}, v{mSt}, v{mSt+2}", f"v_add_f32 v{mSt+1}, v{mSt+1}, v{mSt+3}"]
    for ro in (2, 4, 8):
        va += [f"v_add_f32_dpp v{mSt+i}, v{mSt+i}, v{mSt+i} row_ror:{ro} row_mask:0xf bank_mask:0xf bound_ctrl:1" for i in range(2)]
    va += [f"v_mul_f32 v{mSt}, {hex(f2u(1/512))}, v{mSt}", f"v_mov_b32 v{mSt+2}, {hex(f2u(1e-5))}",
           f"v_fmac_f32 v{mSt+2}, {hex(f2u(1/512))}, v{mSt+1}", f"v_fma_f32 v{mSt+2}, -v{mSt}, v{mSt}, v{mSt+2}",
           f"v_rsq_f32 v{mSt+2}, v{mSt+2}", f"v_mul_f32 v{mC}, v{mC}, v{mSt}", f"v_mul_f32 v{mSt+3}, {hex(f2u(-LOG2E))}, v{mSt+2}", f"v_mul_f32 v{mC+2}, {hex(f2u(-LOG2E))}, v{mC+1}"]
    mlp_pass(2048, mXr2, va)
    A(f"s_waitcnt lgkmcnt({0 if dbg else 2})")
    A(f"v_add_f32 v{mR}, v{mR}, v{mR+1}"); A(f"v_add_f32 v{mR+2}, v{mR+2}, v{mR+3}"); A(f"v_sub_f32 v{mR}, v{mR}, v{mC}")
    A("s_waitcnt lgkmcnt(0)")
    A(f"v_add_f32 v{mR+4}, v{mR+4}, v{mR+5}"); A(f"v_add_f32 v{mR+6}, v{mR+6}, v{mR+7}")
    A(f"v_add_f32 v{mR}, v{mR}, v{mR+2}"); A(f"v_add_f32 v{mR+4}, v{mR+4}, v{mR+6}"); A(f"v_add_f32 v{mR}, v{mR}, v{mR+4}")
    A(f"v_fma_f32 v{mR+1}, v{mR}, v{mSt+3}, v{mC+2}")
    A(f"v_exp_f32 v{mR+1}, v{mR+1}")
    A(f"v_fma_f32 v{mR}, v{mR}, v{mSt+2}, v{mC+1}")
    A(f"v_add_f32 v{mR+1}, 1.0, v{mR+1}"); A(f"v_rcp_f32 v{mR+1}, v{mR+1}")
    A(f"v_mul_f32 v{mR}, v{mR}, v{mR+1}")
    A(f"v_mov_b32_dpp v{mR+1}, v{mR} row_shl:2 row_mask:0xf bank_mask:0xf bound_ctrl:1")
    A(f"v_cvt_pk_bf16_f32 v{mH}, v{mR}, v{mR+1}")
    for q in range(1, 4): A(f"v_mov_b32_dpp v{mH+q}, v{mH} row_shl:{4*q} row_mask:0xf bank_mask:0xf bound_ctrl:1")
    def mpstore(t):
        A(f"buffer_store_dwordx4 {v(mD2+4*t,4)}, v{mMP}, {s(srdWS,4)}, s{sA3 + (t >> 1)} offen offset:{64*(t&1)} sc1")
    for t in range(8):
        A(f"v_mfma_f32_16x16x32_bf16 {v(mD2+4*t,4)}, {v(mW2+4*t,4)}, {v(mH,4)}, 0")
    A(f"s_mov_b64 exec, {s(sM2,2)}")
    for t in range(8): mpstore(t)
    stamp(10)
    A("s_branch L_fin_end")
    for blk in retry: blk()
    A("L_end:"); A("s_endpgm")
    A("L_code_end:")
    A('.section .rodata,"a"'); A(".p2align 6"); A(f".amdhsa_kernel {NAME}_kernel")
    nv = 256 if dbg else max(R.hi, H.hi, Lr.hi)
    nv_al = (nv + 3) // 4 * 4
    for l in (f"next_free_vgpr {nv}", "next_free_sgpr 96", f"accum_offset {nv_al}", "group_segment_fixed_size 0", "kernarg_size 104", "user_sgpr_count 2", "user_sgpr_kernarg_segment_ptr 1", "system_sgpr_workgroup_id_x 1", "float_denorm_mode_32 3"):
        A(".amdhsa_" + l)
    A(".end_amdhsa_kernel")
    bad = A.check_branches()
    for b in bad: print("BRANCH HAZARD", b, file=sys.stderr)
    print(f"compute regs {R.hi}, helper regs {H.hi}, loader regs {Lr.hi}, nops {A.nops}, instrs {sum(1 for i in A.ins if i.ws)}", file=sys.stderr)
    return "\n".join(hdr) + "\n" + A.text()

if __name__ == "__main__":
    out = sys.argv[1] if len(sys.argv) > 1 else "k.s"
    kw = {}
    for a in sys.argv[2:]:
        k, val = a.split("=")
        kw[k] = val if k == "ntw" else int(val)
    open(out, "w").write(gen(**kw))
```

```python
import re

TRANS = ("v_exp_f32", "v_log_f32", "v_rcp_f32", "v_rsq_f32", "v_sqrt_f32", "v_sin_f32", "v_cos_f32", "v_rcp_iflag_f32")
RMW = ("v_fmac_f32", "v_dot2c_f32_bf16", "v_fmac_f32_e32", "v_writelane_b32")

def regs(tok):
    tok = tok.strip()
    tok = tok.lstrip("-")
    if tok.startswith("abs(") or tok.startswith("|"):
        tok = tok.replace("abs(", "").replace(")", "").replace("|", "")
    m = re.fullmatch(r"([vsa])(\d+)", tok)
    if m: return {(m.group(1), int(m.group(2)))}
    m = re.fullmatch(r"([vsa])\[(\d+):(\d+)\]", tok)
    if m: return {(m.group(1), i) for i in range(int(m.group(2)), int(m.group(3)) + 1)}
    if tok == "vcc": return {("s", 106), ("s", 107)}
    if tok == "vcc_lo": return {("s", 106)}
    if tok == "vcc_hi": return {("s", 107)}
    if tok == "exec": return {("s", 126), ("s", 127)}
    if tok == "exec_lo": return {("s", 126)}
    if tok == "exec_hi": return {("s", 127)}
    if tok == "m0": return {("s", 124)}
    return set()

class Ins:
    def __init__(self, text):
        self.text = text
        t = text.split(";")[0].strip()
        self.label = t.endswith(":")
        self.dir = t.startswith(".")
        self.empty = (t == "")
        self.mn = ""; self.w = set(); self.r = set(); self.ws = 1
        self.kind = ""; self.dpp = False; self.srcc = set(); self.srcab = set(); self.data = set(); self.lds = False
        if self.label or self.dir or self.empty:
            self.ws = 0; return
        parts = t.split(None, 1)
        mn = parts[0]; self.mn = mn
        rest = parts[1] if len(parts) > 1 else ""
        ops = [o.strip() for o in rest.split(",")] if rest else []
        mods = ""
        if ops:
            last = ops[-1].split(None, 1)
        m = re.search(r"\s(quad_perm|row_|offen|offset|op_sel|bound_ctrl|sc0|sc1|nt|lds|bank_mask|dst_sel|src0_sel|src1_sel|glc|bitop3|neg_|clamp|wave_|cbsz|abid|blgp|mul:|div:)", " " + rest)
        if m:
            mods = (" " + rest)[m.start():]; rest2 = (" " + rest)[:m.start()]
        else:
            rest2 = rest
        ops = [o.strip() for o in rest2.split(",") if o.strip()]
        self.mods = mods; self.ops = ops
        if mn == "s_nop":
            self.ws = int(ops[0], 0) + 1; self.kind = "nop"; return
        if mn.startswith("s_"):
            self.kind = "salu"
            if mn.startswith(("s_cmp", "s_waitcnt", "s_barrier", "s_cbranch", "s_branch", "s_endpgm", "s_sleep", "s_setprio", "s_bitcmp")):
                for o in ops: self.r |= regs(o)
            else:
                if ops: self.w |= regs(ops[0])
                for o in ops[1:]: self.r |= regs(o)
                if "saveexec" in mn: self.w |= regs("exec")
            return
        if mn.startswith("v_mfma"):
            self.kind = "mfma"
            self.w = regs(ops[0]); self.srcab = regs(ops[1]) | regs(ops[2]); self.srcc = regs(ops[3]); self.r = self.srcab | self.srcc
            self.passes = 4 if "16x16" in mn else 8
            self.cop = ops[3]; self.dop = ops[0]
            return
        if mn.startswith("v_"):
            self.kind = "valu"
            self.dpp = ("quad_perm" in mods) or ("row_" in mods and "row_mask" in mods) or mn.endswith("_dpp")
            self.trans = mn.replace("_e32", "").replace("_e64", "") in TRANS
            self.perm = mn.startswith("v_permlane")
            self.rl = mn.startswith(("v_readfirstlane", "v_readlane"))
            self.sdwa = "sdwa" in mn or "op_sel" in mods
            if self.perm:
                self.w = regs(ops[0]) | regs(ops[1]); self.r = set(self.w); return
            self.w = regs(ops[0])
            for o in ops[1:]: self.r |= regs(o)
            base = mn.replace("_e32", "").replace("_e64", "").replace("_dpp", "")
            if base in RMW or (self.dpp and ("row_mask:0xf" not in mods or "bank_mask:0xf" not in mods or "bound_ctrl" not in mods)):
                self.r |= {x for x in self.w if x[0] != "s"}
            if base.startswith("v_cndmask") and len(ops) == 3: self.r |= regs("vcc")
            return
        if mn.startswith(("buffer_", "global_")):
            self.kind = "vmem"
            self.lds = (" lds" in mods) or ("_lds_" in mn)
            if "store" in mn or "atomic" in mn:
                if mn.startswith("buffer_"):
                    self.data = regs(ops[0])
                else:
                    self.data = regs(ops[1])
                for o in ops: self.r |= regs(o)
                self.wide = mn.endswith(("x3", "x4"))
            elif self.lds:
                for o in ops: self.r |= regs(o)
                self.r |= regs("m0")
            elif mn in ("buffer_wbl2", "buffer_inv"):
                pass
            else:
                self.w = regs(ops[0])
                for o in ops[1:]: self.r |= regs(o)
            return
        if mn.startswith("ds_"):
            self.kind = "ds"
            if "read" in mn or "bpermute" in mn or "swizzle" in mn or "permute" in mn:
                self.w = regs(ops[0])
                for o in ops[1:]: self.r |= regs(o)
            else:
                for o in ops: self.r |= regs(o)
            return
        raise ValueError("unknown instr: " + text)

def need(p, c):
    n = 0
    vw = {x for x in p.w if x[0] != "s"}; sw = {x for x in p.w if x[0] == "s"}
    if p.kind == "valu":
        if vw & c.r:
            if c.kind == "valu":
                if c.rl: n = max(n, 1)
                if c.dpp or c.perm: n = max(n, 2)
                if p.trans and not c.trans: n = max(n, 1)
                if p.trans and c.trans: n = max(n, 1)
                if p.sdwa: n = max(n, 1)
            if c.kind == "mfma": n = max(n, 2)
        if p.sdwa and c.kind == "valu" and (vw & c.w): n = max(n, 1)
        if sw & c.r:
            if c.kind == "valu": n = max(n, 4 if (c.rl or c.mn.startswith("v_writelane")) else 2)
            if c.kind == "vmem": n = max(n, 5)
            if c.kind == "salu": n = max(n, 1) if not c.mn.startswith("s_cbranch") else n
        if (sw & regs("exec")):
            if c.kind == "valu" and (c.dpp): n = max(n, 5)
            if c.kind == "valu" and (c.perm or c.rl): n = max(n, 4)
            if c.kind == "mfma": n = max(n, 4)
    if p.kind == "valu" and p.mn.startswith("v_dot"):
        if c.kind == "valu" and c.mn == p.mn:
            srcab = set()
            for o in c.ops[1:3]: srcab |= regs(o)
            if vw & srcab: n = max(n, 3)
        elif vw & (c.r | c.w): n = max(n, 3)
    if p.kind == "mfma":
        P = p.passes
        full = {4: 8, 8: 12}[P]; ovl = {4: 6, 8: 10}[P]; war = {4: 3, 8: 7}[P]
        if c.kind == "mfma":
            if p.w & c.srcab: n = max(n, full)
            if p.w & c.srcc:
                if not (c.cop == p.dop and c.passes == P): n = max(n, ovl)
            elif p.w & c.w: n = max(n, ovl)
        elif c.kind in ("valu", "vmem", "ds"):
            if p.w & (c.r | c.w): n = max(n, full)
            if c.kind == "valu" and (p.srcc & c.w): n = max(n, war)
    if p.kind == "vmem" and getattr(p, "wide", False):
        if p.data & c.w: n = max(n, 2 if c.kind in ("valu", "mfma") else 1)
    if p.kind == "salu":
        if (sw & regs("m0")) and c.kind == "vmem" and c.lds: n = max(n, 1)
        if (sw & regs("m0")) and c.kind == "valu" and ("s", 124) in c.r: n = max(n, 1)
    return n

def required_nops(hist, c):
    dist = 0; add = 0
    for p in reversed(hist):
        if p.ws == 0: continue
        if dist >= 20: break
        nn = need(p, c)
        if nn > dist: add = max(add, nn - dist)
        dist += p.ws
    return add

class Asm:
    def __init__(self):
        self.ins = []
        self.nops = 0
    def __call__(self, text):
        for line in text.split("\n"):
            self.emit(line.strip())
    def emit(self, line):
        i = Ins(line)
        if i.ws and i.kind != "nop":
            k = required_nops(self.ins[-40:], i)
            if k:
                self.ins.append(Ins(f"s_nop {k-1}")); self.nops += k
        self.ins.append(i)
    def check_branches(self):
        labels = {}
        for idx, i in enumerate(self.ins):
            if i.label: labels[i.text.split(";")[0].strip()[:-1]] = idx
        bad = []
        for idx, i in enumerate(self.ins):
            if i.mn.startswith(("s_cbranch", "s_branch")):
                tgt = labels[i.ops[0]]
                hist = [x for x in self.ins[max(0, idx - 40): idx + 1]]
                seq = []
                j = tgt
                cnt = 0
                while j < len(self.ins) and cnt < 20:
                    c = self.ins[j]
                    if c.ws and c.kind != "nop":
                        k = required_nops(hist + seq, c)
                        if k: bad.append((i.text, c.text, k))
                    seq.append(c); cnt += c.ws
                    if c.mn in ("s_branch", "s_endpgm"): break
                    j += 1
        return bad
    def text(self):
        out = []
        for i in self.ins:
            if i.label or i.dir or i.empty: out.append(i.text)
            else: out.append("    " + i.text)
        return "\n".join(out) + "\n"
```

```python
import sys, struct
from asmlib import Asm
NAME = "adaLN_cond__sliding_block_cached__dense_activation_silu__decode"

EPOCH = 0
MODP = 0x1000
QPA  = 0x20000
QPB  = 0x60000
OPA  = 0xA0000
OPB  = 0xE0000
STA  = 0x120000
STB  = 0x122000
YX   = 0x2100
YA   = 0x124000
YB   = 0x138000
MF   = 0x14C000
OF   = 0x14D000
CF   = 0x14E000
YF   = 0x14F000
AP   = 0x150000
MP   = 0x170000
WS_USED = 0x1B0000
DBG  = 0x200000
QB = QPB - QPA; OB = OPB - OPA; SB = STB - STA; YBO = YB - YA

LK = 0; LV = 65536; S0 = 131072; S1 = 147456
SM = LV + 49152
FL = S0
F_M, F_W, F_K, F_QP, F_KR, F_MC, F_V, F_Q, F_P = 0, 4, 8, 12, 16, 32, 40, 48, 192
ML = S0 + 64
HS = S0 + 512; QL = S0 + 1024; PAR = S0 + 2304; TAGL = S0 + 3328; PX = S0 + 3584; RED = S0 + 5632
RS = 272

LOG2E = 1.4426950408889634
def f2u(x): return struct.unpack("<I", struct.pack("<f", x))[0]
SC = f2u(128 ** -0.5 * LOG2E)
STRK = ("ntw",)

class Regs:
    def __init__(self, start=1):
        self.n = start; self.hi = start
    def a(self, cnt=1, al=None):
        al = al or (1 if cnt == 1 else 2)
        self.n = (self.n + al - 1) // al * al
        r = self.n; self.n += cnt; self.hi = max(self.hi, self.n)
        return r
def v(r, n=1): return f"v{r}" if n == 1 else f"v[{r}:{r+n-1}]"
def s(r, n=1): return f"s{r}" if n == 1 else f"s[{r}:{r+n-1}]"

def gen(T=28, T0=20, TC=16, TK=24, KF=4, T2=32, TM=24, TM1=12, QD=0, D2=8, PS=0, PN=0, PB=16, GK=11, TH=99, RA=1, RX=2, DG=70, DQ=12, DP=20, QORD=0, MFG=1,
        dbg=False, FINE=0, NA=8, NT=100000, CODE_PF=1, ntw="nt", DUR=0, FREM=0):
    A = Asm()
    hdr = []
    hdr.append("; @launch grid=(256,1,1) block=(384,1,1) lds=163840")
    A('.amdgcn_target "amdgcn-amd-amdhsa--gfx950"')
    A(".text"); A(f".globl {NAME}_kernel"); A(".p2align 8"); A(f".type {NAME}_kernel,@function"); A(f"{NAME}_kernel:")
    sWV, sX8, sR = 3, 36, 37
    sKO, sT0, sT1, sT2, sT3 = 38, 39, 40, 41, 42
    sTAG, sCNT, sB, sS, sW = 43, 44, 45, 46, 47
    sM0, sM1, sM2 = 48, 50, 52
    sAB = 54; sJ = 55; sT4 = 56; sT5 = 57; sT6 = 58; sT7 = 59
    sST = 60
    sREM, sLO, sHI, sTQ = 94, 95, 93, 92
    if DUR: pass
    srdWS, srdX = 16, 28
    vL, vG, vN = 1, 2, 3
    WSN = WS_USED if not dbg else 0x400000
    out_of_line = []
    def stamp(idx):
        if dbg and not FINE: A(f"s_memrealtime {s(64+2*idx,2)}")
    def fine(sec, idx):
        if dbg and FINE == sec: A(f"s_memtime {s(64+2*idx,2)}")
    def stamp_flush():
        if dbg:
            A("s_waitcnt lgkmcnt(0)")
            A("s_mov_b64 exec, -1")
            A(f"v_writelane_b32 v255, s{sST+2}, 0")
            for i in range(1, 14): A(f"v_writelane_b32 v255, s{64+2*i}, {i}")
            A(f"s_memrealtime {s(sST,2)}" if not FINE else f"s_memtime {s(sST,2)}"); A("s_waitcnt lgkmcnt(0)"); A(f"v_writelane_b32 v255, s{sST}, 14")
            A(f"s_mul_i32 s{sST}, s2, 6"); A(f"s_add_u32 s{sST}, s{sST}, s{sWV}"); A(f"s_lshl_b32 s{sST}, s{sST}, 7"); A(f"s_add_u32 s{sST}, s{sST}, {DBG}")
            A("v_and_b32 v254, 63, v0"); A("v_lshlrev_b32 v254, 2, v254")
            A("s_mov_b64 exec, 0xffff")
            A(f"buffer_store_dword v255, v254, {s(srdWS,4)}, s{sST} offen")
    def lg(n): return 0 if dbg else min(n, 15)
    def setexec(m):
        lo, hi = m & 0xffffffff, m >> 32
        if m == (1 << 64) - 1: A("s_mov_b64 exec, -1")
        elif hi == 0 and lo < 0x80000000: A(f"s_mov_b64 exec, {hex(lo)}")
        else: A(f"s_mov_b32 exec_lo, {hex(lo)}"); A(f"s_mov_b32 exec_hi, {hex(hi)}")
    def srd_tail(r, nbytes):
        A(f"s_mov_b32 s{r+2}, {nbytes}"); A(f"s_mov_b32 s{r+3}, 0x20000")
    def backoff(n):
        while n > 0: A(f"s_sleep {min(n, 100)}"); n -= 100
    lab = [0]
    def spin(va, off, vt, n=1, sleep=0):
        lab[0] += 1; L = f"L_spin{lab[0]}"
        A(f"{L}:")
        if n == 1: A(f"ds_read_b32 v{vt}, v{va} offset:{off}")
        else: A(f"ds_read_b128 {v(vt,4)}, v{va} offset:{off}")
        A("s_waitcnt lgkmcnt(0)")
        if n == 4:
            A(f"v_min3_u32 v{vt+4}, v{vt}, v{vt+1}, v{vt+2}"); A(f"v_min_u32 v{vt+4}, v{vt+4}, v{vt+3}")
        A(f"v_cmp_eq_u32 vcc, 0, v{vt + (4 if n == 4 else 0)}")
        if sleep:
            A(f"s_cbranch_vccz {L}_ok"); A(f"s_sleep {sleep}"); A(f"s_branch {L}"); A(f"{L}_ok:")
        else:
            A(f"s_cbranch_vccnz {L}")
    def smul_add(dst, terms, const=0, tmp=sT7):
        first = True
        for (r, op, k) in terms:
            d = dst if first else tmp
            A(f"s_lshl_b32 s{d}, s{r}, {k}" if op == "shl" else f"s_mul_i32 s{d}, s{r}, {k}")
            if not first: A(f"s_add_u32 s{dst}, s{dst}, s{tmp}")
            first = False
        if const: A(f"s_add_u32 s{dst}, s{dst}, {const}")
    def tagcheck(rs, acc, tag=sTAG):
        A(f"v_xor_b32 v{acc}, s{tag}, v{rs[0]}")
        for r in rs[1:]: A(f"v_bitop3_b32 v{acc}, v{r}, s{tag}, v{acc} bitop3:0xbe")
        A(f"v_cmp_ne_u32 vcc, 0, v{acc}")
    def sentcheck(rs, acc):
        if len(rs) == 1: A(f"v_cmp_eq_u32 vcc, -1, v{rs[0]}"); return
        if len(rs) == 2: A(f"v_max_u32 v{acc}, v{rs[0]}, v{rs[1]}"); i = 2
        else: A(f"v_max3_u32 v{acc}, v{rs[0]}, v{rs[1]}, v{rs[2]}"); i = 3
        while i < len(rs):
            if i + 1 < len(rs): A(f"v_max3_u32 v{acc}, v{acc}, v{rs[i]}, v{rs[i+1]}"); i += 2
            else: A(f"v_max_u32 v{acc}, v{acc}, v{rs[i]}"); i += 1
        A(f"v_cmp_eq_u32 vcc, -1, v{acc}")
    def poll(lbl, loads, check, first_wait=0):
        A(f"s_waitcnt vmcnt({first_wait})")
        check()
        A(f"s_cbranch_vccnz {lbl}_re")
        A(f"{lbl}_ok:")
        def blk():
            A(f"{lbl}_re:")
            A(f"s_mov_b32 s{sCNT}, 0")
            A(f"{lbl}_re2:")
            loads()
            A(f"s_add_u32 s{sCNT}, s{sCNT}, 1"); A(f"s_cmp_gt_u32 s{sCNT}, {NT}")
            A("s_waitcnt vmcnt(0)")
            A(f"s_cbranch_scc1 {lbl}_ok")
            check()
            A(f"s_cbranch_vccnz {lbl}_re2")
            A(f"s_branch {lbl}_ok")
        out_of_line.append(blk)
    def flagwait(lbl, va, so, vt, mask):
        A(f"s_mov_b32 s{sCNT}, 0"); setexec(mask)
        A(f"{lbl}:")
        A(f"buffer_load_dword v{vt}, v{va}, {s(srdWS,4)}, s{so} offen sc1")
        A(f"s_add_u32 s{sCNT}, s{sCNT}, 1"); A(f"s_cmp_gt_u32 s{sCNT}, {NT}")
        A("s_waitcnt vmcnt(0)")
        A(f"s_cbranch_scc1 {lbl}_x")
        A(f"v_cmp_ne_u32 vcc, s{sTAG}, v{vt}")
        A(f"s_cbranch_vccnz {lbl}")
        A(f"{lbl}_x:")
        A("s_mov_b64 exec, -1")
    def flagset(vt, so):
        A("s_waitcnt vmcnt(0)")
        A("s_mov_b64 exec, 1")
        A(f"v_mov_b32 v{vt}, 0"); A(f"v_mov_b32 v{vt+1}, s{sTAG}")
        A(f"buffer_store_dword v{vt+1}, v{vt}, {s(srdWS,4)}, s{so} offen sc1")
        A("s_mov_b64 exec, -1")
    def sum_pairs(dst, srcs):
        for i, q in enumerate(srcs):
            for c in range(4):
                A(f"v_dot2_f32_bf16 v{dst+c}, v{q + (c & 2)}, s{sHI if c & 1 else sLO}, {'0' if i == 0 else 'v%d' % (dst+c)}")
    def dot_consts():
        A(f"s_mov_b32 s{sLO}, 0x3f80"); A(f"s_mov_b32 s{sHI}, 0x3f800000")

    if dbg or DUR: A(f"s_memrealtime {s(sST+2,2)}")
    A("s_cmp_ge_u32 s2, 256"); A("s_cbranch_scc1 L_end")
    A("v_lshrrev_b32 v1, 6, v0")
    A(f"s_and_b32 s{sX8}, s2, 7"); A(f"s_lshr_b32 s{sR}, s2, 3")
    A(f"v_readfirstlane_b32 s{sWV}, v1")
    A("v_and_b32 v1, 63, v0")
    A("v_lshrrev_b32 v2, 4, v1"); A("v_and_b32 v3, 15, v1")
    A(f"s_lshr_b32 s{sB}, s{sR}, 4"); A(f"s_and_b32 s{sS}, s{sR}, 15")
    sRHO = 35; P = dict(cl=34, rp=33)
    A(f"s_lshr_b32 s{sRHO}, s{sR}, 3")
    A(f"s_cmp_lg_u32 s{sWV}, 0"); A("s_cbranch_scc1 L_notloader")
    def prod_decode():
        A(f"s_add_u32 s{sT1}, s2, 64"); A(f"s_sub_u32 s{sT2}, s2, 192")
        A(f"s_cmp_ge_u32 s{sR}, 24"); A(f"s_cselect_b32 s{sT0}, s{sT2}, s{sT1}")
        A(f"s_lshr_b32 s{P['cl']}, s{sT0}, 2"); A(f"s_and_b32 s{P['rp']}, s{sT0}, 3")

    Lr = Regs(4)
    srdWM, srdWQ, srdK, srdV, srdW, srdW2 = 8, 12, 20, 24, 4, 28
    lWM = Lr.a(4); lWQ = Lr.a(4); lK = Lr.a(4); lV = Lr.a(2); lW = Lr.a(4); lW1 = Lr.a(4); lT0 = Lr.a(); lT1 = Lr.a(); lF = Lr.a(); lOne = Lr.a(); lS = Lr.a(6, 4)
    A("s_setprio 3")
    A(f"s_load_dwordx2 {s(srdK,2)}, s[0:1], 8")
    A(f"s_load_dwordx2 {s(srdWM,2)}, s[0:1], 72")
    A(f"s_load_dwordx2 {s(srdWQ,2)}, s[0:1], 24")
    A(f"s_load_dwordx2 {s(srdV,2)}, s[0:1], 16")
    prod_decode()
    A(f"v_and_b32 v{lT0}, 7, v{vL}"); A(f"v_lshlrev_b32 v{lT1}, 1, v{vG}"); A(f"v_xor_b32 v{lT0}, v{lT0}, v{lT1}"); A(f"v_lshlrev_b32 v{lT0}, 4, v{lT0}")
    A(f"v_lshrrev_b32 v{lT1}, 3, v{vL}")
    A(f"v_mul_u32_u24 v{lWM}, 6144, v{lT1}"); A(f"v_add_u32 v{lWM}, v{lWM}, v{lT0}")
    for j in range(1, 4): A(f"v_add_u32 v{lWM+j}, {j*(8*6144-1024)}, v{lWM}")
    A(f"v_lshl_or_b32 v{lWQ}, v{lT1}, 13, v{lT0}")
    for j in range(4):
        A(f"v_add_u32 v{lT0}, {4*j}, v{vG}"); A(f"v_xor_b32 v{lT0}, v{lT0}, v{vN}"); A(f"v_lshlrev_b32 v{lT0}, 4, v{lT0}"); A(f"v_lshl_or_b32 v{lK+j}, v{vG}, 8, v{lT0}")
    srd_tail(srdWM, 512*6144); srd_tail(srdK, 65536)
    smul_add(sT0, [(P['rp'], "mul", 128*6144), (P['cl'], "shl", 7)])
    smul_add(sKO, [(sB, "shl", 26), (sX8, "shl", 23), (sS, "shl", 16)], 28672*256)
    smul_add(sT2, [(sR, "mul", RA), (sX8, "mul", RX)]); A(f"s_and_b32 s{sT2}, s{sT2}, 15"); A(f"s_lshl_b32 s{sT2}, s{sT2}, 12")
    A("s_barrier")
    A(f"s_cmp_ge_u32 s{sR}, 24")
    A("s_waitcnt lgkmcnt(0)")
    A("s_cbranch_scc1 L_l_crit")
    def group(srd, vr, so, wait, nt="nt"):
        for j in range(4):
            if wait is not None: A(f"s_waitcnt vmcnt({wait})")
            A(f"buffer_load_dwordx4 v{vr[j]}, {s(srd,4)}, s{so} offen offset:{j*1024} {nt} lds")
    def flag(off, cnt):
        A(f"s_waitcnt vmcnt({cnt})"); A(f"ds_write_b32 v{lF}, v{lOne} offset:{off}")
    kr = [lK+j for j in range(4)]
    def late_setup():
        for j in range(1, 4): A(f"v_add_u32 v{lWQ+j}, {j*(8*8192-1024)}, v{lWQ}")
        srd_tail(srdWQ, 512*8192)
        A(f"s_and_b32 s{sT3}, s{sR}, 7")
        smul_add(sT1, [(sRHO, "shl", 20), (sX8, "shl", 10), (sT3, "shl", 7)])
        A(f"v_mov_b32 v{lF}, {FL}"); A(f"v_mov_b32 v{lOne}, 1")
    def kbase():
        A(f"s_add_u32 s{srdK}, s{srdK}, s{sKO}"); A(f"s_addc_u32 s{srdK+1}, s{srdK+1}, 0")
    def pace(extra=0):
        if PS: A(f"s_sleep {PS}")
        n = PN + (extra if PS or PN else 0)
        while n >= 4: k = min(n // 4, 16); A(f"s_nop {k-1}"); n -= 4*k
    def head(seq, T0=T0):
        seq = list(seq); n = 0; kidx = 0; pend = []; cnt = {"m": 0, "q": 0}; did = False; kb = False
        i = 0
        while i < len(seq) or pend:
            while pend and n - pend[0][0] >= min(T0 - 1, TH):
                flag(pend[0][1], n - pend[0][0]); pend.pop(0)
                if seq[0] == "m" and cnt["q"] < 4: stamp(7)
            if i >= len(seq) and not pend: break
            kind = seq[i] if i < len(seq) else "k"
            w = T0 - 1 if n + 3 >= T0 else None
            if kind == "k":
                if not kb: kbase(); kb = True
                A(f"s_mov_b32 m0, {kidx*4096}")
                group(srdK, kr, sT2, w)
                A(f"s_add_u32 s{sT2}, s{sT2}, 4096"); A(f"s_and_b32 s{sT2}, s{sT2}, 0xffff"); kidx += 1
            else:
                srd, vr, so, base, st, fo = (srdWM, lWM, sT0, SM, 6144, F_M) if kind == "m" else (srdWQ, lWQ, sT1, S1, 8192, F_W)
                A(f"s_mov_b32 m0, {base + 4096*cnt[kind]}")
                group(srd, [vr+j for j in range(4)], so, w, ntw)
                cnt[kind] += 1
                if cnt[kind] < 4: A(f"s_add_u32 s{so}, s{so}, {32*st}")
                else: pend.append((n + 4, fo))
            n += 4; i += 1
            if not did: late_setup(); did = True
            if n >= PB: pace(40)
        A(f"s_mov_b32 m0, {kidx*4096}")
        assert kidx < 16
    A(f"s_cmp_eq_u32 s{sRHO}, 2"); A("s_cbranch_scc1 L_l_light")
    head("k"*KF + "qqqq" + "mmmm")
    A("s_branch L_l_k")
    A("L_l_light:")
    head("k"*KF + "qqqq")
    A("s_branch L_l_k")
    A("L_l_crit:")
    head("mmmm" + "k"*KF + "qqqq", TC)
    A("L_l_k:")
    stamp(1)
    A(f"s_cmp_lt_u32 s{sR}, 16"); A(f"s_cselect_b32 s{sT0}, 32, 48")
    A(f"s_load_dwordx2 {s(srdW,2)}, s[0:1], s{sT0}")
    A(f"s_load_dwordx2 {s(srdW2,2)}, s[0:1], 56")
    if dbg: A(f"s_load_dwordx2 {s(srdWS,2)}, s[0:1], 96")
    def kvloop(name, srd, vr, end, TT):
        A(f"{name}:")
        group(srd, vr, sT2, TT-1)
        pace()
        A(f"s_add_u32 s{sT2}, s{sT2}, 4096"); A(f"s_and_b32 s{sT2}, s{sT2}, 0xffff")
        A("s_add_u32 m0, m0, 4096"); A(f"s_cmp_lt_u32 m0, {end}"); A(f"s_cbranch_scc1 {name}")
    A(f"s_add_u32 s{srdV}, s{srdV}, s{sKO}"); A(f"s_addc_u32 s{srdV+1}, s{srdV+1}, 0"); srd_tail(srdV, 65536)
    A(f"v_lshlrev_b32 v{lT0}, 1, v{vG}"); A(f"v_xor_b32 v{lT0}, v{lT0}, v{vN}"); A(f"v_lshlrev_b32 v{lT0}, 4, v{lT0}")
    A(f"v_lshl_or_b32 v{lV}, v{vG}, 8, v{lT0}"); A(f"v_xor_b32 v{lV+1}, 128, v{lV}")
    A(f"v_lshl_or_b32 v{lW}, v{vG}, 10, v{lT0}"); A(f"v_xor_b32 v{lT0}, 128, v{lW}")
    A(f"v_add_u32 v{lW+1}, 3072, v{lT0}"); A(f"v_add_u32 v{lW+2}, 6144, v{lW}"); A(f"v_add_u32 v{lW+3}, 9216, v{lT0}")
    kvloop("L_k3", srdK, kr, LV, TK)
    stamp(3)
    A(f"v_and_b32 v{lT0}, 1, v{vG}"); A(f"v_lshlrev_b32 v{lT0}, 1, v{lT0}"); A(f"v_and_b32 v{lT1}, 3, v{vL}"); A(f"v_xor_b32 v{lT0}, v{lT0}, v{lT1}"); A(f"v_lshlrev_b32 v{lT0}, 4, v{lT0}")
    A(f"v_lshrrev_b32 v{lT1}, 2, v{vL}"); A(f"v_mul_u32_u24 v{lT1}, 3584, v{lT1}"); A(f"v_add_u32 v{lW1}, v{lT0}, v{lT1}")
    for j in range(1, 4): A(f"v_add_u32 v{lW1+j}, {j*(16*3584-1024)}, v{lW1}")
    A(f"s_mov_b32 s{sT0}, {512*3584}"); A(f"s_cmp_lt_u32 s{sR}, 16"); A(f"s_cselect_b32 s{srdW+2}, {4096*1024}, s{sT0}"); A(f"s_mov_b32 s{srdW+3}, 0x20000")
    srd_tail(srdW2, 1792*1024)
    if dbg: srd_tail(srdWS, WSN)
    vr = [lV, lV+1, lV, lV+1]
    gv = min((T + 3) // 4, GK)
    kvloop("L_v1", srdV, vr, LV + gv*4096, T)
    flag(F_K, min(T-1, 4*gv))
    stamp(4)
    kvloop("L_v2", srdV, vr, SM, T)
    spin(lF, F_MC, lS)
    kvloop("L_v3", srdV, vr, S0, T)
    stamp(5)
    A(f"s_cmp_lt_u32 s{sR}, 16"); A("s_cbranch_scc1 L_l_t1")
    A(f"s_sub_u32 s{sT0}, s{sR}, 16"); A(f"s_cmp_lt_u32 s{sT0}, 7"); A("s_cbranch_scc1 L_l_mlp")
    flag(F_V, 8)
    A("s_waitcnt vmcnt(0)"); A("s_barrier")
    A("L_l_end:")
    stamp_flush()
    A("s_endpgm")
    def post_v(groups, TT, marks):
        ev = [(56 - 64, "f"), (0, "b")] + [(m, "b") for m in marks]
        n = 0
        for gi in range(len(groups) + 1):
            while ev and (n - TT >= ev[0][0] or gi == len(groups)):
                need, kind = ev.pop(0)
                if kind == "f": flag(F_V, n - need)
                else: A(f"s_waitcnt vmcnt({n - need})"); A("s_barrier")
            if gi < len(groups):
                groups[gi](TT - 1); n += 4
    A("L_l_t1:")
    spin(lF, F_KR, lS, 4)
    A(f"s_lshr_b32 s{sT1}, s{sR}, 2"); A(f"s_and_b32 s{sT2}, s{sR}, 3")
    smul_add(sT0, [(sX8, "shl", 19), (sT1, "shl", 17), (sT2, "shl", 8)])
    A("s_mov_b32 m0, 0")
    wr = [lW+j for j in range(4)]
    def wog(i):
        def f(w):
            group(srdW, wr, sT0, w, ntw)
            if i < 7: A(f"s_add_u32 s{sT0}, s{sT0}, 16384"); A("s_add_u32 m0, m0, 4096")
        return f
    post_v([wog(i) for i in range(8)], T2, [32])
    A("s_branch L_l_end")
    A("L_l_mlp:")
    spin(lF, F_KR, lS, 4)
    A(f"s_mul_i32 s{sJ}, s{sX8}, 7"); A(f"s_add_u32 s{sJ}, s{sJ}, s{sT0}")
    A(f"s_lshl_b32 s{sT0}, s{sJ}, 6"); A(f"s_lshl_b32 s{sT1}, s{sJ}, 15")
    A("s_mov_b32 m0, 0")
    def w1g(i):
        def f(w):
            group(srdW, [lW1+j for j in range(4)], sT0, w, ntw)
            A(f"s_add_u32 s{sT0}, s{sT0}, {64*3584}"); A("s_add_u32 m0, m0, 4096")
        return f
    def w2g(i):
        def f(w):
            group(srdW2, wr, sT1, w, ntw)
            if i < 7:
                A(f"s_add_u32 s{sT1}, s{sT1}, 16384" if i % 2 == 0 else f"s_sub_u32 s{sT1}, s{sT1}, {16384-256}"); A("s_add_u32 m0, m0, 4096")
        return f
    def w1s(i):
        def f(w):
            if i == 0: A("s_mov_b32 m0, 0")
            w1g(i)(min(w, TM1 - 1))
        return f
    A("s_mov_b32 m0, 32768")
    post_v([w2g(i) for i in range(8)] + [w1s(i) for i in range(8)], TM, [64])
    A("s_branch L_l_end")

    A("L_notloader:")
    A(f"s_load_dwordx2 {s(srdWS,2)}, s[0:1], 96")
    A(f"s_load_dwordx2 {s(srdX,2)}, s[0:1], 0")
    A(f"s_cmp_lg_u32 s{sWV}, 1"); A("s_cbranch_scc1 L_compute")

    H = Regs(4)
    srdC, srdCode = 20, 24
    hT0 = H.a(); hT1 = H.a(); hT2 = H.a(); hT3 = H.a()
    hE = H.a(); hC = H.a(2); hX0 = H.a(4, 4); hX1 = H.a(4, 4); hXa = H.a(); hXb = H.a()
    hTR = H.a(4); hA = H.a(16, 4); hB = H.a(64, 4); hBq = H.a(64, 4); hD = H.a(16, 4); hF = H.a(4, 4)
    hM = H.a(4); hU = H.a(12, 4); hL16 = H.a(); hAcc = H.a(); hDum = H.a(); hFl = H.a(); hOne = H.a()
    xn = H.a(4); hHa = H.a(); hHr = H.a(); hQa = H.a(); hGa = H.a(); hGr = H.a()
    hG, hN = vG, vN
    A("s_setprio 2")
    A(f"s_load_dwordx2 {s(srdC,2)}, s[0:1], 64")
    prod_decode()
    def c_addr(t0, t1):
        A(f"v_and_b32 v{t0}, 1, v{vN}"); A(f"v_lshlrev_b32 v{t0}, 10, v{t0}")
        A(f"v_lshrrev_b32 v{t1}, 1, v{vN}"); A(f"v_lshl_or_b32 v{t0}, v{t1}, 5, v{t0}"); A(f"v_lshl_or_b32 v{t0}, v{vG}, 3, v{t0}")
    c_addr(hT0, hT1)
    A(f"v_lshlrev_b32 v{hL16}, 4, v{vL}"); A(f"v_mov_b32 v{hT2}, 0"); A(f"v_lshlrev_b32 v{hT3}, 2, v{vL}")
    srd_tail(srdWS, WSN); srd_tail(srdC, 2048); srd_tail(srdX, 2048)
    A(f"s_lshl_b32 s{sT0}, s{P['rp']}, 8"); A(f"s_lshl_b32 s{sT1}, s{sRHO}, 8")
    A("s_barrier")
    A("s_waitcnt lgkmcnt(0)")
    A(f"buffer_load_dword v{hE}, v{hT2}, {s(srdWS,4)}, 0 offen sc1")
    A(f"buffer_load_dwordx2 {v(hC,2)}, v{hT0}, {s(srdC,4)}, s{sT0} offen")
    A(f"buffer_load_dwordx4 {v(hX0,4)}, v{hL16}, {s(srdX,4)}, 0 offen")
    A(f"buffer_load_dwordx4 {v(hX1,4)}, v{hL16}, {s(srdX,4)}, 0 offen offset:1024")
    A(f"buffer_load_dword v{hXa}, v{hT3}, {s(srdX,4)}, s{sT1} offen")
    A(f"buffer_load_dword v{hXb}, v{hT3}, {s(srdX,4)}, s{sT1} offen offset:1024")
    for i in range(4): A(f"v_mov_b32 v{hF+i}, -1")
    A(f"v_mov_b32 v{hFl}, {FL}"); A(f"v_mov_b32 v{hOne}, 1")
    smul_add(sT0, [(sX8, "shl", 15), (sR, "shl", 10)], OPA)
    A(f"buffer_store_dwordx4 {v(hF,4)}, v{hL16}, {s(srdWS,4)}, s{sT0} offen")
    A(f"s_cmp_lg_u32 s{sS}, 0"); A("s_cbranch_scc1 L_h_c2")
    smul_add(sT0, [(sX8, "shl", 10), (sB, "shl", 9)], STA)
    setexec(0xffffffff)
    A(f"buffer_store_dwordx4 {v(hF,4)}, v{hL16}, {s(srdWS,4)}, s{sT0} offen")
    A("s_mov_b64 exec, -1")
    A("L_h_c2:")
    A(f"s_cmp_ge_u32 s{sR}, 16"); A("s_cbranch_scc1 L_h_c3")
    smul_add(sT0, [(sX8, "mul", YX), (sR, "shl", 9)], YA)
    A(f"s_mul_i32 s{sT1}, s{sR}, {16-512}"); A(f"s_add_u32 s{sT1}, s{sT1}, 8192")
    A(f"v_mov_b32 v{hT0}, v{hL16}"); A(f"v_writelane_b32 v{hT0}, s{sT1}, 32")
    setexec(0x1ffffffff)
    A(f"buffer_store_dwordx4 {v(hF,4)}, v{hT0}, {s(srdWS,4)}, s{sT0} offen")
    A("s_mov_b64 exec, -1")
    A("L_h_c3:")
    if CODE_PF:
        A(f"s_getpc_b64 {s(srdCode,2)}")
        A("L_pc:")
        A(f"s_sub_u32 s{srdCode}, s{srdCode}, L_pc-{NAME}_kernel"); A(f"s_subb_u32 s{srdCode+1}, s{srdCode+1}, 0")
        srd_tail(srdCode, f"L_code_end-{NAME}_kernel")
        A(f"v_lshlrev_b32 v{hT1}, 7, v{vL}"); A(f"s_mul_i32 s{sT0}, s{sR}, 768")
        A("s_mov_b64 exec, 0x3f")
        A(f"buffer_load_dword v{hDum}, v{hT1}, {s(srdCode,4)}, s{sT0} offen")
        A("s_mov_b64 exec, -1")
    NPF = 1 if CODE_PF else 0
    def tr128_base(dst4, t0, t1, lbase):
        A(f"v_lshrrev_b32 v{t0}, 2, v{vL}"); A(f"v_bfe_u32 v{t1}, v{vL}, 3, 2")
        A(f"v_lshlrev_b32 v{t1}, 5, v{t1}"); A(f"v_lshl_or_b32 v{t0}, v{t0}, 7, v{t1}")
        A(f"v_and_b32 v{t1}, 3, v{vL}"); A(f"v_lshl_or_b32 v{t0}, v{t1}, 3, v{t0}")
        A(f"v_add_u32 v{dst4}, {lbase}, v{t0}")
        for t in range(1, 4): A(f"v_xor_b32 v{dst4+t}, {32*t}, v{dst4}")
    def tr128_read(dst, base4, off):
        for sg in range(4):
            for t in range(4):
                for u in range(2):
                    A(f"ds_read_b64_tr_b16 {v(dst + (sg*4 + t)*4 + 2*u, 2)}, v{base4+t} offset:{off + (32*sg + 16*u)*128}")
    tr128_base(hTR, hT0, hT1, SM)
    A(f"s_getreg_b32 s{sTQ}, hwreg(HW_REG_XCC_ID, 0, 3)")
    dot_consts()
    stamp(1)
    A(f"s_waitcnt vmcnt({4+1+NPF})")
    A(f"v_readfirstlane_b32 s{sTAG}, v{hE}")
    A(f"s_add_u32 s{sTAG}, s{sTAG}, 0x9E3779B1")
    A(f"s_add_u32 s{sTQ}, s{sTQ}, s{sTAG}")
    def mod_block(rC, rU, rA, rB, rD, rTR, rT0, rT1, rFl, rOne, crit):
        A(f"v_lshlrev_b32 v{rU+0}, 16, v{rC}"); A(f"v_and_b32 v{rU+1}, 0xffff0000, v{rC}")
        A(f"v_lshlrev_b32 v{rU+2}, 16, v{rC+1}"); A(f"v_and_b32 v{rU+3}, 0xffff0000, v{rC+1}")
        for i in range(4): A(f"v_mul_f32 v{rU+4+i}, {hex(f2u(-LOG2E))}, v{rU+i}")
        for i in range(4): A(f"v_exp_f32 v{rU+4+i}, v{rU+4+i}")
        for i in range(4): A(f"v_add_f32 v{rU+4+i}, 1.0, v{rU+4+i}")
        for i in range(4): A(f"v_rcp_f32 v{rU+4+i}, v{rU+4+i}")
        for i in range(4): A(f"v_mul_f32 v{rU+i}, v{rU+i}, v{rU+4+i}")
        A(f"v_cvt_pk_bf16_f32 v{rA}, v{rU}, v{rU+1}"); A(f"v_cvt_pk_bf16_f32 v{rA+1}, v{rU+2}, v{rU+3}")
        for sg in range(4):
            for q in range(4):
                sh = 4*sg + 2*(q >> 1)
                if sh: A(f"v_mov_b32_dpp v{rA+4*sg+q}, v{rA+(q&1)} row_shl:{sh} row_mask:0xf bank_mask:0xf bound_ctrl:1")
        smul_add(sT0, [(P['cl'], "shl", 11), (P['rp'], "shl", 9)], MODP)
        A(f"v_lshlrev_b32 v{rT0}, 3, v{vL}")
        for t in range(4): A(f"v_mov_b32 v{rU+2*t+1}, s{sTAG}")
        spin(rFl, F_M, rT1, sleep=0 if crit else 2)
        if crit: stamp(2)
        tr128_read(rB, rTR, 0)
        A(f"ds_write_b32 v{rFl}, v{rOne} offset:{F_MC}")
        for sg in range(4):
            A(f"s_waitcnt lgkmcnt({lg(25-8*sg)})")
            for t in range(4):
                A(f"v_mfma_f32_16x16x32_bf16 {v(rD+4*t,4)}, {v(rA+4*sg,4)}, {v(rB+(sg*4+t)*4,4)}, {'0' if sg == 0 else v(rD+4*t,4)}")
        for t in range(4): A(f"v_cvt_pk_bf16_f32 v{rU+2*t}, v{rD+4*t}, v{rD+4*t+1}")
        for t in range(1, 4): A(f"v_mov_b32_dpp v{rU}, v{rU+2*t} row_newbcast:0 row_mask:0x1 bank_mask:0x0") if False else None
        A("s_mov_b64 exec, 0xffff")
        for t in range(4):
            A(f"buffer_store_dwordx2 {v(rU+2*t,2)}, v{rT0}, {s(srdWS,4)}, s{sT0} offen offset:{t*128} sc1")
        A("s_mov_b64 exec, -1")
        if crit: stamp(3)
    A(f"s_cmp_lt_u32 s{sR}, 24"); A("s_cbranch_scc1 L_h_m1")
    mod_block(hC, hU, hA, hB, hD, hTR, hT0, hT1, hFl, hOne, True)
    A("s_branch L_h_m1b")
    A("L_h_m1:")
    backoff(DG)
    A(f"s_cmp_lt_u32 s{sR}, 16"); A("s_cbranch_scc1 L_h_m1b")
    A(f"ds_write_b32 v{hFl}, v{hOne} offset:{F_MC}")
    A("L_h_m1b:")
    A(f"v_lshrrev_b32 v{hT0}, 5, v{vL}"); A(f"v_and_b32 v{hT1}, 31, v{vL}"); A(f"v_lshlrev_b32 v{hT1}, 4, v{hT1}"); A(f"v_lshl_or_b32 v{hGa}, v{hT0}, 11, v{hT1}")
    A(f"s_lshl_b32 s{sT0}, s{sRHO}, 12"); A(f"s_add_u32 s{sT0}, s{sT0}, {MODP}"); A(f"s_add_u32 s{sT1}, s{sT0}, {8*2048}")
    def modp_loads():
        for rp in range(4):
            A(f"buffer_load_dwordx4 {v(hB+4*rp,4)}, v{hGa}, {s(srdWS,4)}, s{sT0} offen offset:{rp*512} sc1")
            A(f"buffer_load_dwordx4 {v(hB+16+4*rp,4)}, v{hGa}, {s(srdWS,4)}, s{sT1} offen offset:{rp*512} sc1")
    A("s_waitcnt vmcnt(0)")
    stamp(10)
    modp_loads()
    def unpack(dst, src, n):
        for i in range(n):
            A(f"v_lshlrev_b32 v{dst+2*i}, 16, v{src+i}"); A(f"v_and_b32 v{dst+2*i+1}, 0xffff0000, v{src+i}")
    def allreduce64(regs, op, tmp):
        for pat in ("quad_perm:[1,0,3,2]", "quad_perm:[2,3,0,1]", "row_half_mirror", "row_mirror"):
            for r in regs: A(f"{op}_dpp v{r}, v{r}, v{r} {pat} row_mask:0xf bank_mask:0xf bound_ctrl:1")
        for sw in ("v_permlane16_swap_b32", "v_permlane32_swap_b32"):
            for i, r in enumerate(regs): A(f"v_mov_b32 v{tmp+i}, v{r}")
            for i, r in enumerate(regs): A(f"{sw} v{tmp+i}, v{r}")
            for i, r in enumerate(regs): A(f"{op} v{r}, v{r}, v{tmp+i}")
    xs = hB + 32
    unpack(xs, hX0, 4); unpack(xs+8, hX1, 4)
    for b in range(2):
        A(f"v_add_f32 v{hM+b}, v{xs+8*b}, v{xs+8*b+1}")
        for i in range(2, 8): A(f"v_add_f32 v{hM+b}, v{hM+b}, v{xs+8*b+i}")
    allreduce64([hM, hM+1], "v_add_f32", hU)
    for b in range(2): A(f"v_mul_f32 v{hM+b}, {hex(f2u(1/512))}, v{hM+b}")
    for b in range(2):
        for i in range(8): A(f"v_sub_f32 v{xs+8*b+i}, v{xs+8*b+i}, v{hM+b}")
        A(f"v_mul_f32 v{hM+2+b}, v{xs+8*b}, v{xs+8*b}")
        for i in range(1, 8): A(f"v_fmac_f32 v{hM+2+b}, v{xs+8*b+i}, v{xs+8*b+i}")
    allreduce64([hM+2, hM+3], "v_add_f32", hU)
    for b in range(2): A(f"v_mov_b32 v{hU+b}, {hex(f2u(1e-5))}"); A(f"v_fmac_f32 v{hU+b}, {hex(f2u(1/512))}, v{hM+2+b}")
    for b in range(2): A(f"v_rsq_f32 v{hM+2+b}, v{hU+b}")
    unpack(xn, hXa, 1); unpack(xn+2, hXb, 1)
    for b in range(2):
        for c in range(2):
            A(f"v_sub_f32 v{xn+2*b+c}, v{xn+2*b+c}, v{hM+b}"); A(f"v_mul_f32 v{xn+2*b+c}, v{xn+2*b+c}, v{hM+2+b}")
    spin(hFl, F_W, hT1)
    tr128_read(hBq, hTR, S1 - SM)
    def perm_pos(dst, src, t1, hi):
        A(f"v_bfe_u32 v{dst}, v{src}, 1, 2"); A(f"v_lshlrev_b32 v{dst}, {hi}, v{dst}")
        A(f"v_and_b32 v{t1}, 8, v{src}"); A(f"v_or_b32 v{dst}, v{dst}, v{t1}"); A(f"v_and_b32 v{t1}, 1, v{src}"); A(f"v_lshl_or_b32 v{dst}, v{t1}, 2, v{dst}")
    perm_pos(hT0, vL, hT1, 4); A(f"v_lshl_or_b32 v{hT0}, v{hG}, 6, v{hT0}"); A(f"v_add_u32 v{hHa}, {HS}, v{hT0}")
    A(f"v_bfe_u32 v{hT1}, v{vL}, 2, 1"); A(f"v_lshlrev_b32 v{hT1}, 8, v{hT1}"); A(f"v_lshl_or_b32 v{hT1}, v{hG}, 4, v{hT1}"); A(f"v_add_u32 v{hHr}, {HS}, v{hT1}")
    A(f"v_and_b32 v{hT0}, 1, v{hG}"); A(f"v_lshlrev_b32 v{hT0}, 14, v{hT0}"); A(f"v_lshrrev_b32 v{hT1}, 1, v{hG}"); A(f"v_lshl_or_b32 v{hT0}, v{hT1}, 7, v{hT0}"); A(f"v_lshl_or_b32 v{hQa}, v{hN}, 3, v{hT0}")
    A(f"s_and_b32 s{sT4}, s{sR}, 7")
    smul_add(sT6, [(sX8, "shl", 15), (sRHO, "shl", 12), (sT4, "shl", 9)], QPA); A(f"s_add_u32 s{sT5}, s{sT6}, {QB}")
    A(f"v_lshlrev_b32 v{hT0}, 14, v{hG}"); A(f"v_lshl_or_b32 v{hGr}, v{hN}, 4, v{hT0}")
    A(f"s_lshr_b32 s{sT4}, s{sR}, 1"); A(f"s_and_b32 s{sT3}, s{sR}, 1")
    smul_add(sT2, [(sT4, "shl", 11), (sT3, "shl", 8)], MODP + 16*2048)
    A(f"v_mov_b32 v{hF+1}, s{sTQ}"); A(f"v_mov_b32 v{hF+3}, s{sTQ}")
    poll("L_h_p1", modp_loads, lambda: tagcheck([hB+4*i+k for i in range(8) for k in (1, 3)], hAcc))
    stamp(4)
    if dbg and not FINE: A(f"s_mov_b32 s80, s{sCNT}")
    sum_pairs(hU, [hB+4*i for i in range(4)]); sum_pairs(hU+4, [hB+16+4*i for i in range(4)])
    for c in range(2):
        for b in range(2):
            A(f"v_add_f32 v{hU+4+2*c+b}, 1.0, v{hU+4+2*c+b}")
            A(f"v_fmac_f32 v{hU+2*c+b}, v{xn+2*b+c}, v{hU+4+2*c+b}")
    A(f"v_cvt_pk_bf16_f32 v{hU+8}, v{hU}, v{hU+2}"); A(f"v_cvt_pk_bf16_f32 v{hU+9}, v{hU+1}, v{hU+3}")
    A(f"ds_write_b32 v{hHa}, v{hU+8}"); A(f"ds_write_b32 v{hHa}, v{hU+9} offset:256")
    for sg in range(4): A(f"ds_read_b128 {v(hA+4*sg,4)}, v{hHr} offset:{64*sg}")
    for sg in range(4):
        A(f"s_waitcnt lgkmcnt({lg(3-sg)})")
        for t in range(4):
            A(f"v_mfma_f32_16x16x32_bf16 {v(hD+4*t,4)}, {v(hA+4*sg,4)}, {v(hBq+(sg*4+t)*4,4)}, {'0' if sg == 0 else v(hD+4*t,4)}")
    A(f"v_mov_b32 v{hT1}, s{sTAG}"); A(f"ds_write_b32 v{hFl}, v{hT1} offset:{TAGL-FL}")
    A(f"v_mov_b32 v{hF}, v{hD}"); A(f"v_mov_b32 v{hF+2}, v{hD+8}")
    A(f"v_mov_b32_dpp v{hF}, v{hD+4} quad_perm:[0,1,2,3] row_mask:0xc bank_mask:0xf")
    A(f"v_mov_b32_dpp v{hF+2}, v{hD+12} quad_perm:[0,1,2,3] row_mask:0xc bank_mask:0xf")
    A(f"buffer_store_dwordx2 {v(hF,2)}, v{hQa}, {s(srdWS,4)}, s{sT6} offen")
    A(f"buffer_store_dwordx2 {v(hF+2,2)}, v{hQa}, {s(srdWS,4)}, s{sT6} offen offset:256")
    A(f"ds_write_b32 v{hFl}, v{hOne} offset:{F_QP}")
    A(f"buffer_store_dwordx2 {v(hF,2)}, v{hQa}, {s(srdWS,4)}, s{sT5} offen sc1")
    A(f"buffer_store_dwordx2 {v(hF+2,2)}, v{hQa}, {s(srdWS,4)}, s{sT5} offen offset:256 sc1")
    stamp(5)
    A(f"s_cmp_ge_u32 s{sR}, 16"); A("s_cbranch_scc1 L_h_end")
    hPr = hA
    def par_loads():
        for rp in range(4):
            A(f"buffer_load_dwordx4 {v(hPr+4*rp,4)}, v{hGr}, {s(srdWS,4)}, s{sT2} offen offset:{rp*512} sc1")
    backoff(DP)
    par_loads()
    A(f"v_cmp_eq_u32 vcc, 2, v{hG}"); A(f"v_cndmask_b32 v{hT2}, 0, 1.0, vcc")
    A(f"v_lshlrev_b32 v{hT0}, 8, v{hG}"); A(f"v_lshl_or_b32 v{hT0}, v{hN}, 3, v{hT0}"); A(f"v_add_u32 v{hT3}, {PAR}, v{hT0}")
    perm_pos(hT0, hN, hT1, 6); A(f"v_and_b32 v{hT1}, 1, v{hG}"); A(f"v_lshl_or_b32 v{hT0}, v{hT1}, 4, v{hT0}")
    smul_add(sT0, [(sX8, "mul", YX), (sR, "shl", 9)], YA)
    poll("L_h_p2", par_loads, lambda: tagcheck([hPr+4*i+k for i in range(4) for k in (1, 3)], hAcc))
    stamp(6)
    if dbg and not FINE: A(f"s_mov_b32 s82, s{sCNT}")
    sum_pairs(hU, [hPr+4*i for i in range(4)])
    def round_pairs():
        A(f"v_cvt_pk_bf16_f32 v{hU+4}, v{hU}, v{hU+2}"); A(f"v_cvt_pk_bf16_f32 v{hU+5}, v{hU+1}, v{hU+3}")
        for b in range(2):
            A(f"v_lshlrev_b32 v{hU+b}, 16, v{hU+4+b}"); A(f"v_and_b32 v{hU+2+b}, 0xffff0000, v{hU+4+b}")
    round_pairs()
    for i in range(4): A(f"v_add_f32 v{hU+i}, v{hU+i}, v{hT2}")
    round_pairs()
    A(f"v_mov_b32 v{hU+6}, v{hU}"); A(f"v_mov_b32 v{hU+7}, v{hU+2}"); A(f"v_mov_b32 v{hU+8}, v{hU+1}"); A(f"v_mov_b32 v{hU+9}, v{hU+3}")
    A(f"ds_write_b64 v{hT3}, {v(hU+6,2)}"); A(f"ds_write_b64 v{hT3}, {v(hU+8,2)} offset:128")
    spin(hFl, F_Q, hD, 4, sleep=1)
    A(f"v_max3_u32 v{hD}, v{hD}, v{hD+1}, v{hD+2}"); A(f"v_max_u32 v{hD}, v{hD}, v{hD+3}")
    A(f"v_cmp_lt_u32 vcc, 1, v{hD}")
    A("s_cbranch_vccnz L_h_cprem")
    setexec(0xffffffff0000)
    for b in range(2): A(f"buffer_store_dword v{hU+4+b}, v{hT0}, {s(srdWS,4)}, s{sT0} offen offset:{256+32*b}")
    A("L_h_end:")
    A("s_waitcnt lgkmcnt(0)")
    stamp(7)
    stamp_flush()
    A("s_endpgm")
    A("L_h_cprem:")
    A(f"s_add_u32 s{sT0}, s{sT0}, {YBO}")
    setexec(0xffffffff0000)
    for b in range(2): A(f"buffer_store_dword v{hU+4+b}, v{hT0}, {s(srdWS,4)}, s{sT0} offen offset:{256+32*b} sc1")
    smul_add(sT0, [(sX8, "shl", 7), (sR, "shl", 2)], CF)
    flagset(hU, sT0)
    A("s_branch L_h_end")
    for blk in out_of_line: blk()
    out_of_line.clear()

    A("L_compute:")
    R = Regs(4)
    srdO = 32
    vT0 = R.a(); vT1 = R.a(); vT2 = R.a(); vT3 = R.a(); vFl = R.a(); vH4 = R.a(); vC3 = R.a(); vFw = R.a(); vOne = R.a()
    vKa = R.a(4); vQa = R.a(); vVa = R.a(2); vTRV = R.a(); vMLw = R.a(); vMLr = R.a(); vPw = R.a(); vPr = R.a(); vOa = R.a(); vSa = R.a(); vL16 = R.a(); vQw = R.a()
    vM = R.a(); vLs = R.a(); vMc = R.a(); vU = R.a(8, 4); vS = R.a(16, 4); vSt = R.a(2, 2)
    vKb = R.a(64, 4); vQ = R.a(48, 4); vO = R.a(8, 4); vX = R.a(24, 4); vG2 = R.a(32, 4)
    vP = vKb; vVb = vKb + 32
    A(f"s_sub_u32 s{sW}, s{sWV}, 2")
    A(f"s_cmp_lg_u32 s{sW}, 0"); A("s_cbranch_scc1 L_c_b0")
    A(f"v_lshlrev_b32 v{vT0}, 4, v{vL}"); A(f"v_add_u32 v{vT0}, {FL}, v{vT0}")
    A(f"v_subrev_u32 v{vT1}, 4, v{vL}"); A(f"v_cmp_gt_u32 vcc, 8, v{vT1}"); A(f"v_cndmask_b32 v{vU}, 0, -1, vcc")
    for i in range(1, 4): A(f"v_mov_b32 v{vU+i}, v{vU}")
    A("s_mov_b64 exec, 0xffff")
    A(f"ds_write_b128 v{vT0}, {v(vU,4)}")
    A("s_mov_b64 exec, -1")
    A("s_waitcnt lgkmcnt(0)")
    A("L_c_b0:")
    A("s_barrier")
    A(f"s_load_dwordx2 {s(srdO,2)}, s[0:1], 80")
    if DUR: A("s_load_dwordx2 s[88:89], s[0:1], 88")
    A(f"v_mov_b32 v{vFl}, {FL}"); A(f"v_mov_b32 v{vOne}, 1"); A(f"s_lshl_b32 s{sT0}, s{sW}, 2"); A(f"v_add_u32 v{vFw}, s{sT0}, v{vFl}")
    A(f"v_and_b32 v{vH4}, 3, v{vN}"); A(f"v_and_b32 v{vC3}, 3, v{vL}"); A(f"v_lshlrev_b32 v{vL16}, 4, v{vL}")
    A(f"v_xor_b32 v{vT0}, v{vG}, v{vN}"); A(f"v_lshlrev_b32 v{vT0}, 4, v{vT0}"); A(f"v_lshl_or_b32 v{vT0}, v{vN}, 8, v{vT0}")
    A(f"s_lshl_b32 s{sT0}, s{sW}, 14"); A(f"v_add_u32 v{vKa}, s{sT0}, v{vT0}")
    for sg in range(1, 4): A(f"v_xor_b32 v{vKa+sg}, {64*sg}, v{vKa}")
    A(f"v_mul_u32_u24 v{vT0}, 288, v{vH4}"); A(f"v_lshl_add_u32 v{vT0}, v{vG}, 4, v{vT0}"); A(f"v_add_u32 v{vQa}, {QL}, v{vT0}")
    A(f"v_lshrrev_b32 v{vT0}, 2, v{vL}"); A(f"v_and_b32 v{vT1}, 7, v{vT0}"); A(f"v_lshlrev_b32 v{vT1}, 5, v{vT1}"); A(f"v_lshl_or_b32 v{vT0}, v{vT0}, 8, v{vT1}")
    A(f"v_lshl_or_b32 v{vTRV}, v{vC3}, 3, v{vT0}")
    A(f"s_lshl_b32 s{sT0}, s{sW}, 6"); A(f"v_xor_b32 v{vT0}, s{sT0}, v{vTRV}"); A(f"v_add_u32 v{vVa}, {LV}, v{vT0}"); A(f"v_xor_b32 v{vVa+1}, 32, v{vVa}")
    A(f"v_lshlrev_b32 v{vT0}, 5, v{vH4}"); A(f"v_add_u32 v{vMLr}, {ML}, v{vT0}"); A(f"s_lshl_b32 s{sT0}, s{sW}, 3"); A(f"v_add_u32 v{vMLw}, s{sT0}, v{vMLr}")
    A(f"v_lshlrev_b32 v{vT0}, 6, v{vG}"); A(f"v_lshl_or_b32 v{vT0}, v{vH4}, 4, v{vT0}"); A(f"v_add_u32 v{vPr}, {PX}, v{vT0}")
    A(f"v_lshrrev_b32 v{vT0}, 3, v{vN}"); A(f"v_bfe_u32 v{vT1}, v{vN}, 2, 1"); A(f"v_lshlrev_b32 v{vT1}, 3, v{vT1}"); A(f"v_lshl_or_b32 v{vT0}, v{vT0}, 8, v{vT1}")
    A(f"s_lshl_b32 s{sT0}, s{sW}, 9"); A(f"v_add3_u32 v{vPw}, v{vT0}, s{sT0}, v{vPr}")
    A(f"v_lshlrev_b32 v{vOa}, 12, v{vH4}"); A(f"v_lshl_or_b32 v{vOa}, v{vG}, 8, v{vOa}"); A(f"v_lshlrev_b32 v{vSa}, 7, v{vH4}")
    A(f"s_mul_i32 s{sT5}, s{sW}, 288"); A(f"s_add_u32 s{sT5}, s{sT5}, {QL}"); A(f"v_lshl_add_u32 v{vQw}, v{vL}, 2, s{sT5}")
    A(f"v_cmp_gt_u32 {s(sM0,2)}, 4, v{vN}")
    A(f"s_lshl_b64 {s(sM1,2)}, 1, s{sW}")
    sOA, sSA, sSC = 4, 5, 6
    smul_add(sOA, [(sX8, "shl", 15), (sB, "shl", 14), (sW, "shl", 10), (sS, "shl", 4)], OPA)
    smul_add(sSA, [(sX8, "shl", 10), (sB, "shl", 9), (sS, "shl", 3)], STA)
    A(f"s_mov_b32 s{sSC}, {hex(SC)}")
    dot_consts()
    A(f"s_getreg_b32 s{sTQ}, hwreg(HW_REG_XCC_ID, 0, 3)")
    srd_tail(srdWS, WSN); srd_tail(srdX, 2048); srd_tail(srdO, 2048)
    tSa = vX; tX = vX + 1; tCol = vX + 2; tAP = vX + 3; tPar = vX + 4; tY = vX + 8; tPa = vX + 10; tOut = vX + 11; tTR = vX + 12; tW = vX + 16; tYv = vX + 20
    mYa = vX; mSa = vX + 1; mXw = vX + 2; mXr = vX + 3; mBp = vX + 4; mMP = vX + 5; mA1 = vX + 6; mA2 = vX + 8; mMQ = vX + 16; mC = vX + 18
    sA0, sA1, sA2, sA3, sA4, sA5, sA6, sA7, sA8, sA9 = 7, 8, 9, 10, 11, 12, 13, 14, 15, 26
    for i in range(12): A(f"v_mov_b32 v{vX+i}, 0")
    A("s_waitcnt lgkmcnt(0)")
    A(f"s_cmp_lt_u32 s{sR}, 16"); A("s_cbranch_scc0 L_c_nt1")
    A(f"s_and_b32 s{sAB}, s{sW}, 1"); A(f"s_lshr_b32 s{sT0}, s{sW}, 1"); A(f"s_lshr_b32 s{sT1}, s{sR}, 2"); A(f"s_and_b32 s{sT2}, s{sR}, 3")
    A(f"v_lshlrev_b32 v{tSa}, 5, v{vG}")
    smul_add(sA0, [(sX8, "shl", 15), (sAB, "shl", 14), (sT1, "shl", 12)], OPA)
    smul_add(sA1, [(sX8, "shl", 10), (sAB, "shl", 9), (sT1, "shl", 7)], STA)
    A(f"v_and_b32 v{vT0}, 7, v{vL}"); A(f"v_lshl_or_b32 v{tCol}, v{vT0}, 2, v{vG}")
    A(f"v_lshlrev_b32 v{tOut}, 1, v{tCol}")
    smul_add(sA7, [(sAB, "shl", 10), (sR, "shl", 6)])
    A(f"buffer_load_ushort v{tX}, v{tOut}, {s(srdX,4)}, s{sA7} offen")
    A(f"s_lshl_b32 s{sT3}, s{sT0}, 7"); A(f"v_xor_b32 v{tTR}, s{sT3}, v{vTRV}")
    for t in range(1, 4): A(f"v_xor_b32 v{tTR+t}, {32*t}, v{tTR}")
    A(f"v_lshrrev_b32 v{vT0}, 5, v{vL}"); A(f"v_and_b32 v{vT1}, 30, v{vL}"); A(f"v_lshlrev_b32 v{vT1}, 2, v{vT1}"); A(f"v_lshl_or_b32 v{tAP}, v{vT0}, 13, v{vT1}")
    smul_add(sA2, [(sT2, "shl", 15), (sT0, "shl", 14), (sAB, "shl", 12), (sX8, "shl", 9), (sT1, "shl", 7)], AP)
    smul_add(sA3, [(sR, "shl", 13), (sAB, "shl", 12)], AP)
    A(f"v_lshlrev_b32 v{vT0}, 6, v{vC3}"); A(f"v_bfe_u32 v{vT1}, v{vL}, 2, 1"); A(f"v_lshl_or_b32 v{vT0}, v{vT1}, 3, v{vT0}")
    A(f"v_and_b32 v{vT1}, 1, v{vG}"); A(f"v_lshl_or_b32 v{vT0}, v{vT1}, 4, v{vT0}"); A(f"v_lshrrev_b32 v{vT1}, 1, v{vG}"); A(f"v_lshl_or_b32 v{tY}, v{vT1}, 2, v{vT0}")
    A(f"v_lshrrev_b32 v{tY+1}, 1, v{vL}")
    smul_add(sA4, [(sX8, "mul", YX), (sR, "shl", 9), (sAB, "shl", 5)], YA)
    smul_add(sA5, [(sX8, "mul", YX), (sR, "shl", 4), (sAB, "shl", 3)], YA + 8192)
    A(f"s_lshl_b32 s{sT4}, s{sR}, 1"); A(f"s_add_u32 s{sA8}, s{sT4}, s{sAB}"); A(f"s_mul_i32 s{sA6}, s{sA8}, 7168"); A(f"s_add_u32 s{sA6}, s{sA6}, {MP}"); A(f"s_add_u32 s{sA9}, s{sA6}, 4096")
    A(f"s_sub_u32 s{sJ}, s{sX8}, s{sT4}"); A(f"s_and_b32 s{sJ}, s{sJ}, 7")
    smul_add(sT4, [(sAB, "shl", 7)], PAR); A(f"v_lshl_add_u32 v{tPa}, v{tCol}, 2, s{sT4}")
    A(f"s_cmp_eq_u32 s{sW}, 1"); A("s_cbranch_scc0 L_c_roledone")
    srdC2 = 20; P['cl'], P['rp'] = 24, 25
    A(f"s_load_dwordx2 {s(srdC2,2)}, s[0:1], 64")
    A(f"s_add_u32 s{sT0}, s2, 64"); A(f"s_lshr_b32 s{P['cl']}, s{sT0}, 2"); A(f"s_and_b32 s{P['rp']}, s{sT0}, 3")
    c_addr(vT0, vT1)
    A(f"v_mov_b32 v{vT1}, 0"); A(f"s_lshl_b32 s{sT0}, s{P['rp']}, 8")
    srd_tail(srdC2, 2048)
    A("s_waitcnt lgkmcnt(0)")
    A(f"buffer_load_dword v{vO+2}, v{vT1}, {s(srdWS,4)}, 0 offen sc1")
    A(f"buffer_load_dwordx2 {v(vO,2)}, v{vT0}, {s(srdC2,4)}, s{sT0} offen")
    tr128_base(vO+4, vT0, vT1, SM)
    A("s_waitcnt vmcnt(0)")
    A(f"v_readfirstlane_b32 s{sTAG}, v{vO+2}")
    A(f"s_add_u32 s{sTAG}, s{sTAG}, 0x9E3779B1")
    mod_block(vO, vU, vQ, vKb, vQ+16, vO+4, vT0, vT1, vFl, vOne, False)
    A("s_branch L_c_roledone")
    A("L_c_nt1:")
    A(f"s_sub_u32 s{sT0}, s{sR}, 16"); A(f"s_mul_i32 s{sJ}, s{sX8}, 7"); A(f"s_add_u32 s{sJ}, s{sJ}, s{sT0}")
    A(f"v_lshrrev_b32 v{vT0}, 2, v{vN}"); A(f"v_lshlrev_b32 v{vT0}, 9, v{vT0}"); A(f"v_lshl_or_b32 v{vT0}, v{vG}, 6, v{vT0}"); A(f"v_lshl_or_b32 v{mYa}, v{vH4}, 4, v{vT0}")
    A(f"v_and_b32 v{vT0}, 31, v{vL}"); A(f"v_lshlrev_b32 v{mSa}, 3, v{vT0}")
    smul_add(sA1, [(sX8, "mul", YX)], YA + 8192); smul_add(sA0, [(sX8, "mul", YX), (sW, "shl", 11)], YA)
    A(f"v_mul_u32_u24 v{mXw}, {RS}, v{vH4}"); A(f"v_lshl_add_u32 v{mXw}, v{vG}, 4, v{mXw}"); smul_add(sT1, [(sW, "shl", 6)], RED); A(f"v_add_u32 v{mXw}, s{sT1}, v{mXw}")
    A(f"v_lshrrev_b32 v{vT0}, 3, v{vN}"); A(f"v_and_b32 v{vT1}, 1, v{vN}"); A(f"v_lshl_or_b32 v{vT0}, v{vT0}, 1, v{vT1}"); A(f"v_mul_u32_u24 v{mXr}, {2*RS}, v{vT0}")
    A(f"v_lshl_add_u32 v{mXr}, v{vG}, 4, v{mXr}"); A(f"v_bfe_u32 v{vT0}, v{vN}, 1, 2"); A(f"v_lshl_add_u32 v{mXr}, v{vT0}, 2, v{mXr}"); A(f"v_add_u32 v{mXr}, {RED}, v{mXr}")
    A(f"v_lshlrev_b32 v{mBp}, 6, v{vG}"); A(f"v_lshl_or_b32 v{mBp}, v{vT1}, 2, v{mBp}")
    A(f"v_lshrrev_b32 v{vT0}, 2, v{vL}"); A(f"v_lshlrev_b32 v{vT0}, 6, v{vT0}"); A(f"v_and_b32 v{vT2}, 1, v{vG}"); A(f"v_lshl_or_b32 v{vT0}, v{vT2}, 5, v{vT0}"); A(f"v_lshl_or_b32 v{vT0}, v{vC3}, 3, v{vT0}")
    A(f"s_lshl_b32 s{sT1}, s{sW}, 13"); A(f"v_add_u32 v{mA1}, s{sT1}, v{vT0}"); A(f"v_xor_b32 v{mA1+1}, 32, v{mA1}")
    A(f"s_add_u32 s{sT1}, s{sT1}, 32768"); A(f"v_add_u32 v{mA2}, s{sT1}, v{vTRV}")
    for t in range(1, 8): A(f"v_xor_b32 v{mA2+t}, {32*t}, v{mA2}")
    A(f"v_lshrrev_b32 v{vT0}, 2, v{vN}"); A(f"v_lshl_or_b32 v{vT0}, v{vT0}, 1, v{vT1}"); A(f"v_mul_u32_u24 v{mMP}, 7168, v{vT0}")
    A(f"v_bfe_u32 v{vT0}, v{vN}, 1, 1"); A(f"v_lshl_add_u32 v{mMP}, v{vT0}, 6, v{mMP}"); A(f"v_lshl_add_u32 v{mMP}, v{vG}, 4, v{mMP}")
    smul_add(sA3, [(sW, "mul", 4*14336), (sJ, "shl", 7)], MP)
    smul_add(sA4, [(sX8, "shl", 7), (sT0, "shl", 4), (sW, "shl", 2)], MF)
    A(f"s_mov_b32 s{sM2}, 0xcccccccc"); A(f"s_mov_b32 s{sM2+1}, 0xcccccccc")
    A("L_c_roledone:")
    smul_add(sT0, [(sX8, "shl", 15), (sB, "shl", 14), (sW, "shl", 10)], QPA)
    A(f"s_add_u32 s{sT1}, s{sT0}, 4096"); A(f"s_add_u32 s{sT3}, s{sT0}, 8192"); A(f"s_add_u32 s{sT4}, s{sT0}, 12288")
    stamp(1)
    spin(vFl, F_QP, vT0, sleep=2)
    A(f"ds_read_b32 v{vT0}, v{vFl} offset:{TAGL-FL}")
    def q_loads(Pq=vG2):
        for rho, so in enumerate((sT0, sT1, sT3, sT4)):
            A(f"buffer_load_dwordx4 {v(Pq+4*rho,4)}, v{vL16}, {s(srdWS,4)}, s{so} offen sc1")
    def k_reads():
        spin(vFl, F_K, vT1, sleep=1)
        for t in range(4):
            for sg in range(4): A(f"ds_read_b128 {v(vKb+(t*4+sg)*4,4)}, v{vKa+sg} offset:{t*4096}")
        A(f"ds_write_b32 v{vFw}, v{vOne} offset:{F_KR}")
    qtags = [vG2+4*i+k for i in range(4) for k in (1, 3)]
    backoff(DQ)
    q_loads()
    A("s_waitcnt lgkmcnt(0)")
    A(f"v_readfirstlane_b32 s{sTAG}, v{vT0}")
    A(f"v_mov_b32 v{vT3}, 1")
    A(f"s_add_u32 s{sTQ}, s{sTQ}, s{sTAG}")
    if FREM: A(f"s_add_u32 s{sTQ}, s{sTQ}, 9")
    def q_sum(Pq):
        A(f"v_pk_add_f32 {v(vU,2)}, {v(Pq,2)}, {v(Pq+4,2)}"); A(f"v_pk_add_f32 {v(vU+2,2)}, {v(Pq+2,2)}, {v(Pq+6,2)}")
        A(f"v_add_f32 v{vU+1}, v{Pq+8}, v{Pq+12}"); A(f"v_add_f32 v{vU+3}, v{Pq+10}, v{Pq+14}")
    if not QD:
        k_reads()
        A("s_waitcnt vmcnt(0)")
        tagcheck(qtags, vT0, sTQ)
        A("s_cbranch_vccnz L_c_qre")
    else:
        backoff(D2)
        q_loads(vG2+16)
        k_reads()
        A("s_waitcnt vmcnt(4)")
        tagcheck(qtags, vT0, sTQ)
        A("s_cbranch_vccnz L_c_qd")
        def qdual():
            A("L_c_qd:")
            A(f"s_mov_b32 s{sCNT}, 0")
            A("L_c_qd0:")
            q_loads(vG2)
            A("s_waitcnt vmcnt(4)")
            tagcheck([r+16 for r in qtags], vT0, sTQ)
            A("s_cbranch_vccz L_c_qd1")
            q_loads(vG2+16)
            A(f"s_add_u32 s{sCNT}, s{sCNT}, 1"); A(f"s_cmp_ge_u32 s{sCNT}, {NA}"); A("s_cbranch_scc1 L_c_qB")
            A("s_waitcnt vmcnt(4)")
            tagcheck(qtags, vT0, sTQ)
            A("s_cbranch_vccnz L_c_qd0")
            A("s_branch L_c_qok")
            A("L_c_qd1:")
            q_sum(vG2+16)
            A("s_branch L_c_qok2")
        out_of_line.append(qdual)
    A("L_c_qok:")
    q_sum(vG2)
    A("L_c_qok2:")
    def qretry():
        A("L_c_qre:")
        A(f"s_mov_b32 s{sCNT}, 0")
        A("L_c_qre2:")
        q_loads()
        A(f"s_add_u32 s{sCNT}, s{sCNT}, 1"); A(f"s_cmp_ge_u32 s{sCNT}, {NA}")
        A("s_waitcnt vmcnt(0)")
        A("s_cbranch_scc1 L_c_qB")
        tagcheck(qtags, vT0, sTQ)
        A("s_cbranch_vccnz L_c_qre2")
        A("s_branch L_c_qok")
        A("L_c_qB:")
        for so in (sT0, sT1, sT3, sT4): A(f"s_add_u32 s{so}, s{so}, {QB}")
        A("L_c_qB2:")
        q_loads()
        A(f"s_add_u32 s{sCNT}, s{sCNT}, 1"); A(f"s_cmp_gt_u32 s{sCNT}, {NT}")
        A("s_waitcnt vmcnt(0)")
        A("s_cbranch_scc1 L_c_qB3")
        for i, r in enumerate(qtags): A(f"v_subrev_u32 v{vU+i}, s{sTAG}, v{r}")
        A(f"v_max3_u32 v{vT0}, v{vU}, v{vU+1}, v{vU+2}"); A(f"v_max3_u32 v{vT0}, v{vT0}, v{vU+3}, v{vU+4}"); A(f"v_max3_u32 v{vT0}, v{vT0}, v{vU+5}, v{vU+6}"); A(f"v_max_u32 v{vT0}, v{vT0}, v{vU+7}")
        A(f"v_cmp_lt_u32 vcc, 7, v{vT0}")
        A("s_cbranch_vccnz L_c_qB2")
        A("L_c_qB3:")
        tagcheck(qtags, vT0, sTQ)
        A("s_cbranch_vccz L_c_qok")
        A(f"v_mov_b32 v{vT3}, 2")
        A("s_branch L_c_qok")
    out_of_line.append(qretry)
    A(f"v_add_f32 v{vU}, v{vU}, v{vU+1}"); A(f"v_add_f32 v{vU+2}, v{vU+2}, v{vU+3}")
    A(f"v_cvt_pk_bf16_f32 v{vT0}, v{vU}, v{vU+2}")
    A(f"ds_write_b32 v{vQw}, v{vT0}")
    A(f"ds_write_b32 v{vFw}, v{vT3} offset:{F_Q}")
    stamp(2)
    if dbg and not FINE: A(f"s_mov_b32 s{64+2*13}, s{sCNT}")
    spin(vFl, F_Q, vU, 4)
    stamp(3); fine(2, 1)
    for sg in range(4): A(f"ds_read_b128 {v(vQ+sg*4,4)}, v{vQa} offset:{64*sg}")
    A(f"v_max3_u32 v{vU}, v{vU}, v{vU+1}, v{vU+2}"); A(f"v_max_u32 v{vU}, v{vU}, v{vU+3}")
    A(f"v_readfirstlane_b32 s{sREM}, v{vU}")
    for sg in range(4):
        A(f"s_waitcnt lgkmcnt({lg(3-sg)})")
        for t in range(4):
            A(f"v_mfma_f32_16x16x32_bf16 {v(vS+4*t,4)}, {v(vKb+(t*4+sg)*4,4)}, {v(vQ+sg*4,4)}, {'0' if sg == 0 else v(vS+4*t,4)}")
    fine(2, 2)
    for t in range(1, 4):
        for r in range(4): A(f"v_mov_b32_dpp v{vS+r}, v{vS+4*t+r} quad_perm:[0,1,2,3] row_mask:0xf bank_mask:{hex(1 << t)}")
    def red_all(r, op, t):
        for ro in (4, 8): A(f"{op}_dpp v{r}, v{r}, v{r} row_ror:{ro} row_mask:0xf bank_mask:0xf bound_ctrl:1")
        for sw in ("v_permlane16_swap_b32", "v_permlane32_swap_b32"):
            A(f"v_mov_b32 v{t}, v{r}"); A(f"{sw} v{t}, v{r}"); A(f"{op} v{r}, v{r}, v{t}")
    A(f"v_max3_f32 v{vM}, v{vS}, v{vS+1}, v{vS+2}"); A(f"v_max_f32 v{vM}, v{vM}, v{vS+3}")
    red_all(vM, "v_max_f32", vT0)
    A(f"v_mul_f32 v{vSt}, s{sSC}, v{vM}")
    for i in range(4): A(f"v_fma_f32 v{vS+i}, v{vS+i}, s{sSC}, -v{vSt}")
    for i in range(4): A(f"v_exp_f32 v{vS+i}, v{vS+i}")
    A(f"v_add_f32 v{vT0}, v{vS}, v{vS+1}"); A(f"v_add_f32 v{vT1}, v{vS+2}, v{vS+3}"); A(f"v_add_f32 v{vSt+1}, v{vT0}, v{vT1}")
    red_all(vSt+1, "v_add_f32", vT0)
    fine(2, 3)
    A("s_mov_b64 exec, 0xf")
    A(f"ds_write_b64 v{vMLw}, {v(vSt,2)}")
    A("s_mov_b64 exec, -1")
    A(f"s_mov_b32 s{sCNT}, 0")
    A("L_c_ml:")
    A(f"ds_read_b128 {v(vU,4)}, v{vMLr}"); A(f"ds_read_b128 {v(vU+4,4)}, v{vMLr} offset:16")
    A(f"s_add_u32 s{sCNT}, s{sCNT}, 1"); A(f"s_cmp_gt_u32 s{sCNT}, {NT}")
    A("s_waitcnt lgkmcnt(0)")
    A("s_cbranch_scc1 L_c_mlok")
    A(f"v_max3_u32 v{vT0}, v{vU+1}, v{vU+3}, v{vU+5}"); A(f"v_max_u32 v{vT0}, v{vT0}, v{vU+7}")
    A(f"v_cmp_eq_u32 vcc, -1, v{vT0}")
    A("s_cbranch_vccnz L_c_ml")
    A("L_c_mlok:")
    fine(2, 4)
    A(f"v_max3_f32 v{vMc}, v{vU}, v{vU+2}, v{vU+4}"); A(f"v_max_f32 v{vMc}, v{vMc}, v{vU+6}")
    for i in range(4): A(f"v_sub_f32 v{vU+2*i}, v{vU+2*i}, v{vMc}")
    A(f"v_sub_f32 v{vT0}, v{vSt}, v{vMc}")
    for i in range(4): A(f"v_exp_f32 v{vU+2*i}, v{vU+2*i}")
    A(f"v_exp_f32 v{vT0}, v{vT0}")
    A(f"v_mul_f32 v{vLs}, v{vU}, v{vU+1}")
    for i in range(1, 4): A(f"v_fmac_f32 v{vLs}, v{vU+2*i}, v{vU+2*i+1}")
    A(f"v_rcp_f32 v{vT1}, v{vLs}")
    A(f"v_mov_b32 v{vSt}, v{vMc}"); A(f"v_mov_b32 v{vSt+1}, v{vLs}")
    A(f"v_mul_f32 v{vT0}, v{vT0}, v{vT1}")
    for i in range(4): A(f"v_mul_f32 v{vS+i}, v{vS+i}, v{vT0}")
    A(f"v_cvt_pk_bf16_f32 v{vU}, v{vS}, v{vS+1}"); A(f"v_cvt_pk_bf16_f32 v{vU+1}, v{vS+2}, v{vS+3}")
    A(f"ds_write_b64 v{vPw}, {v(vU,2)}")
    A(f"ds_write_b32 v{vFw}, v{vOne} offset:{F_P}")
    A(f"s_cmp_gt_u32 s{sREM}, 1")
    A(f"s_mov_b64 exec, {s(sM1,2)}")
    A("s_cbranch_scc1 L_c_strem")
    A(f"buffer_store_dwordx2 {v(vSt,2)}, v{vSa}, {s(srdWS,4)}, s{sSA} offen")
    A("L_c_stdone:")
    def strem():
        A("L_c_strem:")
        A(f"s_add_u32 s{sSA}, s{sSA}, {SB}"); A(f"s_add_u32 s{sOA}, s{sOA}, {OB}")
        A(f"buffer_store_dwordx2 {v(vSt,2)}, v{vSa}, {s(srdWS,4)}, s{sSA} offen sc1")
        A("s_branch L_c_stdone")
    out_of_line.append(strem)
    A("s_mov_b64 exec, -1")
    stamp(4); fine(2, 5)
    spin(vFl, F_P, vU, 4)
    fine(2, 7)
    for k in range(8): A(f"ds_read_b128 {v(vP+4*k,4)}, v{vPr} offset:{k*256}")
    spin(vFl, F_V, vT0)
    stamp(5); fine(2, 8)
    def vreads(k, dst):
        for t in range(2):
            for u in range(2):
                A(f"ds_read_b64_tr_b16 {v(dst+4*t+2*u,2)}, v{vVa+t} offset:{(32*k+16*u)*256}")
    for k in range(7): vreads(k, vVb+8*k)
    tSt = vG2; tA = vG2 + 8
    def st_loads():
        for k in range(2): A(f"buffer_load_dwordx4 {v(tSt+4*k,4)}, v{tSa}, {s(srdWS,4)}, s{sA1} offen offset:{16*k} sc1")
    st_loads()
    for k in range(7):
        A(f"s_waitcnt lgkmcnt({lg(4*(6-k))})")
        for t in range(2):
            A(f"v_mfma_f32_16x16x32_bf16 {v(vO+4*t,4)}, {v(vVb+8*k+4*t,4)}, {v(vP+4*k,4)}, {'0' if k == 0 else v(vO+4*t,4)}")
    A(f"s_cmp_gt_u32 s{sREM}, 1")
    fine(2, 9)
    A("s_barrier")
    fine(2, 10)
    vreads(7, vVb)
    A(f"s_waitcnt lgkmcnt({lg(2)})")
    A(f"v_mfma_f32_16x16x32_bf16 {v(vO,4)}, {v(vVb,4)}, {v(vP+28,4)}, {v(vO,4)}")
    A("s_waitcnt lgkmcnt(0)")
    A(f"v_mfma_f32_16x16x32_bf16 {v(vO+4,4)}, {v(vVb+4,4)}, {v(vP+28,4)}, {v(vO+4,4)}")
    stamp(6)
    A(f"s_mov_b64 exec, {s(sM0,2)}")
    for i in range(4): A(f"v_cvt_pk_bf16_f32 v{vU+i}, v{vO+2*i}, v{vO+2*i+1}")
    A("s_cbranch_scc1 L_c_orem")
    A(f"buffer_store_dwordx4 {v(vU,4)}, v{vOa}, {s(srdWS,4)}, s{sOA} offen")
    A("s_mov_b64 exec, -1")
    stamp(7); fine(2, 11)
    A(f"s_cmp_lt_u32 s{sR}, 16")
    A("s_cbranch_scc0 L_c_other")

    tB = vKb; tD = vS
    def t1_loads():
        for k in range(4): A(f"buffer_load_dwordx4 {v(tA+4*k,4)}, v{vL16}, {s(srdWS,4)}, s{sA0} offen offset:{1024*k} sc1")
    t1_loads()
    poll("L_stp", lambda: (st_loads(), t1_loads()), lambda: sentcheck([tSt+1, tSt+3, tSt+5, tSt+7], vT0), first_wait=5)
    A("L_t1_w:")
    A(f"ds_read_b32 v{tPar}, v{tPa}"); A(f"ds_read_b32 v{tPar+1}, v{tPa} offset:512"); A(f"ds_read_b32 v{tPar+2}, v{tPa} offset:768")
    A(f"v_max3_f32 v{vM}, v{tSt}, v{tSt+2}, v{tSt+4}"); A(f"v_max_f32 v{vM}, v{vM}, v{tSt+6}")
    def xg(r, op, t):
        for sw in ("v_permlane16_swap_b32", "v_permlane32_swap_b32"):
            A(f"v_mov_b32 v{t}, v{r}"); A(f"{sw} v{t}, v{r}"); A(f"{op} v{r}, v{r}, v{t}")
    xg(vM, "v_max_f32", vT0)
    for r in range(4): A(f"v_sub_f32 v{tW+r}, v{tSt+2*r}, v{vM}")
    for r in range(4): A(f"v_exp_f32 v{tW+r}, v{tW+r}")
    for r in range(4): A(f"v_mul_f32 v{tW+r}, v{tW+r}, v{tSt+2*r+1}")
    A(f"v_add_f32 v{vLs}, v{tW}, v{tW+1}"); A(f"v_add_f32 v{vT1}, v{tW+2}, v{tW+3}"); A(f"v_add_f32 v{vLs}, v{vLs}, v{vT1}")
    xg(vLs, "v_add_f32", vT0)
    A(f"v_rcp_f32 v{vLs}, v{vLs}")
    A(f"v_lshlrev_b32 v{tX}, 16, v{tX}"); A(f"v_mov_b32 v{tYv+1}, s{sTAG}")
    for r in range(4): A(f"v_mul_f32 v{tW+r}, v{tW+r}, v{vLs}")
    A("s_barrier")
    for k in range(4):
        for t in range(4):
            for u in range(2):
                A(f"ds_read_b64_tr_b16 {v(tB+(k*4+t)*4+2*u,2)}, v{tTR+t} offset:{(32*k+16*u)*256}")
    A(f"v_and_b32 v{vT0}, 8, v{vL}"); A(f"v_cmp_ne_u32 {s(sM0,2)}, 0, v{vT0}")
    A(f"v_and_b32 v{vT0}, 16, v{vL}"); A(f"v_cmp_ne_u32 {s(sM1,2)}, 0, v{vT0}")
    A(f"s_cmp_gt_u32 s{sREM}, 1"); A("s_cbranch_scc1 L_t1p_ok")
    stamp(8)
    poll("L_t1p", t1_loads, lambda: sentcheck([tA+3, tA+7, tA+11, tA+15], vT0))
    stamp(9); fine(3, 1)
    for k in range(4):
        A(f"s_waitcnt lgkmcnt({lg(24-8*k)})")
        for t in (0, 2, 1, 3):
            A(f"v_mfma_f32_16x16x32_bf16 {v(tD+4*t,4)}, {v(tA+4*k,4)}, {v(tB+(k*4+t)*4,4)}, {'0' if k == 0 else v(tD+4*t,4)}")
    fine(3, 2)
    A(f"s_cmp_lt_u32 s{sW}, 2")
    for t in (0, 2, 1, 3):
        A(f"v_pk_mul_f32 {v(tD+4*t,2)}, {v(tD+4*t,2)}, {v(tW,2)}")
        A(f"v_pk_fma_f32 {v(tD+4*t,2)}, {v(tD+4*t+2,2)}, {v(tW+2,2)}, {v(tD+4*t,2)}")
        A(f"v_add_f32 v{vU+t}, v{tD+4*t}, v{tD+4*t+1}")
    def reduce4(u):
        A(f"v_permlane32_swap_b32 v{u}, v{u+2}"); A(f"v_permlane32_swap_b32 v{u+1}, v{u+3}")
        A(f"v_pk_add_f32 {v(u,2)}, {v(u,2)}, {v(u+2,2)}")
        A(f"v_permlane16_swap_b32 v{u}, v{u+1}")
        A(f"v_add_f32 v{u}, v{u}, v{u+1}")
    reduce4(vU)
    A(f"v_mov_b32_dpp v{vU+1}, v{vU} quad_perm:[1,0,3,2] row_mask:0xf bank_mask:0xf bound_ctrl:1")
    setexec(0x5555555555555555)
    A(f"v_cvt_pk_bf16_f32 v{tYv}, v{vU}, v{vU+1}")
    A(f"buffer_store_dwordx2 {v(tYv,2)}, v{tAP}, {s(srdWS,4)}, s{sA2} offen sc1")
    A("s_mov_b64 exec, -1")
    stamp(10); fine(3, 3)
    A("s_cbranch_scc0 L_fin_end")
    def red_loads():
        for q in range(4): A(f"buffer_load_dwordx4 {v(tA+4*q,4)}, v{vL16}, {s(srdWS,4)}, s{sA3} offen offset:{1024*q} sc1")
    A("s_waitcnt vmcnt(0)")
    red_loads()
    poll("L_rdp", red_loads, lambda: tagcheck([tA+3, tA+7, tA+11, tA+15], vT0))
    stamp(11); fine(3, 4)
    sum_pairs(vU, [tA+4*q for q in range(4)])
    reduce4(vU)
    A(f"v_add_f32_dpp v{vU}, v{vU}, v{vU} row_ror:8 row_mask:0xf bank_mask:0xf bound_ctrl:1")
    A(f"s_cmp_gt_u32 s{sREM}, 1")
    A(f"v_fmac_f32 v{tX}, v{tPar}, v{vU}")
    A(f"v_mul_f32 v{vU}, v{tX}, v{tPar+1}")
    A(f"v_mul_f32 v{vU+4}, v{tX}, v{tX}")
    A(f"v_mov_b32 v{vU+1}, v{vU}")
    A(f"v_cndmask_b32 v{vU+4}, v{tX}, v{vU+4}, {s(sM0,2)}")
    A(f"v_permlane16_swap_b32 v{vU}, v{vU+1}")
    A(f"v_add_f32_dpp v{vU+4}, v{vU+4}, v{vU+4} quad_perm:[1,0,3,2] row_mask:0xf bank_mask:0xf bound_ctrl:1")
    A(f"v_cvt_pk_bf16_f32 v{vU+2}, v{vU}, v{vU+1}")
    A(f"v_lshlrev_b32 v{vT0}, 16, v{vU+2}")
    A(f"v_add_f32_dpp v{vU+4}, v{vU+4}, v{vU+4} quad_perm:[2,3,0,1] row_mask:0xf bank_mask:0xf bound_ctrl:1")
    A(f"v_and_b32 v{vT1}, 0xffff0000, v{vU+2}")
    A(f"v_sub_f32 v{vU}, v{vU}, v{vT0}")
    A(f"v_add_f32_dpp v{vU+4}, v{vU+4}, v{vU+4} row_half_mirror row_mask:0xf bank_mask:0xf bound_ctrl:1")
    A(f"v_sub_f32 v{vU+1}, v{vU+1}, v{vT1}")
    A(f"v_mov_b32 v{vU+5}, v{vU+4}")
    A(f"v_cvt_pk_bf16_f32 v{vU+3}, v{vU}, v{vU+1}")
    A(f"v_permlane16_swap_b32 v{vU+5}, v{vU+4}")
    A(f"v_cndmask_b32 v{vU+2}, v{vU+2}, v{vU+3}, {s(sM1,2)}")
    A(f"v_add_f32 v{vU+4}, v{vU+4}, v{vU+5}")
    A("s_cbranch_scc1 L_yrem")
    setexec(0x00ff00ff00ff00ff)
    A(f"buffer_store_dword v{vU+2}, v{tY}, {s(srdWS,4)}, s{sA4} offen")
    A("s_mov_b64 exec, -1")
    A(f"v_mov_b32 v{vU+5}, v{vU+4}")
    A(f"v_permlane32_swap_b32 v{vU+5}, v{vU+4}")
    A(f"v_add_f32 v{vU+4}, v{vU+4}, v{vU+5}")
    A("s_mov_b64 exec, 0x101")
    A(f"buffer_store_dword v{vU+4}, v{tY+1}, {s(srdWS,4)}, s{sA5} offen")
    A("s_mov_b64 exec, -1")
    stamp(12); fine(3, 5)
    A(f"s_cmp_eq_u32 s{sJ}, s{sAB}"); A("s_cbranch_scc0 L_fin_end")
    if MFG:
        smul_add(sT0, [(sX8, "shl", 7)], MF); A(f"v_lshlrev_b32 v{vT1}, 2, v{vL}")
        flagwait("L_mfw", vT1, sT0, vT0, 0xfffffff)
    A("L_fin:")
    def fin_loads():
        for q in range(7):
            A(f"buffer_load_dwordx4 {v(tB+4*q,4)}, v{vL16}, {s(srdWS,4)}, s{sA6 if q < 4 else sA9} offen offset:{1024*(q%4)} sc1")
    fin_loads()
    A(f"v_mov_b32 v{vT2}, 0")
    poll("L_fnp", fin_loads, lambda: tagcheck([tB+4*q+3 for q in range(7)], vT0))
    stamp(13) if False else None
    fine(3, 6)
    sum_pairs(vU, [tB+4*q for q in range(7)])
    reduce4(vU)
    A(f"v_add_f32_dpp v{vU}, v{vU}, v{vU} row_ror:8 row_mask:0xf bank_mask:0xf bound_ctrl:1")
    A(f"s_cmp_lg_u32 s{sA8}, 0")
    A(f"v_fmac_f32 v{tX}, v{tPar+2}, v{vU}")
    A(f"v_mov_b32 v{vU+1}, v{tX}")
    A(f"v_permlane16_swap_b32 v{tX}, v{vU+1}")
    setexec(0x000000ff000000ff)
    A(f"v_cvt_pk_bf16_f32 v{vU+2}, v{tX}, v{vU+1}")
    A(f"buffer_store_dword v{vU+2}, v{tOut}, {s(srdO,4)}, s{sA7} offen")
    if DUR:
        A(f"s_memrealtime {s(sST,2)}"); A("s_mov_b32 s90, 256"); A("s_mov_b32 s91, 0x20000"); A("s_waitcnt lgkmcnt(0)")
        A("s_mov_b64 exec, 1"); A(f"s_not_b32 s{sST+2}, s{sST+2}"); A(f"v_mov_b32 v{vU+4}, s{sST+2}"); A(f"v_mov_b32 v{vU+5}, s{sST}")
        A(f"buffer_atomic_umax v{vU+4}, v{vT2}, s[88:91], 0 offen"); A(f"buffer_atomic_umax v{vU+5}, v{vT2}, s[88:91], 0 offen offset:4")
        A(f"s_cmp_lg_u32 s{sA8}, 0")
    A("s_cbranch_scc1 L_fin_end")
    A("s_mov_b64 exec, 1")
    A(f"buffer_store_dword v{tYv+1}, v{vT2}, {s(srdWS,4)}, 0 offen sc1")
    A("L_fin_end:")
    stamp_flush()
    A("s_endpgm")
    A("L_c_orem:")
    A(f"buffer_store_dwordx4 {v(vU,4)}, v{vOa}, {s(srdWS,4)}, s{sOA} offen sc1")
    smul_add(sT0, [(sX8, "shl", 9), (sR, "shl", 4), (sW, "shl", 2)], OF)
    flagset(vT0, sT0)
    A(f"s_cmp_lt_u32 s{sR}, 16"); A("s_cbranch_scc0 L_c_other")
    smul_add(sT0, [(sX8, "shl", 9), (sAB, "shl", 8)], OF); A(f"v_lshlrev_b32 v{vT1}, 2, v{vL}")
    flagwait("L_ofw", vT1, sT0, vT0, (1 << 64) - 1)
    A(f"s_add_u32 s{sA0}, s{sA0}, {OB}"); A(f"s_add_u32 s{sA1}, s{sA1}, {SB}")
    st_loads(); t1_loads()
    A("s_waitcnt vmcnt(0)")
    A("s_branch L_t1_w")
    A("L_yrem:")
    A(f"s_add_u32 s{sA4}, s{sA4}, {YBO}"); A(f"s_add_u32 s{sA5}, s{sA5}, {YBO}")
    setexec(0x00ff00ff00ff00ff)
    A(f"buffer_store_dword v{vU+2}, v{tY}, {s(srdWS,4)}, s{sA4} offen sc1")
    A("s_mov_b64 exec, -1")
    A(f"v_mov_b32 v{vU+5}, v{vU+4}")
    A(f"v_permlane32_swap_b32 v{vU+5}, v{vU+4}")
    A(f"v_add_f32 v{vU+4}, v{vU+4}, v{vU+5}")
    A("s_mov_b64 exec, 0x101")
    A(f"buffer_store_dword v{vU+4}, v{tY+1}, {s(srdWS,4)}, s{sA5} offen sc1")
    smul_add(sT0, [(sX8, "shl", 7), (sA8, "shl", 2)], YF)
    flagset(vT0, sT0)
    A(f"s_cmp_eq_u32 s{sJ}, s{sAB}"); A("s_cbranch_scc0 L_fin_end")
    A("s_branch L_fin")
    for blk in out_of_line: blk()
    out_of_line.clear()

    A("L_c_other:")
    A(f"s_sub_u32 s{sT0}, s{sR}, 16"); A(f"s_cmp_lt_u32 s{sT0}, 7"); A("s_cbranch_scc0 L_fin_end")
    mW1 = vKb; mW2 = vKb + 32; mB = vQ; mD = vQ + 16; mSt = vQ + 24; mR = vQ + 28; mD2 = vQ + 36; mO = vQ + 40; mH = vG2
    sY0, sY1, sMO, sFW = 22, 23, 24, 25
    def y_loads():
        A(f"buffer_load_dwordx4 {v(mB,4)}, v{mYa}, {s(srdWS,4)}, s{sY0} offen sc1")
        A(f"buffer_load_dwordx2 {v(mSt,2)}, v{mSa}, {s(srdWS,4)}, s{sY1} offen sc1")
    A(f"s_cmp_gt_u32 s{sREM}, 1"); A(f"s_cselect_b32 s{sT1}, {YBO}, 0"); A(f"s_add_u32 s{sA0}, s{sA0}, s{sT1}"); A(f"s_add_u32 s{sA1}, s{sA1}, s{sT1}")
    A(f"s_add_u32 s{sY0}, s{sA0}, 256"); A(f"s_mov_b32 s{sY1}, s{sY0}")
    smul_add(sFW, [(sX8, "shl", 7)], CF)
    A(f"v_mov_b32 v{mC}, 0"); A(f"v_mov_b32 v{mC+1}, 0"); A(f"v_mov_b32 v{mO+1}, s{sTAG}"); A(f"v_mov_b32 v{mO+3}, s{sTAG}")
    A(f"v_add_u32 v{mMQ}, 0x40000000, v{mMP}"); A(f"v_mov_b32 v{mMQ+1}, 0x40000000")
    A(f"s_mov_b32 s{sMO}, 0")
    A("s_waitcnt vmcnt(0)")
    for i in range(32): A(f"v_mov_b32 v{mH+i}, 0")
    A("s_barrier")
    for sg in range(4):
        for t in range(2):
            for u in range(2):
                A(f"ds_read_b64_tr_b16 {v(mW1+(t*4+sg)*4+2*u,2)}, v{mA1+t} offset:{(32*sg+16*u)*64}")
    for t in range(8):
        for u in range(2):
            A(f"ds_read_b64_tr_b16 {v(mW2+4*t+2*u,2)}, v{mA2+t} offset:{16*u*256}")
    A("s_waitcnt lgkmcnt(0)")
    A("L_mlp:")
    A(f"s_cmp_gt_u32 s{sREM}, 1"); A("s_cbranch_scc1 L_mrem")
    y_loads()
    stamp(8)
    poll("L_myp", y_loads, lambda: sentcheck([mB+3, mSt, mSt+1], vT0))
    stamp(9); fine(1, 1)
    def mrem():
        A("L_mrem:")
        A(f"v_lshlrev_b32 v{vT1}, 2, v{vL}")
        A(f"s_cmp_eq_u32 s{sMO}, 0"); A("s_cbranch_scc0 L_mrem1")
        flagwait("L_cfw", vT1, sFW, vT0, 0xffff)
        A("s_branch L_mrem2")
        A("L_mrem1:")
        flagwait("L_yfw", vT1, sFW, vT0, 0xffffffff)
        A("L_mrem2:")
        y_loads()
        A("s_waitcnt vmcnt(0)")
        A("s_branch L_myp_ok")
    out_of_line.append(mrem)
    va = []
    for ro in (2, 4, 8):
        va += [f"v_add_f32_dpp v{mSt+i}, v{mSt+i}, v{mSt+i} row_ror:{ro} row_mask:0xf bank_mask:0xf bound_ctrl:1" for i in range(2)]
    va += [f"v_mov_b32 v{mSt+2}, v{mSt}", f"v_mov_b32 v{mSt+3}, v{mSt+1}", f"v_permlane16_swap_b32 v{mSt+2}, v{mSt}", f"v_permlane16_swap_b32 v{mSt+3}, v{mSt+1}",
           f"v_pk_add_f32 {v(mSt,2)}, {v(mSt,2)}, {v(mSt+2,2)}",
           f"v_mul_f32 v{mSt}, {hex(f2u(1/512))}, v{mSt}", f"v_mov_b32 v{mSt+2}, {hex(f2u(1e-5))}",
           f"v_fmac_f32 v{mSt+2}, {hex(f2u(1/512))}, v{mSt+1}", f"v_fma_f32 v{mSt+2}, -v{mSt}, v{mSt}, v{mSt+2}",
           f"v_rsq_f32 v{mSt+2}, v{mSt+2}", f"v_mul_f32 v{mC}, v{mC}, v{mSt}", f"v_mul_f32 v{mSt+3}, {hex(f2u(-LOG2E))}, v{mSt+2}", f"v_mul_f32 v{mC+2}, {hex(f2u(-LOG2E))}, v{mC+1}"]
    def shl(sg):
        for q in range(4): A(f"v_mov_b32_dpp v{mB+4*sg+q}, v{mB+q} row_shl:{4*sg} row_mask:0xf bank_mask:0xf bound_ctrl:1")
    def mf1(sg, t): A(f"v_mfma_f32_16x16x32_bf16 {v(mD+4*t,4)}, {v(mW1+(t*4+sg)*4,4)}, {v(mB+4*sg,4)}, {'0' if sg == 0 else v(mD+4*t,4)}")
    mf1(0, 0); shl(1); mf1(0, 1); shl(2); mf1(1, 0); mf1(1, 1); shl(3); mf1(2, 0); mf1(2, 1)
    vi = 0
    A(va[0]); A(va[1]); mf1(3, 0); A(va[2]); A(va[3]); mf1(3, 1); vi = 4
    for _ in range(6): A(va[vi]); vi += 1
    fine(1, 2)
    A(f"s_mov_b64 exec, {s(sM0,2)}")
    for t in range(2): A(f"ds_write_b128 v{mXw}, {v(mD+4*t,4)} offset:{t*4*RS}")
    A("s_mov_b64 exec, -1")
    while vi < len(va): A(va[vi]); vi += 1
    A("s_waitcnt lgkmcnt(0)")
    fine(1, 3)
    A("s_barrier")
    fine(1, 4)
    for cw in range(4): A(f"ds_read2_b32 {v(mR+2*cw,2)}, v{mXr} offset0:{16*cw} offset1:{16*cw+RS//4}")
    A(f"s_waitcnt lgkmcnt({lg(2)})")
    A(f"v_pk_add_f32 {v(mR,2)}, {v(mR,2)}, {v(mR+2,2)}")
    A("s_waitcnt lgkmcnt(0)")
    A(f"v_pk_add_f32 {v(mR+4,2)}, {v(mR+4,2)}, {v(mR+6,2)}")
    A(f"v_pk_add_f32 {v(mR,2)}, {v(mR,2)}, {v(mR+4,2)}")
    A(f"v_sub_f32 v{mR+2}, v{mR}, v{mC}"); A(f"v_add_f32 v{mR+2}, v{mR+2}, v{mR+1}")
    fine(1, 5)
    A(f"v_fma_f32 v{mR+3}, v{mR+2}, v{mSt+3}, v{mC+2}")
    A(f"v_exp_f32 v{mR+3}, v{mR+3}")
    A(f"v_fma_f32 v{mR+2}, v{mR+2}, v{mSt+2}, v{mC+1}")
    A(f"v_add_f32 v{mR+3}, 1.0, v{mR+3}"); A(f"v_rcp_f32 v{mR+3}, v{mR+3}")
    A(f"v_mul_f32 v{mR+2}, v{mR+2}, v{mR+3}")
    A(f"v_mov_b32_dpp v{mR+3}, v{mR+2} row_shl:2 row_mask:0xf bank_mask:0xf bound_ctrl:1")
    A(f"v_cvt_pk_bf16_f32 v{mR+4}, v{mR+2}, v{mR+3}")
    A(f"v_cndmask_b32 v{mR+4}, v{mR+4}, 0, {s(sM2,2)}")
    fine(1, 6)
    def bt(t):
        for q in range(4):
            d = 2*t - 4*q
            pat = "quad_perm:[0,1,2,3]" if d == 0 else (f"row_shr:{d}" if d > 0 else f"row_shl:{-d}")
            A(f"v_mov_b32_dpp v{mH+4*t+q}, v{mR+4} {pat} row_mask:0xf bank_mask:{hex(1 << (t >> 1))} bound_ctrl:1")
    def mf2(t): A(f"v_mfma_f32_16x16x32_bf16 {v(mD2,4)}, {v(mW2+4*t,4)}, {v(mH+4*t,4)}, {'0' if t == 0 else v(mD2,4)}")
    bt(0); bt(1)
    for t in range(8):
        mf2(t)
        if t + 2 < 8: bt(t + 2)
    fine(1, 7)
    A(f"v_cvt_pk_bf16_f32 v{mO}, v{mD2}, v{mD2+1}"); A(f"v_cvt_pk_bf16_f32 v{mO+2}, v{mD2+2}, v{mD2+3}")
    A(f"buffer_store_dwordx4 {v(mO,4)}, v{mMQ}, {s(srdWS,4)}, s{sA3} offen sc1")
    A("s_mov_b64 exec, 1")
    A(f"buffer_store_dword v{mO+1}, v{mMQ+1}, {s(srdWS,4)}, s{sA4} offen")
    stamp(10); fine(1, 8)
    A(f"s_cmp_lg_u32 s{sMO}, 0"); A("s_cbranch_scc1 L_fin_end")
    A("s_mov_b64 exec, -1")
    A(f"s_mov_b32 s{sMO}, 1")
    A(f"s_mov_b32 s{sY0}, s{sA0}"); A(f"s_mov_b32 s{sY1}, s{sA1}"); A(f"s_add_u32 s{sFW}, s{sFW}, {YF-CF}")
    A(f"v_mov_b32 v{mC}, v{mR}"); A(f"v_mov_b32 v{mC+1}, v{mR+1}"); A(f"v_mov_b32 v{mMQ}, v{mMP}"); A(f"v_mov_b32 v{mMQ+1}, 0")
    A(f"v_add_u32 v{mXw}, {8*RS}, v{mXw}"); A(f"v_add_u32 v{mXr}, {8*RS}, v{mXr}")
    A("s_branch L_mlp")
    for blk in out_of_line: blk()
    A("L_end:"); A("s_endpgm")
    A("L_code_end:")
    A('.section .rodata,"a"'); A(".p2align 6"); A(f".amdhsa_kernel {NAME}_kernel")
    nv = 256 if dbg else max(R.hi, H.hi, Lr.hi)
    nv_al = (nv + 3) // 4 * 4
    for l in (f"next_free_vgpr {nv}", "next_free_sgpr 96", f"accum_offset {nv_al}", "group_segment_fixed_size 0", "kernarg_size 104", "user_sgpr_count 2", "user_sgpr_kernarg_segment_ptr 1", "system_sgpr_workgroup_id_x 1", "float_denorm_mode_32 3"):
        A(".amdhsa_" + l)
    A(".end_amdhsa_kernel")
    bad = A.check_branches()
    for b in bad: print("BRANCH HAZARD", b, file=sys.stderr)
    print(f"compute regs {R.hi}, helper regs {H.hi}, loader regs {Lr.hi}, nops {A.nops}, instrs {sum(1 for i in A.ins if i.ws)}", file=sys.stderr)
    return "\n".join(hdr) + "\n" + A.text()

if __name__ == "__main__":
    out = sys.argv[1] if len(sys.argv) > 1 else "k.s"
    kw = {}
    for a in sys.argv[2:]:
        k, val = a.split("=")
        kw[k] = val.replace("_", " ") if k in STRK else int(val)
    open(out, "w").write(gen(**kw))
```

```python
import sys, struct
from asmlib import Asm
NAME = "adaLN_cond__sliding_block_cached__dense_activation_silu__decode"

EPOCH = 0
MODP = 0x1000
QPA  = 0x20000
QPB  = 0x60000
OPA  = 0xA0000
OPB  = 0xE0000
STA  = 0x120000
STB  = 0x122000
YX   = 0x2100
YA   = 0x124000
YB   = 0x138000
MF   = 0x14C000
OF   = 0x14D000
CF   = 0x14E000
YF   = 0x14F000
AP   = 0x150000
MP   = 0x170000
WS_USED = 0x1B0000
DBG  = 0x200000
QB = QPB - QPA; OB = OPB - OPA; SB = STB - STA; YBO = YB - YA

LK = 0; LV = 65536; S0 = 131072; S1 = 147456
SM = LV + 49152
SR = LV + 32768
FL = S0
F_M, F_W, F_K, F_QP, F_KR, F_MC, F_V, F_Q, F_P = 0, 4, 8, 12, 16, 32, 40, 48, 192
F_T1, F_T2, F_CR, F_R, F_RC = 36, 44, 208, 224, 228
ML = S0 + 64
HS = S0 + 512; QL = S0 + 1024; PAR = S0 + 2304; TAGL = S0 + 3328; PX = S0 + 3584; RED = S0 + 5632
RS = 272

LOG2E = 1.4426950408889634
def f2u(x): return struct.unpack("<I", struct.pack("<f", x))[0]
SC = f2u(128 ** -0.5 * LOG2E)
STRK = ("ntw", "ntk", "nts", "osf")

class Regs:
    def __init__(self, start=1):
        self.n = start; self.hi = start
    def a(self, cnt=1, al=None):
        al = al or (1 if cnt == 1 else 2)
        self.n = (self.n + al - 1) // al * al
        r = self.n; self.n += cnt; self.hi = max(self.hi, self.n)
        return r
def v(r, n=1): return f"v{r}" if n == 1 else f"v[{r}:{r+n-1}]"
def s(r, n=1): return f"s{r}" if n == 1 else f"s[{r}:{r+n-1}]"

def gen(WA=20, WB=20, WC=22, VA=28, VB=20, VC=24, TI=16, NI=32, NC=48, RP=0, QT=1, OT=1, TLB=0, BO=1, BT=9, EW=0, EM=0, SH=1, DM=0, DA=0, MFE=0, WBL=0, OPT=0, osf='', nts='', W1F=1, TMA=40, TME=16, KF=4, T2=20, TM=12, TM1=16, T3=32, QD=0, D2=8, PS=0, PN=0, PB=16, GK=7, TH=99, RA=1, RX=2, DG=62, DQ=70, DP=20, QORD=0, MFG=1,
        dbg=False, FINE=0, NA=8, NT=100000, CODE_PF=1, ntw="nt", ntk="nt", DUR=0, FREM=0):
    A = Asm()
    hdr = []
    hdr.append("; @launch grid=(256,1,1) block=(384,1,1) lds=163840")
    A('.amdgcn_target "amdgcn-amd-amdhsa--gfx950"')
    A(".text"); A(f".globl {NAME}_kernel"); A(".p2align 8"); A(f".type {NAME}_kernel,@function"); A(f"{NAME}_kernel:")
    sWV, sX8, sR = 3, 36, 37
    sKO, sT0, sT1, sT2, sT3 = 38, 39, 40, 41, 42
    sTAG, sCNT, sB, sS, sW = 43, 44, 45, 46, 47
    sM0, sM1, sM2 = 48, 50, 52
    sAB = 54; sJ = 55; sT4 = 56; sT5 = 57; sT6 = 58; sT7 = 59
    sST = 60
    sREM, sLO, sHI, sTQ = 94, 95, 93, 92
    if DUR: pass
    srdWS, srdX = 16, 28
    vL, vG, vN = 1, 2, 3
    WSN = WS_USED if not dbg else 0x400000
    out_of_line = []
    def stamp(idx):
        if dbg and not FINE: A(f"s_memrealtime {s(64+2*idx,2)}")
    def fine(sec, idx):
        if dbg and FINE == sec: A(f"s_memtime {s(64+2*idx,2)}")
    def stamp_flush():
        if dbg:
            A("s_waitcnt lgkmcnt(0)")
            A("s_mov_b64 exec, -1")
            A(f"v_writelane_b32 v255, s{sST+2}, 0")
            for i in range(1, 14): A(f"v_writelane_b32 v255, s{64+2*i}, {i}")
            A(f"s_memrealtime {s(sST,2)}" if not FINE else f"s_memtime {s(sST,2)}"); A("s_waitcnt lgkmcnt(0)"); A(f"v_writelane_b32 v255, s{sST}, 14")
            A(f"s_mul_i32 s{sST}, s2, 6"); A(f"s_add_u32 s{sST}, s{sST}, s{sWV}"); A(f"s_lshl_b32 s{sST}, s{sST}, 7"); A(f"s_add_u32 s{sST}, s{sST}, {DBG}")
            A("v_and_b32 v254, 63, v0"); A("v_lshlrev_b32 v254, 2, v254")
            A("s_mov_b64 exec, 0xffff")
            A(f"buffer_store_dword v255, v254, {s(srdWS,4)}, s{sST} offen")
    def lg(n): return 0 if dbg else min(n, 15)
    def setexec(m):
        lo, hi = m & 0xffffffff, m >> 32
        if m == (1 << 64) - 1: A("s_mov_b64 exec, -1")
        elif hi == 0 and lo < 0x80000000: A(f"s_mov_b64 exec, {hex(lo)}")
        else: A(f"s_mov_b32 exec_lo, {hex(lo)}"); A(f"s_mov_b32 exec_hi, {hex(hi)}")
    def srd_tail(r, nbytes):
        A(f"s_mov_b32 s{r+2}, {nbytes}"); A(f"s_mov_b32 s{r+3}, 0x20000")
    def backoff(n):
        while n > 0: A(f"s_sleep {min(n, 100)}"); n -= 100
    lab = [0]
    def spin(va, off, vt, n=1, sleep=0):
        lab[0] += 1; L = f"L_spin{lab[0]}"
        A(f"{L}:")
        if n == 1: A(f"ds_read_b32 v{vt}, v{va} offset:{off}")
        else: A(f"ds_read_b128 {v(vt,4)}, v{va} offset:{off}")
        A("s_waitcnt lgkmcnt(0)")
        if n == 4:
            A(f"v_min3_u32 v{vt+4}, v{vt}, v{vt+1}, v{vt+2}"); A(f"v_min_u32 v{vt+4}, v{vt+4}, v{vt+3}")
        A(f"v_cmp_eq_u32 vcc, 0, v{vt + (4 if n == 4 else 0)}")
        if sleep:
            A(f"s_cbranch_vccz {L}_ok"); A(f"s_sleep {sleep}"); A(f"s_branch {L}"); A(f"{L}_ok:")
        else:
            A(f"s_cbranch_vccnz {L}")
    def smul_add(dst, terms, const=0, tmp=sT7):
        first = True
        for (r, op, k) in terms:
            d = dst if first else tmp
            A(f"s_lshl_b32 s{d}, s{r}, {k}" if op == "shl" else f"s_mul_i32 s{d}, s{r}, {k}")
            if not first: A(f"s_add_u32 s{dst}, s{dst}, s{tmp}")
            first = False
        if const: A(f"s_add_u32 s{dst}, s{dst}, {const}")
    def tagcheck(rs, acc, tag=sTAG):
        A(f"v_xor_b32 v{acc}, s{tag}, v{rs[0]}")
        for r in rs[1:]: A(f"v_bitop3_b32 v{acc}, v{r}, s{tag}, v{acc} bitop3:0xbe")
        A(f"v_cmp_ne_u32 vcc, 0, v{acc}")
    def sentcheck(rs, acc):
        if len(rs) == 1: A(f"v_cmp_eq_u32 vcc, -1, v{rs[0]}"); return
        if len(rs) == 2: A(f"v_max_u32 v{acc}, v{rs[0]}, v{rs[1]}"); i = 2
        else: A(f"v_max3_u32 v{acc}, v{rs[0]}, v{rs[1]}, v{rs[2]}"); i = 3
        while i < len(rs):
            if i + 1 < len(rs): A(f"v_max3_u32 v{acc}, v{acc}, v{rs[i]}, v{rs[i+1]}"); i += 2
            else: A(f"v_max_u32 v{acc}, v{acc}, v{rs[i]}"); i += 1
        A(f"v_cmp_eq_u32 vcc, -1, v{acc}")
    def poll(lbl, loads, check, first_wait=0):
        A(f"s_waitcnt vmcnt({first_wait})")
        check()
        A(f"s_cbranch_vccnz {lbl}_re")
        A(f"{lbl}_ok:")
        def blk():
            A(f"{lbl}_re:")
            A(f"s_mov_b32 s{sCNT}, 0")
            A(f"{lbl}_re2:")
            loads()
            A(f"s_add_u32 s{sCNT}, s{sCNT}, 1"); A(f"s_cmp_gt_u32 s{sCNT}, {NT}")
            A("s_waitcnt vmcnt(0)")
            A(f"s_cbranch_scc1 {lbl}_ok")
            check()
            A(f"s_cbranch_vccnz {lbl}_re2")
            A(f"s_branch {lbl}_ok")
        out_of_line.append(blk)
    def flagwait(lbl, va, so, vt, mask):
        A(f"s_mov_b32 s{sCNT}, 0"); setexec(mask)
        A(f"{lbl}:")
        A(f"buffer_load_dword v{vt}, v{va}, {s(srdWS,4)}, s{so} offen sc1")
        A(f"s_add_u32 s{sCNT}, s{sCNT}, 1"); A(f"s_cmp_gt_u32 s{sCNT}, {NT}")
        A("s_waitcnt vmcnt(0)")
        A(f"s_cbranch_scc1 {lbl}_x")
        A(f"v_cmp_ne_u32 vcc, s{sTAG}, v{vt}")
        A(f"s_cbranch_vccnz {lbl}")
        A(f"{lbl}_x:")
        A("s_mov_b64 exec, -1")
    def flagset(vt, so):
        A("s_waitcnt vmcnt(0)")
        A("s_mov_b64 exec, 1")
        A(f"v_mov_b32 v{vt}, 0"); A(f"v_mov_b32 v{vt+1}, s{sTAG}")
        A(f"buffer_store_dword v{vt+1}, v{vt}, {s(srdWS,4)}, s{so} offen sc1")
        A("s_mov_b64 exec, -1")
    def sum_pairs(dst, srcs):
        for i, q in enumerate(srcs):
            for c in range(4):
                A(f"v_dot2_f32_bf16 v{dst+c}, v{q + (c & 2)}, s{sHI if c & 1 else sLO}, {'0' if i == 0 else 'v%d' % (dst+c)}")
    def dot_consts():
        A(f"s_mov_b32 s{sLO}, 0x3f80"); A(f"s_mov_b32 s{sHI}, 0x3f800000")

    if dbg or DUR: A(f"s_memrealtime {s(sST+2,2)}")
    A("s_cmp_ge_u32 s2, 256"); A("s_cbranch_scc1 L_end")
    A("v_lshrrev_b32 v1, 6, v0")
    A(f"s_and_b32 s{sX8}, s2, 7"); A(f"s_lshr_b32 s{sR}, s2, 3")
    A(f"v_readfirstlane_b32 s{sWV}, v1")
    A("v_and_b32 v1, 63, v0")
    A("v_lshrrev_b32 v2, 4, v1"); A("v_and_b32 v3, 15, v1")
    A(f"s_lshr_b32 s{sB}, s{sR}, 4"); A(f"s_and_b32 s{sS}, s{sR}, 15")
    sRHO = 35; P = dict(cl=34, rp=33)
    A(f"s_lshr_b32 s{sRHO}, s{sR}, 3")
    A(f"s_cmp_lg_u32 s{sWV}, 0"); A("s_cbranch_scc1 L_notloader")
    def prod_decode():
        A(f"s_lshr_b32 s{P['cl']}, s2, 2"); A(f"s_and_b32 s{P['cl']}, s{P['cl']}, 15"); A(f"s_and_b32 s{P['rp']}, s2, 3")

    Lr = Regs(4)
    srdWM, srdWQ, srdK, srdV, srdW, srdW2 = 8, 12, 20, 24, 4, 28
    lWM = Lr.a(4); lWQ = Lr.a(4); lK = Lr.a(4); lV = Lr.a(2); lW = Lr.a(4); lW1 = Lr.a(4); lT0 = Lr.a(); lT1 = Lr.a(); lF = Lr.a(); lOne = Lr.a(); lS = Lr.a(6, 4)
    A("s_setprio 3")
    A(f"s_load_dwordx2 {s(srdK,2)}, s[0:1], 8")
    A(f"s_load_dwordx2 {s(srdWM,2)}, s[0:1], 72")
    A(f"s_load_dwordx2 {s(srdWQ,2)}, s[0:1], 24")
    A(f"s_load_dwordx2 {s(srdV,2)}, s[0:1], 16")
    prod_decode()
    A(f"v_and_b32 v{lT0}, 7, v{vL}"); A(f"v_lshlrev_b32 v{lT1}, 1, v{vG}"); A(f"v_xor_b32 v{lT0}, v{lT0}, v{lT1}"); A(f"v_lshlrev_b32 v{lT0}, 4, v{lT0}")
    A(f"v_lshrrev_b32 v{lT1}, 3, v{vL}")
    A(f"v_mul_u32_u24 v{lWM}, 6144, v{lT1}"); A(f"v_add_u32 v{lWM}, v{lWM}, v{lT0}")
    for j in range(1, 4): A(f"v_add_u32 v{lWM+j}, {j*(8*6144-1024)}, v{lWM}")
    A(f"v_lshl_or_b32 v{lWQ}, v{lT1}, 13, v{lT0}")
    for j in range(4):
        A(f"v_add_u32 v{lT0}, {4*j}, v{vG}"); A(f"v_xor_b32 v{lT0}, v{lT0}, v{vN}"); A(f"v_lshlrev_b32 v{lT0}, 4, v{lT0}"); A(f"v_lshl_or_b32 v{lK+j}, v{vG}, 8, v{lT0}")
    srd_tail(srdWM, 512*6144); srd_tail(srdK, 65536)
    smul_add(sT0, [(P['rp'], "mul", 128*6144), (P['cl'], "shl", 7)])
    sRO = 32
    smul_add(sKO, [(sB, "shl", 26), (sX8, "shl", 23), (sS, "shl", 16)], 28672*256)
    smul_add(sT2, [(sR, "mul", RA), (sX8, "mul", RX)]); A(f"s_and_b32 s{sT2}, s{sT2}, 15"); A(f"s_lshl_b32 s{sT2}, s{sT2}, 12")
    A("s_barrier")
    A(f"s_cmp_ge_u32 s{sR}, 24")
    A("s_waitcnt lgkmcnt(0)")
    A("s_cbranch_scc1 L_l_crit")
    def group(srd, vr, so, wait, nt=ntk):
        for j in range(4):
            if wait is not None: A(f"s_waitcnt vmcnt({wait})")
            A(f"buffer_load_dwordx4 v{vr[j]}, {s(srd,4)}, s{so} offen offset:{j*1024} {nt} lds")
    def flag(off, cnt):
        A(f"s_waitcnt vmcnt({cnt})"); A(f"ds_write_b32 v{lF}, v{lOne} offset:{off}")
    kr = [lK+j for j in range(4)]
    def late_setup():
        for j in range(1, 4): A(f"v_add_u32 v{lWQ+j}, {j*(8*8192-1024)}, v{lWQ}")
        srd_tail(srdWQ, 512*8192)
        A(f"s_and_b32 s{sT3}, s{sR}, 7")
        smul_add(sT1, [(sRHO, "shl", 20), (sX8, "shl", 10), (sT3, "shl", 7)])
        A(f"v_mov_b32 v{lF}, {FL}"); A(f"v_mov_b32 v{lOne}, 1")
        A(f"s_lshr_b32 s{sT3}, s2, 2"); A(f"s_add_u32 s{sT3}, s{sT3}, {-16 if RP else 16}")
        smul_add(sRO, [(P['rp'], "mul", 128*6144), (sT3, "shl", 7)])
    def kbase():
        A(f"s_add_u32 s{srdK}, s{srdK}, s{sKO}"); A(f"s_addc_u32 s{srdK+1}, s{srdK+1}, 0")
    def pace(extra=0):
        if PS: A(f"s_sleep {PS}")
        n = PN + (extra if PS or PN else 0)
        while n >= 4: k = min(n // 4, 16); A(f"s_nop {k-1}"); n -= 4*k
    vr = [lV, lV+1, lV, lV+1]
    def kvloop(name, srd, vr, end, TT):
        A(f"{name}:")
        group(srd, vr, sT2, TT-1)
        A(f"s_add_u32 s{sT2}, s{sT2}, 4096"); A(f"s_and_b32 s{sT2}, s{sT2}, 0xffff")
        A("s_add_u32 m0, m0, 4096"); A(f"s_cmp_lt_u32 m0, {end}"); A(f"s_cbranch_scc1 {name}")
    def setup2():
        A(f"s_cmp_lt_u32 s{sR}, 16"); A(f"s_cselect_b32 s{sT4}, 32, 48")
        A(f"s_load_dwordx2 {s(srdW,2)}, s[0:1], s{sT4}")
        A(f"s_load_dwordx2 {s(srdW2,2)}, s[0:1], 56")
        if dbg: A(f"s_load_dwordx2 {s(srdWS,2)}, s[0:1], 96"); srd_tail(srdWS, WSN)
        A(f"s_add_u32 s{srdV}, s{srdV}, s{sKO}"); A(f"s_addc_u32 s{srdV+1}, s{srdV+1}, 0"); srd_tail(srdV, 65536)
        A(f"v_lshlrev_b32 v{lT0}, 1, v{vG}"); A(f"v_xor_b32 v{lT0}, v{lT0}, v{vN}"); A(f"v_lshlrev_b32 v{lT0}, 4, v{lT0}")
        A(f"v_lshl_or_b32 v{lV}, v{vG}, 8, v{lT0}"); A(f"v_xor_b32 v{lV+1}, 128, v{lV}")
        A(f"v_lshl_or_b32 v{lW}, v{vG}, 10, v{lT0}"); A(f"v_xor_b32 v{lT0}, 128, v{lW}")
        A(f"v_add_u32 v{lW+1}, 3072, v{lT0}"); A(f"v_add_u32 v{lW+2}, 6144, v{lW}"); A(f"v_add_u32 v{lW+3}, 9216, v{lT0}")
    wr = [lW+j for j in range(4)]
    def wo_setup():
        spin(lF, F_KR, lS, 4)
        srd_tail(srdW, 4096*1024)
        A(f"s_lshr_b32 s{sT1}, s{sR}, 2"); A(f"s_and_b32 s{sT3}, s{sR}, 3")
        smul_add(sT0, [(sX8, "shl", 19), (sT1, "shl", 17), (sT3, "shl", 8)])
        A("s_mov_b32 m0, 0")
    def wog(i):
        def f(w):
            group(srdW, wr, sT0, w, ntw)
            if i < 7: A(f"s_add_u32 s{sT0}, s{sT0}, 16384"); A("s_add_u32 m0, m0, 4096")
        return f
    def mlp_setup():
        A(f"v_and_b32 v{lT0}, 1, v{vG}"); A(f"v_lshlrev_b32 v{lT0}, 1, v{lT0}"); A(f"v_and_b32 v{lT1}, 3, v{vL}"); A(f"v_xor_b32 v{lT0}, v{lT0}, v{lT1}"); A(f"v_lshlrev_b32 v{lT0}, 4, v{lT0}")
        A(f"v_lshrrev_b32 v{lT1}, 2, v{vL}"); A(f"v_mul_u32_u24 v{lT1}, 3584, v{lT1}"); A(f"v_add_u32 v{lW1}, v{lT0}, v{lT1}")
        for j in range(1, 4): A(f"v_add_u32 v{lW1+j}, {j*(16*3584-1024)}, v{lW1}")
        srd_tail(srdW, 512*3584); srd_tail(srdW2, 1792*1024)
        spin(lF, F_KR, lS, 4)
        A(f"s_mul_i32 s{sJ}, s{sX8}, 7"); A(f"s_add_u32 s{sJ}, s{sJ}, s{sR}"); A(f"s_sub_u32 s{sJ}, s{sJ}, 16")
        A(f"s_lshl_b32 s{sT0}, s{sJ}, 6"); A(f"s_lshl_b32 s{sT1}, s{sJ}, 15")
        A("s_mov_b32 m0, 0")
    def w1g(i, nt=ntw):
        def f(w):
            group(srdW, [lW1+j for j in range(4)], sT0, w, nt)
            A(f"s_add_u32 s{sT0}, s{sT0}, {64*3584}"); A("s_add_u32 m0, m0, 4096")
        return f
    def w2g(i, nt=ntw):
        def f(w):
            group(srdW2, wr, sT1, w, nt)
            if i < 7:
                A(f"s_add_u32 s{sT1}, s{sT1}, 16384" if i % 2 == 0 else f"s_sub_u32 s{sT1}, s{sT1}, {16384-256}"); A("s_add_u32 m0, m0, 4096")
        return f
    def stream(sfx, seq, W, WV, NI=NI):
        seq = list(seq); n = 0; kidx = 0; pend = []; cnt = {"m": 0, "q": 0, "r": 0}; kb = False
        i = 0
        while i < len(seq) or pend:
            TT = TI if n < NI else W
            while pend and n - pend[0][0] >= TT - 1:
                flag(pend[0][1], n - pend[0][0])
                if pend[0][1] == F_M: stamp(7)
                pend.pop(0)
            if n == NI and pend and n - pend[0][0] >= TI:
                flag(pend[0][1], n - pend[0][0])
                if pend[0][1] == F_M: stamp(7)
                pend.pop(0)
            if i >= len(seq) and not pend: break
            kind = seq[i] if i < len(seq) else "k"
            w = TT - 1 if n + 3 >= TT else None
            if kind == "k":
                if not kb: kbase(); kb = True
                A(f"s_mov_b32 m0, {kidx*4096}")
                group(srdK, kr, sT2, w)
                A(f"s_add_u32 s{sT2}, s{sT2}, 4096"); A(f"s_and_b32 s{sT2}, s{sT2}, 0xffff"); kidx += 1
            else:
                srd, vq, so, base, st, fo = {"m": (srdWM, lWM, sT0, SM, 6144, F_M), "q": (srdWQ, lWQ, sT1, S1, 8192, F_W), "r": (srdWM, lWM, sRO, SR, 6144, F_R)}[kind]
                A(f"s_mov_b32 m0, {base + 4096*cnt[kind]}")
                group(srd, [vq+j for j in range(4)], so, w, ntw)
                cnt[kind] += 1
                if cnt[kind] < 4: A(f"s_add_u32 s{so}, s{so}, {32*st}")
                else: pend.append((n + 4, fo))
            n += 4; i += 1
            if n == 4: late_setup()
            if n == 16: setup2()
        A(f"s_mov_b32 m0, {kidx*4096}")
        assert kidx < 16
        stamp(1)
        kvloop("L_k3" + sfx, srdK, kr, LV, W)
        stamp(3)
        gv = min((W + 3) // 4, GK)
        assert WV >= W
        kvloop("L_v1" + sfx, srdV, vr, LV + gv*4096, W)
        flag(F_K, min(W-1, 4*gv))
        stamp(4)
        assert gv < 8
        kvloop("L_v2" + sfx, srdV, vr, SR, WV)
        if "r" in seq: spin(lF, F_RC, lS)
        if "m" in seq: spin(lF, F_MC, lS)
        if EW and sfx == "a":
            if EW > 8: kvloop("L_v4" + sfx, srdV, vr, LV + EW*4096, WV)
            wo_setup()
            for i in range(8): wog(i)(WV - 1)
            A(f"s_mov_b32 m0, {LV + EW*4096}")
        if EM and sfx == "b":
            if EM > 8: kvloop("L_v4" + sfx, srdV, vr, LV + EM*4096, WV)
            A(f"s_cmp_eq_u32 s{sR}, 23"); A("s_cbranch_scc1 L_v5b")
            mlp_setup()
            for i in range(8): w1g(i)(TME - 1)
            A(f"s_mov_b32 m0, {LV + EM*4096}")
            A("L_v5b:")
        kvloop("L_v3" + sfx, srdV, vr, S0, WV)
        stamp(5)
    A(f"s_cmp_lt_u32 s{sR}, 16"); A("s_cbranch_scc1 L_l_light")
    stream("b", "k"*KF + "qqqq" + "rrrr"*RP, WB, VB)
    A(f"s_sub_u32 s{sT0}, s{sR}, 16"); A(f"s_cmp_lt_u32 s{sT0}, 7"); A("s_cbranch_scc1 L_l_mlp")
    A("s_branch L_l_plain")
    A("L_l_light:")
    stream("a", "k"*KF + "qqqq" + "rrrr"*(1-RP), WA, VA)
    A("s_branch L_l_t1")
    A("L_l_crit:")
    stream("c", "mmmm" + "k"*KF + "qqqq" + "rrrr"*RP, WC, VC, NC)
    if SH:
        A(f"s_cmp_eq_u32 s{sR}, 31"); A("s_cbranch_scc1 L_l_plain")
        A(f"s_sub_u32 s{sR}, s{sR}, 8")
        mlp_setup()
        A(f"s_add_u32 s{sT0}, s{sT0}, {(8-SH+1)*64*3584}")
        flag(F_V, 8)
        A("s_waitcnt vmcnt(0)"); A("s_barrier")
        A("s_barrier")
        backoff(DM)
        for i in range(SH - 1): w1g(i, nts)(TM1 - 1)
        for i in range(8): w2g(i, nts)(TMA - 1)
        A("s_branch L_l_end")
    A("L_l_plain:")
    flag(F_V, 8)
    A("s_waitcnt vmcnt(0)"); A("s_barrier")
    if WBL:
        A(f"s_cmp_eq_u32 s{sR}, 31"); A("s_cbranch_scc0 L_l_end")
        backoff(WBL)
        A("buffer_wbl2 sc1"); A("s_waitcnt vmcnt(0)")
    A("L_l_end:")
    stamp_flush()
    A("s_endpgm")
    def post_v(name, groups, TT, marks):
        n = 0; gi = 0
        def rd(): A(f"ds_read_b128 {v(lS,4)}, v{lF} offset:{F_CR}")
        def ck():
            A("s_waitcnt lgkmcnt(0)")
            A(f"v_min3_u32 v{lS+4}, v{lS}, v{lS+1}, v{lS+2}"); A(f"v_min_u32 v{lS+4}, v{lS+4}, v{lS+3}"); A(f"v_cmp_eq_u32 vcc, 0, v{lS+4}")
        while gi < len(groups) and n - TT < -8: groups[gi](TT - 1); n += 4; gi += 1
        flag(F_V, n + 8)
        rd(); ck()
        while gi < len(groups) and n - TT < 0: groups[gi](TT - 1); n += 4; gi += 1
        g0 = gi
        A(f"s_cbranch_vccnz {name}_late")
        A(f"s_waitcnt vmcnt({n})")
        for g in range(g0, len(groups)):
            if g > g0: A(f"s_branch {name}_c{g}"); A(f"{name}_b{g}:")
            A("s_barrier")
            A(f"{name}_c{g}:")
            groups[g](T3 - 1)
        A(f"s_branch {name}_e")
        A(f"{name}_late:")
        A(f"s_waitcnt vmcnt({n})")
        for g in range(g0, len(groups)):
            if g > g0: ck(); A(f"s_cbranch_vccz {name}_b{g}")
            rd()
            groups[g](T3 - 1)
        A("s_barrier")
        A(f"{name}_e:")
        if marks: A("s_waitcnt vmcnt(0)"); A("s_barrier")
    A("L_l_t1:")
    if EW: A("s_branch L_l_plain")
    wo_setup()
    if BT:
        for i in range(BT - 1): wog(i)(VA - 1)
        flag(F_V, 8 + 4*(BT-1))
        A(f"s_waitcnt vmcnt({4*(BT-1)})"); A("s_barrier")
        A("s_barrier")
        for i in range(BT - 1, 8): wog(i)(63)
        A("s_waitcnt vmcnt(0)"); A("s_barrier")
    else:
        post_v("L_pw", [wog(i) for i in range(8)], T2, [32])
    A("s_branch L_l_end")
    A("L_l_mlp:")
    if not EM: mlp_setup()
    else: srd_tail(srdW2, 1792*1024)
    def w1s(i):
        def f(w): w1g(i)(min(w, TM1 - 1))
        return f
    def w2s(i):
        def f(w): w2g(i)(TMA - 1)
        return f
    if BO:
        flag(F_V, 8)
        A("s_waitcnt vmcnt(0)"); A("s_barrier")
        A("s_barrier")
        backoff(DM)
        if not EM:
            for i in range(8): w1s(i)(63)
        else: A("s_mov_b32 m0, 32768")
    else:
        post_v("L_pm", [w1s(i) for i in range(8)], TM, None)
    for i in range(8):
        if i == 4 and not EM: A("s_waitcnt vmcnt(16)"); A("s_barrier")
        w2s(i)(0)
    A("s_barrier")
    A("s_waitcnt vmcnt(0)"); A("s_barrier")
    A("s_branch L_l_end")

    A("L_notloader:")
    A(f"s_load_dwordx2 {s(srdWS,2)}, s[0:1], 96")
    A(f"s_load_dwordx2 {s(srdX,2)}, s[0:1], 0")
    A(f"s_cmp_lg_u32 s{sWV}, 1"); A("s_cbranch_scc1 L_compute")

    H = Regs(4)
    srdC, srdCode = 20, 24
    hT0 = H.a(); hT1 = H.a(); hT2 = H.a(); hT3 = H.a()
    hE = H.a(); hC = H.a(2); hX0 = H.a(4, 4); hX1 = H.a(4, 4); hXa = H.a(); hXb = H.a()
    hTR = H.a(4); hA = H.a(16, 4); hB = H.a(64, 4); hBq = H.a(64, 4); hD = H.a(16, 4); hF = H.a(4, 4)
    hM = H.a(4); hU = H.a(12, 4); hL16 = H.a(); hAcc = H.a(); hDum = H.a(); hFl = H.a(); hOne = H.a()
    xn = H.a(4); hHa = H.a(); hHr = H.a(); hQa = H.a(); hGa = H.a(); hGr = H.a()
    hG, hN = vG, vN
    A("s_setprio 2")
    A(f"s_load_dwordx2 {s(srdC,2)}, s[0:1], 64")
    prod_decode()
    def c_addr(t0, t1):
        A(f"v_and_b32 v{t0}, 1, v{vN}"); A(f"v_lshlrev_b32 v{t0}, 10, v{t0}")
        A(f"v_lshrrev_b32 v{t1}, 1, v{vN}"); A(f"v_lshl_or_b32 v{t0}, v{t1}, 5, v{t0}"); A(f"v_lshl_or_b32 v{t0}, v{vG}, 3, v{t0}")
    c_addr(hT0, hT1)
    A(f"v_lshlrev_b32 v{hL16}, 4, v{vL}"); A(f"v_mov_b32 v{hT2}, 0"); A(f"v_lshlrev_b32 v{hT3}, 2, v{vL}")
    srd_tail(srdWS, WSN); srd_tail(srdC, 2048); srd_tail(srdX, 2048)
    A(f"s_lshl_b32 s{sT0}, s{P['rp']}, 8"); A(f"s_lshl_b32 s{sT1}, s{sRHO}, 8")
    A("s_barrier")
    A("s_waitcnt lgkmcnt(0)")
    A(f"buffer_load_dword v{hE}, v{hT2}, {s(srdWS,4)}, 0 offen sc1")
    A(f"buffer_load_dwordx2 {v(hC,2)}, v{hT0}, {s(srdC,4)}, s{sT0} offen")
    A(f"buffer_load_dwordx4 {v(hX0,4)}, v{hL16}, {s(srdX,4)}, 0 offen")
    A(f"buffer_load_dwordx4 {v(hX1,4)}, v{hL16}, {s(srdX,4)}, 0 offen offset:1024")
    A(f"buffer_load_dword v{hXa}, v{hT3}, {s(srdX,4)}, s{sT1} offen")
    A(f"buffer_load_dword v{hXb}, v{hT3}, {s(srdX,4)}, s{sT1} offen offset:1024")
    for i in range(4): A(f"v_mov_b32 v{hF+i}, -1")
    A(f"v_mov_b32 v{hFl}, {FL}"); A(f"v_mov_b32 v{hOne}, 1")
    smul_add(sT0, [(sX8, "shl", 15), (sR, "shl", 10)], OPA)
    hTch = hBq
    if OT: A(f"buffer_load_dwordx4 {v(hTch,4)}, v{hL16}, {s(srdWS,4)}, s{sT0} offen")
    A(f"buffer_store_dwordx4 {v(hF,4)}, v{hL16}, {s(srdWS,4)}, s{sT0} offen")
    sQA = 32
    A(f"v_and_b32 v{hT0}, 1, v{hG}"); A(f"v_lshlrev_b32 v{hT0}, 14, v{hT0}"); A(f"v_lshrrev_b32 v{hT1}, 1, v{hG}"); A(f"v_lshl_or_b32 v{hT0}, v{hT1}, 7, v{hT0}"); A(f"v_lshl_or_b32 v{hQa}, v{hN}, 3, v{hT0}")
    A(f"s_and_b32 s{sT4}, s{sR}, 7")
    smul_add(sQA, [(sX8, "shl", 15), (sRHO, "shl", 12), (sT4, "shl", 9)], QPA)
    if QT:
        A(f"buffer_load_dwordx2 {v(hU+8,2)}, v{hQa}, {s(srdWS,4)}, s{sQA} offen")
        A(f"buffer_load_dwordx2 {v(hU+10,2)}, v{hQa}, {s(srdWS,4)}, s{sQA} offen offset:256")
    A(f"s_cmp_lg_u32 s{sS}, 0"); A("s_cbranch_scc1 L_h_c2")
    smul_add(sT0, [(sX8, "shl", 10), (sB, "shl", 9)], STA)
    setexec(0xffffffff)
    if OT: A(f"buffer_load_dwordx4 {v(hTch+4,4)}, v{hL16}, {s(srdWS,4)}, s{sT0} offen")
    A(f"buffer_store_dwordx4 {v(hF,4)}, v{hL16}, {s(srdWS,4)}, s{sT0} offen")
    A("s_mov_b64 exec, -1")
    A("L_h_c2:")
    A(f"s_cmp_ge_u32 s{sR}, 16"); A("s_cbranch_scc1 L_h_c3")
    smul_add(sT0, [(sX8, "mul", YX), (sR, "shl", 9)], YA)
    A(f"s_mul_i32 s{sT1}, s{sR}, {16-512}"); A(f"s_add_u32 s{sT1}, s{sT1}, 8192")
    A(f"v_mov_b32 v{hT0}, v{hL16}"); A(f"v_writelane_b32 v{hT0}, s{sT1}, 32")
    setexec(0x1ffffffff)
    if OT: A(f"buffer_load_dwordx4 {v(hTch+8,4)}, v{hT0}, {s(srdWS,4)}, s{sT0} offen")
    A(f"buffer_store_dwordx4 {v(hF,4)}, v{hT0}, {s(srdWS,4)}, s{sT0} offen")
    A("s_mov_b64 exec, -1")
    A("L_h_c3:")
    if CODE_PF:
        A(f"s_getpc_b64 {s(srdCode,2)}")
        A("L_pc:")
        A(f"s_sub_u32 s{srdCode}, s{srdCode}, L_pc-{NAME}_kernel"); A(f"s_subb_u32 s{srdCode+1}, s{srdCode+1}, 0")
        srd_tail(srdCode, f"L_code_end-{NAME}_kernel")
        A(f"v_lshlrev_b32 v{hT1}, 7, v{vL}"); A(f"s_mul_i32 s{sT0}, s{sR}, 768")
        A("s_mov_b64 exec, 0x3f")
        A(f"buffer_load_dword v{hDum}, v{hT1}, {s(srdCode,4)}, s{sT0} offen")
        A("s_mov_b64 exec, -1")
    NPF = 1 if CODE_PF else 0
    def tr128_base(dst4, t0, t1, lbase):
        A(f"v_lshrrev_b32 v{t0}, 2, v{vL}"); A(f"v_bfe_u32 v{t1}, v{vL}, 3, 2")
        A(f"v_lshlrev_b32 v{t1}, 5, v{t1}"); A(f"v_lshl_or_b32 v{t0}, v{t0}, 7, v{t1}")
        A(f"v_and_b32 v{t1}, 3, v{vL}"); A(f"v_lshl_or_b32 v{t0}, v{t1}, 3, v{t0}")
        A(f"v_add_u32 v{dst4}, {lbase}, v{t0}")
        for t in range(1, 4): A(f"v_xor_b32 v{dst4+t}, {32*t}, v{dst4}")
    def tr128_read(dst, base4, off):
        for sg in range(4):
            for t in range(4):
                for u in range(2):
                    A(f"ds_read_b64_tr_b16 {v(dst + (sg*4 + t)*4 + 2*u, 2)}, v{base4+t} offset:{off + (32*sg + 16*u)*128}")
    tr128_base(hTR, hT0, hT1, SM)
    A(f"s_getreg_b32 s{sTQ}, hwreg(HW_REG_XCC_ID, 0, 3)")
    dot_consts()
    stamp(1)
    A(f"s_waitcnt vmcnt({4+1+OT+2*QT+NPF})")
    A(f"v_readfirstlane_b32 s{sTAG}, v{hE}")
    A(f"s_add_u32 s{sTAG}, s{sTAG}, 0x9E3779B1")
    A(f"s_add_u32 s{sTQ}, s{sTQ}, s{sTAG}")
    def mod_block(rC, rU, rA, rB, rD, rTR, rT0, rT1, rFl, rOne, crit):
        A(f"v_lshlrev_b32 v{rU+0}, 16, v{rC}"); A(f"v_and_b32 v{rU+1}, 0xffff0000, v{rC}")
        A(f"v_lshlrev_b32 v{rU+2}, 16, v{rC+1}"); A(f"v_and_b32 v{rU+3}, 0xffff0000, v{rC+1}")
        for i in range(4): A(f"v_mul_f32 v{rU+4+i}, {hex(f2u(-LOG2E))}, v{rU+i}")
        for i in range(4): A(f"v_exp_f32 v{rU+4+i}, v{rU+4+i}")
        for i in range(4): A(f"v_add_f32 v{rU+4+i}, 1.0, v{rU+4+i}")
        for i in range(4): A(f"v_rcp_f32 v{rU+4+i}, v{rU+4+i}")
        for i in range(4): A(f"v_mul_f32 v{rU+i}, v{rU+i}, v{rU+4+i}")
        A(f"v_cvt_pk_bf16_f32 v{rA}, v{rU}, v{rU+1}"); A(f"v_cvt_pk_bf16_f32 v{rA+1}, v{rU+2}, v{rU+3}")
        for sg in range(4):
            for q in range(4):
                sh = 4*sg + 2*(q >> 1)
                if sh: A(f"v_mov_b32_dpp v{rA+4*sg+q}, v{rA+(q&1)} row_shl:{sh} row_mask:0xf bank_mask:0xf bound_ctrl:1")
        smul_add(sT0, [(P['cl'], "shl", 11), (P['rp'], "shl", 9)], MODP)
        A(f"v_lshlrev_b32 v{rT0}, 3, v{vL}")
        for t in range(4): A(f"v_mov_b32 v{rU+2*t+1}, s{sTAG}")
        spin(rFl, F_M if crit else F_R, rT1, sleep=0 if crit else 2)
        if crit: stamp(2)
        tr128_read(rB, rTR, 0)
        A(f"ds_write_b32 v{rFl}, v{rOne} offset:{F_MC if crit else F_RC}")
        for sg in range(4):
            A(f"s_waitcnt lgkmcnt({lg(25-8*sg)})")
            for t in range(4):
                A(f"v_mfma_f32_16x16x32_bf16 {v(rD+4*t,4)}, {v(rA+4*sg,4)}, {v(rB+(sg*4+t)*4,4)}, {'0' if sg == 0 else v(rD+4*t,4)}")
        for t in range(4): A(f"v_cvt_pk_bf16_f32 v{rU+2*t}, v{rD+4*t}, v{rD+4*t+1}")
        for t in range(1, 4): A(f"v_mov_b32_dpp v{rU}, v{rU+2*t} row_newbcast:0 row_mask:0x1 bank_mask:0x0") if False else None
        A("s_mov_b64 exec, 0xffff")
        for t in range(4):
            A(f"buffer_store_dwordx2 {v(rU+2*t,2)}, v{rT0}, {s(srdWS,4)}, s{sT0} offen offset:{t*128} sc1")
        A("s_mov_b64 exec, -1")
        if crit: stamp(3)
    A(f"s_cmp_lt_u32 s{sR}, 24"); A("s_cbranch_scc1 L_h_m1")
    mod_block(hC, hU, hA, hB, hD, hTR, hT0, hT1, hFl, hOne, True)
    A("L_h_m1:")
    A(f"v_lshrrev_b32 v{hT0}, 5, v{vL}"); A(f"v_and_b32 v{hT1}, 31, v{vL}"); A(f"v_lshlrev_b32 v{hT1}, 4, v{hT1}"); A(f"v_lshl_or_b32 v{hGa}, v{hT0}, 11, v{hT1}")
    A(f"s_lshl_b32 s{sT0}, s{sRHO}, 12"); A(f"s_add_u32 s{sT0}, s{sT0}, {MODP}"); A(f"s_add_u32 s{sT1}, s{sT0}, {8*2048}")
    def modp_loads():
        for rp in range(4):
            A(f"buffer_load_dwordx4 {v(hB+4*rp,4)}, v{hGa}, {s(srdWS,4)}, s{sT0} offen offset:{rp*512} sc1")
            A(f"buffer_load_dwordx4 {v(hB+16+4*rp,4)}, v{hGa}, {s(srdWS,4)}, s{sT1} offen offset:{rp*512} sc1")
    A("s_waitcnt vmcnt(0)")
    spin(hFl, F_T1, hT1, sleep=1)
    stamp(10)
    modp_loads()
    def unpack(dst, src, n):
        for i in range(n):
            A(f"v_lshlrev_b32 v{dst+2*i}, 16, v{src+i}"); A(f"v_and_b32 v{dst+2*i+1}, 0xffff0000, v{src+i}")
    def allreduce64(regs, op, tmp):
        for pat in ("quad_perm:[1,0,3,2]", "quad_perm:[2,3,0,1]", "row_half_mirror", "row_mirror"):
            for r in regs: A(f"{op}_dpp v{r}, v{r}, v{r} {pat} row_mask:0xf bank_mask:0xf bound_ctrl:1")
        for sw in ("v_permlane16_swap_b32", "v_permlane32_swap_b32"):
            for i, r in enumerate(regs): A(f"v_mov_b32 v{tmp+i}, v{r}")
            for i, r in enumerate(regs): A(f"{sw} v{tmp+i}, v{r}")
            for i, r in enumerate(regs): A(f"{op} v{r}, v{r}, v{tmp+i}")
    xs = hB + 32
    unpack(xs, hX0, 4); unpack(xs+8, hX1, 4)
    for b in range(2):
        A(f"v_add_f32 v{hM+b}, v{xs+8*b}, v{xs+8*b+1}")
        for i in range(2, 8): A(f"v_add_f32 v{hM+b}, v{hM+b}, v{xs+8*b+i}")
    allreduce64([hM, hM+1], "v_add_f32", hU)
    for b in range(2): A(f"v_mul_f32 v{hM+b}, {hex(f2u(1/512))}, v{hM+b}")
    for b in range(2):
        for i in range(8): A(f"v_sub_f32 v{xs+8*b+i}, v{xs+8*b+i}, v{hM+b}")
        A(f"v_mul_f32 v{hM+2+b}, v{xs+8*b}, v{xs+8*b}")
        for i in range(1, 8): A(f"v_fmac_f32 v{hM+2+b}, v{xs+8*b+i}, v{xs+8*b+i}")
    allreduce64([hM+2, hM+3], "v_add_f32", hU)
    for b in range(2): A(f"v_mov_b32 v{hU+b}, {hex(f2u(1e-5))}"); A(f"v_fmac_f32 v{hU+b}, {hex(f2u(1/512))}, v{hM+2+b}")
    for b in range(2): A(f"v_rsq_f32 v{hM+2+b}, v{hU+b}")
    unpack(xn, hXa, 1); unpack(xn+2, hXb, 1)
    for b in range(2):
        for c in range(2):
            A(f"v_sub_f32 v{xn+2*b+c}, v{xn+2*b+c}, v{hM+b}"); A(f"v_mul_f32 v{xn+2*b+c}, v{xn+2*b+c}, v{hM+2+b}")
    spin(hFl, F_W, hT1)
    tr128_read(hBq, hTR, S1 - SM)
    def perm_pos(dst, src, t1, hi):
        A(f"v_bfe_u32 v{dst}, v{src}, 1, 2"); A(f"v_lshlrev_b32 v{dst}, {hi}, v{dst}")
        A(f"v_and_b32 v{t1}, 8, v{src}"); A(f"v_or_b32 v{dst}, v{dst}, v{t1}"); A(f"v_and_b32 v{t1}, 1, v{src}"); A(f"v_lshl_or_b32 v{dst}, v{t1}, 2, v{dst}")
    perm_pos(hT0, vL, hT1, 4); A(f"v_lshl_or_b32 v{hT0}, v{hG}, 6, v{hT0}"); A(f"v_add_u32 v{hHa}, {HS}, v{hT0}")
    A(f"v_bfe_u32 v{hT1}, v{vL}, 2, 1"); A(f"v_lshlrev_b32 v{hT1}, 8, v{hT1}"); A(f"v_lshl_or_b32 v{hT1}, v{hG}, 4, v{hT1}"); A(f"v_add_u32 v{hHr}, {HS}, v{hT1}")
    A(f"s_mov_b32 s{sT6}, s{sQA}"); A(f"s_add_u32 s{sT5}, s{sT6}, {QB}")
    A(f"v_lshlrev_b32 v{hT0}, 14, v{hG}"); A(f"v_lshl_or_b32 v{hGr}, v{hN}, 4, v{hT0}")
    A(f"s_lshr_b32 s{sT4}, s{sR}, 1"); A(f"s_and_b32 s{sT3}, s{sR}, 1")
    smul_add(sT2, [(sT4, "shl", 11), (sT3, "shl", 8)], MODP + 16*2048)
    A(f"v_mov_b32 v{hF+1}, s{sTQ}"); A(f"v_mov_b32 v{hF+3}, s{sTQ}")
    poll("L_h_p1", modp_loads, lambda: tagcheck([hB+4*i+k for i in range(8) for k in (1, 3)], hAcc))
    stamp(4)
    if dbg and not FINE: A(f"s_mov_b32 s80, s{sCNT}")
    sum_pairs(hU, [hB+4*i for i in range(4)]); sum_pairs(hU+4, [hB+16+4*i for i in range(4)])
    for c in range(2):
        for b in range(2):
            A(f"v_add_f32 v{hU+4+2*c+b}, 1.0, v{hU+4+2*c+b}")
            A(f"v_fmac_f32 v{hU+2*c+b}, v{xn+2*b+c}, v{hU+4+2*c+b}")
    A(f"v_cvt_pk_bf16_f32 v{hU+8}, v{hU}, v{hU+2}"); A(f"v_cvt_pk_bf16_f32 v{hU+9}, v{hU+1}, v{hU+3}")
    A(f"ds_write_b32 v{hHa}, v{hU+8}"); A(f"ds_write_b32 v{hHa}, v{hU+9} offset:256")
    for sg in range(4): A(f"ds_read_b128 {v(hA+4*sg,4)}, v{hHr} offset:{64*sg}")
    for sg in range(4):
        A(f"s_waitcnt lgkmcnt({lg(3-sg)})")
        for t in range(4):
            A(f"v_mfma_f32_16x16x32_bf16 {v(hD+4*t,4)}, {v(hA+4*sg,4)}, {v(hBq+(sg*4+t)*4,4)}, {'0' if sg == 0 else v(hD+4*t,4)}")
    A(f"v_mov_b32 v{hT1}, s{sTAG}"); A(f"ds_write_b32 v{hFl}, v{hT1} offset:{TAGL-FL}")
    A(f"v_mov_b32 v{hF}, v{hD}"); A(f"v_mov_b32 v{hF+2}, v{hD+8}")
    A(f"v_mov_b32_dpp v{hF}, v{hD+4} quad_perm:[0,1,2,3] row_mask:0xc bank_mask:0xf")
    A(f"v_mov_b32_dpp v{hF+2}, v{hD+12} quad_perm:[0,1,2,3] row_mask:0xc bank_mask:0xf")
    A(f"buffer_store_dwordx2 {v(hF,2)}, v{hQa}, {s(srdWS,4)}, s{sT6} offen")
    A(f"buffer_store_dwordx2 {v(hF+2,2)}, v{hQa}, {s(srdWS,4)}, s{sT6} offen offset:256")
    A(f"ds_write_b32 v{hFl}, v{hOne} offset:{F_QP}")
    A(f"buffer_store_dwordx2 {v(hF,2)}, v{hQa}, {s(srdWS,4)}, s{sT5} offen sc1")
    A(f"buffer_store_dwordx2 {v(hF+2,2)}, v{hQa}, {s(srdWS,4)}, s{sT5} offen offset:256 sc1")
    stamp(5)
    A(f"s_cmp_ge_u32 s{sR}, 16"); A("s_cbranch_scc1 L_h_end")
    hPr = hA
    def par_loads():
        for rp in range(4):
            A(f"buffer_load_dwordx4 {v(hPr+4*rp,4)}, v{hGr}, {s(srdWS,4)}, s{sT2} offen offset:{rp*512} sc1")
    backoff(DP)
    par_loads()
    A(f"v_cmp_eq_u32 vcc, 2, v{hG}"); A(f"v_cndmask_b32 v{hT2}, 0, 1.0, vcc")
    A(f"v_lshlrev_b32 v{hT0}, 8, v{hG}"); A(f"v_lshl_or_b32 v{hT0}, v{hN}, 3, v{hT0}"); A(f"v_add_u32 v{hT3}, {PAR}, v{hT0}")
    perm_pos(hT0, hN, hT1, 6); A(f"v_and_b32 v{hT1}, 1, v{hG}"); A(f"v_lshl_or_b32 v{hT0}, v{hT1}, 4, v{hT0}")
    smul_add(sT0, [(sX8, "mul", YX), (sR, "shl", 9)], YA)
    poll("L_h_p2", par_loads, lambda: tagcheck([hPr+4*i+k for i in range(4) for k in (1, 3)], hAcc))
    stamp(6)
    if dbg and not FINE: A(f"s_mov_b32 s82, s{sCNT}")
    sum_pairs(hU, [hPr+4*i for i in range(4)])
    def round_pairs():
        A(f"v_cvt_pk_bf16_f32 v{hU+4}, v{hU}, v{hU+2}"); A(f"v_cvt_pk_bf16_f32 v{hU+5}, v{hU+1}, v{hU+3}")
        for b in range(2):
            A(f"v_lshlrev_b32 v{hU+b}, 16, v{hU+4+b}"); A(f"v_and_b32 v{hU+2+b}, 0xffff0000, v{hU+4+b}")
    round_pairs()
    for i in range(4): A(f"v_add_f32 v{hU+i}, v{hU+i}, v{hT2}")
    round_pairs()
    A(f"v_mov_b32 v{hU+6}, v{hU}"); A(f"v_mov_b32 v{hU+7}, v{hU+2}"); A(f"v_mov_b32 v{hU+8}, v{hU+1}"); A(f"v_mov_b32 v{hU+9}, v{hU+3}")
    A(f"ds_write_b64 v{hT3}, {v(hU+6,2)}"); A(f"ds_write_b64 v{hT3}, {v(hU+8,2)} offset:128")
    spin(hFl, F_Q, hD, 4, sleep=1)
    A(f"v_max3_u32 v{hD}, v{hD}, v{hD+1}, v{hD+2}"); A(f"v_max_u32 v{hD}, v{hD}, v{hD+3}")
    A(f"v_cmp_lt_u32 vcc, 1, v{hD}")
    A("s_cbranch_vccnz L_h_cprem")
    setexec(0xffffffff0000)
    for b in range(2): A(f"buffer_store_dword v{hU+4+b}, v{hT0}, {s(srdWS,4)}, s{sT0} offen offset:{256+32*b}")
    A("L_h_end:")
    A("s_waitcnt lgkmcnt(0)")
    stamp(7)
    stamp_flush()
    A("s_endpgm")
    A("L_h_cprem:")
    A(f"s_add_u32 s{sT0}, s{sT0}, {YBO}")
    setexec(0xffffffff0000)
    for b in range(2): A(f"buffer_store_dword v{hU+4+b}, v{hT0}, {s(srdWS,4)}, s{sT0} offen offset:{256+32*b} sc1")
    smul_add(sT0, [(sX8, "shl", 7), (sR, "shl", 2)], CF)
    flagset(hU, sT0)
    A("s_branch L_h_end")
    for blk in out_of_line: blk()
    out_of_line.clear()

    A("L_compute:")
    R = Regs(4)
    srdO = 32
    vT0 = R.a(); vT1 = R.a(); vT2 = R.a(); vT3 = R.a(); vFl = R.a(); vH4 = R.a(); vC3 = R.a(); vFw = R.a(); vOne = R.a()
    vKa = R.a(4); vQa = R.a(); vVa = R.a(2); vTRV = R.a(); vMLw = R.a(); vMLr = R.a(); vPw = R.a(); vPr = R.a(); vOa = R.a(); vSa = R.a(); vL16 = R.a(); vQw = R.a()
    vM = R.a(); vLs = R.a(); vMc = R.a(); vU = R.a(8, 4); vS = R.a(16, 4); vSt = R.a(2, 2)
    vKb = R.a(64, 4); vQ = R.a(48, 4); vO = R.a(8, 4); vX = R.a(24, 4); vG2 = R.a(32, 4)
    vP = vKb; vVb = vKb + 32
    A(f"s_sub_u32 s{sW}, s{sWV}, 2")
    A(f"s_cmp_lg_u32 s{sW}, 0"); A("s_cbranch_scc1 L_c_b0")
    A(f"v_lshlrev_b32 v{vT0}, 4, v{vL}"); A(f"v_add_u32 v{vT0}, {FL}, v{vT0}")
    A(f"v_subrev_u32 v{vT1}, 4, v{vL}"); A(f"v_cmp_gt_u32 vcc, 8, v{vT1}"); A(f"v_cndmask_b32 v{vU}, 0, -1, vcc")
    for i in range(1, 4): A(f"v_mov_b32 v{vU+i}, v{vU}")
    A("s_mov_b64 exec, 0xffff")
    A(f"ds_write_b128 v{vT0}, {v(vU,4)}")
    A("s_mov_b64 exec, -1")
    A("s_waitcnt lgkmcnt(0)")
    A("L_c_b0:")
    A("s_barrier")
    if TLB:
        A(f"s_cmp_eq_u32 s{sR}, 23"); A("s_cbranch_scc0 L_c_notlb")
        A(f"s_cmp_eq_u32 s{sW}, 2"); A("s_cbranch_scc0 L_c_notlb")
        A("s_load_dwordx2 s[20:21], s[0:1], 16"); A("s_load_dwordx2 s[24:25], s[0:1], 32")
        A("s_load_dwordx2 s[4:5], s[0:1], 48"); A("s_load_dwordx2 s[8:9], s[0:1], 56")
        srd_tail(20, 0x8000000); srd_tail(24, 4096*1024); srd_tail(4, 512*3584); srd_tail(8, 1792*1024)
        A(f"v_lshlrev_b32 v{vT0}, 16, v{vL}"); A(f"v_and_b32 v{vT1}, 1, v{vG}"); A(f"v_lshlrev_b32 v{vT1}, 26, v{vT1}"); A(f"v_lshl_or_b32 v{vT1}, v{vN}, 16, v{vT1}")
        smul_add(sT0, [(sX8, "shl", 23)], 28672*256 + 65536 - 128); smul_add(sT1, [(sX8, "shl", 19)]); smul_add(sT2, [(sX8, "shl", 7)]); smul_add(sT3, [(sX8, "mul", 7*32768)])
        backoff(TLB)
        A("s_waitcnt lgkmcnt(0)")
        setexec(0xffffffff)
        A(f"buffer_load_dword v{vG2}, v{vT1}, s[20:23], s{sT0} offen")
        A(f"buffer_load_dword v{vG2+1}, v{vT0}, s[4:7], s{sT2} offen")
        A("s_mov_b64 exec, 0xff")
        A(f"buffer_load_dword v{vG2+2}, v{vT0}, s[24:27], s{sT1} offen")
        A("s_mov_b64 exec, 0xf")
        A(f"buffer_load_dword v{vG2+3}, v{vT0}, s[8:11], s{sT3} offen")
        A("s_mov_b64 exec, -1")
        A("L_c_notlb:")
    A(f"s_load_dwordx2 {s(srdO,2)}, s[0:1], 80")
    if DUR: A("s_load_dwordx2 s[88:89], s[0:1], 88")
    A(f"v_mov_b32 v{vFl}, {FL}"); A(f"v_mov_b32 v{vOne}, 1"); A(f"s_lshl_b32 s{sT0}, s{sW}, 2"); A(f"v_add_u32 v{vFw}, s{sT0}, v{vFl}")
    A(f"v_and_b32 v{vH4}, 3, v{vN}"); A(f"v_and_b32 v{vC3}, 3, v{vL}"); A(f"v_lshlrev_b32 v{vL16}, 4, v{vL}")
    A(f"v_xor_b32 v{vT0}, v{vG}, v{vN}"); A(f"v_lshlrev_b32 v{vT0}, 4, v{vT0}"); A(f"v_lshl_or_b32 v{vT0}, v{vN}, 8, v{vT0}")
    A(f"s_lshl_b32 s{sT0}, s{sW}, 14"); A(f"v_add_u32 v{vKa}, s{sT0}, v{vT0}")
    for sg in range(1, 4): A(f"v_xor_b32 v{vKa+sg}, {64*sg}, v{vKa}")
    A(f"v_mul_u32_u24 v{vT0}, 288, v{vH4}"); A(f"v_lshl_add_u32 v{vT0}, v{vG}, 4, v{vT0}"); A(f"v_add_u32 v{vQa}, {QL}, v{vT0}")
    A(f"v_lshrrev_b32 v{vT0}, 2, v{vL}"); A(f"v_and_b32 v{vT1}, 7, v{vT0}"); A(f"v_lshlrev_b32 v{vT1}, 5, v{vT1}"); A(f"v_lshl_or_b32 v{vT0}, v{vT0}, 8, v{vT1}")
    A(f"v_lshl_or_b32 v{vTRV}, v{vC3}, 3, v{vT0}")
    A(f"s_lshl_b32 s{sT0}, s{sW}, 6"); A(f"v_xor_b32 v{vT0}, s{sT0}, v{vTRV}"); A(f"v_add_u32 v{vVa}, {LV}, v{vT0}"); A(f"v_xor_b32 v{vVa+1}, 32, v{vVa}")
    A(f"v_lshlrev_b32 v{vT0}, 5, v{vH4}"); A(f"v_add_u32 v{vMLr}, {ML}, v{vT0}"); A(f"s_lshl_b32 s{sT0}, s{sW}, 3"); A(f"v_add_u32 v{vMLw}, s{sT0}, v{vMLr}")
    A(f"v_lshlrev_b32 v{vT0}, 6, v{vG}"); A(f"v_lshl_or_b32 v{vT0}, v{vH4}, 4, v{vT0}"); A(f"v_add_u32 v{vPr}, {PX}, v{vT0}")
    A(f"v_lshrrev_b32 v{vT0}, 3, v{vN}"); A(f"v_bfe_u32 v{vT1}, v{vN}, 2, 1"); A(f"v_lshlrev_b32 v{vT1}, 3, v{vT1}"); A(f"v_lshl_or_b32 v{vT0}, v{vT0}, 8, v{vT1}")
    A(f"s_lshl_b32 s{sT0}, s{sW}, 9"); A(f"v_add3_u32 v{vPw}, v{vT0}, s{sT0}, v{vPr}")
    A(f"v_lshlrev_b32 v{vOa}, 12, v{vH4}"); A(f"v_lshl_or_b32 v{vOa}, v{vG}, 8, v{vOa}"); A(f"v_lshlrev_b32 v{vSa}, 7, v{vH4}")
    A(f"s_mul_i32 s{sT5}, s{sW}, 288"); A(f"s_add_u32 s{sT5}, s{sT5}, {QL}"); A(f"v_lshl_add_u32 v{vQw}, v{vL}, 2, s{sT5}")
    A(f"v_cmp_gt_u32 {s(sM0,2)}, 4, v{vN}")
    A(f"s_lshl_b64 {s(sM1,2)}, 1, s{sW}")
    sOA, sSA, sSC = 4, 5, 6
    smul_add(sOA, [(sX8, "shl", 15), (sB, "shl", 14), (sW, "shl", 10), (sS, "shl", 4)], OPA)
    smul_add(sSA, [(sX8, "shl", 10), (sB, "shl", 9), (sS, "shl", 3)], STA)
    A(f"s_mov_b32 s{sSC}, {hex(SC)}")
    dot_consts()
    A(f"s_getreg_b32 s{sTQ}, hwreg(HW_REG_XCC_ID, 0, 3)")
    srd_tail(srdWS, WSN); srd_tail(srdX, 2048); srd_tail(srdO, 2048)
    tSa = vX; tX = vX + 1; tCol = vX + 2; tAP = vX + 3; tPar = vX + 4; tY = vX + 8; tPa = vX + 10; tOut = vX + 11; tTR = vX + 12; tW = vX + 16; tYv = vX + 20
    mYa = vX; mSa = vX + 1; mXw = vX + 2; mXr = vX + 3; mBp = vX + 4; mMP = vX + 5; mA1 = vX + 6; mA2 = vX + 8; mMQ = vX + 16; mC = vX + 18
    sA0, sA1, sA2, sA3, sA4, sA5, sA6, sA7, sA8, sA9 = 7, 8, 9, 10, 11, 12, 13, 14, 15, 26
    for i in range(12): A(f"v_mov_b32 v{vX+i}, 0")
    A("s_waitcnt lgkmcnt(0)")
    def rest_block():
        A(f"s_cmp_eq_u32 s{sW}, 1"); A("s_cbranch_scc0 L_c_roledone")
        srdC2 = 20; P['cl'], P['rp'] = 24, 25
        A(f"s_load_dwordx2 {s(srdC2,2)}, s[0:1], 64")
        A(f"s_lshr_b32 s{P['cl']}, s2, 2"); A(f"s_add_u32 s{P['cl']}, s{P['cl']}, {-16 if RP else 16}"); A(f"s_and_b32 s{P['rp']}, s2, 3")
        c_addr(vT0, vT1)
        A(f"v_mov_b32 v{vT1}, 0"); A(f"s_lshl_b32 s{sT0}, s{P['rp']}, 8")
        srd_tail(srdC2, 2048)
        A("s_waitcnt lgkmcnt(0)")
        A(f"buffer_load_dword v{vO+2}, v{vT1}, {s(srdWS,4)}, 0 offen sc1")
        A(f"buffer_load_dwordx2 {v(vO,2)}, v{vT0}, {s(srdC2,4)}, s{sT0} offen")
        tr128_base(vO+4, vT0, vT1, SR)
        A("s_waitcnt vmcnt(0)")
        A(f"v_readfirstlane_b32 s{sTAG}, v{vO+2}")
        A(f"s_add_u32 s{sTAG}, s{sTAG}, 0x9E3779B1")
        mod_block(vO, vU, vQ, vKb, vQ+16, vO+4, vT0, vT1, vFl, vOne, False)
    A(f"s_cmp_lt_u32 s{sR}, 16"); A("s_cbranch_scc0 L_c_nt1")
    A(f"s_and_b32 s{sAB}, s{sW}, 1"); A(f"s_lshr_b32 s{sT0}, s{sW}, 1"); A(f"s_lshr_b32 s{sT1}, s{sR}, 2"); A(f"s_and_b32 s{sT2}, s{sR}, 3")
    A(f"v_lshlrev_b32 v{tSa}, 5, v{vG}")
    smul_add(sA0, [(sX8, "shl", 15), (sAB, "shl", 14), (sT1, "shl", 12)], OPA)
    smul_add(sA1, [(sX8, "shl", 10), (sAB, "shl", 9), (sT1, "shl", 7)], STA)
    A(f"v_and_b32 v{vT0}, 7, v{vL}"); A(f"v_lshl_or_b32 v{tCol}, v{vT0}, 2, v{vG}")
    A(f"v_lshlrev_b32 v{tOut}, 1, v{tCol}")
    smul_add(sA7, [(sAB, "shl", 10), (sR, "shl", 6)])
    A(f"buffer_load_ushort v{tX}, v{tOut}, {s(srdX,4)}, s{sA7} offen")
    A(f"s_lshl_b32 s{sT3}, s{sT0}, 7"); A(f"v_xor_b32 v{tTR}, s{sT3}, v{vTRV}")
    for t in range(1, 4): A(f"v_xor_b32 v{tTR+t}, {32*t}, v{tTR}")
    A(f"v_lshrrev_b32 v{vT0}, 5, v{vL}"); A(f"v_and_b32 v{vT1}, 30, v{vL}"); A(f"v_lshlrev_b32 v{vT1}, 2, v{vT1}"); A(f"v_lshl_or_b32 v{tAP}, v{vT0}, 13, v{vT1}")
    smul_add(sA2, [(sT2, "shl", 15), (sT0, "shl", 14), (sAB, "shl", 12), (sX8, "shl", 9), (sT1, "shl", 7)], AP)
    smul_add(sA3, [(sR, "shl", 13), (sAB, "shl", 12)], AP)
    A(f"v_lshlrev_b32 v{vT0}, 6, v{vC3}"); A(f"v_bfe_u32 v{vT1}, v{vL}, 2, 1"); A(f"v_lshl_or_b32 v{vT0}, v{vT1}, 3, v{vT0}")
    A(f"v_and_b32 v{vT1}, 1, v{vG}"); A(f"v_lshl_or_b32 v{vT0}, v{vT1}, 4, v{vT0}"); A(f"v_lshrrev_b32 v{vT1}, 1, v{vG}"); A(f"v_lshl_or_b32 v{tY}, v{vT1}, 2, v{vT0}")
    A(f"v_lshrrev_b32 v{tY+1}, 1, v{vL}")
    smul_add(sA4, [(sX8, "mul", YX), (sR, "shl", 9), (sAB, "shl", 5)], YA)
    smul_add(sA5, [(sX8, "mul", YX), (sR, "shl", 4), (sAB, "shl", 3)], YA + 8192)
    A(f"s_lshl_b32 s{sT4}, s{sR}, 1"); A(f"s_add_u32 s{sA8}, s{sT4}, s{sAB}"); A(f"s_mul_i32 s{sA6}, s{sA8}, 7168"); A(f"s_add_u32 s{sA6}, s{sA6}, {MP}"); A(f"s_add_u32 s{sA9}, s{sA6}, 4096")
    A(f"s_sub_u32 s{sJ}, s{sX8}, s{sT4}"); A(f"s_and_b32 s{sJ}, s{sJ}, 7")
    smul_add(sT4, [(sAB, "shl", 7)], PAR); A(f"v_lshl_add_u32 v{tPa}, v{tCol}, 2, s{sT4}")
    if not RP: rest_block()
    A("s_branch L_c_roledone")
    A("L_c_nt1:")
    A(f"s_sub_u32 s{sT0}, s{sR}, 16"); A(f"s_mul_i32 s{sJ}, s{sX8}, 7"); A(f"s_add_u32 s{sJ}, s{sJ}, s{sT0}")
    A(f"v_lshrrev_b32 v{vT0}, 2, v{vN}"); A(f"v_lshlrev_b32 v{vT0}, 9, v{vT0}"); A(f"v_lshl_or_b32 v{vT0}, v{vG}, 6, v{vT0}"); A(f"v_lshl_or_b32 v{mYa}, v{vH4}, 4, v{vT0}")
    A(f"v_and_b32 v{vT0}, 31, v{vL}"); A(f"v_lshlrev_b32 v{mSa}, 3, v{vT0}")
    smul_add(sA1, [(sX8, "mul", YX)], YA + 8192); smul_add(sA0, [(sX8, "mul", YX), (sW, "shl", 11)], YA)
    A(f"v_mul_u32_u24 v{mXw}, {RS}, v{vH4}"); A(f"v_lshl_add_u32 v{mXw}, v{vG}, 4, v{mXw}"); smul_add(sT1, [(sW, "shl", 6)], RED); A(f"v_add_u32 v{mXw}, s{sT1}, v{mXw}")
    A(f"v_lshrrev_b32 v{vT0}, 3, v{vN}"); A(f"v_and_b32 v{vT1}, 1, v{vN}"); A(f"v_lshl_or_b32 v{vT0}, v{vT0}, 1, v{vT1}"); A(f"v_mul_u32_u24 v{mXr}, {2*RS}, v{vT0}")
    A(f"v_lshl_add_u32 v{mXr}, v{vG}, 4, v{mXr}"); A(f"v_bfe_u32 v{vT0}, v{vN}, 1, 2"); A(f"v_lshl_add_u32 v{mXr}, v{vT0}, 2, v{mXr}"); A(f"v_add_u32 v{mXr}, {RED}, v{mXr}")
    A(f"v_lshlrev_b32 v{mBp}, 6, v{vG}"); A(f"v_lshl_or_b32 v{mBp}, v{vT1}, 2, v{mBp}")
    A(f"v_lshrrev_b32 v{vT0}, 2, v{vL}"); A(f"v_lshlrev_b32 v{vT0}, 6, v{vT0}"); A(f"v_and_b32 v{vT2}, 1, v{vG}"); A(f"v_lshl_or_b32 v{vT0}, v{vT2}, 5, v{vT0}"); A(f"v_lshl_or_b32 v{vT0}, v{vC3}, 3, v{vT0}")
    A(f"s_lshl_b32 s{sT1}, s{sW}, 13"); A(f"v_add_u32 v{mA1}, s{sT1}, v{vT0}"); A(f"v_xor_b32 v{mA1+1}, 32, v{mA1}")
    A(f"s_add_u32 s{sT1}, s{sT1}, 32768"); A(f"v_add_u32 v{mA2}, s{sT1}, v{vTRV}")
    for t in range(1, 8): A(f"v_xor_b32 v{mA2+t}, {32*t}, v{mA2}")
    A(f"v_lshrrev_b32 v{vT0}, 2, v{vN}"); A(f"v_lshl_or_b32 v{vT0}, v{vT0}, 1, v{vT1}"); A(f"v_mul_u32_u24 v{mMP}, 7168, v{vT0}")
    A(f"v_bfe_u32 v{vT0}, v{vN}, 1, 1"); A(f"v_lshl_add_u32 v{mMP}, v{vT0}, 6, v{mMP}"); A(f"v_lshl_add_u32 v{mMP}, v{vG}, 4, v{mMP}")
    smul_add(sA3, [(sW, "mul", 4*14336), (sJ, "shl", 7)], MP)
    smul_add(sA4, [(sX8, "shl", 7), (sT0, "shl", 4), (sW, "shl", 2)], MF)
    A(f"s_mov_b32 s{sM2}, 0xcccccccc"); A(f"s_mov_b32 s{sM2+1}, 0xcccccccc")
    if RP: rest_block()
    A("L_c_roledone:")
    smul_add(sT0, [(sX8, "shl", 15), (sB, "shl", 14), (sW, "shl", 10)], QPA)
    A(f"s_add_u32 s{sT1}, s{sT0}, 4096"); A(f"s_add_u32 s{sT3}, s{sT0}, 8192"); A(f"s_add_u32 s{sT4}, s{sT0}, 12288")
    stamp(1)
    A(f"s_cmp_lg_u32 s{sW}, 0"); A("s_cbranch_scc1 L_c_nt")
    backoff(DG)
    A(f"ds_write_b32 v{vFl}, v{vOne} offset:{F_T1}")
    backoff(DQ)
    A(f"ds_write_b32 v{vFl}, v{vOne} offset:{F_T2}")
    A("L_c_nt:")
    spin(vFl, F_T2, vT0, sleep=2)
    spin(vFl, F_QP, vT0, sleep=1)
    A(f"ds_read_b32 v{vT0}, v{vFl} offset:{TAGL-FL}")
    def q_loads(Pq=vG2):
        for rho, so in enumerate((sT0, sT1, sT3, sT4)):
            A(f"buffer_load_dwordx4 {v(Pq+4*rho,4)}, v{vL16}, {s(srdWS,4)}, s{so} offen sc1")
    def k_reads():
        spin(vFl, F_K, vT1, sleep=1)
        for t in range(4):
            for sg in range(4): A(f"ds_read_b128 {v(vKb+(t*4+sg)*4,4)}, v{vKa+sg} offset:{t*4096}")
        A(f"ds_write_b32 v{vFw}, v{vOne} offset:{F_KR}")
    qtags = [vG2+4*i+k for i in range(4) for k in (1, 3)]
    q_loads()
    A("s_waitcnt lgkmcnt(0)")
    A(f"v_readfirstlane_b32 s{sTAG}, v{vT0}")
    A(f"v_mov_b32 v{vT3}, 1")
    A(f"s_add_u32 s{sTQ}, s{sTQ}, s{sTAG}")
    if FREM: A(f"s_add_u32 s{sTQ}, s{sTQ}, 9")
    def q_sum(Pq):
        A(f"v_pk_add_f32 {v(vU,2)}, {v(Pq,2)}, {v(Pq+4,2)}"); A(f"v_pk_add_f32 {v(vU+2,2)}, {v(Pq+2,2)}, {v(Pq+6,2)}")
        A(f"v_add_f32 v{vU+1}, v{Pq+8}, v{Pq+12}"); A(f"v_add_f32 v{vU+3}, v{Pq+10}, v{Pq+14}")
    if not QD:
        k_reads()
        A("s_waitcnt vmcnt(0)")
        tagcheck(qtags, vT0, sTQ)
        A("s_cbranch_vccnz L_c_qre")
    else:
        backoff(D2)
        q_loads(vG2+16)
        k_reads()
        A("s_waitcnt vmcnt(4)")
        tagcheck(qtags, vT0, sTQ)
        A("s_cbranch_vccnz L_c_qd")
        def qdual():
            A("L_c_qd:")
            A(f"s_mov_b32 s{sCNT}, 0")
            A("L_c_qd0:")
            q_loads(vG2)
            A("s_waitcnt vmcnt(4)")
            tagcheck([r+16 for r in qtags], vT0, sTQ)
            A("s_cbranch_vccz L_c_qd1")
            q_loads(vG2+16)
            A(f"s_add_u32 s{sCNT}, s{sCNT}, 1"); A(f"s_cmp_ge_u32 s{sCNT}, {NA}"); A("s_cbranch_scc1 L_c_qB")
            A("s_waitcnt vmcnt(4)")
            tagcheck(qtags, vT0, sTQ)
            A("s_cbranch_vccnz L_c_qd0")
            A("s_branch L_c_qok")
            A("L_c_qd1:")
            q_sum(vG2+16)
            A("s_branch L_c_qok2")
        out_of_line.append(qdual)
    A("L_c_qok:")
    q_sum(vG2)
    A("L_c_qok2:")
    def qretry():
        A("L_c_qre:")
        A(f"s_mov_b32 s{sCNT}, 0")
        A("L_c_qre2:")
        q_loads()
        A(f"s_add_u32 s{sCNT}, s{sCNT}, 1"); A(f"s_cmp_ge_u32 s{sCNT}, {NA}")
        A("s_waitcnt vmcnt(0)")
        A("s_cbranch_scc1 L_c_qB")
        tagcheck(qtags, vT0, sTQ)
        A("s_cbranch_vccnz L_c_qre2")
        A("s_branch L_c_qok")
        A("L_c_qB:")
        for so in (sT0, sT1, sT3, sT4): A(f"s_add_u32 s{so}, s{so}, {QB}")
        A("L_c_qB2:")
        q_loads()
        A(f"s_add_u32 s{sCNT}, s{sCNT}, 1"); A(f"s_cmp_gt_u32 s{sCNT}, {NT}")
        A("s_waitcnt vmcnt(0)")
        A("s_cbranch_scc1 L_c_qB3")
        for i, r in enumerate(qtags): A(f"v_subrev_u32 v{vU+i}, s{sTAG}, v{r}")
        A(f"v_max3_u32 v{vT0}, v{vU}, v{vU+1}, v{vU+2}"); A(f"v_max3_u32 v{vT0}, v{vT0}, v{vU+3}, v{vU+4}"); A(f"v_max3_u32 v{vT0}, v{vT0}, v{vU+5}, v{vU+6}"); A(f"v_max_u32 v{vT0}, v{vT0}, v{vU+7}")
        A(f"v_cmp_lt_u32 vcc, 7, v{vT0}")
        A("s_cbranch_vccnz L_c_qB2")
        A("L_c_qB3:")
        tagcheck(qtags, vT0, sTQ)
        A("s_cbranch_vccz L_c_qok")
        A(f"v_mov_b32 v{vT3}, 2")
        A("s_branch L_c_qok")
    out_of_line.append(qretry)
    A(f"v_add_f32 v{vU}, v{vU}, v{vU+1}"); A(f"v_add_f32 v{vU+2}, v{vU+2}, v{vU+3}")
    A(f"v_cvt_pk_bf16_f32 v{vT0}, v{vU}, v{vU+2}")
    A(f"ds_write_b32 v{vQw}, v{vT0}")
    A(f"ds_write_b32 v{vFw}, v{vT3} offset:{F_Q}")
    stamp(2)
    spin(vFl, F_Q, vU, 4)
    stamp(3); fine(2, 1)
    for sg in range(4): A(f"ds_read_b128 {v(vQ+sg*4,4)}, v{vQa} offset:{64*sg}")
    A(f"v_max3_u32 v{vU}, v{vU}, v{vU+1}, v{vU+2}"); A(f"v_max_u32 v{vU}, v{vU}, v{vU+3}")
    A(f"v_readfirstlane_b32 s{sREM}, v{vU}")
    for sg in range(4):
        A(f"s_waitcnt lgkmcnt({lg(3-sg)})")
        for t in range(4):
            A(f"v_mfma_f32_16x16x32_bf16 {v(vS+4*t,4)}, {v(vKb+(t*4+sg)*4,4)}, {v(vQ+sg*4,4)}, {'0' if sg == 0 else v(vS+4*t,4)}")
    fine(2, 2)
    for t in range(1, 4):
        for r in range(4): A(f"v_mov_b32_dpp v{vS+r}, v{vS+4*t+r} quad_perm:[0,1,2,3] row_mask:0xf bank_mask:{hex(1 << t)}")
    def red_all(r, op, t):
        for ro in (4, 8): A(f"{op}_dpp v{r}, v{r}, v{r} row_ror:{ro} row_mask:0xf bank_mask:0xf bound_ctrl:1")
        for sw in ("v_permlane16_swap_b32", "v_permlane32_swap_b32"):
            A(f"v_mov_b32 v{t}, v{r}"); A(f"{sw} v{t}, v{r}"); A(f"{op} v{r}, v{r}, v{t}")
    A(f"v_max3_f32 v{vM}, v{vS}, v{vS+1}, v{vS+2}"); A(f"v_max_f32 v{vM}, v{vM}, v{vS+3}")
    red_all(vM, "v_max_f32", vT0)
    A(f"v_mul_f32 v{vSt}, s{sSC}, v{vM}")
    for i in range(4): A(f"v_fma_f32 v{vS+i}, v{vS+i}, s{sSC}, -v{vSt}")
    for i in range(4): A(f"v_exp_f32 v{vS+i}, v{vS+i}")
    A(f"v_add_f32 v{vT0}, v{vS}, v{vS+1}"); A(f"v_add_f32 v{vT1}, v{vS+2}, v{vS+3}"); A(f"v_add_f32 v{vSt+1}, v{vT0}, v{vT1}")
    red_all(vSt+1, "v_add_f32", vT0)
    fine(2, 3)
    A("s_mov_b64 exec, 0xf")
    A(f"ds_write_b64 v{vMLw}, {v(vSt,2)}")
    A("s_mov_b64 exec, -1")
    A(f"s_mov_b32 s{sCNT}, 0")
    A("L_c_ml:")
    A(f"ds_read_b128 {v(vU,4)}, v{vMLr}"); A(f"ds_read_b128 {v(vU+4,4)}, v{vMLr} offset:16")
    A(f"s_add_u32 s{sCNT}, s{sCNT}, 1"); A(f"s_cmp_gt_u32 s{sCNT}, {NT}")
    A("s_waitcnt lgkmcnt(0)")
    A("s_cbranch_scc1 L_c_mlok")
    A(f"v_max3_u32 v{vT0}, v{vU+1}, v{vU+3}, v{vU+5}"); A(f"v_max_u32 v{vT0}, v{vT0}, v{vU+7}")
    A(f"v_cmp_eq_u32 vcc, -1, v{vT0}")
    A("s_cbranch_vccnz L_c_ml")
    A("L_c_mlok:")
    fine(2, 4)
    A(f"v_max3_f32 v{vMc}, v{vU}, v{vU+2}, v{vU+4}"); A(f"v_max_f32 v{vMc}, v{vMc}, v{vU+6}")
    for i in range(4): A(f"v_sub_f32 v{vU+2*i}, v{vU+2*i}, v{vMc}")
    A(f"v_sub_f32 v{vT0}, v{vSt}, v{vMc}")
    for i in range(4): A(f"v_exp_f32 v{vU+2*i}, v{vU+2*i}")
    A(f"v_exp_f32 v{vT0}, v{vT0}")
    A(f"v_mul_f32 v{vLs}, v{vU}, v{vU+1}")
    for i in range(1, 4): A(f"v_fmac_f32 v{vLs}, v{vU+2*i}, v{vU+2*i+1}")
    A(f"v_rcp_f32 v{vT1}, v{vLs}")
    A(f"v_mov_b32 v{vSt}, v{vMc}"); A(f"v_mov_b32 v{vSt+1}, v{vLs}")
    A(f"v_mul_f32 v{vT0}, v{vT0}, v{vT1}")
    for i in range(4): A(f"v_mul_f32 v{vS+i}, v{vS+i}, v{vT0}")
    A(f"v_cvt_pk_bf16_f32 v{vU}, v{vS}, v{vS+1}"); A(f"v_cvt_pk_bf16_f32 v{vU+1}, v{vS+2}, v{vS+3}")
    A(f"ds_write_b64 v{vPw}, {v(vU,2)}")
    A(f"ds_write_b32 v{vFw}, v{vOne} offset:{F_P}")
    A(f"s_cmp_gt_u32 s{sREM}, 1")
    A(f"s_mov_b64 exec, {s(sM1,2)}")
    A("s_cbranch_scc1 L_c_strem")
    A(f"buffer_store_dwordx2 {v(vSt,2)}, v{vSa}, {s(srdWS,4)}, s{sSA} offen")
    A("L_c_stdone:")
    def strem():
        A("L_c_strem:")
        A(f"s_add_u32 s{sSA}, s{sSA}, {SB}"); A(f"s_add_u32 s{sOA}, s{sOA}, {OB}")
        A(f"buffer_store_dwordx2 {v(vSt,2)}, v{vSa}, {s(srdWS,4)}, s{sSA} offen sc1")
        A("s_branch L_c_stdone")
    out_of_line.append(strem)
    A("s_mov_b64 exec, -1")
    stamp(4); fine(2, 5)
    spin(vFl, F_P, vU, 4)
    fine(2, 7)
    for k in range(8): A(f"ds_read_b128 {v(vP+4*k,4)}, v{vPr} offset:{k*256}")
    A(f"ds_write_b32 v{vFw}, v{vOne} offset:{F_CR}")
    spin(vFl, F_V, vT0)
    stamp(5); fine(2, 8)
    def vreads(k, dst):
        for t in range(2):
            for u in range(2):
                A(f"ds_read_b64_tr_b16 {v(dst+4*t+2*u,2)}, v{vVa+t} offset:{(32*k+16*u)*256}")
    for k in range(7): vreads(k, vVb+8*k)
    tSt = vG2; tA = vG2 + 8
    def st_loads():
        for k in range(2): A(f"buffer_load_dwordx4 {v(tSt+4*k,4)}, v{tSa}, {s(srdWS,4)}, s{sA1} offen offset:{16*k} sc1")
    st_loads()
    for k in range(7):
        A(f"s_waitcnt lgkmcnt({lg(4*(6-k))})")
        for t in range(2):
            A(f"v_mfma_f32_16x16x32_bf16 {v(vO+4*t,4)}, {v(vVb+8*k+4*t,4)}, {v(vP+4*k,4)}, {'0' if k == 0 else v(vO+4*t,4)}")
    A(f"s_cmp_gt_u32 s{sREM}, 1")
    fine(2, 9)
    A("s_barrier")
    fine(2, 10)
    vreads(7, vVb)
    A(f"s_waitcnt lgkmcnt({lg(2)})")
    A(f"v_mfma_f32_16x16x32_bf16 {v(vO,4)}, {v(vVb,4)}, {v(vP+28,4)}, {v(vO,4)}")
    A("s_waitcnt lgkmcnt(0)")
    A(f"v_mfma_f32_16x16x32_bf16 {v(vO+4,4)}, {v(vVb+4,4)}, {v(vP+28,4)}, {v(vO+4,4)}")
    stamp(6)
    A(f"s_mov_b64 exec, {s(sM0,2)}")
    for i in range(4): A(f"v_cvt_pk_bf16_f32 v{vU+i}, v{vO+2*i}, v{vO+2*i+1}")
    A("s_cbranch_scc1 L_c_orem")
    A(f"buffer_store_dwordx4 {v(vU,4)}, v{vOa}, {s(srdWS,4)}, s{sOA} offen")
    A("s_mov_b64 exec, -1")
    stamp(7); fine(2, 11)
    A(f"s_cmp_lt_u32 s{sR}, 16")
    A("s_cbranch_scc0 L_c_other")

    if BT: A("s_barrier")
    tB = vKb; tD = vS
    def t1_loads():
        for k in range(4): A(f"buffer_load_dwordx4 {v(tA+4*k,4)}, v{vL16}, {s(srdWS,4)}, s{sA0} offen offset:{1024*k} sc1")
    if EW:
        t1_loads()
        poll("L_stp", lambda: (st_loads(), t1_loads()), lambda: sentcheck([tSt+1, tSt+3, tSt+5, tSt+7], vT0), first_wait=5)
    else:
        poll("L_stp", st_loads, lambda: sentcheck([tSt+1, tSt+3, tSt+5, tSt+7], vT0), first_wait=1)
    A("L_t1_w:")
    stamp(13)
    A(f"ds_read_b32 v{tPar}, v{tPa}"); A(f"ds_read_b32 v{tPar+1}, v{tPa} offset:512"); A(f"ds_read_b32 v{tPar+2}, v{tPa} offset:768")
    A(f"v_max3_f32 v{vM}, v{tSt}, v{tSt+2}, v{tSt+4}"); A(f"v_max_f32 v{vM}, v{vM}, v{tSt+6}")
    def xg(r, op, t):
        for sw in ("v_permlane16_swap_b32", "v_permlane32_swap_b32"):
            A(f"v_mov_b32 v{t}, v{r}"); A(f"{sw} v{t}, v{r}"); A(f"{op} v{r}, v{r}, v{t}")
    xg(vM, "v_max_f32", vT0)
    for r in range(4): A(f"v_sub_f32 v{tW+r}, v{tSt+2*r}, v{vM}")
    for r in range(4): A(f"v_exp_f32 v{tW+r}, v{tW+r}")
    for r in range(4): A(f"v_mul_f32 v{tW+r}, v{tW+r}, v{tSt+2*r+1}")
    A(f"v_add_f32 v{vLs}, v{tW}, v{tW+1}"); A(f"v_add_f32 v{vT1}, v{tW+2}, v{tW+3}"); A(f"v_add_f32 v{vLs}, v{vLs}, v{vT1}")
    xg(vLs, "v_add_f32", vT0)
    A(f"v_rcp_f32 v{vLs}, v{vLs}")
    A(f"v_lshlrev_b32 v{tX}, 16, v{tX}"); A(f"v_mov_b32 v{tYv+1}, s{sTAG}")
    for r in range(4): A(f"v_mul_f32 v{tW+r}, v{tW+r}, v{vLs}")
    if not EW:
        A(f"s_cmp_gt_u32 s{sREM}, 1")
        A("s_barrier")
        A("s_cbranch_scc1 L_t1_nl")
        t1_loads()
        A("L_t1_nl:")
    def wo_reads():
        for k in range(4):
            for t in range(4):
                for u in range(2):
                    A(f"ds_read_b64_tr_b16 {v(tB+(k*4+t)*4+2*u,2)}, v{tTR+t} offset:{(32*k+16*u)*256}")
    wo_reads()
    A(f"v_and_b32 v{vT0}, 8, v{vL}"); A(f"v_cmp_ne_u32 {s(sM0,2)}, 0, v{vT0}")
    A(f"v_and_b32 v{vT0}, 16, v{vL}"); A(f"v_cmp_ne_u32 {s(sM1,2)}, 0, v{vT0}")
    A(f"s_cmp_gt_u32 s{sREM}, 1"); A("s_cbranch_scc1 L_t1p_ok")
    stamp(8)
    if dbg: A(f"s_mov_b32 s{sCNT}, 0")
    poll("L_t1p", t1_loads, lambda: sentcheck([tA+3, tA+7, tA+11, tA+15], vT0))
    stamp(9); fine(3, 1)
    if dbg and not FINE: A(f"s_mov_b32 s88, s{sCNT}")
    for k in range(4):
        A(f"s_waitcnt lgkmcnt({lg(24-8*k)})")
        for t in (0, 2, 1, 3):
            A(f"v_mfma_f32_16x16x32_bf16 {v(tD+4*t,4)}, {v(tA+4*k,4)}, {v(tB+(k*4+t)*4,4)}, {'0' if k == 0 else v(tD+4*t,4)}")
    fine(3, 2)
    A(f"s_cmp_lt_u32 s{sW}, 2")
    for t in (0, 2, 1, 3):
        A(f"v_pk_mul_f32 {v(tD+4*t,2)}, {v(tD+4*t,2)}, {v(tW,2)}")
        A(f"v_pk_fma_f32 {v(tD+4*t,2)}, {v(tD+4*t+2,2)}, {v(tW+2,2)}, {v(tD+4*t,2)}")
        A(f"v_add_f32 v{vU+t}, v{tD+4*t}, v{tD+4*t+1}")
    def reduce4(u):
        A(f"v_permlane32_swap_b32 v{u}, v{u+2}"); A(f"v_permlane32_swap_b32 v{u+1}, v{u+3}")
        A(f"v_pk_add_f32 {v(u,2)}, {v(u,2)}, {v(u+2,2)}")
        A(f"v_permlane16_swap_b32 v{u}, v{u+1}")
        A(f"v_add_f32 v{u}, v{u}, v{u+1}")
    reduce4(vU)
    A(f"v_mov_b32_dpp v{vU+1}, v{vU} quad_perm:[1,0,3,2] row_mask:0xf bank_mask:0xf bound_ctrl:1")
    setexec(0x5555555555555555)
    A(f"v_cvt_pk_bf16_f32 v{tYv}, v{vU}, v{vU+1}")
    A("s_barrier")
    A(f"buffer_store_dwordx2 {v(tYv,2)}, v{tAP}, {s(srdWS,4)}, s{sA2} offen sc1")
    A("s_mov_b64 exec, -1")
    stamp(10); fine(3, 3)
    A("s_cbranch_scc0 L_fin_end")
    def red_loads():
        for q in range(4): A(f"buffer_load_dwordx4 {v(tA+4*q,4)}, v{vL16}, {s(srdWS,4)}, s{sA3} offen offset:{1024*q} sc1")
    if DA: backoff(DA)
    else: A("s_waitcnt vmcnt(0)")
    red_loads()
    poll("L_rdp", red_loads, lambda: tagcheck([tA+3, tA+7, tA+11, tA+15], vT0))
    stamp(11); fine(3, 4)
    sum_pairs(vU, [tA+4*q for q in range(4)])
    reduce4(vU)
    A(f"v_add_f32_dpp v{vU}, v{vU}, v{vU} row_ror:8 row_mask:0xf bank_mask:0xf bound_ctrl:1")
    A(f"s_cmp_gt_u32 s{sREM}, 1")
    A(f"v_fmac_f32 v{tX}, v{tPar}, v{vU}")
    A(f"v_mul_f32 v{vU}, v{tX}, v{tPar+1}")
    A(f"v_mul_f32 v{vU+4}, v{tX}, v{tX}")
    A(f"v_mov_b32 v{vU+1}, v{vU}")
    A(f"v_cndmask_b32 v{vU+4}, v{tX}, v{vU+4}, {s(sM0,2)}")
    A(f"v_permlane16_swap_b32 v{vU}, v{vU+1}")
    A(f"v_add_f32_dpp v{vU+4}, v{vU+4}, v{vU+4} quad_perm:[1,0,3,2] row_mask:0xf bank_mask:0xf bound_ctrl:1")
    A(f"v_cvt_pk_bf16_f32 v{vU+2}, v{vU}, v{vU+1}")
    A(f"v_lshlrev_b32 v{vT0}, 16, v{vU+2}")
    A(f"v_add_f32_dpp v{vU+4}, v{vU+4}, v{vU+4} quad_perm:[2,3,0,1] row_mask:0xf bank_mask:0xf bound_ctrl:1")
    A(f"v_and_b32 v{vT1}, 0xffff0000, v{vU+2}")
    A(f"v_sub_f32 v{vU}, v{vU}, v{vT0}")
    A(f"v_add_f32_dpp v{vU+4}, v{vU+4}, v{vU+4} row_half_mirror row_mask:0xf bank_mask:0xf bound_ctrl:1")
    A(f"v_sub_f32 v{vU+1}, v{vU+1}, v{vT1}")
    A(f"v_mov_b32 v{vU+5}, v{vU+4}")
    A(f"v_cvt_pk_bf16_f32 v{vU+3}, v{vU}, v{vU+1}")
    A(f"v_permlane16_swap_b32 v{vU+5}, v{vU+4}")
    A(f"v_cndmask_b32 v{vU+2}, v{vU+2}, v{vU+3}, {s(sM1,2)}")
    A(f"v_add_f32 v{vU+4}, v{vU+4}, v{vU+5}")
    A("s_cbranch_scc1 L_yrem")
    setexec(0x00ff00ff00ff00ff)
    A(f"buffer_store_dword v{vU+2}, v{tY}, {s(srdWS,4)}, s{sA4} offen")
    A("s_mov_b64 exec, -1")
    A(f"v_mov_b32 v{vU+5}, v{vU+4}")
    A(f"v_permlane32_swap_b32 v{vU+5}, v{vU+4}")
    A(f"v_add_f32 v{vU+4}, v{vU+4}, v{vU+5}")
    A("s_mov_b64 exec, 0x101")
    A(f"buffer_store_dword v{vU+4}, v{tY+1}, {s(srdWS,4)}, s{sA5} offen")
    A("s_mov_b64 exec, -1")
    stamp(12); fine(3, 5)
    A(f"s_cmp_eq_u32 s{sJ}, s{sAB}"); A("s_cbranch_scc0 L_notfin")
    if OPT: A(f"buffer_load_ushort v{vT3}, v{tOut}, {s(srdO,4)}, s{sA7} offen")
    if MFG:
        smul_add(sT0, [(sX8, "shl", 7)], MF); A(f"v_lshlrev_b32 v{vT1}, 2, v{vL}")
        flagwait("L_mfw", vT1, sT0, vT0, 0xfffffff)
    A("L_fin:")
    def fin_loads():
        for q in range(7):
            A(f"buffer_load_dwordx4 {v(tB+4*q,4)}, v{vL16}, {s(srdWS,4)}, s{sA6 if q < 4 else sA9} offen offset:{1024*(q%4)} sc1")
    fin_loads()
    A(f"v_mov_b32 v{vT2}, 0")
    poll("L_fnp", fin_loads, lambda: tagcheck([tB+4*q+3 for q in range(7)], vT0))
    stamp(13) if False else None
    fine(3, 6)
    sum_pairs(vU, [tB+4*q for q in range(7)])
    reduce4(vU)
    A(f"v_add_f32_dpp v{vU}, v{vU}, v{vU} row_ror:8 row_mask:0xf bank_mask:0xf bound_ctrl:1")
    A(f"v_fmac_f32 v{tX}, v{tPar+2}, v{vU}")
    A(f"v_mov_b32 v{vU+1}, v{tX}")
    A(f"v_permlane16_swap_b32 v{tX}, v{vU+1}")
    setexec(0x000000ff000000ff)
    A(f"v_cvt_pk_bf16_f32 v{vU+2}, v{tX}, v{vU+1}")
    A(f"buffer_store_dword v{vU+2}, v{tOut}, {s(srdO,4)}, s{sA7} offen {osf}")
    if DUR:
        A(f"s_memrealtime {s(sST,2)}"); A("s_mov_b32 s90, 256"); A("s_mov_b32 s91, 0x20000"); A("s_waitcnt lgkmcnt(0)")
        A("s_mov_b64 exec, 1"); A(f"s_not_b32 s{sST+2}, s{sST+2}"); A(f"v_mov_b32 v{vU+4}, s{sST+2}"); A(f"v_mov_b32 v{vU+5}, s{sST}")
        A(f"buffer_atomic_umax v{vU+4}, v{vT2}, s[88:91], 0 offen"); A(f"buffer_atomic_umax v{vU+5}, v{vT2}, s[88:91], 0 offen offset:4")
    A("L_fin_end:")
    stamp_flush()
    A("s_endpgm")
    A("L_c_orem:")
    A(f"buffer_store_dwordx4 {v(vU,4)}, v{vOa}, {s(srdWS,4)}, s{sOA} offen sc1")
    smul_add(sT0, [(sX8, "shl", 9), (sR, "shl", 4), (sW, "shl", 2)], OF)
    flagset(vT0, sT0)
    A(f"s_cmp_lt_u32 s{sR}, 16"); A("s_cbranch_scc0 L_c_other")
    if BT: A("s_barrier")
    smul_add(sT0, [(sX8, "shl", 9), (sAB, "shl", 8)], OF); A(f"v_lshlrev_b32 v{vT1}, 2, v{vL}")
    flagwait("L_ofw", vT1, sT0, vT0, (1 << 64) - 1)
    A(f"s_add_u32 s{sA0}, s{sA0}, {OB}"); A(f"s_add_u32 s{sA1}, s{sA1}, {SB}")
    st_loads(); t1_loads()
    A("s_waitcnt vmcnt(0)")
    A("s_branch L_t1_w")
    A("L_yrem:")
    A(f"s_add_u32 s{sA4}, s{sA4}, {YBO}"); A(f"s_add_u32 s{sA5}, s{sA5}, {YBO}")
    setexec(0x00ff00ff00ff00ff)
    A(f"buffer_store_dword v{vU+2}, v{tY}, {s(srdWS,4)}, s{sA4} offen sc1")
    A("s_mov_b64 exec, -1")
    A(f"v_mov_b32 v{vU+5}, v{vU+4}")
    A(f"v_permlane32_swap_b32 v{vU+5}, v{vU+4}")
    A(f"v_add_f32 v{vU+4}, v{vU+4}, v{vU+5}")
    A("s_mov_b64 exec, 0x101")
    A(f"buffer_store_dword v{vU+4}, v{tY+1}, {s(srdWS,4)}, s{sA5} offen sc1")
    smul_add(sT0, [(sX8, "shl", 7), (sA8, "shl", 2)], YF)
    flagset(vT0, sT0)
    A(f"s_cmp_eq_u32 s{sJ}, s{sAB}"); A("s_cbranch_scc0 L_notfin")
    A("s_branch L_fin")
    A("L_notfin:")
    A(f"s_cmp_eq_u32 s2, 4"); A("s_cbranch_scc0 L_fin_end")
    A(f"s_cmp_eq_u32 s{sW}, 0"); A("s_cbranch_scc0 L_fin_end")
    A("s_mov_b64 exec, 1"); A(f"v_mov_b32 v{vT2}, 0")
    A(f"buffer_store_dword v{tYv+1}, v{vT2}, {s(srdWS,4)}, 0 offen sc1")
    A("s_branch L_fin_end")
    for blk in out_of_line: blk()
    out_of_line.clear()

    A("L_c_other:")
    if dbg and not FINE: A("s_waitcnt vmcnt(0)"); stamp(11)
    A(f"s_sub_u32 s{sT0}, s{sR}, 16"); A(f"s_cmp_lt_u32 s{sT0}, 7"); A("s_cbranch_scc0 L_fin_end")
    mW1 = vKb; mW2 = vKb + 32; mB = vQ; mD = vQ + 16; mSt = vQ + 24; mR = vQ + 28; mD2 = vQ + 36; mO = vQ + 40; mH = vG2
    sY0, sY1, sMO, sFW = 22, 23, 24, 25
    def y_loads():
        A(f"buffer_load_dwordx4 {v(mB,4)}, v{mYa}, {s(srdWS,4)}, s{sY0} offen sc1")
        A(f"buffer_load_dwordx2 {v(mSt,2)}, v{mSa}, {s(srdWS,4)}, s{sY1} offen sc1")
    A(f"s_cmp_gt_u32 s{sREM}, 1"); A(f"s_cselect_b32 s{sT1}, {YBO}, 0"); A(f"s_add_u32 s{sA0}, s{sA0}, s{sT1}"); A(f"s_add_u32 s{sA1}, s{sA1}, s{sT1}")
    A(f"s_add_u32 s{sY0}, s{sA0}, 256"); A(f"s_mov_b32 s{sY1}, s{sY0}")
    smul_add(sFW, [(sX8, "shl", 7)], CF)
    y_loads()
    if BO: A("s_barrier")
    A(f"v_mov_b32 v{mC}, 0"); A(f"v_mov_b32 v{mC+1}, 0"); A(f"v_mov_b32 v{mO+1}, s{sTAG}"); A(f"v_mov_b32 v{mO+3}, s{sTAG}")
    A(f"v_mov_b32 v{mMQ}, v{mMP}"); A(f"v_mov_b32 v{mMQ+1}, 0")
    A(f"s_mov_b32 s{sMO}, 0")
    A("s_waitcnt vmcnt(0)")
    for i in range(32): A(f"v_mov_b32 v{mH+i}, 0")
    if not EM: A("s_barrier")
    stamp(12)
    for sg in range(4):
        for t in range(2):
            for u in range(2):
                A(f"ds_read_b64_tr_b16 {v(mW1+(t*4+sg)*4+2*u,2)}, v{mA1+t} offset:{(32*sg+16*u)*64}")
    A("s_waitcnt lgkmcnt(0)")
    A(f"s_cmp_gt_u32 s{sREM}, 1"); A("s_cbranch_scc1 L_mrem")
    A("L_mlp:")
    stamp(8)
    poll("L_myp", y_loads, lambda: sentcheck([mB+3, mSt, mSt+1], vT0))
    stamp(9); fine(1, 1)
    def mrem():
        A("L_mrem:")
        A(f"v_lshlrev_b32 v{vT1}, 2, v{vL}")
        A(f"s_cmp_eq_u32 s{sMO}, 0"); A("s_cbranch_scc0 L_mrem1")
        flagwait("L_cfw", vT1, sFW, vT0, 0xffff)
        A("s_branch L_mrem2")
        A("L_mrem1:")
        flagwait("L_yfw", vT1, sFW, vT0, 0xffffffff)
        A("L_mrem2:")
        y_loads()
        A("s_waitcnt vmcnt(0)")
        A("s_branch L_myp_ok")
    out_of_line.append(mrem)
    va = []
    for ro in (2, 4, 8):
        va += [f"v_add_f32_dpp v{mSt+i}, v{mSt+i}, v{mSt+i} row_ror:{ro} row_mask:0xf bank_mask:0xf bound_ctrl:1" for i in range(2)]
    va += [f"v_mov_b32 v{mSt+2}, v{mSt}", f"v_mov_b32 v{mSt+3}, v{mSt+1}", f"v_permlane16_swap_b32 v{mSt+2}, v{mSt}", f"v_permlane16_swap_b32 v{mSt+3}, v{mSt+1}",
           f"v_pk_add_f32 {v(mSt,2)}, {v(mSt,2)}, {v(mSt+2,2)}",
           f"v_mul_f32 v{mSt}, {hex(f2u(1/512))}, v{mSt}", f"v_mov_b32 v{mSt+2}, {hex(f2u(1e-5))}",
           f"v_fmac_f32 v{mSt+2}, {hex(f2u(1/512))}, v{mSt+1}", f"v_fma_f32 v{mSt+2}, -v{mSt}, v{mSt}, v{mSt+2}",
           f"v_rsq_f32 v{mSt+2}, v{mSt+2}", f"v_mul_f32 v{mC}, v{mC}, v{mSt}", f"v_mul_f32 v{mSt+3}, {hex(f2u(-LOG2E))}, v{mSt+2}", f"v_mul_f32 v{mC+2}, {hex(f2u(-LOG2E))}, v{mC+1}"]
    def shl(sg):
        for q in range(4): A(f"v_mov_b32_dpp v{mB+4*sg+q}, v{mB+q} row_shl:{4*sg} row_mask:0xf bank_mask:0xf bound_ctrl:1")
    def mf1(sg, t): A(f"v_mfma_f32_16x16x32_bf16 {v(mD+4*t,4)}, {v(mW1+(t*4+sg)*4,4)}, {v(mB+4*sg,4)}, {'0' if sg == 0 else v(mD+4*t,4)}")
    mf1(0, 0); shl(1); mf1(0, 1); shl(2); mf1(1, 0); mf1(1, 1); shl(3); mf1(2, 0); mf1(2, 1)
    vi = 0
    A(va[0]); A(va[1]); mf1(3, 0); A(va[2]); A(va[3]); mf1(3, 1); vi = 4
    for _ in range(6): A(va[vi]); vi += 1
    fine(1, 2)
    A(f"s_mov_b64 exec, {s(sM0,2)}")
    for t in range(2): A(f"ds_write_b128 v{mXw}, {v(mD+4*t,4)} offset:{t*4*RS}")
    A("s_mov_b64 exec, -1")
    while vi < len(va): A(va[vi]); vi += 1
    A(f"s_cmp_lg_u32 s{sMO}, 0")
    A("s_waitcnt lgkmcnt(0)")
    fine(1, 3)
    A("s_barrier")
    fine(1, 4)
    for cw in range(4): A(f"ds_read2_b32 {v(mR+2*cw,2)}, v{mXr} offset0:{16*cw} offset1:{16*cw+RS//4}")
    A(f"s_waitcnt lgkmcnt({lg(2)})")
    A(f"v_pk_add_f32 {v(mR,2)}, {v(mR,2)}, {v(mR+2,2)}")
    A("s_waitcnt lgkmcnt(0)")
    A(f"v_pk_add_f32 {v(mR+4,2)}, {v(mR+4,2)}, {v(mR+6,2)}")
    A(f"v_pk_add_f32 {v(mR,2)}, {v(mR,2)}, {v(mR+4,2)}")
    A("s_cbranch_scc0 L_mlp0")
    if MFE:
        A("s_mov_b64 exec, 1")
        A(f"buffer_store_dword v{mO+1}, v{mMQ+1}, {s(srdWS,4)}, s{sA4} offen")
        A("s_mov_b64 exec, -1")
    A(f"v_sub_f32 v{mR+2}, v{mR}, v{mC}"); A(f"v_add_f32 v{mR+2}, v{mR+2}, v{mR+1}")
    fine(1, 5)
    A(f"v_fma_f32 v{mR+3}, v{mR+2}, v{mSt+3}, v{mC+2}")
    A(f"v_exp_f32 v{mR+3}, v{mR+3}")
    A(f"v_fma_f32 v{mR+2}, v{mR+2}, v{mSt+2}, v{mC+1}")
    A(f"v_add_f32 v{mR+3}, 1.0, v{mR+3}"); A(f"v_rcp_f32 v{mR+3}, v{mR+3}")
    A(f"v_mul_f32 v{mR+2}, v{mR+2}, v{mR+3}")
    A(f"v_mov_b32_dpp v{mR+3}, v{mR+2} row_shl:2 row_mask:0xf bank_mask:0xf bound_ctrl:1")
    A(f"v_cvt_pk_bf16_f32 v{mR+4}, v{mR+2}, v{mR+3}")
    A(f"v_cndmask_b32 v{mR+4}, v{mR+4}, 0, {s(sM2,2)}")
    fine(1, 6)
    def bt(t):
        for q in range(4):
            d = 2*t - 4*q
            pat = "quad_perm:[0,1,2,3]" if d == 0 else (f"row_shr:{d}" if d > 0 else f"row_shl:{-d}")
            A(f"v_mov_b32_dpp v{mH+4*t+q}, v{mR+4} {pat} row_mask:0xf bank_mask:{hex(1 << (t >> 1))} bound_ctrl:1")
    def mf2(t): A(f"v_mfma_f32_16x16x32_bf16 {v(mD2,4)}, {v(mW2+4*t,4)}, {v(mH+4*t,4)}, {'0' if t == 0 else v(mD2,4)}")
    bt(0); bt(1)
    for t in range(8):
        mf2(t)
        if t + 2 < 8: bt(t + 2)
    fine(1, 7)
    A(f"v_cvt_pk_bf16_f32 v{mO}, v{mD2}, v{mD2+1}"); A(f"v_cvt_pk_bf16_f32 v{mO+2}, v{mD2+2}, v{mD2+3}")
    A(f"buffer_store_dwordx4 {v(mO,4)}, v{mMQ}, {s(srdWS,4)}, s{sA3} offen sc1")
    if not MFE:
        A("s_mov_b64 exec, 1")
        A(f"buffer_store_dword v{mO+1}, v{mMQ+1}, {s(srdWS,4)}, s{sA4} offen")
    stamp(10); fine(1, 8)
    A("s_branch L_fin_end")
    A("L_mlp0:")
    stamp(13)
    A(f"s_mov_b32 s{sMO}, 1")
    A(f"s_mov_b32 s{sY0}, s{sA0}"); A(f"s_mov_b32 s{sY1}, s{sA1}"); A(f"s_add_u32 s{sFW}, s{sFW}, {YF-CF}")
    A(f"v_mov_b32 v{mC}, v{mR}"); A(f"v_mov_b32 v{mC+1}, v{mR+1}")
    A(f"v_add_u32 v{mXw}, {8*RS}, v{mXw}"); A(f"v_add_u32 v{mXr}, {8*RS}, v{mXr}")
    A("s_barrier")
    for t in range(8):
        for u in range(2):
            A(f"ds_read_b64_tr_b16 {v(mW2+4*t+2*u,2)}, v{mA2+t} offset:{16*u*256}")
    A(f"s_cmp_gt_u32 s{sREM}, 1")
    A("s_waitcnt lgkmcnt(0)")
    A("s_cbranch_scc1 L_mrem")
    y_loads()
    A("s_branch L_mlp")
    for blk in out_of_line: blk()
    A("L_end:"); A("s_endpgm")
    A("L_code_end:")
    A('.section .rodata,"a"'); A(".p2align 6"); A(f".amdhsa_kernel {NAME}_kernel")
    nv = 256 if dbg else max(R.hi, H.hi, Lr.hi)
    nv_al = (nv + 3) // 4 * 4
    for l in (f"next_free_vgpr {nv}", "next_free_sgpr 96", f"accum_offset {nv_al}", "group_segment_fixed_size 0", "kernarg_size 104", "user_sgpr_count 2", "user_sgpr_kernarg_segment_ptr 1", "system_sgpr_workgroup_id_x 1", "float_denorm_mode_32 3"):
        A(".amdhsa_" + l)
    A(".end_amdhsa_kernel")
    bad = A.check_branches()
    for b in bad: print("BRANCH HAZARD", b, file=sys.stderr)
    print(f"compute regs {R.hi}, helper regs {H.hi}, loader regs {Lr.hi}, nops {A.nops}, instrs {sum(1 for i in A.ins if i.ws)}", file=sys.stderr)
    return "\n".join(hdr) + "\n" + A.text()

if __name__ == "__main__":
    out = sys.argv[1] if len(sys.argv) > 1 else "k.s"
    kw = {}
    for a in sys.argv[2:]:
        k, val = a.split("=")
        kw[k] = val.replace("_", " ") if k in STRK else int(val)
    open(out, "w").write(gen(**kw))
```

```python
import sys, struct
from asmlib import Asm
NAME = "adaLN_cond__sliding_block_cached__dense_activation_silu__decode"

EPOCH = 0
MODP = 0x1000
QPA  = 0x20000
QPB  = 0x60000
OPA  = 0xA0000
OPB  = 0xE0000
STA  = 0x120000
STB  = 0x122000
YX   = 0x2100
YA   = 0x124000
YB   = 0x138000
MF   = 0x14C000
OF   = 0x14D000
CF   = 0x14E000
YF   = 0x14F000
AP   = 0x150000
MP   = 0x170000
WS_USED = 0x1B0000
DBG  = 0x200000
QB = QPB - QPA; OB = OPB - OPA; SB = STB - STA; YBO = YB - YA

LK = 0; LV = 65536; S0 = 131072; S1 = 147456
SM = LV + 49152
SR = LV + 32768
FL = S0
F_M, F_W, F_K, F_QP, F_KR, F_MC, F_V, F_Q, F_P = 0, 4, 8, 12, 16, 32, 40, 48, 192
F_T1, F_T2, F_CR, F_R, F_RC = 36, 44, 208, 224, 228
ML = S0 + 64
HS = S0 + 512; QL = S0 + 1024; PAR = S0 + 2304; TAGL = S0 + 3328; PX = S0 + 3584; RED = S0 + 5632
RS = 272

LOG2E = 1.4426950408889634
def f2u(x): return struct.unpack("<I", struct.pack("<f", x))[0]
SC = f2u(128 ** -0.5 * LOG2E)
STRK = ("ntw", "ntk", "nts", "osf")

class Regs:
    def __init__(self, start=1):
        self.n = start; self.hi = start
    def a(self, cnt=1, al=None):
        al = al or (1 if cnt == 1 else 2)
        self.n = (self.n + al - 1) // al * al
        r = self.n; self.n += cnt; self.hi = max(self.hi, self.n)
        return r
def v(r, n=1): return f"v{r}" if n == 1 else f"v[{r}:{r+n-1}]"
def s(r, n=1): return f"s{r}" if n == 1 else f"s[{r}:{r+n-1}]"

def gen(WA=20, WB=20, WC=22, VA=32, VB=24, VC=28, TI=16, NI=48, NC=48, RP=0, QT=0, OT=1, TLB=0, BO=1, BT=9, EW=0, EM=0, SH=1, DM=0, DA=0, DF=0, MFE=0, ST=1, GR=0, GF=0, GT=1, WBL=0, OPT=0, osf='', nts='', W1F=1, TMA=40, TME=16, KF=4, T2=20, TM=12, TM1=16, T3=32, QD=0, D2=8, PS=0, PN=0, PB=16, GK=7, TH=99, RA=1, RX=2, DG=52, DQ=64, DP=20, QORD=0, MFG=1,
        dbg=False, FINE=0, NA=8, NT=100000, CODE_PF=1, ntw="nt", ntk="nt", DUR=0, FREM=0):
    A = Asm()
    hdr = []
    hdr.append("; @launch grid=(256,1,1) block=(384,1,1) lds=163840")
    A('.amdgcn_target "amdgcn-amd-amdhsa--gfx950"')
    A(".text"); A(f".globl {NAME}_kernel"); A(".p2align 8"); A(f".type {NAME}_kernel,@function"); A(f"{NAME}_kernel:")
    sWV, sX8, sR = 3, 36, 37
    sKO, sT0, sT1, sT2, sT3 = 38, 39, 40, 41, 42
    sTAG, sCNT, sB, sS, sW = 43, 44, 45, 46, 47
    sM0, sM1, sM2 = 48, 50, 52
    sAB = 54; sJ = 55; sT4 = 56; sT5 = 57; sT6 = 58; sT7 = 59
    sST = 60
    sREM, sLO, sHI, sTQ = 94, 95, 93, 92
    if DUR: pass
    srdWS, srdX = 16, 28
    vL, vG, vN = 1, 2, 3
    WSN = WS_USED if not dbg else 0x400000
    out_of_line = []
    def stamp(idx):
        if dbg and not FINE: A(f"s_memrealtime {s(64+2*idx,2)}")
    def fine(sec, idx):
        if dbg and FINE == sec: A(f"s_memtime {s(64+2*idx,2)}")
    def stamp_flush():
        if dbg:
            A("s_waitcnt lgkmcnt(0)")
            A("s_mov_b64 exec, -1")
            A(f"v_writelane_b32 v255, s{sST+2}, 0")
            for i in range(1, 14): A(f"v_writelane_b32 v255, s{64+2*i}, {i}")
            A(f"s_memrealtime {s(sST,2)}" if not FINE else f"s_memtime {s(sST,2)}"); A("s_waitcnt lgkmcnt(0)"); A(f"v_writelane_b32 v255, s{sST}, 14")
            A(f"s_mul_i32 s{sST}, s2, 6"); A(f"s_add_u32 s{sST}, s{sST}, s{sWV}"); A(f"s_lshl_b32 s{sST}, s{sST}, 7"); A(f"s_add_u32 s{sST}, s{sST}, {DBG}")
            A("v_and_b32 v254, 63, v0"); A("v_lshlrev_b32 v254, 2, v254")
            A("s_mov_b64 exec, 0xffff")
            A(f"buffer_store_dword v255, v254, {s(srdWS,4)}, s{sST} offen")
    def lg(n): return 0 if dbg else min(n, 15)
    def setexec(m):
        lo, hi = m & 0xffffffff, m >> 32
        if m == (1 << 64) - 1: A("s_mov_b64 exec, -1")
        elif hi == 0 and lo < 0x80000000: A(f"s_mov_b64 exec, {hex(lo)}")
        else: A(f"s_mov_b32 exec_lo, {hex(lo)}"); A(f"s_mov_b32 exec_hi, {hex(hi)}")
    def srd_tail(r, nbytes):
        A(f"s_mov_b32 s{r+2}, {nbytes}"); A(f"s_mov_b32 s{r+3}, 0x20000")
    def backoff(n):
        while n > 0: A(f"s_sleep {min(n, 100)}"); n -= 100
    lab = [0]
    def spin(va, off, vt, n=1, sleep=0):
        lab[0] += 1; L = f"L_spin{lab[0]}"
        A(f"{L}:")
        if n == 1: A(f"ds_read_b32 v{vt}, v{va} offset:{off}")
        else: A(f"ds_read_b128 {v(vt,4)}, v{va} offset:{off}")
        A("s_waitcnt lgkmcnt(0)")
        if n == 4:
            A(f"v_min3_u32 v{vt+4}, v{vt}, v{vt+1}, v{vt+2}"); A(f"v_min_u32 v{vt+4}, v{vt+4}, v{vt+3}")
        A(f"v_cmp_eq_u32 vcc, 0, v{vt + (4 if n == 4 else 0)}")
        if sleep:
            A(f"s_cbranch_vccz {L}_ok"); A(f"s_sleep {sleep}"); A(f"s_branch {L}"); A(f"{L}_ok:")
        else:
            A(f"s_cbranch_vccnz {L}")
    def smul_add(dst, terms, const=0, tmp=sT7):
        first = True
        for (r, op, k) in terms:
            d = dst if first else tmp
            A(f"s_lshl_b32 s{d}, s{r}, {k}" if op == "shl" else f"s_mul_i32 s{d}, s{r}, {k}")
            if not first: A(f"s_add_u32 s{dst}, s{dst}, s{tmp}")
            first = False
        if const: A(f"s_add_u32 s{dst}, s{dst}, {const}")
    def tagcheck(rs, acc, tag=sTAG):
        A(f"v_xor_b32 v{acc}, s{tag}, v{rs[0]}")
        for r in rs[1:]: A(f"v_bitop3_b32 v{acc}, v{r}, s{tag}, v{acc} bitop3:0xbe")
        A(f"v_cmp_ne_u32 vcc, 0, v{acc}")
    def sentcheck(rs, acc):
        if len(rs) == 1: A(f"v_cmp_eq_u32 vcc, -1, v{rs[0]}"); return
        if len(rs) == 2: A(f"v_max_u32 v{acc}, v{rs[0]}, v{rs[1]}"); i = 2
        else: A(f"v_max3_u32 v{acc}, v{rs[0]}, v{rs[1]}, v{rs[2]}"); i = 3
        while i < len(rs):
            if i + 1 < len(rs): A(f"v_max3_u32 v{acc}, v{acc}, v{rs[i]}, v{rs[i+1]}"); i += 2
            else: A(f"v_max_u32 v{acc}, v{acc}, v{rs[i]}"); i += 1
        A(f"v_cmp_eq_u32 vcc, -1, v{acc}")
    def poll(lbl, loads, check, first_wait=0):
        A(f"s_waitcnt vmcnt({first_wait})")
        check()
        A(f"s_cbranch_vccnz {lbl}_re")
        A(f"{lbl}_ok:")
        def blk():
            A(f"{lbl}_re:")
            A(f"s_mov_b32 s{sCNT}, 0")
            A(f"{lbl}_re2:")
            loads()
            A(f"s_add_u32 s{sCNT}, s{sCNT}, 1"); A(f"s_cmp_gt_u32 s{sCNT}, {NT}")
            A("s_waitcnt vmcnt(0)")
            A(f"s_cbranch_scc1 {lbl}_ok")
            check()
            A(f"s_cbranch_vccnz {lbl}_re2")
            A(f"s_branch {lbl}_ok")
        out_of_line.append(blk)
    def ipoll(lbl, loads, body, gap=0):
        A(f"s_mov_b32 s{sCNT}, 0")
        A(f"s_branch {lbl}_m")
        A(f"{lbl}_re:")
        A(f"s_add_u32 s{sCNT}, s{sCNT}, 1"); A(f"s_cmp_gt_u32 s{sCNT}, {NT}"); A(f"s_cbranch_scc1 {lbl}_ok")
        backoff(gap)
        loads()
        A(f"{lbl}_m:")
        body()
        A(f"s_cbranch_vccnz {lbl}_re")
        A(f"{lbl}_ok:")
    def gather_sum(dst, srcs, acc):
        n = len(srcs)
        for i, q in enumerate(srcs):
            A(f"s_waitcnt vmcnt({n-1-i})")
            A(f"v_xor_b32 v{acc}, s{sTAG}, v{q+3}" if i == 0 else f"v_bitop3_b32 v{acc}, v{q+3}, s{sTAG}, v{acc} bitop3:0xbe")
            if i == n - 1: A(f"v_cmp_ne_u32 vcc, 0, v{acc}")
            for c in (0, 2, 1, 3):
                A(f"v_dot2_f32_bf16 v{dst+c}, v{q + (c & 2)}, s{sHI if c & 1 else sLO}, {'0' if i == 0 else 'v%d' % (dst+c)}")
    def flagwait(lbl, va, so, vt, mask):
        A(f"s_mov_b32 s{sCNT}, 0"); setexec(mask)
        A(f"{lbl}:")
        A(f"buffer_load_dword v{vt}, v{va}, {s(srdWS,4)}, s{so} offen sc1")
        A(f"s_add_u32 s{sCNT}, s{sCNT}, 1"); A(f"s_cmp_gt_u32 s{sCNT}, {NT}")
        A("s_waitcnt vmcnt(0)")
        A(f"s_cbranch_scc1 {lbl}_x")
        A(f"v_cmp_ne_u32 vcc, s{sTAG}, v{vt}")
        A(f"s_cbranch_vccnz {lbl}")
        A(f"{lbl}_x:")
        A("s_mov_b64 exec, -1")
    def flagset(vt, so):
        A("s_waitcnt vmcnt(0)")
        A("s_mov_b64 exec, 1")
        A(f"v_mov_b32 v{vt}, 0"); A(f"v_mov_b32 v{vt+1}, s{sTAG}")
        A(f"buffer_store_dword v{vt+1}, v{vt}, {s(srdWS,4)}, s{so} offen sc1")
        A("s_mov_b64 exec, -1")
    def sum_pairs(dst, srcs):
        for i, q in enumerate(srcs):
            for c in range(4):
                A(f"v_dot2_f32_bf16 v{dst+c}, v{q + (c & 2)}, s{sHI if c & 1 else sLO}, {'0' if i == 0 else 'v%d' % (dst+c)}")
    def dot_consts():
        A(f"s_mov_b32 s{sLO}, 0x3f80"); A(f"s_mov_b32 s{sHI}, 0x3f800000")

    srdWM, srdWQ, srdK, srdV, srdW, srdW2, srdF = 8, 12, 20, 24, 4, 28, 4
    if dbg or DUR: A(f"s_memrealtime {s(sST+2,2)}")
    A(f"s_load_dwordx2 {s(srdK,2)}, s[0:1], 8")
    A(f"s_load_dwordx2 {s(srdWM,2)}, s[0:1], 72")
    A("s_cmp_ge_u32 s2, 256"); A("s_cbranch_scc1 L_end")
    A("v_lshrrev_b32 v1, 6, v0")
    A(f"s_and_b32 s{sX8}, s2, 7"); A(f"s_lshr_b32 s{sR}, s2, 3")
    A(f"v_readfirstlane_b32 s{sWV}, v1")
    A("v_and_b32 v1, 63, v0")
    A("v_lshrrev_b32 v2, 4, v1"); A("v_and_b32 v3, 15, v1")
    A(f"s_lshr_b32 s{sB}, s{sR}, 4"); A(f"s_and_b32 s{sS}, s{sR}, 15")
    sRHO = 35; P = dict(cl=34, rp=33)
    A(f"s_cmp_lg_u32 s{sWV}, 0"); A("s_cbranch_scc1 L_notloader")
    def prod_decode():
        A(f"s_bfe_u32 s{P['cl']}, s2, 0x40002"); A(f"s_and_b32 s{P['rp']}, s2, 3")

    Lr = Regs(4)
    lWM = Lr.a(4); lWQ = Lr.a(4); lK = Lr.a(4); lV = Lr.a(2); lW = Lr.a(4); lW1 = Lr.a(4); lT0 = Lr.a(); lT1 = Lr.a(); lF = Lr.a(); lOne = Lr.a(); lS = Lr.a(6, 4); lA = Lr.a(4)
    sRO = 32
    prod_decode()
    A(f"v_xor_b32 v{lT0}, v{vG}, v{vN}"); A(f"v_lshlrev_b32 v{lT0}, 4, v{lT0}"); A(f"v_lshl_or_b32 v{lK}, v{vG}, 8, v{lT0}")
    for j in range(1, 4): A(f"v_xor_b32 v{lK+j}, {64*j}, v{lK}")
    A(f"v_and_b32 v{lT0}, 7, v{vL}"); A(f"v_lshlrev_b32 v{lT1}, 1, v{vG}"); A(f"v_xor_b32 v{lT0}, v{lT0}, v{lT1}"); A(f"v_lshlrev_b32 v{lT0}, 4, v{lT0}")
    A(f"v_lshrrev_b32 v{lT1}, 3, v{vL}")
    A(f"v_mad_u32_u24 v{lWM}, v{lT1}, s{sT4}, v{lT0}") if False else None
    A(f"v_mul_u32_u24 v{lWM}, 6144, v{lT1}"); A(f"v_add_u32 v{lWM}, v{lWM}, v{lT0}")
    for j in range(1, 4): A(f"v_add_u32 v{lWM+j}, {j*(8*6144-1024)}, v{lWM}")
    smul_add(sT0, [(P['rp'], "mul", 128*6144), (P['cl'], "shl", 7)])
    smul_add(sKO, [(sB, "shl", 26), (sX8, "shl", 23), (sS, "shl", 16)], 28672*256)
    smul_add(sT2, [(sR, "mul", RA), (sX8, "mul", RX)]); A(f"s_and_b32 s{sT2}, s{sT2}, 15"); A(f"s_lshl_b32 s{sT2}, s{sT2}, 12")
    srd_tail(srdWM, 512*6144); srd_tail(srdK, 65536)
    A(f"s_cmp_ge_u32 s{sR}, 24")
    A("s_cselect_b64 vcc, -1, 0")
    A(f"s_cselect_b32 s{sT1}, s{sT0}, s{sT2}"); A(f"s_cselect_b32 m0, {SM}, 0")
    A(f"s_mov_b32 s{sT5}, {65536*ST}")
    A(f"s_cselect_b32 s{sT5}, {32*6144}, s{sT5}"); A(f"s_cselect_b32 s{sT6}, -1, 0xffff"); A(f"s_cselect_b32 s{srdF+2}, s{srdWM+2}, s{srdK+2}")
    A(f"s_cselect_b32 s{sT3}, 0, 4"); A(f"s_lshr_b32 s{sT5}, s{sT5}, s{sT3}")
    for j in range(4): A(f"v_cndmask_b32 v{lA+j}, v{lK+j}, v{lWM+j}, vcc")
    A(f"s_mov_b32 s{srdF+3}, 0x20000")
    A("s_waitcnt lgkmcnt(0)")
    A(f"s_add_u32 s{srdK}, s{srdK}, s{sKO}"); A(f"s_addc_u32 s{srdK+1}, s{srdK+1}, 0")
    A(f"s_cmp_ge_u32 s{sR}, 24")
    A(f"s_cselect_b64 {s(srdF,2)}, {s(srdWM,2)}, {s(srdK,2)}")
    assert KF >= 4 and TI >= 16
    for gi in range(4):
        for j in range(4): A(f"buffer_load_dwordx4 v{lA+j}, {s(srdF,4)}, s{sT1} offen offset:{j*1024} nt lds")
        if gi == 0: stamp(2)
        A(f"s_add_u32 s{sT1}, s{sT1}, s{sT5}"); A(f"s_and_b32 s{sT1}, s{sT1}, s{sT6}")
        if gi < 3: A("s_add_u32 m0, m0, 4096")
    A("s_setprio 3")
    A(f"s_load_dwordx2 {s(srdWQ,2)}, s[0:1], 24")
    A(f"s_load_dwordx2 {s(srdV,2)}, s[0:1], 16")
    A(f"v_lshlrev_b32 v{lF}, 4, v{vL}"); A(f"v_add_u32 v{lF}, {FL}, v{lF}")
    A(f"v_subrev_u32 v{lOne}, 4, v{vL}"); A(f"v_cmp_gt_u32 vcc, 8, v{lOne}"); A(f"v_cndmask_b32 v{lS}, 0, -1, vcc")
    for i in range(1, 4): A(f"v_mov_b32 v{lS+i}, v{lS}")
    A("s_mov_b64 exec, 0xffff")
    A(f"ds_write_b128 v{lF}, {v(lS,4)}")
    A("s_mov_b64 exec, -1")
    A(f"v_lshl_or_b32 v{lWQ}, v{lT1}, 13, v{lT0}")
    A(f"s_lshr_b32 s{sRHO}, s{sR}, 3")
    A(f"s_cmp_ge_u32 s{sR}, 24"); A(f"s_cselect_b32 s{sT2}, s{sT2}, s{sT1}")
    A("s_waitcnt lgkmcnt(0)")
    A("s_barrier")
    def group(srd, vr, so, wait, nt=ntk):
        for j in range(4):
            if wait is not None: A(f"s_waitcnt vmcnt({wait})")
            A(f"buffer_load_dwordx4 v{vr[j]}, {s(srd,4)}, s{so} offen offset:{j*1024} {nt} lds")
    def flag(off, cnt):
        A(f"s_waitcnt vmcnt({cnt})"); A(f"ds_write_b32 v{lF}, v{lOne} offset:{off}")
    kr = [lK+j for j in range(4)]
    def late_setup():
        for j in range(1, 4): A(f"v_add_u32 v{lWQ+j}, {j*(8*8192-1024)}, v{lWQ}")
        srd_tail(srdWQ, 512*8192)
        A(f"s_and_b32 s{sT3}, s{sR}, 7")
        smul_add(sT1, [(sRHO, "shl", 20), (sX8, "shl", 10), (sT3, "shl", 7)])
        A(f"v_mov_b32 v{lF}, {FL}"); A(f"v_mov_b32 v{lOne}, 1")
        A(f"s_lshr_b32 s{sT3}, s2, 2"); A(f"s_add_u32 s{sT3}, s{sT3}, {-16 if RP else 16}")
        smul_add(sRO, [(P['rp'], "mul", 128*6144), (sT3, "shl", 7)])
    def kbase():
        A(f"s_add_u32 s{srdK}, s{srdK}, s{sKO}"); A(f"s_addc_u32 s{srdK+1}, s{srdK+1}, 0")
    def pace(extra=0):
        if PS: A(f"s_sleep {PS}")
        n = PN + (extra if PS or PN else 0)
        while n >= 4: k = min(n // 4, 16); A(f"s_nop {k-1}"); n -= 4*k
    vr = [lV, lV+1, lV, lV+1]
    def kvloop(name, srd, vr, end, TT):
        A(f"{name}:")
        group(srd, vr, sT2, TT-1)
        A(f"s_add_u32 s{sT2}, s{sT2}, {4096*ST}"); A(f"s_and_b32 s{sT2}, s{sT2}, 0xffff")
        A("s_add_u32 m0, m0, 4096"); A(f"s_cmp_lt_u32 m0, {end}"); A(f"s_cbranch_scc1 {name}")
    def setup2():
        A(f"s_cmp_lt_u32 s{sR}, 16"); A(f"s_cselect_b32 s{sT4}, 32, 48")
        A(f"s_load_dwordx2 {s(srdW,2)}, s[0:1], s{sT4}")
        A(f"s_load_dwordx2 {s(srdW2,2)}, s[0:1], 56")
        if dbg: A(f"s_load_dwordx2 {s(srdWS,2)}, s[0:1], 96"); srd_tail(srdWS, WSN)
        A(f"s_add_u32 s{srdV}, s{srdV}, s{sKO}"); A(f"s_addc_u32 s{srdV+1}, s{srdV+1}, 0"); srd_tail(srdV, 65536)
        A(f"v_lshlrev_b32 v{lT0}, 1, v{vG}"); A(f"v_xor_b32 v{lT0}, v{lT0}, v{vN}"); A(f"v_lshlrev_b32 v{lT0}, 4, v{lT0}")
        A(f"v_lshl_or_b32 v{lV}, v{vG}, 8, v{lT0}"); A(f"v_xor_b32 v{lV+1}, 128, v{lV}")
        A(f"v_lshl_or_b32 v{lW}, v{vG}, 10, v{lT0}"); A(f"v_xor_b32 v{lT0}, 128, v{lW}")
        A(f"v_add_u32 v{lW+1}, 3072, v{lT0}"); A(f"v_add_u32 v{lW+2}, 6144, v{lW}"); A(f"v_add_u32 v{lW+3}, 9216, v{lT0}")
    wr = [lW+j for j in range(4)]
    def wo_setup():
        spin(lF, F_KR, lS, 4)
        srd_tail(srdW, 4096*1024)
        A(f"s_lshr_b32 s{sT1}, s{sR}, 2"); A(f"s_and_b32 s{sT3}, s{sR}, 3")
        smul_add(sT0, [(sX8, "shl", 19), (sT1, "shl", 17), (sT3, "shl", 8)])
        A("s_mov_b32 m0, 0")
    def wog(i):
        def f(w):
            group(srdW, wr, sT0, w, ntw)
            if i < 7: A(f"s_add_u32 s{sT0}, s{sT0}, 16384"); A("s_add_u32 m0, m0, 4096")
        return f
    def mlp_setup():
        A(f"v_and_b32 v{lT0}, 1, v{vG}"); A(f"v_lshlrev_b32 v{lT0}, 1, v{lT0}"); A(f"v_and_b32 v{lT1}, 3, v{vL}"); A(f"v_xor_b32 v{lT0}, v{lT0}, v{lT1}"); A(f"v_lshlrev_b32 v{lT0}, 4, v{lT0}")
        A(f"v_lshrrev_b32 v{lT1}, 2, v{vL}"); A(f"v_mul_u32_u24 v{lT1}, 3584, v{lT1}"); A(f"v_add_u32 v{lW1}, v{lT0}, v{lT1}")
        for j in range(1, 4): A(f"v_add_u32 v{lW1+j}, {j*(16*3584-1024)}, v{lW1}")
        srd_tail(srdW, 512*3584); srd_tail(srdW2, 1792*1024)
        spin(lF, F_KR, lS, 4)
        A(f"s_mul_i32 s{sJ}, s{sX8}, 7"); A(f"s_add_u32 s{sJ}, s{sJ}, s{sR}"); A(f"s_sub_u32 s{sJ}, s{sJ}, 16")
        A(f"s_lshl_b32 s{sT0}, s{sJ}, 6"); A(f"s_lshl_b32 s{sT1}, s{sJ}, 15")
        A("s_mov_b32 m0, 0")
    def w1g(i, nt=ntw):
        def f(w):
            group(srdW, [lW1+j for j in range(4)], sT0, w, nt)
            A(f"s_add_u32 s{sT0}, s{sT0}, {64*3584}"); A("s_add_u32 m0, m0, 4096")
        return f
    def w2g(i, nt=ntw):
        def f(w):
            group(srdW2, wr, sT1, w, nt)
            if i < 7:
                A(f"s_add_u32 s{sT1}, s{sT1}, 16384" if i % 2 == 0 else f"s_sub_u32 s{sT1}, s{sT1}, {16384-256}"); A("s_add_u32 m0, m0, 4096")
        return f
    def stream(sfx, seq, W, WV, NI=NI):
        seq = list(seq); n = 16; pend = [(16, F_M)] if seq[0] == "m" else []; kidx = 0 if pend else 4; cnt = {"m": 0, "q": 0, "r": 0}
        i = 4
        while i < len(seq) or pend:
            TT = TI if n < NI else W
            while pend and n - pend[0][0] >= TT - 1:
                flag(pend[0][1], n - pend[0][0])
                if pend[0][1] == F_M: stamp(7)
                pend.pop(0)
            if n == NI and pend and n - pend[0][0] >= TI:
                flag(pend[0][1], n - pend[0][0])
                if pend[0][1] == F_M: stamp(7)
                pend.pop(0)
            if i >= len(seq) and not pend: break
            kind = seq[i] if i < len(seq) else "k"
            w = TT - 1 if n + 3 >= TT else None
            if kind == "k":
                A(f"s_mov_b32 m0, {kidx*4096}")
                group(srdK, kr, sT2, w)
                A(f"s_add_u32 s{sT2}, s{sT2}, {4096*ST}"); A(f"s_and_b32 s{sT2}, s{sT2}, 0xffff"); kidx += 1
            else:
                srd, vq, so, base, st, fo = {"m": (srdWM, lWM, sT0, SM, 6144, F_M), "q": (srdWQ, lWQ, sT1, S1, 8192, F_W), "r": (srdWM, lWM, sRO, SR, 6144, F_R)}[kind]
                A(f"s_mov_b32 m0, {base + 4096*cnt[kind]}")
                group(srd, [vq+j for j in range(4)], so, w, ntw)
                cnt[kind] += 1
                if cnt[kind] < 4: A(f"s_add_u32 s{so}, s{so}, {32*st}")
                else: pend.append((n + 4, fo))
            n += 4; i += 1
        A(f"s_mov_b32 m0, {kidx*4096}")
        assert kidx < 16
        stamp(1)
        kvloop("L_k3" + sfx, srdK, kr, LV, W)
        stamp(3)
        gv = min((W + 3) // 4, GK)
        assert WV >= W
        late_r = RP == 2 and sfx != "a"
        if late_r:
            if "m" in seq: spin(lF, F_MC, lS)
            for gi in range(4):
                A(f"s_mov_b32 m0, {SM + 4096*gi}")
                group(srdWM, [lWM+j for j in range(4)], sRO, W-1, ntw)
                if gi < 3: A(f"s_add_u32 s{sRO}, s{sRO}, {32*6144}")
            A(f"s_mov_b32 m0, {LV}")
            gk = max(gv - 4, 1)
            kvloop("L_v0" + sfx, srdV, vr, LV + gk*4096, W)
            flag(F_K, min(W-1, 16 + 4*gk))
            if gv > gk: kvloop("L_v1" + sfx, srdV, vr, LV + gv*4096, W)
            flag(F_R, min(W-1, 4*gv))
        else:
            kvloop("L_v1" + sfx, srdV, vr, LV + gv*4096, W)
            flag(F_K, min(W-1, 4*gv))
        stamp(4)
        assert gv < 8
        kvloop("L_v2" + sfx, srdV, vr, SR, WV)
        if late_r:
            kvloop("L_v6" + sfx, srdV, vr, SM, WV)
            spin(lF, F_RC, lS)
        else:
            if "r" in seq: spin(lF, F_RC, lS)
            if "m" in seq: spin(lF, F_MC, lS)
        if EW and sfx == "a":
            if EW > 8: kvloop("L_v4" + sfx, srdV, vr, LV + EW*4096, WV)
            wo_setup()
            for i in range(8): wog(i)(WV - 1)
            A(f"s_mov_b32 m0, {LV + EW*4096}")
        if EM and sfx == "b":
            if EM > 8: kvloop("L_v4" + sfx, srdV, vr, LV + EM*4096, WV)
            A(f"s_cmp_eq_u32 s{sR}, 23"); A("s_cbranch_scc1 L_v5b")
            mlp_setup()
            for i in range(8): w1g(i)(TME - 1)
            A(f"s_mov_b32 m0, {LV + EM*4096}")
            A("L_v5b:")
        kvloop("L_v3" + sfx, srdV, vr, S0, WV)
        stamp(5)
    late_setup(); setup2()
    A(f"s_cmp_ge_u32 s{sR}, 24"); A("s_cbranch_scc1 L_l_crit")
    A(f"s_cmp_lt_u32 s{sR}, 16"); A("s_cbranch_scc1 L_l_light")
    stream("b", "k"*KF + "qqqq" + "rrrr"*(RP == 1), WB, VB)
    A(f"s_sub_u32 s{sT0}, s{sR}, 16"); A(f"s_cmp_lt_u32 s{sT0}, 7"); A("s_cbranch_scc1 L_l_mlp")
    A("s_branch L_l_plain")
    A("L_l_light:")
    stream("a", "k"*KF + "qqqq" + "rrrr"*(RP == 0), WA, VA)
    A("s_branch L_l_t1")
    A("L_l_crit:")
    stream("c", "mmmm" + "k"*KF + "qqqq" + "rrrr"*(RP == 1), WC, VC, NC)
    if SH:
        A(f"s_cmp_eq_u32 s{sR}, 31"); A("s_cbranch_scc1 L_l_plain")
        A(f"s_sub_u32 s{sR}, s{sR}, 8")
        mlp_setup()
        A(f"s_add_u32 s{sT0}, s{sT0}, {(8-SH+1)*64*3584}")
        flag(F_V, 8)
        A("s_waitcnt vmcnt(0)"); A("s_barrier")
        A("s_barrier")
        backoff(DM)
        for i in range(SH - 1): w1g(i, nts)(TM1 - 1)
        for i in range(8): w2g(i, nts)(TMA - 1)
        A("s_branch L_l_end")
    A("L_l_plain:")
    flag(F_V, 8)
    A("s_waitcnt vmcnt(0)"); A("s_barrier")
    if WBL:
        A(f"s_cmp_eq_u32 s{sR}, 31"); A("s_cbranch_scc0 L_l_end")
        backoff(WBL)
        A("buffer_wbl2 sc1"); A("s_waitcnt vmcnt(0)")
    A("L_l_end:")
    stamp_flush()
    A("s_endpgm")
    def post_v(name, groups, TT, marks):
        n = 0; gi = 0
        def rd(): A(f"ds_read_b128 {v(lS,4)}, v{lF} offset:{F_CR}")
        def ck():
            A("s_waitcnt lgkmcnt(0)")
            A(f"v_min3_u32 v{lS+4}, v{lS}, v{lS+1}, v{lS+2}"); A(f"v_min_u32 v{lS+4}, v{lS+4}, v{lS+3}"); A(f"v_cmp_eq_u32 vcc, 0, v{lS+4}")
        while gi < len(groups) and n - TT < -8: groups[gi](TT - 1); n += 4; gi += 1
        flag(F_V, n + 8)
        rd(); ck()
        while gi < len(groups) and n - TT < 0: groups[gi](TT - 1); n += 4; gi += 1
        g0 = gi
        A(f"s_cbranch_vccnz {name}_late")
        A(f"s_waitcnt vmcnt({n})")
        for g in range(g0, len(groups)):
            if g > g0: A(f"s_branch {name}_c{g}"); A(f"{name}_b{g}:")
            A("s_barrier")
            A(f"{name}_c{g}:")
            groups[g](T3 - 1)
        A(f"s_branch {name}_e")
        A(f"{name}_late:")
        A(f"s_waitcnt vmcnt({n})")
        for g in range(g0, len(groups)):
            if g > g0: ck(); A(f"s_cbranch_vccz {name}_b{g}")
            rd()
            groups[g](T3 - 1)
        A("s_barrier")
        A(f"{name}_e:")
        if marks: A("s_waitcnt vmcnt(0)"); A("s_barrier")
    A("L_l_t1:")
    if EW: A("s_branch L_l_plain")
    wo_setup()
    if BT:
        for i in range(BT - 1): wog(i)(VA - 1)
        flag(F_V, 8 + 4*(BT-1))
        A(f"s_waitcnt vmcnt({4*(BT-1)})"); A("s_barrier")
        A("s_barrier")
        for i in range(BT - 1, 8): wog(i)(63)
        A("s_waitcnt vmcnt(0)"); A("s_barrier")
    else:
        post_v("L_pw", [wog(i) for i in range(8)], T2, [32])
    A("s_branch L_l_end")
    A("L_l_mlp:")
    if not EM: mlp_setup()
    else: srd_tail(srdW2, 1792*1024)
    def w1s(i):
        def f(w): w1g(i)(min(w, TM1 - 1))
        return f
    def w2s(i):
        def f(w): w2g(i)(TMA - 1)
        return f
    if BO:
        flag(F_V, 8)
        A("s_waitcnt vmcnt(0)"); A("s_barrier")
        A("s_barrier")
        backoff(DM)
        if not EM:
            for i in range(8): w1s(i)(63)
        else: A("s_mov_b32 m0, 32768")
    else:
        post_v("L_pm", [w1s(i) for i in range(8)], TM, None)
    for i in range(8):
        if i == 4 and not EM: A("s_waitcnt vmcnt(16)"); A("s_barrier")
        w2s(i)(0)
    A("s_barrier")
    A("s_waitcnt vmcnt(0)"); A("s_barrier")
    A("s_branch L_l_end")

    A("L_notloader:")
    A(f"s_load_dwordx2 {s(srdWS,2)}, s[0:1], 96")
    A(f"s_load_dwordx2 {s(srdX,2)}, s[0:1], 0")
    A(f"s_cmp_lg_u32 s{sWV}, 1"); A("s_cbranch_scc1 L_compute")

    H = Regs(4)
    srdC, srdCode = 4, 24
    hT0 = H.a(); hT1 = H.a(); hT2 = H.a(); hT3 = H.a()
    hE = H.a(); hC = H.a(2); hX0 = H.a(4, 4); hX1 = H.a(4, 4); hXa = H.a(); hXb = H.a()
    hTR = H.a(4); hA = H.a(16, 4); hB = H.a(64, 4); hBq = H.a(64, 4); hD = H.a(16, 4); hF = H.a(4, 4)
    hM = H.a(4); hU = H.a(12, 4); hL16 = H.a(); hAcc = H.a(); hDum = H.a(); hFl = H.a(); hOne = H.a()
    xn = H.a(4); hHa = H.a(); hHr = H.a(); hQa = H.a(); hGa = H.a(); hGr = H.a()
    hG, hN = vG, vN
    A("s_setprio 2")
    A(f"s_load_dwordx2 {s(srdC,2)}, s[0:1], 64")
    A(f"s_lshr_b32 s{sRHO}, s{sR}, 3")
    prod_decode()
    def c_addr(t0, t1):
        A(f"v_and_b32 v{t0}, 1, v{vN}"); A(f"v_lshlrev_b32 v{t0}, 10, v{t0}")
        A(f"v_lshrrev_b32 v{t1}, 1, v{vN}"); A(f"v_lshl_or_b32 v{t0}, v{t1}, 5, v{t0}"); A(f"v_lshl_or_b32 v{t0}, v{vG}, 3, v{t0}")
    c_addr(hT0, hT1)
    A(f"v_lshlrev_b32 v{hL16}, 4, v{vL}"); A(f"v_mov_b32 v{hT2}, 0"); A(f"v_lshlrev_b32 v{hT3}, 2, v{vL}")
    srd_tail(srdWS, WSN); srd_tail(srdC, 2048); srd_tail(srdX, 2048)
    A(f"s_lshl_b32 s{sT0}, s{P['rp']}, 8"); A(f"s_lshl_b32 s{sT1}, s{sRHO}, 8")
    A("s_waitcnt lgkmcnt(0)")
    A(f"buffer_load_dword v{hE}, v{hT2}, {s(srdWS,4)}, 0 offen sc1")
    A(f"buffer_load_dwordx2 {v(hC,2)}, v{hT0}, {s(srdC,4)}, s{sT0} offen")
    A(f"buffer_load_dwordx4 {v(hX0,4)}, v{hL16}, {s(srdX,4)}, 0 offen")
    A(f"buffer_load_dwordx4 {v(hX1,4)}, v{hL16}, {s(srdX,4)}, 0 offen offset:1024")
    for i in range(4): A(f"v_mov_b32 v{hF+i}, -1")
    A(f"v_mov_b32 v{hFl}, {FL}"); A(f"v_mov_b32 v{hOne}, 1")
    smul_add(sT0, [(sX8, "shl", 15), (sR, "shl", 10)], OPA)
    hTch = hBq
    if OT: A(f"buffer_load_dwordx4 {v(hTch,4)}, v{hL16}, {s(srdWS,4)}, s{sT0} offen")
    A(f"buffer_store_dwordx4 {v(hF,4)}, v{hL16}, {s(srdWS,4)}, s{sT0} offen")
    sQA = 32
    A(f"v_and_b32 v{hT0}, 1, v{hG}"); A(f"v_lshlrev_b32 v{hT0}, 13, v{hT0}"); A(f"v_lshrrev_b32 v{hT1}, 1, v{hG}"); A(f"v_lshl_or_b32 v{hT0}, v{hT1}, 6, v{hT0}")
    A(f"v_and_b32 v{hT1}, 1, v{hN}"); A(f"v_lshl_or_b32 v{hT0}, v{hT1}, 7, v{hT0}"); A(f"v_cmp_eq_u32 {s(sM0,2)}, 1, v{hT1}")
    A(f"v_lshrrev_b32 v{hT1}, 1, v{hN}"); A(f"v_lshl_or_b32 v{hQa}, v{hT1}, 3, v{hT0}")
    A(f"s_and_b32 s{sT4}, s{sR}, 7")
    smul_add(sQA, [(sX8, "shl", 14), (sRHO, "shl", 11), (sT4, "shl", 8)], QPA)
    if QT:
        A(f"buffer_load_dwordx2 {v(hU+8,2)}, v{hQa}, {s(srdWS,4)}, s{sQA} offen")
    A(f"s_cmp_lg_u32 s{sS}, 0"); A("s_cbranch_scc1 L_h_c2")
    smul_add(sT0, [(sX8, "shl", 10), (sB, "shl", 9)], STA)
    setexec(0xffffffff)
    if OT: A(f"buffer_load_dwordx4 {v(hTch+4,4)}, v{hL16}, {s(srdWS,4)}, s{sT0} offen")
    A(f"buffer_store_dwordx4 {v(hF,4)}, v{hL16}, {s(srdWS,4)}, s{sT0} offen")
    A("s_mov_b64 exec, -1")
    A("L_h_c2:")
    A(f"s_cmp_ge_u32 s{sR}, 16"); A("s_cbranch_scc1 L_h_c3")
    smul_add(sT0, [(sX8, "mul", YX), (sR, "shl", 9)], YA)
    A(f"s_mul_i32 s{sT1}, s{sR}, {16-512}"); A(f"s_add_u32 s{sT1}, s{sT1}, 8192")
    A(f"v_mov_b32 v{hT0}, v{hL16}"); A(f"v_writelane_b32 v{hT0}, s{sT1}, 32")
    setexec(0x1ffffffff)
    if OT: A(f"buffer_load_dwordx4 {v(hTch+8,4)}, v{hT0}, {s(srdWS,4)}, s{sT0} offen")
    A(f"buffer_store_dwordx4 {v(hF,4)}, v{hT0}, {s(srdWS,4)}, s{sT0} offen")
    A("s_mov_b64 exec, -1")
    A("L_h_c3:")
    if CODE_PF:
        A(f"s_getpc_b64 {s(srdCode,2)}")
        A("L_pc:")
        A(f"s_sub_u32 s{srdCode}, s{srdCode}, L_pc-{NAME}_kernel"); A(f"s_subb_u32 s{srdCode+1}, s{srdCode+1}, 0")
        srd_tail(srdCode, f"L_code_end-{NAME}_kernel")
        A(f"v_lshlrev_b32 v{hT1}, 7, v{vL}"); A(f"s_mul_i32 s{sT0}, s{sR}, 768")
        A("s_mov_b64 exec, 0x3f")
        A(f"buffer_load_dword v{hDum}, v{hT1}, {s(srdCode,4)}, s{sT0} offen")
        A("s_mov_b64 exec, -1")
    NPF = 1 if CODE_PF else 0
    def tr128_base(dst4, t0, t1, lbase):
        A(f"v_lshrrev_b32 v{t0}, 2, v{vL}"); A(f"v_bfe_u32 v{t1}, v{vL}, 3, 2")
        A(f"v_lshlrev_b32 v{t1}, 5, v{t1}"); A(f"v_lshl_or_b32 v{t0}, v{t0}, 7, v{t1}")
        A(f"v_and_b32 v{t1}, 3, v{vL}"); A(f"v_lshl_or_b32 v{t0}, v{t1}, 3, v{t0}")
        A(f"v_add_u32 v{dst4}, {lbase}, v{t0}")
        for t in range(1, 4): A(f"v_xor_b32 v{dst4+t}, {32*t}, v{dst4}")
    def tr128_read(dst, base4, off):
        for sg in range(4):
            for t in range(4):
                for u in range(2):
                    A(f"ds_read_b64_tr_b16 {v(dst + (sg*4 + t)*4 + 2*u, 2)}, v{base4+t} offset:{off + (32*sg + 16*u)*128}")
    A("s_barrier")
    tr128_base(hTR, hT0, hT1, SM)
    A(f"s_getreg_b32 s{sTQ}, hwreg(HW_REG_XCC_ID, 0, 3)")
    dot_consts()
    stamp(1)
    A(f"s_waitcnt vmcnt({2+1+OT+QT+NPF})")
    A(f"v_readfirstlane_b32 s{sTAG}, v{hE}")
    A(f"s_add_u32 s{sTAG}, s{sTAG}, 0x9E3779B1")
    A(f"s_add_u32 s{sTQ}, s{sTQ}, s{sTAG}")
    def mod_block(rC, rU, rA, rB, rD, rTR, rT0, rT1, rFl, rOne, crit):
        A(f"v_lshlrev_b32 v{rU+0}, 16, v{rC}"); A(f"v_and_b32 v{rU+1}, 0xffff0000, v{rC}")
        A(f"v_lshlrev_b32 v{rU+2}, 16, v{rC+1}"); A(f"v_and_b32 v{rU+3}, 0xffff0000, v{rC+1}")
        for i in range(4): A(f"v_mul_f32 v{rU+4+i}, {hex(f2u(-LOG2E))}, v{rU+i}")
        for i in range(4): A(f"v_exp_f32 v{rU+4+i}, v{rU+4+i}")
        for i in range(4): A(f"v_add_f32 v{rU+4+i}, 1.0, v{rU+4+i}")
        for i in range(4): A(f"v_rcp_f32 v{rU+4+i}, v{rU+4+i}")
        for i in range(4): A(f"v_mul_f32 v{rU+i}, v{rU+i}, v{rU+4+i}")
        A(f"v_cvt_pk_bf16_f32 v{rA}, v{rU}, v{rU+1}"); A(f"v_cvt_pk_bf16_f32 v{rA+1}, v{rU+2}, v{rU+3}")
        for sg in range(4):
            for q in range(4):
                sh = 4*sg + 2*(q >> 1)
                if sh: A(f"v_mov_b32_dpp v{rA+4*sg+q}, v{rA+(q&1)} row_shl:{sh} row_mask:0xf bank_mask:0xf bound_ctrl:1")
        smul_add(sT0, [(P['cl'], "shl", 11), (P['rp'], "shl", 9)], MODP)
        A(f"v_lshlrev_b32 v{rT0}, 3, v{vL}")
        A(f"v_mov_b32 v{rU+1}, s{sTAG}")
        spin(rFl, F_M if crit else F_R, rT1, sleep=0 if crit else 2)
        if crit: stamp(2)
        tr128_read(rB, rTR, 0)
        A(f"ds_write_b32 v{rFl}, v{rOne} offset:{F_MC if crit else F_RC}")
        for sg in range(4):
            A(f"s_waitcnt lgkmcnt({lg(25-8*sg)})")
            for t in range(4):
                A(f"v_mfma_f32_16x16x32_bf16 {v(rD+4*t,4)}, {v(rA+4*sg,4)}, {v(rB+(sg*4+t)*4,4)}, {'0' if sg == 0 else v(rD+4*t,4)}")
        for t in range(4): A(f"v_cvt_pk_bf16_f32 v{rU+2*t}, v{rD+4*t}, v{rD+4*t+1}")
        A(f"v_permlane16_swap_b32 v{rU}, v{rU+2}"); A(f"v_permlane16_swap_b32 v{rU+4}, v{rU+6}")
        A(f"v_permlane32_swap_b32 v{rU}, v{rU+4}")
        A(f"buffer_store_dwordx2 {v(rU,2)}, v{rT0}, {s(srdWS,4)}, s{sT0} offen sc1")
        if crit: stamp(3)
    A(f"s_cmp_lt_u32 s{sR}, 24"); A("s_cbranch_scc1 L_h_m1")
    mod_block(hC, hU, hA, hB, hD, hTR, hT0, hT1, hFl, hOne, True)
    A("L_h_m1:")
    A(f"v_lshrrev_b32 v{hT0}, 5, v{vL}"); A(f"v_and_b32 v{hT1}, 31, v{vL}"); A(f"v_lshlrev_b32 v{hT1}, 4, v{hT1}"); A(f"v_lshl_or_b32 v{hGa}, v{hT0}, 11, v{hT1}")
    A(f"s_lshl_b32 s{sT0}, s{sRHO}, 12"); A(f"s_add_u32 s{sT0}, s{sT0}, {MODP}"); A(f"s_add_u32 s{sT1}, s{sT0}, {8*2048}")
    def modp_loads():
        for rp in range(4):
            A(f"buffer_load_dwordx4 {v(hB+4*rp,4)}, v{hGa}, {s(srdWS,4)}, s{sT0} offen offset:{rp*512} sc1")
            A(f"buffer_load_dwordx4 {v(hB+16+4*rp,4)}, v{hGa}, {s(srdWS,4)}, s{sT1} offen offset:{rp*512} sc1")
    A("s_waitcnt vmcnt(0)")
    spin(hFl, F_T1, hT1, sleep=1)
    stamp(10)
    modp_loads()
    def unpack(dst, src, n):
        for i in range(n):
            A(f"v_lshlrev_b32 v{dst+2*i}, 16, v{src+i}"); A(f"v_and_b32 v{dst+2*i+1}, 0xffff0000, v{src+i}")
    def allreduce64(regs, op, tmp):
        for pat in ("quad_perm:[1,0,3,2]", "quad_perm:[2,3,0,1]", "row_half_mirror", "row_mirror"):
            for r in regs: A(f"{op}_dpp v{r}, v{r}, v{r} {pat} row_mask:0xf bank_mask:0xf bound_ctrl:1")
        for sw in ("v_permlane16_swap_b32", "v_permlane32_swap_b32"):
            for i, r in enumerate(regs): A(f"v_mov_b32 v{tmp+i}, v{r}")
            for i, r in enumerate(regs): A(f"{sw} v{tmp+i}, v{r}")
            for i, r in enumerate(regs): A(f"{op} v{r}, v{r}, v{tmp+i}")
    xs = hB + 32
    A(f"s_lshl_b32 s{sT4}, s{sRHO}, 6"); A(f"v_and_b32 v{hT0}, 60, v{vL}"); A(f"v_add_u32 v{hT0}, s{sT4}, v{hT0}")
    for b, src in enumerate((hX0, hX1)):
        for i in range(4): A(f"ds_bpermute_b32 v{hD+4*b+i}, v{hT0}, v{src+i}")
    unpack(xs, hX0, 4); unpack(xs+8, hX1, 4)
    for b in range(2):
        A(f"v_add_f32 v{hM+b}, v{xs+8*b}, v{xs+8*b+1}")
        for i in range(2, 8): A(f"v_add_f32 v{hM+b}, v{hM+b}, v{xs+8*b+i}")
    allreduce64([hM, hM+1], "v_add_f32", hU)
    for b in range(2): A(f"v_mul_f32 v{hM+b}, {hex(f2u(1/512))}, v{hM+b}")
    for b in range(2):
        for i in range(8): A(f"v_sub_f32 v{xs+8*b+i}, v{xs+8*b+i}, v{hM+b}")
        A(f"v_mul_f32 v{hM+2+b}, v{xs+8*b}, v{xs+8*b}")
        for i in range(1, 8): A(f"v_fmac_f32 v{hM+2+b}, v{xs+8*b+i}, v{xs+8*b+i}")
    allreduce64([hM+2, hM+3], "v_add_f32", hU)
    for b in range(2): A(f"v_mov_b32 v{hU+b}, {hex(f2u(1e-5))}"); A(f"v_fmac_f32 v{hU+b}, {hex(f2u(1/512))}, v{hM+2+b}")
    for b in range(2): A(f"v_rsq_f32 v{hM+2+b}, v{hU+b}")
    A("s_waitcnt lgkmcnt(0)")
    A(f"v_and_b32 v{hT0}, 1, v{vL}"); A(f"v_cmp_eq_u32 vcc, 1, v{hT0}")
    for b in range(2):
        A(f"v_cndmask_b32 v{hD+4*b}, v{hD+4*b}, v{hD+4*b+1}, vcc"); A(f"v_cndmask_b32 v{hD+4*b+2}, v{hD+4*b+2}, v{hD+4*b+3}, vcc")
    A(f"v_and_b32 v{hT0}, 2, v{vL}"); A(f"v_cmp_eq_u32 vcc, 2, v{hT0}")
    A(f"v_cndmask_b32 v{hXa}, v{hD}, v{hD+2}, vcc"); A(f"v_cndmask_b32 v{hXb}, v{hD+4}, v{hD+6}, vcc")
    unpack(xn, hXa, 1); unpack(xn+2, hXb, 1)
    for b in range(2):
        for c in range(2):
            A(f"v_sub_f32 v{xn+2*b+c}, v{xn+2*b+c}, v{hM+b}"); A(f"v_mul_f32 v{xn+2*b+c}, v{xn+2*b+c}, v{hM+2+b}")
    spin(hFl, F_W, hT1)
    tr128_read(hBq, hTR, S1 - SM)
    def perm_pos(dst, src, t1, hi):
        A(f"v_bfe_u32 v{dst}, v{src}, 1, 2"); A(f"v_lshlrev_b32 v{dst}, {hi}, v{dst}")
        A(f"v_and_b32 v{t1}, 8, v{src}"); A(f"v_or_b32 v{dst}, v{dst}, v{t1}"); A(f"v_and_b32 v{t1}, 1, v{src}"); A(f"v_lshl_or_b32 v{dst}, v{t1}, 2, v{dst}")
    perm_pos(hT0, vL, hT1, 4); A(f"v_lshl_or_b32 v{hT0}, v{hG}, 6, v{hT0}"); A(f"v_add_u32 v{hHa}, {HS}, v{hT0}")
    A(f"v_bfe_u32 v{hT1}, v{vL}, 2, 1"); A(f"v_lshlrev_b32 v{hT1}, 8, v{hT1}"); A(f"v_lshl_or_b32 v{hT1}, v{hG}, 4, v{hT1}"); A(f"v_add_u32 v{hHr}, {HS}, v{hT1}")
    A(f"s_mov_b32 s{sT6}, s{sQA}"); A(f"s_add_u32 s{sT5}, s{sT6}, {QB}")
    A(f"v_lshlrev_b32 v{hT0}, 14, v{hG}"); A(f"v_lshl_or_b32 v{hGr}, v{hN}, 4, v{hT0}")
    A(f"s_lshr_b32 s{sT4}, s{sR}, 1"); A(f"s_and_b32 s{sT3}, s{sR}, 1")
    smul_add(sT2, [(sT4, "shl", 11), (sT3, "shl", 8)], MODP + 16*2048)
    A(f"v_mov_b32 v{hF+1}, s{sTQ}"); A(f"v_mov_b32 v{hF+3}, s{sTQ}")
    poll("L_h_p1", modp_loads, lambda: tagcheck([hB+4*i+k for i in range(8) for k in (1, 3)], hAcc))
    stamp(4)
    if dbg and not FINE: A(f"s_mov_b32 s80, s{sCNT}")
    sum_pairs(hU, [hB+4*i for i in range(4)]); sum_pairs(hU+4, [hB+16+4*i for i in range(4)])
    for c in range(2):
        for b in range(2):
            A(f"v_add_f32 v{hU+4+2*c+b}, 1.0, v{hU+4+2*c+b}")
            A(f"v_fmac_f32 v{hU+2*c+b}, v{xn+2*b+c}, v{hU+4+2*c+b}")
    A(f"v_cvt_pk_bf16_f32 v{hU+8}, v{hU}, v{hU+2}"); A(f"v_cvt_pk_bf16_f32 v{hU+9}, v{hU+1}, v{hU+3}")
    A(f"ds_write_b32 v{hHa}, v{hU+8}"); A(f"ds_write_b32 v{hHa}, v{hU+9} offset:256")
    for sg in range(4): A(f"ds_read_b128 {v(hA+4*sg,4)}, v{hHr} offset:{64*sg}")
    for sg in range(4):
        A(f"s_waitcnt lgkmcnt({lg(3-sg)})")
        for t in range(4):
            A(f"v_mfma_f32_16x16x32_bf16 {v(hD+4*t,4)}, {v(hA+4*sg,4)}, {v(hBq+(sg*4+t)*4,4)}, {'0' if sg == 0 else v(hD+4*t,4)}")
    A(f"v_mov_b32 v{hT1}, s{sTAG}"); A(f"ds_write_b32 v{hFl}, v{hT1} offset:{TAGL-FL}")
    A(f"v_mov_b32 v{hF}, v{hD}"); A(f"v_mov_b32 v{hF+2}, v{hD+8}")
    A(f"v_mov_b32_dpp v{hF}, v{hD+4} quad_perm:[0,1,2,3] row_mask:0xc bank_mask:0xf")
    A(f"v_mov_b32_dpp v{hF+2}, v{hD+12} quad_perm:[0,1,2,3] row_mask:0xc bank_mask:0xf")
    A(f"v_mov_b32_dpp v{hU}, v{hF} quad_perm:[1,0,3,2] row_mask:0xf bank_mask:0xf bound_ctrl:1")
    A(f"v_mov_b32_dpp v{hU+1}, v{hF+2} quad_perm:[1,0,3,2] row_mask:0xf bank_mask:0xf bound_ctrl:1")
    A(f"v_cvt_pk_bf16_f32 v{hF}, v{hF}, v{hU}"); A(f"v_cvt_pk_bf16_f32 v{hF+2}, v{hU+1}, v{hF+2}")
    A(f"v_cndmask_b32 v{hF}, v{hF}, v{hF+2}, {s(sM0,2)}")
    A(f"buffer_store_dwordx2 {v(hF,2)}, v{hQa}, {s(srdWS,4)}, s{sT6} offen")
    A(f"ds_write_b32 v{hFl}, v{hOne} offset:{F_QP}")
    A(f"buffer_store_dwordx2 {v(hF,2)}, v{hQa}, {s(srdWS,4)}, s{sT5} offen sc1")
    stamp(5)
    A(f"s_cmp_ge_u32 s{sR}, 16"); A("s_cbranch_scc1 " + ("L_h_rest" if RP == 2 else "L_h_end"))
    hPr = hA
    def par_loads():
        for rp in range(4):
            A(f"buffer_load_dwordx4 {v(hPr+4*rp,4)}, v{hGr}, {s(srdWS,4)}, s{sT2} offen offset:{rp*512} sc1")
    backoff(DP)
    par_loads()
    A(f"v_cmp_eq_u32 vcc, 2, v{hG}"); A(f"v_cndmask_b32 v{hT2}, 0, 1.0, vcc")
    A(f"v_lshlrev_b32 v{hT0}, 8, v{hG}"); A(f"v_lshl_or_b32 v{hT0}, v{hN}, 3, v{hT0}"); A(f"v_add_u32 v{hT3}, {PAR}, v{hT0}")
    perm_pos(hT0, hN, hT1, 6); A(f"v_and_b32 v{hT1}, 1, v{hG}"); A(f"v_lshl_or_b32 v{hT0}, v{hT1}, 4, v{hT0}")
    smul_add(sT0, [(sX8, "mul", YX), (sR, "shl", 9)], YA)
    poll("L_h_p2", par_loads, lambda: tagcheck([hPr+4*i+k for i in range(4) for k in (1, 3)], hAcc))
    stamp(6)
    if dbg and not FINE: A(f"s_mov_b32 s82, s{sCNT}")
    sum_pairs(hU, [hPr+4*i for i in range(4)])
    def round_pairs():
        A(f"v_cvt_pk_bf16_f32 v{hU+4}, v{hU}, v{hU+2}"); A(f"v_cvt_pk_bf16_f32 v{hU+5}, v{hU+1}, v{hU+3}")
        for b in range(2):
            A(f"v_lshlrev_b32 v{hU+b}, 16, v{hU+4+b}"); A(f"v_and_b32 v{hU+2+b}, 0xffff0000, v{hU+4+b}")
    round_pairs()
    for i in range(4): A(f"v_add_f32 v{hU+i}, v{hU+i}, v{hT2}")
    round_pairs()
    A(f"v_mov_b32 v{hU+6}, v{hU}"); A(f"v_mov_b32 v{hU+7}, v{hU+2}"); A(f"v_mov_b32 v{hU+8}, v{hU+1}"); A(f"v_mov_b32 v{hU+9}, v{hU+3}")
    A(f"ds_write_b64 v{hT3}, {v(hU+6,2)}"); A(f"ds_write_b64 v{hT3}, {v(hU+8,2)} offset:128")
    spin(hFl, F_Q, hD, 4, sleep=1)
    A(f"v_max3_u32 v{hD}, v{hD}, v{hD+1}, v{hD+2}"); A(f"v_max_u32 v{hD}, v{hD}, v{hD+3}")
    A(f"v_cmp_lt_u32 vcc, 1, v{hD}")
    A("s_cbranch_vccnz L_h_cprem")
    setexec(0xffffffff0000)
    for b in range(2): A(f"buffer_store_dword v{hU+4+b}, v{hT0}, {s(srdWS,4)}, s{sT0} offen offset:{256+32*b}")
    A("L_h_end:")
    A("s_waitcnt lgkmcnt(0)")
    stamp(7)
    stamp_flush()
    A("s_endpgm")
    if RP == 2:
        A("L_h_rest:")
        A(f"s_lshr_b32 s{P['cl']}, s2, 2"); A(f"s_sub_u32 s{P['cl']}, s{P['cl']}, 16")
        mod_block(hC, hU, hA, hB, hD, hTR, hT0, hT1, hFl, hOne, False)
        A("s_branch L_h_end")
    A("L_h_cprem:")
    A(f"s_add_u32 s{sT0}, s{sT0}, {YBO}")
    setexec(0xffffffff0000)
    for b in range(2): A(f"buffer_store_dword v{hU+4+b}, v{hT0}, {s(srdWS,4)}, s{sT0} offen offset:{256+32*b} sc1")
    smul_add(sT0, [(sX8, "shl", 7), (sR, "shl", 2)], CF)
    flagset(hU, sT0)
    A("s_branch L_h_end")
    for blk in out_of_line: blk()
    out_of_line.clear()

    A("L_compute:")
    R = Regs(4)
    srdO = 32
    vT0 = R.a(); vT1 = R.a(); vT2 = R.a(); vT3 = R.a(); vFl = R.a(); vH4 = R.a(); vC3 = R.a(); vFw = R.a(); vOne = R.a()
    vKa = R.a(4); vQa = R.a(); vVa = R.a(2); vTRV = R.a(); vMLw = R.a(); vMLr = R.a(); vPw = R.a(); vPr = R.a(); vOa = R.a(); vSa = R.a(); vL16 = R.a(); vQw = R.a(); vQg = R.a()
    vM = R.a(); vLs = R.a(); vMc = R.a(); vU = R.a(8, 4); vS = R.a(16, 4); vSt = R.a(2, 2)
    vKb = R.a(64, 4); vQ = R.a(48, 4); vO = R.a(8, 4); vX = R.a(24, 4); vG2 = R.a(32, 4)
    vP = vKb; vVb = vKb + 32
    A(f"s_sub_u32 s{sW}, s{sWV}, 2")
    A("s_waitcnt lgkmcnt(0)")
    A("s_barrier")
    if TLB:
        A(f"s_cmp_eq_u32 s{sR}, 23"); A("s_cbranch_scc0 L_c_notlb")
        A(f"s_cmp_eq_u32 s{sW}, 2"); A("s_cbranch_scc0 L_c_notlb")
        A("s_load_dwordx2 s[20:21], s[0:1], 16"); A("s_load_dwordx2 s[24:25], s[0:1], 32")
        A("s_load_dwordx2 s[4:5], s[0:1], 48"); A("s_load_dwordx2 s[8:9], s[0:1], 56")
        srd_tail(20, 0x8000000); srd_tail(24, 4096*1024); srd_tail(4, 512*3584); srd_tail(8, 1792*1024)
        A(f"v_lshlrev_b32 v{vT0}, 16, v{vL}"); A(f"v_and_b32 v{vT1}, 1, v{vG}"); A(f"v_lshlrev_b32 v{vT1}, 26, v{vT1}"); A(f"v_lshl_or_b32 v{vT1}, v{vN}, 16, v{vT1}")
        smul_add(sT0, [(sX8, "shl", 23)], 28672*256 + 65536 - 128); smul_add(sT1, [(sX8, "shl", 19)]); smul_add(sT2, [(sX8, "shl", 7)]); smul_add(sT3, [(sX8, "mul", 7*32768)])
        backoff(TLB)
        A("s_waitcnt lgkmcnt(0)")
        setexec(0xffffffff)
        A(f"buffer_load_dword v{vG2}, v{vT1}, s[20:23], s{sT0} offen")
        A(f"buffer_load_dword v{vG2+1}, v{vT0}, s[4:7], s{sT2} offen")
        A("s_mov_b64 exec, 0xff")
        A(f"buffer_load_dword v{vG2+2}, v{vT0}, s[24:27], s{sT1} offen")
        A("s_mov_b64 exec, 0xf")
        A(f"buffer_load_dword v{vG2+3}, v{vT0}, s[8:11], s{sT3} offen")
        A("s_mov_b64 exec, -1")
        A("L_c_notlb:")
    A(f"s_load_dwordx2 {s(srdO,2)}, s[0:1], 80")
    if DUR: A("s_load_dwordx2 s[88:89], s[0:1], 88")
    A(f"v_mov_b32 v{vFl}, {FL}"); A(f"v_mov_b32 v{vOne}, 1"); A(f"s_lshl_b32 s{sT0}, s{sW}, 2"); A(f"v_add_u32 v{vFw}, s{sT0}, v{vFl}")
    A(f"v_and_b32 v{vH4}, 3, v{vN}"); A(f"v_and_b32 v{vC3}, 3, v{vL}"); A(f"v_lshlrev_b32 v{vL16}, 4, v{vL}")
    A(f"v_xor_b32 v{vT0}, v{vG}, v{vN}"); A(f"v_lshlrev_b32 v{vT0}, 4, v{vT0}"); A(f"v_lshl_or_b32 v{vT0}, v{vN}, 8, v{vT0}")
    A(f"s_lshl_b32 s{sT0}, s{sW}, 14"); A(f"v_add_u32 v{vKa}, s{sT0}, v{vT0}")
    for sg in range(1, 4): A(f"v_xor_b32 v{vKa+sg}, {64*sg}, v{vKa}")
    A(f"v_mul_u32_u24 v{vT0}, 288, v{vH4}"); A(f"v_lshl_add_u32 v{vT0}, v{vG}, 4, v{vT0}"); A(f"v_add_u32 v{vQa}, {QL}, v{vT0}")
    A(f"v_lshrrev_b32 v{vT0}, 2, v{vL}"); A(f"v_and_b32 v{vT1}, 7, v{vT0}"); A(f"v_lshlrev_b32 v{vT1}, 5, v{vT1}"); A(f"v_lshl_or_b32 v{vT0}, v{vT0}, 8, v{vT1}")
    A(f"v_lshl_or_b32 v{vTRV}, v{vC3}, 3, v{vT0}")
    A(f"s_lshl_b32 s{sT0}, s{sW}, 6"); A(f"v_xor_b32 v{vT0}, s{sT0}, v{vTRV}"); A(f"v_add_u32 v{vVa}, {LV}, v{vT0}"); A(f"v_xor_b32 v{vVa+1}, 32, v{vVa}")
    A(f"v_lshlrev_b32 v{vT0}, 5, v{vH4}"); A(f"v_add_u32 v{vMLr}, {ML}, v{vT0}"); A(f"s_lshl_b32 s{sT0}, s{sW}, 3"); A(f"v_add_u32 v{vMLw}, s{sT0}, v{vMLr}")
    A(f"v_lshlrev_b32 v{vT0}, 6, v{vG}"); A(f"v_lshl_or_b32 v{vT0}, v{vH4}, 4, v{vT0}"); A(f"v_add_u32 v{vPr}, {PX}, v{vT0}")
    A(f"v_lshrrev_b32 v{vT0}, 3, v{vN}"); A(f"v_bfe_u32 v{vT1}, v{vN}, 2, 1"); A(f"v_lshlrev_b32 v{vT1}, 3, v{vT1}"); A(f"v_lshl_or_b32 v{vT0}, v{vT0}, 8, v{vT1}")
    A(f"s_lshl_b32 s{sT0}, s{sW}, 9"); A(f"v_add3_u32 v{vPw}, v{vT0}, s{sT0}, v{vPr}")
    A(f"v_lshlrev_b32 v{vOa}, 12, v{vH4}"); A(f"v_lshl_or_b32 v{vOa}, v{vG}, 8, v{vOa}"); A(f"v_lshlrev_b32 v{vSa}, 7, v{vH4}")
    A(f"s_mul_i32 s{sT5}, s{sW}, 288"); A(f"s_add_u32 s{sT5}, s{sT5}, {QL}")
    A(f"v_and_b32 v{vT0}, 31, v{vL}"); A(f"v_lshrrev_b32 v{vT1}, 5, v{vL}"); A(f"v_lshlrev_b32 v{vQg}, 4, v{vT0}"); A(f"v_lshl_or_b32 v{vQg}, v{vT1}, 11, v{vQg}")
    A(f"v_lshl_or_b32 v{vT0}, v{vT0}, 1, v{vT1}"); A(f"v_lshl_add_u32 v{vQw}, v{vT0}, 2, s{sT5}")
    A(f"v_cmp_gt_u32 {s(sM0,2)}, 4, v{vN}")
    A(f"s_cmp_eq_u32 s{sW}, 0"); A(f"s_cselect_b64 {s(sM1,2)}, 15, 0")
    sOA, sSA, sSC = 4, 5, 6
    smul_add(sOA, [(sX8, "shl", 15), (sB, "shl", 14), (sW, "shl", 10), (sS, "shl", 4)], OPA)
    smul_add(sSA, [(sX8, "shl", 10), (sB, "shl", 9), (sS, "shl", 3)], STA)
    A(f"s_mov_b32 s{sSC}, {hex(SC)}")
    dot_consts()
    A(f"s_getreg_b32 s{sTQ}, hwreg(HW_REG_XCC_ID, 0, 3)")
    srd_tail(srdWS, WSN); srd_tail(srdX, 2048); srd_tail(srdO, 2048)
    tSa = vX; tX = vX + 1; tCol = vX + 2; tAP = vX + 3; tPar = vX + 4; tY = vX + 8; tPa = vX + 10; tOut = vX + 11; tTR = vX + 12; tW = vX + 16; tYv = vX + 20
    mYa = vX; mSa = vX + 1; mXw = vX + 2; mXr = vX + 3; mBp = vX + 4; mMP = vX + 5; mA1 = vX + 6; mA2 = vX + 8; mMQ = vX + 16; mC = vX + 18
    sA0, sA1, sA2, sA3, sA4, sA5, sA6, sA7, sA8, sA9 = 7, 8, 9, 10, 11, 12, 13, 14, 15, 26
    for i in range(12): A(f"v_mov_b32 v{vX+i}, 0")
    A("s_waitcnt lgkmcnt(0)")
    def rest_block():
        A(f"s_cmp_eq_u32 s{sW}, 1"); A("s_cbranch_scc0 L_c_roledone")
        srdC2 = 20; P['cl'], P['rp'] = 24, 25
        A(f"s_load_dwordx2 {s(srdC2,2)}, s[0:1], 64")
        A(f"s_lshr_b32 s{P['cl']}, s2, 2"); A(f"s_add_u32 s{P['cl']}, s{P['cl']}, {-16 if RP else 16}"); A(f"s_and_b32 s{P['rp']}, s2, 3")
        c_addr(vT0, vT1)
        A(f"v_mov_b32 v{vT1}, 0"); A(f"s_lshl_b32 s{sT0}, s{P['rp']}, 8")
        srd_tail(srdC2, 2048)
        A("s_waitcnt lgkmcnt(0)")
        A(f"buffer_load_dword v{vO+2}, v{vT1}, {s(srdWS,4)}, 0 offen sc1")
        A(f"buffer_load_dwordx2 {v(vO,2)}, v{vT0}, {s(srdC2,4)}, s{sT0} offen")
        tr128_base(vO+4, vT0, vT1, SM if RP == 2 else SR)
        A("s_waitcnt vmcnt(0)")
        A(f"v_readfirstlane_b32 s{sTAG}, v{vO+2}")
        A(f"s_add_u32 s{sTAG}, s{sTAG}, 0x9E3779B1")
        mod_block(vO, vU, vQ, vKb, vQ+16, vO+4, vT0, vT1, vFl, vOne, False)
    A(f"s_cmp_lt_u32 s{sR}, 16"); A("s_cbranch_scc0 L_c_nt1")
    A(f"s_and_b32 s{sAB}, s{sW}, 1"); A(f"s_lshr_b32 s{sT0}, s{sW}, 1"); A(f"s_lshr_b32 s{sT1}, s{sR}, 2"); A(f"s_and_b32 s{sT2}, s{sR}, 3")
    A(f"v_lshlrev_b32 v{tSa}, 5, v{vG}"); A(f"v_lshl_or_b32 v{tSa}, v{vH4}, 3, v{tSa}")
    smul_add(sA0, [(sX8, "shl", 15), (sAB, "shl", 14), (sT1, "shl", 12)], OPA)
    smul_add(sA1, [(sX8, "shl", 10), (sAB, "shl", 9), (sT1, "shl", 7)], STA)
    A(f"v_and_b32 v{vT0}, 7, v{vL}"); A(f"v_lshl_or_b32 v{tCol}, v{vT0}, 2, v{vG}")
    A(f"v_lshlrev_b32 v{tOut}, 1, v{tCol}")
    smul_add(sA7, [(sAB, "shl", 10), (sR, "shl", 6)])
    A(f"s_lshl_b32 s{sT3}, s{sT0}, 7"); A(f"v_xor_b32 v{tTR}, s{sT3}, v{vTRV}")
    for t in range(1, 4): A(f"v_xor_b32 v{tTR+t}, {32*t}, v{tTR}")
    A(f"v_lshrrev_b32 v{vT0}, 5, v{vL}"); A(f"v_and_b32 v{vT1}, 30, v{vL}"); A(f"v_lshlrev_b32 v{vT1}, 2, v{vT1}"); A(f"v_lshl_or_b32 v{tAP}, v{vT0}, 13, v{vT1}")
    smul_add(sA2, [(sT2, "shl", 15), (sT0, "shl", 14), (sAB, "shl", 12), (sX8, "shl", 9), (sT1, "shl", 7)], AP)
    smul_add(sA3, [(sR, "shl", 13), (sAB, "shl", 12)], AP)
    A(f"v_lshlrev_b32 v{vT0}, 6, v{vC3}"); A(f"v_bfe_u32 v{vT1}, v{vL}, 2, 1"); A(f"v_lshl_or_b32 v{vT0}, v{vT1}, 3, v{vT0}")
    A(f"v_and_b32 v{vT1}, 1, v{vG}"); A(f"v_lshl_or_b32 v{vT0}, v{vT1}, 4, v{vT0}"); A(f"v_lshrrev_b32 v{vT1}, 1, v{vG}"); A(f"v_lshl_or_b32 v{tY}, v{vT1}, 2, v{vT0}")
    A(f"v_lshrrev_b32 v{tY+1}, 1, v{vL}")
    smul_add(sA4, [(sX8, "mul", YX), (sR, "shl", 9), (sAB, "shl", 5)], YA)
    smul_add(sA5, [(sX8, "mul", YX), (sR, "shl", 4), (sAB, "shl", 3)], YA + 8192)
    A(f"s_lshl_b32 s{sT4}, s{sR}, 1"); A(f"s_add_u32 s{sA8}, s{sT4}, s{sAB}"); A(f"s_mul_i32 s{sA6}, s{sA8}, 7168"); A(f"s_add_u32 s{sA6}, s{sA6}, {MP}"); A(f"s_add_u32 s{sA9}, s{sA6}, 4096")
    A(f"s_sub_u32 s{sJ}, s{sX8}, s{sT4}"); A(f"s_and_b32 s{sJ}, s{sJ}, 7")
    smul_add(sT4, [(sAB, "shl", 7)], PAR); A(f"v_lshl_add_u32 v{tPa}, v{tCol}, 2, s{sT4}")
    if not RP: rest_block()
    A("s_branch L_c_roledone")
    A("L_c_nt1:")
    A(f"s_sub_u32 s{sT0}, s{sR}, 16"); A(f"s_mul_i32 s{sJ}, s{sX8}, 7"); A(f"s_add_u32 s{sJ}, s{sJ}, s{sT0}")
    A(f"v_lshrrev_b32 v{vT0}, 2, v{vN}"); A(f"v_lshlrev_b32 v{vT0}, 9, v{vT0}"); A(f"v_lshl_or_b32 v{vT0}, v{vG}, 6, v{vT0}"); A(f"v_lshl_or_b32 v{mYa}, v{vH4}, 4, v{vT0}")
    A(f"v_and_b32 v{vT0}, 31, v{vL}"); A(f"v_lshlrev_b32 v{mSa}, 3, v{vT0}")
    smul_add(sA1, [(sX8, "mul", YX)], YA + 8192); smul_add(sA0, [(sX8, "mul", YX), (sW, "shl", 11)], YA)
    A(f"v_mul_u32_u24 v{mXw}, {RS}, v{vH4}"); A(f"v_lshl_add_u32 v{mXw}, v{vG}, 4, v{mXw}"); smul_add(sT1, [(sW, "shl", 6)], RED); A(f"v_add_u32 v{mXw}, s{sT1}, v{mXw}")
    A(f"v_lshrrev_b32 v{vT0}, 3, v{vN}"); A(f"v_and_b32 v{vT1}, 1, v{vN}"); A(f"v_lshl_or_b32 v{vT0}, v{vT0}, 1, v{vT1}"); A(f"v_mul_u32_u24 v{mXr}, {2*RS}, v{vT0}")
    A(f"v_lshl_add_u32 v{mXr}, v{vG}, 4, v{mXr}"); A(f"v_bfe_u32 v{vT0}, v{vN}, 1, 2"); A(f"v_lshl_add_u32 v{mXr}, v{vT0}, 2, v{mXr}"); A(f"v_add_u32 v{mXr}, {RED}, v{mXr}")
    A(f"v_lshlrev_b32 v{mBp}, 6, v{vG}"); A(f"v_lshl_or_b32 v{mBp}, v{vT1}, 2, v{mBp}")
    A(f"v_lshrrev_b32 v{vT0}, 2, v{vL}"); A(f"v_lshlrev_b32 v{vT0}, 6, v{vT0}"); A(f"v_and_b32 v{vT2}, 1, v{vG}"); A(f"v_lshl_or_b32 v{vT0}, v{vT2}, 5, v{vT0}"); A(f"v_lshl_or_b32 v{vT0}, v{vC3}, 3, v{vT0}")
    A(f"s_lshl_b32 s{sT1}, s{sW}, 13"); A(f"v_add_u32 v{mA1}, s{sT1}, v{vT0}"); A(f"v_xor_b32 v{mA1+1}, 32, v{mA1}")
    A(f"s_add_u32 s{sT1}, s{sT1}, 32768"); A(f"v_add_u32 v{mA2}, s{sT1}, v{vTRV}")
    for t in range(1, 8): A(f"v_xor_b32 v{mA2+t}, {32*t}, v{mA2}")
    A(f"v_lshrrev_b32 v{vT0}, 2, v{vN}"); A(f"v_lshl_or_b32 v{vT0}, v{vT0}, 1, v{vT1}"); A(f"v_mul_u32_u24 v{mMP}, 7168, v{vT0}")
    A(f"v_bfe_u32 v{vT0}, v{vN}, 1, 1"); A(f"v_lshl_add_u32 v{mMP}, v{vT0}, 6, v{mMP}"); A(f"v_lshl_add_u32 v{mMP}, v{vG}, 4, v{mMP}")
    smul_add(sA3, [(sW, "mul", 4*14336), (sJ, "shl", 7)], MP)
    smul_add(sA4, [(sX8, "shl", 7), (sT0, "shl", 4), (sW, "shl", 2)], MF)
    A(f"s_mov_b32 s{sM2}, 0xcccccccc"); A(f"s_mov_b32 s{sM2+1}, 0xcccccccc")
    if RP == 1: rest_block()
    A("L_c_roledone:")
    smul_add(sT0, [(sX8, "shl", 14), (sB, "shl", 13), (sW, "shl", 9)], QPA)
    A(f"s_add_u32 s{sT1}, s{sT0}, 4096")
    stamp(1)
    A(f"s_cmp_lg_u32 s{sW}, 0"); A("s_cbranch_scc1 L_c_nt")
    backoff(DG)
    A(f"ds_write_b32 v{vFl}, v{vOne} offset:{F_T1}")
    backoff(DQ)
    A(f"ds_write_b32 v{vFl}, v{vOne} offset:{F_T2}")
    A("L_c_nt:")
    spin(vFl, F_T2, vT0, sleep=2)
    spin(vFl, F_QP, vT0, sleep=1)
    A(f"ds_read_b32 v{vT0}, v{vFl} offset:{TAGL-FL}")
    def q_loads(Pq=vG2):
        for q, so in enumerate((sT0, sT1)):
            A(f"buffer_load_dwordx4 {v(Pq+4*q,4)}, v{vQg}, {s(srdWS,4)}, s{so} offen sc1")
    def k_reads():
        spin(vFl, F_K, vT1, sleep=1)
        for t in range(4):
            for sg in range(4): A(f"ds_read_b128 {v(vKb+(t*4+sg)*4,4)}, v{vKa+sg} offset:{t*4096}")
        A(f"ds_write_b32 v{vFw}, v{vOne} offset:{F_KR}")
    qtags = [vG2+4*i+k for i in range(2) for k in (1, 3)]
    q_loads()
    A("s_waitcnt lgkmcnt(0)")
    A(f"v_readfirstlane_b32 s{sTAG}, v{vT0}")
    A(f"v_mov_b32 v{vT3}, 1")
    A(f"s_add_u32 s{sTQ}, s{sTQ}, s{sTAG}")
    if FREM: A(f"s_add_u32 s{sTQ}, s{sTQ}, 9")
    k_reads()
    A("s_waitcnt vmcnt(0)")
    tagcheck(qtags, vT0, sTQ)
    A("s_cbranch_vccnz L_c_qre")
    A("L_c_qok:")
    sum_pairs(vU, [vG2, vG2+4])
    def qretry():
        A("L_c_qre:")
        A(f"s_mov_b32 s{sCNT}, 0")
        A("L_c_qre2:")
        q_loads()
        A(f"s_add_u32 s{sCNT}, s{sCNT}, 1"); A(f"s_cmp_ge_u32 s{sCNT}, {NA}")
        A("s_waitcnt vmcnt(0)")
        A("s_cbranch_scc1 L_c_qB")
        tagcheck(qtags, vT0, sTQ)
        A("s_cbranch_vccnz L_c_qre2")
        A("s_branch L_c_qok")
        A("L_c_qB:")
        for so in (sT0, sT1): A(f"s_add_u32 s{so}, s{so}, {QB}")
        A("L_c_qB2:")
        q_loads()
        A(f"s_add_u32 s{sCNT}, s{sCNT}, 1"); A(f"s_cmp_gt_u32 s{sCNT}, {NT}")
        A("s_waitcnt vmcnt(0)")
        A("s_cbranch_scc1 L_c_qB3")
        for i, r in enumerate(qtags): A(f"v_subrev_u32 v{vU+i}, s{sTAG}, v{r}")
        A(f"v_max3_u32 v{vT0}, v{vU}, v{vU+1}, v{vU+2}"); A(f"v_max_u32 v{vT0}, v{vT0}, v{vU+3}")
        A(f"v_cmp_lt_u32 vcc, 7, v{vT0}")
        A("s_cbranch_vccnz L_c_qB2")
        A("L_c_qB3:")
        tagcheck(qtags, vT0, sTQ)
        A("s_cbranch_vccz L_c_qok")
        A(f"v_mov_b32 v{vT3}, 2")
        A("s_branch L_c_qok")
    out_of_line.append(qretry)
    A(f"v_permlane32_swap_b32 v{vU}, v{vU+2}"); A(f"v_permlane32_swap_b32 v{vU+1}, v{vU+3}")
    A(f"v_pk_add_f32 {v(vU,2)}, {v(vU,2)}, {v(vU+2,2)}")
    A(f"v_cvt_pk_bf16_f32 v{vT0}, v{vU}, v{vU+1}")
    A(f"ds_write_b32 v{vQw}, v{vT0}")
    A(f"ds_write_b32 v{vFw}, v{vT3} offset:{F_Q}")
    stamp(2)
    spin(vFl, F_Q, vU, 4)
    stamp(3); fine(2, 1)
    for sg in range(4): A(f"ds_read_b128 {v(vQ+sg*4,4)}, v{vQa} offset:{64*sg}")
    A(f"v_max3_u32 v{vU}, v{vU}, v{vU+1}, v{vU+2}"); A(f"v_max_u32 v{vU}, v{vU}, v{vU+3}")
    A(f"v_readfirstlane_b32 s{sREM}, v{vU}")
    for sg in range(4):
        A(f"s_waitcnt lgkmcnt({lg(3-sg)})")
        for t in range(4):
            A(f"v_mfma_f32_16x16x32_bf16 {v(vS+4*t,4)}, {v(vKb+(t*4+sg)*4,4)}, {v(vQ+sg*4,4)}, {'0' if sg == 0 else v(vS+4*t,4)}")
    fine(2, 2)
    for t in range(1, 4):
        for r in range(4): A(f"v_mov_b32_dpp v{vS+r}, v{vS+4*t+r} quad_perm:[0,1,2,3] row_mask:0xf bank_mask:{hex(1 << t)}")
    def red_all(r, op, t):
        for ro in (4, 8): A(f"{op}_dpp v{r}, v{r}, v{r} row_ror:{ro} row_mask:0xf bank_mask:0xf bound_ctrl:1")
        for sw in ("v_permlane16_swap_b32", "v_permlane32_swap_b32"):
            A(f"v_mov_b32 v{t}, v{r}"); A(f"{sw} v{t}, v{r}"); A(f"{op} v{r}, v{r}, v{t}")
    A(f"v_max3_f32 v{vM}, v{vS}, v{vS+1}, v{vS+2}"); A(f"v_max_f32 v{vM}, v{vM}, v{vS+3}")
    red_all(vM, "v_max_f32", vT0)
    A(f"v_mul_f32 v{vSt}, s{sSC}, v{vM}")
    for i in range(4): A(f"v_fma_f32 v{vS+i}, v{vS+i}, s{sSC}, -v{vSt}")
    for i in range(4): A(f"v_exp_f32 v{vS+i}, v{vS+i}")
    A(f"v_add_f32 v{vT0}, v{vS}, v{vS+1}"); A(f"v_add_f32 v{vT1}, v{vS+2}, v{vS+3}"); A(f"v_add_f32 v{vSt+1}, v{vT0}, v{vT1}")
    red_all(vSt+1, "v_add_f32", vT0)
    fine(2, 3)
    A("s_mov_b64 exec, 0xf")
    A(f"ds_write_b64 v{vMLw}, {v(vSt,2)}")
    A("s_mov_b64 exec, -1")
    A(f"s_mov_b32 s{sCNT}, 0")
    A("L_c_ml:")
    A(f"ds_read_b128 {v(vU,4)}, v{vMLr}"); A(f"ds_read_b128 {v(vU+4,4)}, v{vMLr} offset:16")
    A(f"s_add_u32 s{sCNT}, s{sCNT}, 1"); A(f"s_cmp_gt_u32 s{sCNT}, {NT}")
    A("s_waitcnt lgkmcnt(0)")
    A("s_cbranch_scc1 L_c_mlok")
    A(f"v_max3_u32 v{vT0}, v{vU+1}, v{vU+3}, v{vU+5}"); A(f"v_max_u32 v{vT0}, v{vT0}, v{vU+7}")
    A(f"v_cmp_eq_u32 vcc, -1, v{vT0}")
    A("s_cbranch_vccnz L_c_ml")
    A("L_c_mlok:")
    fine(2, 4)
    A(f"v_max3_f32 v{vMc}, v{vU}, v{vU+2}, v{vU+4}"); A(f"v_max_f32 v{vMc}, v{vMc}, v{vU+6}")
    for i in range(4): A(f"v_sub_f32 v{vU+2*i}, v{vU+2*i}, v{vMc}")
    A(f"v_sub_f32 v{vT0}, v{vSt}, v{vMc}")
    for i in range(4): A(f"v_exp_f32 v{vU+2*i}, v{vU+2*i}")
    A(f"v_exp_f32 v{vT0}, v{vT0}")
    A(f"v_mul_f32 v{vLs}, v{vU}, v{vU+1}")
    for i in range(1, 4): A(f"v_fmac_f32 v{vLs}, v{vU+2*i}, v{vU+2*i+1}")
    A(f"v_rcp_f32 v{vT1}, v{vLs}")
    A(f"v_mov_b32 v{vSt}, v{vMc}"); A(f"v_mov_b32 v{vSt+1}, v{vLs}")
    A(f"v_mul_f32 v{vT0}, v{vT0}, v{vT1}")
    for i in range(4): A(f"v_mul_f32 v{vS+i}, v{vS+i}, v{vT0}")
    A(f"v_cvt_pk_bf16_f32 v{vU}, v{vS}, v{vS+1}"); A(f"v_cvt_pk_bf16_f32 v{vU+1}, v{vS+2}, v{vS+3}")
    A(f"ds_write_b64 v{vPw}, {v(vU,2)}")
    A(f"ds_write_b32 v{vFw}, v{vOne} offset:{F_P}")
    A(f"s_cmp_gt_u32 s{sREM}, 1")
    A(f"s_mov_b64 exec, {s(sM1,2)}")
    A("s_cbranch_scc1 L_c_strem")
    A("s_cbranch_execz L_c_stdone")
    A(f"buffer_store_dwordx2 {v(vSt,2)}, v{vSa}, {s(srdWS,4)}, s{sSA} offen")
    A("L_c_stdone:")
    def strem():
        A("L_c_strem:")
        A(f"s_add_u32 s{sSA}, s{sSA}, {SB}"); A(f"s_add_u32 s{sOA}, s{sOA}, {OB}")
        A("s_cbranch_execz L_c_stdone")
        A(f"buffer_store_dwordx2 {v(vSt,2)}, v{vSa}, {s(srdWS,4)}, s{sSA} offen sc1")
        A("s_branch L_c_stdone")
    out_of_line.append(strem)
    A("s_mov_b64 exec, -1")
    stamp(4); fine(2, 5)
    spin(vFl, F_P, vU, 4)
    fine(2, 7)
    for k in range(8): A(f"ds_read_b128 {v(vP+4*k,4)}, v{vPr} offset:{k*256}")
    A(f"ds_write_b32 v{vFw}, v{vOne} offset:{F_CR}")
    spin(vFl, F_V, vT0)
    stamp(5); fine(2, 8)
    def vreads(k, dst):
        for t in range(2):
            for u in range(2):
                A(f"ds_read_b64_tr_b16 {v(dst+4*t+2*u,2)}, v{vVa+t} offset:{(32*k+16*u)*256}")
    for k in range(7): vreads(k, vVb+8*k)
    tSt = vG2; tA = vG2 + 8
    def st_loads():
        A(f"buffer_load_dwordx2 {v(tSt,2)}, v{tSa}, {s(srdWS,4)}, s{sA1} offen sc1")
    A(f"s_cmp_lt_u32 s{sR}, 16"); A("s_cbranch_scc0 L_c_nost")
    st_loads()
    A("L_c_nost:")
    for k in range(7):
        A(f"s_waitcnt lgkmcnt({lg(4*(6-k))})")
        for t in range(2):
            A(f"v_mfma_f32_16x16x32_bf16 {v(vO+4*t,4)}, {v(vVb+8*k+4*t,4)}, {v(vP+4*k,4)}, {'0' if k == 0 else v(vO+4*t,4)}")
    A(f"s_cmp_gt_u32 s{sREM}, 1")
    fine(2, 9)
    A("s_barrier")
    fine(2, 10)
    vreads(7, vVb)
    A(f"s_waitcnt lgkmcnt({lg(2)})")
    A(f"v_mfma_f32_16x16x32_bf16 {v(vO,4)}, {v(vVb,4)}, {v(vP+28,4)}, {v(vO,4)}")
    A("s_waitcnt lgkmcnt(0)")
    A(f"v_mfma_f32_16x16x32_bf16 {v(vO+4,4)}, {v(vVb+4,4)}, {v(vP+28,4)}, {v(vO+4,4)}")
    stamp(6)
    A(f"s_mov_b64 exec, {s(sM0,2)}")
    for i in range(4): A(f"v_cvt_pk_bf16_f32 v{vU+i}, v{vO+2*i}, v{vO+2*i+1}")
    A("s_cbranch_scc1 L_c_orem")
    A(f"buffer_store_dwordx4 {v(vU,4)}, v{vOa}, {s(srdWS,4)}, s{sOA} offen")
    A("s_mov_b64 exec, -1")
    stamp(7); fine(2, 11)
    A(f"s_cmp_lt_u32 s{sR}, 16")
    A("s_cbranch_scc0 L_c_other")

    if BT: A("s_barrier")
    tB = vKb; tD = vS
    def t1_loads():
        for k in range(4): A(f"buffer_load_dwordx4 {v(tA+4*k,4)}, v{vL16}, {s(srdWS,4)}, s{sA0} offen offset:{1024*k} sc1")
    if EW:
        t1_loads()
        poll("L_stp", lambda: (st_loads(), t1_loads()), lambda: sentcheck([tSt+1], vT0), first_wait=5)
    else:
        poll("L_stp", st_loads, lambda: sentcheck([tSt+1], vT0), first_wait=1)
    A("L_t1_w:")
    stamp(13)
    A(f"ds_read_b32 v{tPar}, v{tPa}"); A(f"ds_read_b32 v{tPar+1}, v{tPa} offset:512"); A(f"ds_read_b32 v{tPar+2}, v{tPa} offset:768")
    def xg(r, op, t):
        for pat in ("quad_perm:[1,0,3,2]", "quad_perm:[2,3,0,1]"):
            A(f"{op}_dpp v{r}, v{r}, v{r} {pat} row_mask:0xf bank_mask:0xf bound_ctrl:1")
        for sw in ("v_permlane16_swap_b32", "v_permlane32_swap_b32"):
            A(f"v_mov_b32 v{t}, v{r}"); A(f"{sw} v{t}, v{r}"); A(f"{op} v{r}, v{r}, v{t}")
    A(f"v_mov_b32 v{vM}, v{tSt}")
    xg(vM, "v_max_f32", vT0)
    A(f"v_sub_f32 v{vM}, v{tSt}, v{vM}"); A(f"v_exp_f32 v{vM}, v{vM}"); A(f"v_mul_f32 v{vM}, v{vM}, v{tSt+1}")
    A(f"v_mov_b32 v{vLs}, v{vM}")
    xg(vLs, "v_add_f32", vT0)
    A(f"v_rcp_f32 v{vLs}, v{vLs}")
    A(f"v_mov_b32 v{tYv+1}, s{sTAG}")
    A(f"v_mul_f32 v{vM}, v{vM}, v{vLs}")
    for r in range(4): A(f"v_mov_b32_dpp v{tW+r}, v{vM} quad_perm:[{r},{r},{r},{r}] row_mask:0xf bank_mask:0xf bound_ctrl:1")
    if not EW:
        A(f"s_cmp_gt_u32 s{sREM}, 1")
        A("s_barrier")
        A("s_cbranch_scc1 L_t1_nl")
        t1_loads()
        A("L_t1_nl:")
    def wo_reads():
        for k in range(4):
            for t in range(4):
                for u in range(2):
                    A(f"ds_read_b64_tr_b16 {v(tB+(k*4+t)*4+2*u,2)}, v{tTR+t} offset:{(32*k+16*u)*256}")
    wo_reads()
    A(f"v_and_b32 v{vT0}, 8, v{vL}"); A(f"v_cmp_ne_u32 {s(sM0,2)}, 0, v{vT0}")
    A(f"v_and_b32 v{vT0}, 16, v{vL}"); A(f"v_cmp_ne_u32 {s(sM1,2)}, 0, v{vT0}")
    A(f"s_cmp_gt_u32 s{sREM}, 1"); A("s_cbranch_scc1 L_t1rem")
    stamp(8)
    if dbg: A(f"s_mov_b32 s{sCNT}, 0")
    def t1_mf(k, ts=(0, 2, 1, 3)):
        for t in ts:
            A(f"v_mfma_f32_16x16x32_bf16 {v(tD+4*t,4)}, {v(tA+4*k,4)}, {v(tB+(k*4+t)*4,4)}, {'0' if k == 0 else v(tD+4*t,4)}")
    def t1_body():
        A("s_waitcnt vmcnt(3) lgkmcnt(0)")
        t1_mf(0, (0, 2))
        A("s_waitcnt vmcnt(0)")
        sentcheck([tA+3, tA+7, tA+11, tA+15], vT0)
        t1_mf(0, (1, 3))
    ipoll("L_t1p", t1_loads, t1_body, GT)
    stamp(9); fine(3, 1)
    if dbg and not FINE: A(f"s_mov_b32 s88, s{sCNT}")
    for k in range(1, 4): t1_mf(k)
    fine(3, 2)
    A(f"s_cmp_lt_u32 s{sW}, 2")
    for t in (0, 2, 1, 3):
        A(f"v_pk_mul_f32 {v(tD+4*t,2)}, {v(tD+4*t,2)}, {v(tW,2)}")
        A(f"v_pk_fma_f32 {v(tD+4*t,2)}, {v(tD+4*t+2,2)}, {v(tW+2,2)}, {v(tD+4*t,2)}")
        A(f"v_add_f32 v{vU+t}, v{tD+4*t}, v{tD+4*t+1}")
    def reduce4(u):
        A(f"v_permlane32_swap_b32 v{u}, v{u+2}"); A(f"v_permlane32_swap_b32 v{u+1}, v{u+3}")
        A(f"v_pk_add_f32 {v(u,2)}, {v(u,2)}, {v(u+2,2)}")
        A(f"v_permlane16_swap_b32 v{u}, v{u+1}")
        A(f"v_add_f32 v{u}, v{u}, v{u+1}")
    reduce4(vU)
    A(f"v_mov_b32_dpp v{vU+1}, v{vU} quad_perm:[1,0,3,2] row_mask:0xf bank_mask:0xf bound_ctrl:1")
    setexec(0x5555555555555555)
    A(f"v_cvt_pk_bf16_f32 v{tYv}, v{vU}, v{vU+1}")
    A("s_barrier")
    A(f"buffer_store_dwordx2 {v(tYv,2)}, v{tAP}, {s(srdWS,4)}, s{sA2} offen sc1")
    A("s_mov_b64 exec, -1")
    stamp(10); fine(3, 3)
    A("s_cbranch_scc0 L_fin_end")
    def red_loads():
        for q in range(4): A(f"buffer_load_dwordx4 {v(tA+4*q,4)}, v{vL16}, {s(srdWS,4)}, s{sA3} offen offset:{1024*q} sc1")
    A(f"buffer_load_ushort v{tX}, v{tOut}, {s(srdX,4)}, s{sA7} offen")
    A("s_waitcnt vmcnt(0)")
    red_loads()
    A(f"v_lshlrev_b32 v{tX}, 16, v{tX}")
    ipoll("L_rdp", red_loads, lambda: gather_sum(vU, [tA+4*q for q in range(4)], vT0), GR)
    stamp(11); fine(3, 4)
    reduce4(vU)
    A(f"v_add_f32_dpp v{vU}, v{vU}, v{vU} row_ror:8 row_mask:0xf bank_mask:0xf bound_ctrl:1")
    A(f"s_cmp_gt_u32 s{sREM}, 1")
    A(f"v_fmac_f32 v{tX}, v{tPar}, v{vU}")
    A(f"v_mul_f32 v{vU}, v{tX}, v{tPar+1}")
    A(f"v_mul_f32 v{vU+4}, v{tX}, v{tX}")
    A(f"v_mov_b32 v{vU+1}, v{vU}")
    A(f"v_cndmask_b32 v{vU+4}, v{tX}, v{vU+4}, {s(sM0,2)}")
    A(f"v_permlane16_swap_b32 v{vU}, v{vU+1}")
    A(f"v_add_f32_dpp v{vU+4}, v{vU+4}, v{vU+4} quad_perm:[1,0,3,2] row_mask:0xf bank_mask:0xf bound_ctrl:1")
    A(f"v_cvt_pk_bf16_f32 v{vU+2}, v{vU}, v{vU+1}")
    A(f"v_lshlrev_b32 v{vT0}, 16, v{vU+2}")
    A(f"v_add_f32_dpp v{vU+4}, v{vU+4}, v{vU+4} quad_perm:[2,3,0,1] row_mask:0xf bank_mask:0xf bound_ctrl:1")
    A(f"v_and_b32 v{vT1}, 0xffff0000, v{vU+2}")
    A(f"v_sub_f32 v{vU}, v{vU}, v{vT0}")
    A(f"v_add_f32_dpp v{vU+4}, v{vU+4}, v{vU+4} row_half_mirror row_mask:0xf bank_mask:0xf bound_ctrl:1")
    A(f"v_sub_f32 v{vU+1}, v{vU+1}, v{vT1}")
    A(f"v_mov_b32 v{vU+5}, v{vU+4}")
    A(f"v_cvt_pk_bf16_f32 v{vU+3}, v{vU}, v{vU+1}")
    A(f"v_permlane16_swap_b32 v{vU+5}, v{vU+4}")
    A(f"v_cndmask_b32 v{vU+2}, v{vU+2}, v{vU+3}, {s(sM1,2)}")
    A(f"v_add_f32 v{vU+4}, v{vU+4}, v{vU+5}")
    A("s_cbranch_scc1 L_yrem")
    setexec(0x00ff00ff00ff00ff)
    A(f"buffer_store_dword v{vU+2}, v{tY}, {s(srdWS,4)}, s{sA4} offen")
    A("s_mov_b64 exec, -1")
    A(f"v_mov_b32 v{vU+5}, v{vU+4}")
    A(f"v_permlane32_swap_b32 v{vU+5}, v{vU+4}")
    A(f"v_add_f32 v{vU+4}, v{vU+4}, v{vU+5}")
    A("s_mov_b64 exec, 0x101")
    A(f"buffer_store_dword v{vU+4}, v{tY+1}, {s(srdWS,4)}, s{sA5} offen")
    A("s_mov_b64 exec, -1")
    stamp(12); fine(3, 5)
    A(f"s_cmp_eq_u32 s{sJ}, s{sAB}"); A("s_cbranch_scc0 L_notfin")
    if OPT: A(f"buffer_load_ushort v{vT3}, v{tOut}, {s(srdO,4)}, s{sA7} offen")
    if MFG:
        smul_add(sT0, [(sX8, "shl", 7)], MF); A(f"v_lshlrev_b32 v{vT1}, 2, v{vL}")
        flagwait("L_mfw", vT1, sT0, vT0, 0xfffffff)
        backoff(DF)
    A("L_fin:")
    def fin_loads():
        for q in range(7):
            A(f"buffer_load_dwordx4 {v(tB+4*q,4)}, v{vL16}, {s(srdWS,4)}, s{sA6 if q < 4 else sA9} offen offset:{1024*(q%4)} sc1")
    fin_loads()
    A(f"v_mov_b32 v{vT2}, 0")
    ipoll("L_fnp", fin_loads, lambda: gather_sum(vU, [tB+4*q for q in range(7)], vT0), GF)
    fine(3, 6)
    reduce4(vU)
    A(f"v_add_f32_dpp v{vU}, v{vU}, v{vU} row_ror:8 row_mask:0xf bank_mask:0xf bound_ctrl:1")
    A(f"v_fmac_f32 v{tX}, v{tPar+2}, v{vU}")
    A(f"v_mov_b32 v{vU+1}, v{tX}")
    A(f"v_permlane16_swap_b32 v{tX}, v{vU+1}")
    setexec(0x000000ff000000ff)
    A(f"v_cvt_pk_bf16_f32 v{vU+2}, v{tX}, v{vU+1}")
    A(f"buffer_store_dword v{vU+2}, v{tOut}, {s(srdO,4)}, s{sA7} offen {osf}")
    if DUR:
        A(f"s_memrealtime {s(sST,2)}"); A("s_mov_b32 s90, 256"); A("s_mov_b32 s91, 0x20000"); A("s_waitcnt lgkmcnt(0)")
        A("s_mov_b64 exec, 1"); A(f"s_not_b32 s{sST+2}, s{sST+2}"); A(f"v_mov_b32 v{vU+4}, s{sST+2}"); A(f"v_mov_b32 v{vU+5}, s{sST}")
        A(f"buffer_atomic_umax v{vU+4}, v{vT2}, s[88:91], 0 offen"); A(f"buffer_atomic_umax v{vU+5}, v{vT2}, s[88:91], 0 offen offset:4")
    A("L_fin_end:")
    stamp_flush()
    A("s_endpgm")
    A("L_c_orem:")
    A(f"buffer_store_dwordx4 {v(vU,4)}, v{vOa}, {s(srdWS,4)}, s{sOA} offen sc1")
    smul_add(sT0, [(sX8, "shl", 9), (sR, "shl", 4), (sW, "shl", 2)], OF)
    flagset(vT0, sT0)
    A(f"s_cmp_lt_u32 s{sR}, 16"); A("s_cbranch_scc0 L_c_other")
    if BT: A("s_barrier")
    smul_add(sT0, [(sX8, "shl", 9), (sAB, "shl", 8)], OF); A(f"v_lshlrev_b32 v{vT1}, 2, v{vL}")
    flagwait("L_ofw", vT1, sT0, vT0, (1 << 64) - 1)
    A(f"s_add_u32 s{sA0}, s{sA0}, {OB}"); A(f"s_add_u32 s{sA1}, s{sA1}, {SB}")
    st_loads(); t1_loads()
    A("s_waitcnt vmcnt(0)")
    A("s_branch L_t1_w")
    A("L_t1rem:")
    A("s_waitcnt lgkmcnt(0)")
    t1_mf(0)
    A("s_branch L_t1p_ok")
    A("L_yrem:")
    A(f"s_add_u32 s{sA4}, s{sA4}, {YBO}"); A(f"s_add_u32 s{sA5}, s{sA5}, {YBO}")
    setexec(0x00ff00ff00ff00ff)
    A(f"buffer_store_dword v{vU+2}, v{tY}, {s(srdWS,4)}, s{sA4} offen sc1")
    A("s_mov_b64 exec, -1")
    A(f"v_mov_b32 v{vU+5}, v{vU+4}")
    A(f"v_permlane32_swap_b32 v{vU+5}, v{vU+4}")
    A(f"v_add_f32 v{vU+4}, v{vU+4}, v{vU+5}")
    A("s_mov_b64 exec, 0x101")
    A(f"buffer_store_dword v{vU+4}, v{tY+1}, {s(srdWS,4)}, s{sA5} offen sc1")
    smul_add(sT0, [(sX8, "shl", 7), (sA8, "shl", 2)], YF)
    flagset(vT0, sT0)
    A(f"s_cmp_eq_u32 s{sJ}, s{sAB}"); A("s_cbranch_scc0 L_notfin")
    A("s_branch L_fin")
    A("L_notfin:")
    A(f"s_cmp_eq_u32 s2, 4"); A("s_cbranch_scc0 L_fin_end")
    A(f"s_cmp_eq_u32 s{sW}, 0"); A("s_cbranch_scc0 L_fin_end")
    A("s_mov_b64 exec, 1"); A(f"v_mov_b32 v{vT2}, 0")
    A(f"buffer_store_dword v{tYv+1}, v{vT2}, {s(srdWS,4)}, 0 offen sc1")
    A("s_branch L_fin_end")
    for blk in out_of_line: blk()
    out_of_line.clear()

    A("L_c_other:")
    if dbg and not FINE: A("s_waitcnt vmcnt(0)"); stamp(11)
    A(f"s_sub_u32 s{sT0}, s{sR}, 16"); A(f"s_cmp_lt_u32 s{sT0}, 7"); A("s_cbranch_scc0 L_fin_end")
    mW1 = vKb; mW2 = vKb + 32; mB = vQ; mD = vQ + 16; mSt = vQ + 24; mR = vQ + 28; mD2 = vQ + 36; mO = vQ + 40; mH = vG2
    sY0, sY1, sMO, sFW = 22, 23, 24, 25
    def y_loads():
        A(f"buffer_load_dwordx4 {v(mB,4)}, v{mYa}, {s(srdWS,4)}, s{sY0} offen sc1")
        A(f"buffer_load_dwordx2 {v(mSt,2)}, v{mSa}, {s(srdWS,4)}, s{sY1} offen sc1")
    A(f"s_cmp_gt_u32 s{sREM}, 1"); A(f"s_cselect_b32 s{sT1}, {YBO}, 0"); A(f"s_add_u32 s{sA0}, s{sA0}, s{sT1}"); A(f"s_add_u32 s{sA1}, s{sA1}, s{sT1}")
    A(f"s_add_u32 s{sY0}, s{sA0}, 256"); A(f"s_mov_b32 s{sY1}, s{sY0}")
    smul_add(sFW, [(sX8, "shl", 7)], CF)
    y_loads()
    if BO: A("s_barrier")
    A(f"v_mov_b32 v{mC}, 0"); A(f"v_mov_b32 v{mC+1}, 0"); A(f"v_mov_b32 v{mO+1}, s{sTAG}"); A(f"v_mov_b32 v{mO+3}, s{sTAG}")
    A(f"v_mov_b32 v{mMQ}, v{mMP}"); A(f"v_mov_b32 v{mMQ+1}, 0")
    A(f"s_mov_b32 s{sMO}, 0")
    A("s_waitcnt vmcnt(0)")
    for i in range(32): A(f"v_mov_b32 v{mH+i}, 0")
    if not EM: A("s_barrier")
    stamp(12)
    for sg in range(4):
        for t in range(2):
            for u in range(2):
                A(f"ds_read_b64_tr_b16 {v(mW1+(t*4+sg)*4+2*u,2)}, v{mA1+t} offset:{(32*sg+16*u)*64}")
    A("s_waitcnt lgkmcnt(0)")
    A(f"s_cmp_gt_u32 s{sREM}, 1"); A("s_cbranch_scc1 L_mrem")
    A("L_mlp:")
    stamp(8)
    ipoll("L_myp", y_loads, lambda: (A("s_waitcnt vmcnt(0)"), sentcheck([mB+3, mSt, mSt+1], vT0)))
    stamp(9); fine(1, 1)
    def mrem():
        A("L_mrem:")
        A(f"v_lshlrev_b32 v{vT1}, 2, v{vL}")
        A(f"s_cmp_eq_u32 s{sMO}, 0"); A("s_cbranch_scc0 L_mrem1")
        flagwait("L_cfw", vT1, sFW, vT0, 0xffff)
        A("s_branch L_mrem2")
        A("L_mrem1:")
        flagwait("L_yfw", vT1, sFW, vT0, 0xffffffff)
        A("L_mrem2:")
        y_loads()
        A("s_waitcnt vmcnt(0)")
        A("s_branch L_myp_ok")
    out_of_line.append(mrem)
    va = []
    for ro in (2, 4, 8):
        va += [f"v_add_f32_dpp v{mSt+i}, v{mSt+i}, v{mSt+i} row_ror:{ro} row_mask:0xf bank_mask:0xf bound_ctrl:1" for i in range(2)]
    va += [f"v_mov_b32 v{mSt+2}, v{mSt}", f"v_mov_b32 v{mSt+3}, v{mSt+1}", f"v_permlane16_swap_b32 v{mSt+2}, v{mSt}", f"v_permlane16_swap_b32 v{mSt+3}, v{mSt+1}",
           f"v_pk_add_f32 {v(mSt,2)}, {v(mSt,2)}, {v(mSt+2,2)}",
           f"v_mul_f32 v{mSt}, {hex(f2u(1/512))}, v{mSt}", f"v_mul_f32 v{mSt+2}, {hex(f2u(1/512))}, v{mSt+1}",
           f"v_fma_f32 v{mSt+2}, -v{mSt}, v{mSt}, v{mSt+2}", f"v_max_f32 v{mSt+2}, 0, v{mSt+2}", f"v_add_f32 v{mSt+2}, {hex(f2u(1e-5))}, v{mSt+2}",
           f"v_rsq_f32 v{mSt+2}, v{mSt+2}", f"v_mul_f32 v{mC}, v{mC}, v{mSt}", f"v_mul_f32 v{mSt+3}, {hex(f2u(-LOG2E))}, v{mSt+2}", f"v_mul_f32 v{mC+2}, {hex(f2u(-LOG2E))}, v{mC+1}"]
    def shl(sg):
        for q in range(4): A(f"v_mov_b32_dpp v{mB+4*sg+q}, v{mB+q} row_shl:{4*sg} row_mask:0xf bank_mask:0xf bound_ctrl:1")
    def mf1(sg, t): A(f"v_mfma_f32_16x16x32_bf16 {v(mD+4*t,4)}, {v(mW1+(t*4+sg)*4,4)}, {v(mB+4*sg,4)}, {'0' if sg == 0 else v(mD+4*t,4)}")
    mf1(0, 0); shl(1); mf1(0, 1); shl(2); mf1(1, 0); mf1(1, 1); shl(3); mf1(2, 0); mf1(2, 1)
    vi = 0
    A(va[0]); A(va[1]); mf1(3, 0); A(va[2]); A(va[3]); mf1(3, 1); vi = 4
    for _ in range(6): A(va[vi]); vi += 1
    fine(1, 2)
    A(f"s_mov_b64 exec, {s(sM0,2)}")
    for t in range(2): A(f"ds_write_b128 v{mXw}, {v(mD+4*t,4)} offset:{t*4*RS}")
    A("s_mov_b64 exec, -1")
    while vi < len(va): A(va[vi]); vi += 1
    A(f"s_cmp_lg_u32 s{sMO}, 0")
    A("s_waitcnt lgkmcnt(0)")
    fine(1, 3)
    A("s_barrier")
    fine(1, 4)
    for cw in range(4): A(f"ds_read2_b32 {v(mR+2*cw,2)}, v{mXr} offset0:{16*cw} offset1:{16*cw+RS//4}")
    A(f"s_waitcnt lgkmcnt({lg(2)})")
    A(f"v_pk_add_f32 {v(mR,2)}, {v(mR,2)}, {v(mR+2,2)}")
    A("s_waitcnt lgkmcnt(0)")
    A(f"v_pk_add_f32 {v(mR+4,2)}, {v(mR+4,2)}, {v(mR+6,2)}")
    A(f"v_pk_add_f32 {v(mR,2)}, {v(mR,2)}, {v(mR+4,2)}")
    A("s_cbranch_scc0 L_mlp0")
    if MFE == 1:
        A("s_mov_b64 exec, 1")
        A(f"buffer_store_dword v{mO+1}, v{mMQ+1}, {s(srdWS,4)}, s{sA4} offen")
        A("s_mov_b64 exec, -1")
    A(f"v_sub_f32 v{mR+2}, v{mR}, v{mC}"); A(f"v_add_f32 v{mR+2}, v{mR+2}, v{mR+1}")
    fine(1, 5)
    A(f"v_fma_f32 v{mR+3}, v{mR+2}, v{mSt+3}, v{mC+2}")
    A(f"v_exp_f32 v{mR+3}, v{mR+3}")
    A(f"v_fma_f32 v{mR+2}, v{mR+2}, v{mSt+2}, v{mC+1}")
    A(f"v_add_f32 v{mR+3}, 1.0, v{mR+3}"); A(f"v_rcp_f32 v{mR+3}, v{mR+3}")
    A(f"v_mul_f32 v{mR+2}, v{mR+2}, v{mR+3}")
    A(f"v_mov_b32_dpp v{mR+3}, v{mR+2} row_shl:2 row_mask:0xf bank_mask:0xf bound_ctrl:1")
    A(f"v_cvt_pk_bf16_f32 v{mR+4}, v{mR+2}, v{mR+3}")
    A(f"v_cndmask_b32 v{mR+4}, v{mR+4}, 0, {s(sM2,2)}")
    fine(1, 6)
    def bt(t):
        for q in range(4):
            d = 2*t - 4*q
            pat = "quad_perm:[0,1,2,3]" if d == 0 else (f"row_shr:{d}" if d > 0 else f"row_shl:{-d}")
            A(f"v_mov_b32_dpp v{mH+4*t+q}, v{mR+4} {pat} row_mask:0xf bank_mask:{hex(1 << (t >> 1))} bound_ctrl:1")
    def mf2(t): A(f"v_mfma_f32_16x16x32_bf16 {v(mD2,4)}, {v(mW2+4*t,4)}, {v(mH+4*t,4)}, {'0' if t == 0 else v(mD2,4)}")
    bt(0); bt(1)
    for t in range(8):
        mf2(t)
        if t + 2 < 8: bt(t + 2)
    fine(1, 7)
    if MFE == 2:
        A("s_mov_b64 exec, 1")
        A(f"buffer_store_dword v{mO+1}, v{mMQ+1}, {s(srdWS,4)}, s{sA4} offen")
        A("s_mov_b64 exec, -1")
    A(f"v_cvt_pk_bf16_f32 v{mO}, v{mD2}, v{mD2+1}"); A(f"v_cvt_pk_bf16_f32 v{mO+2}, v{mD2+2}, v{mD2+3}")
    A(f"buffer_store_dwordx4 {v(mO,4)}, v{mMQ}, {s(srdWS,4)}, s{sA3} offen sc1")
    if not MFE:
        A("s_mov_b64 exec, 1")
        A(f"buffer_store_dword v{mO+1}, v{mMQ+1}, {s(srdWS,4)}, s{sA4} offen")
    stamp(10); fine(1, 8)
    A("s_branch L_fin_end")
    A("L_mlp0:")
    stamp(13)
    A(f"s_mov_b32 s{sMO}, 1")
    A(f"s_mov_b32 s{sY0}, s{sA0}"); A(f"s_mov_b32 s{sY1}, s{sA1}"); A(f"s_add_u32 s{sFW}, s{sFW}, {YF-CF}")
    A(f"v_mov_b32 v{mC}, v{mR}"); A(f"v_mov_b32 v{mC+1}, v{mR+1}")
    A(f"v_add_u32 v{mXw}, {8*RS}, v{mXw}"); A(f"v_add_u32 v{mXr}, {8*RS}, v{mXr}")
    A("s_barrier")
    for t in range(8):
        for u in range(2):
            A(f"ds_read_b64_tr_b16 {v(mW2+4*t+2*u,2)}, v{mA2+t} offset:{16*u*256}")
    A(f"s_cmp_gt_u32 s{sREM}, 1")
    A("s_waitcnt lgkmcnt(0)")
    A("s_cbranch_scc1 L_mrem")
    y_loads()
    A("s_branch L_mlp")
    for blk in out_of_line: blk()
    A("L_end:"); A("s_endpgm")
    A("L_code_end:")
    A('.section .rodata,"a"'); A(".p2align 6"); A(f".amdhsa_kernel {NAME}_kernel")
    nv = 256 if dbg else max(R.hi, H.hi, Lr.hi)
    nv_al = (nv + 3) // 4 * 4
    for l in (f"next_free_vgpr {nv}", "next_free_sgpr 96", f"accum_offset {nv_al}", "group_segment_fixed_size 0", "kernarg_size 104", "user_sgpr_count 2", "user_sgpr_kernarg_segment_ptr 1", "system_sgpr_workgroup_id_x 1", "float_denorm_mode_32 3"):
        A(".amdhsa_" + l)
    A(".end_amdhsa_kernel")
    bad = A.check_branches()
    for b in bad: print("BRANCH HAZARD", b, file=sys.stderr)
    print(f"compute regs {R.hi}, helper regs {H.hi}, loader regs {Lr.hi}, nops {A.nops}, instrs {sum(1 for i in A.ins if i.ws)}", file=sys.stderr)
    return "\n".join(hdr) + "\n" + A.text()

if __name__ == "__main__":
    out = sys.argv[1] if len(sys.argv) > 1 else "k.s"
    kw = {}
    for a in sys.argv[2:]:
        k, val = a.split("=")
        kw[k] = val.replace("_", " ") if k in STRK else int(val)
    open(out, "w").write(gen(**kw))
```

```python
import sys, struct
from asmlib import Asm
NAME = "adaLN_cond__sliding_block_cached__dense_activation_silu__decode"

EPOCH = 0
MODP = 0x1000
QPA  = 0x20000
QPB  = 0x60000
OPA  = 0xA0000
OPB  = 0xE0000
STA  = 0x120000
STB  = 0x122000
YX   = 0x2100
YA   = 0x124000
YB   = 0x138000
MF   = 0x14C000
OF   = 0x14D000
CF   = 0x14E000
YF   = 0x14F000
AP   = 0x150000
MP   = 0x170000
WS_USED = 0x1B0000
DBG  = 0x200000
QB = QPB - QPA; OB = OPB - OPA; SB = STB - STA; YBO = YB - YA

LK = 0; LV = 65536; S0 = 131072; S1 = 147456
SM = LV + 49152
SR = LV + 32768
FL = S0
F_M, F_W, F_K, F_QP, F_KR, F_MC, F_V, F_Q, F_P = 0, 4, 8, 12, 16, 32, 40, 48, 192
F_T1, F_T2, F_CR, F_R, F_RC = 36, 44, 208, 224, 228
ML = S0 + 64
HS = S0 + 512; QL = S0 + 1024; PAR = S0 + 2304; TAGL = S0 + 3328; PX = S0 + 3584; RED = S0 + 5632
RS = 272

LOG2E = 1.4426950408889634
def f2u(x): return struct.unpack("<I", struct.pack("<f", x))[0]
SC = f2u(128 ** -0.5 * LOG2E)
STRK = ("ntw", "ntk", "nts", "osf")

HEADER = """
;
;   * across groups: 8-byte granules {bf16 pair, tag}, write-through stores, L1-bypassing loads; tag = f(epoch word of ws),
; @launch grid=(256,1,1) block=(384,1,1) lds=163840
"""

class Regs:
    def __init__(self, start=1):
        self.n = start; self.hi = start
    def a(self, cnt=1, al=None):
        al = al or (1 if cnt == 1 else 2)
        self.n = (self.n + al - 1) // al * al
        r = self.n; self.n += cnt; self.hi = max(self.hi, self.n)
        return r
def v(r, n=1): return f"v{r}" if n == 1 else f"v[{r}:{r+n-1}]"
def s(r, n=1): return f"s{r}" if n == 1 else f"s[{r}:{r+n-1}]"

def gen(WA=20, WB=20, WC=22, VA=32, VB=24, VC=28, TI=16, NI=48, NC=48, RP=0, QT=0, OT=1, TLB=0, BO=1, BT=9, EW=0, EM=0, SH=1, DM=0, DA=0, DF=0, MFE=0, ST=1, GR=0, GF=0, GT=1, EI=0, TB=0, WM=1, QBD=0, NQ=48, WBL=0, OPT=0, osf='', nts='', W1F=1, TMA=40, TME=16, KF=4, T2=20, TM=12, TM1=16, T3=32, QD=0, D2=8, PS=0, PN=0, PB=16, GK=7, TH=99, RA=1, RX=2, DG=60, DQ=64, DP=20, QORD=0, MFG=1,
        dbg=False, FINE=0, NA=8, NT=100000, CODE_PF=1, ntw="nt", ntk="nt", DUR=0, FREM=0):
    A = Asm()
    hdr = HEADER.strip().split("\n")
    A('.amdgcn_target "amdgcn-amd-amdhsa--gfx950"')
    A(".text"); A(f".globl {NAME}_kernel"); A(".p2align 8"); A(f".type {NAME}_kernel,@function"); A(f"{NAME}_kernel:")
    sWV, sX8, sR = 3, 36, 37
    sKO, sT0, sT1, sT2, sT3 = 38, 39, 40, 41, 42
    sTAG, sCNT, sB, sS, sW = 43, 44, 45, 46, 47
    sM0, sM1, sM2 = 48, 50, 52
    sAB = 54; sJ = 55; sT4 = 56; sT5 = 57; sT6 = 58; sT7 = 59
    sST = 60
    sREM, sLO, sHI, sTQ = 94, 95, 93, 92
    if DUR: pass
    srdWS, srdX = 16, 28
    vL, vG, vN = 1, 2, 3
    WSN = WS_USED if not dbg else 0x400000
    out_of_line = []
    def stamp(idx):
        if dbg and not FINE: A(f"s_memrealtime {s(64+2*idx,2)}")
    def fine(sec, idx):
        if dbg and FINE == sec: A(f"s_memtime {s(64+2*idx,2)}")
    def stamp_flush():
        if dbg:
            A("s_waitcnt lgkmcnt(0)")
            A("s_mov_b64 exec, -1")
            A(f"v_writelane_b32 v255, s{sST+2}, 0")
            for i in range(1, 14): A(f"v_writelane_b32 v255, s{64+2*i}, {i}")
            A(f"s_memrealtime {s(sST,2)}" if not FINE else f"s_memtime {s(sST,2)}"); A("s_waitcnt lgkmcnt(0)"); A(f"v_writelane_b32 v255, s{sST}, 14")
            A(f"s_mul_i32 s{sST}, s2, 6"); A(f"s_add_u32 s{sST}, s{sST}, s{sWV}"); A(f"s_lshl_b32 s{sST}, s{sST}, 7"); A(f"s_add_u32 s{sST}, s{sST}, {DBG}")
            A("v_and_b32 v254, 63, v0"); A("v_lshlrev_b32 v254, 2, v254")
            A("s_mov_b64 exec, 0xffff")
            A(f"buffer_store_dword v255, v254, {s(srdWS,4)}, s{sST} offen")
    def lg(n): return 0 if dbg else min(n, 15)
    def setexec(m):
        lo, hi = m & 0xffffffff, m >> 32
        if m == (1 << 64) - 1: A("s_mov_b64 exec, -1")
        elif hi == 0 and lo < 0x80000000: A(f"s_mov_b64 exec, {hex(lo)}")
        else: A(f"s_mov_b32 exec_lo, {hex(lo)}"); A(f"s_mov_b32 exec_hi, {hex(hi)}")
    def srd_tail(r, nbytes):
        A(f"s_mov_b32 s{r+2}, {nbytes}"); A(f"s_mov_b32 s{r+3}, 0x20000")
    def backoff(n):
        while n > 0: A(f"s_sleep {min(n, 100)}"); n -= 100
    lab = [0]
    def spin(va, off, vt, n=1, sleep=0):
        lab[0] += 1; L = f"L_spin{lab[0]}"
        A(f"{L}:")
        if n == 1: A(f"ds_read_b32 v{vt}, v{va} offset:{off}")
        else: A(f"ds_read_b128 {v(vt,4)}, v{va} offset:{off}")
        A("s_waitcnt lgkmcnt(0)")
        if n == 4:
            A(f"v_min3_u32 v{vt+4}, v{vt}, v{vt+1}, v{vt+2}"); A(f"v_min_u32 v{vt+4}, v{vt+4}, v{vt+3}")
        A(f"v_cmp_eq_u32 vcc, 0, v{vt + (4 if n == 4 else 0)}")
        if sleep:
            A(f"s_cbranch_vccz {L}_ok"); A(f"s_sleep {sleep}"); A(f"s_branch {L}"); A(f"{L}_ok:")
        else:
            A(f"s_cbranch_vccnz {L}")
    def smul_add(dst, terms, const=0, tmp=sT7):
        first = True
        for (r, op, k) in terms:
            d = dst if first else tmp
            A(f"s_lshl_b32 s{d}, s{r}, {k}" if op == "shl" else f"s_mul_i32 s{d}, s{r}, {k}")
            if not first: A(f"s_add_u32 s{dst}, s{dst}, s{tmp}")
            first = False
        if const: A(f"s_add_u32 s{dst}, s{dst}, {const}")
    def tagcheck(rs, acc, tag=sTAG):
        A(f"v_xor_b32 v{acc}, s{tag}, v{rs[0]}")
        for r in rs[1:]: A(f"v_bitop3_b32 v{acc}, v{r}, s{tag}, v{acc} bitop3:0xbe")
        A(f"v_cmp_ne_u32 vcc, 0, v{acc}")
    def sentcheck(rs, acc):
        if len(rs) == 1: A(f"v_cmp_eq_u32 vcc, -1, v{rs[0]}"); return
        if len(rs) == 2: A(f"v_max_u32 v{acc}, v{rs[0]}, v{rs[1]}"); i = 2
        else: A(f"v_max3_u32 v{acc}, v{rs[0]}, v{rs[1]}, v{rs[2]}"); i = 3
        while i < len(rs):
            if i + 1 < len(rs): A(f"v_max3_u32 v{acc}, v{acc}, v{rs[i]}, v{rs[i+1]}"); i += 2
            else: A(f"v_max_u32 v{acc}, v{acc}, v{rs[i]}"); i += 1
        A(f"v_cmp_eq_u32 vcc, -1, v{acc}")
    def poll(lbl, loads, check, first_wait=0):
        A(f"s_waitcnt vmcnt({first_wait})")
        check()
        A(f"s_cbranch_vccnz {lbl}_re")
        A(f"{lbl}_ok:")
        def blk():
            A(f"{lbl}_re:")
            A(f"s_mov_b32 s{sCNT}, 0")
            A(f"{lbl}_re2:")
            loads()
            A(f"s_add_u32 s{sCNT}, s{sCNT}, 1"); A(f"s_cmp_gt_u32 s{sCNT}, {NT}")
            A("s_waitcnt vmcnt(0)")
            A(f"s_cbranch_scc1 {lbl}_ok")
            check()
            A(f"s_cbranch_vccnz {lbl}_re2")
            A(f"s_branch {lbl}_ok")
        out_of_line.append(blk)
    def ipoll(lbl, loads, body, gap=0):
        A(f"s_mov_b32 s{sCNT}, 0")
        A(f"s_branch {lbl}_m")
        A(f"{lbl}_re:")
        A(f"s_add_u32 s{sCNT}, s{sCNT}, 1"); A(f"s_cmp_gt_u32 s{sCNT}, {NT}"); A(f"s_cbranch_scc1 {lbl}_ok")
        backoff(gap)
        loads()
        A(f"{lbl}_m:")
        body()
        A(f"s_cbranch_vccnz {lbl}_re")
        A(f"{lbl}_ok:")
    def gather_sum(dst, srcs, acc):
        n = len(srcs)
        for i, q in enumerate(srcs):
            A(f"s_waitcnt vmcnt({n-1-i})")
            A(f"v_xor_b32 v{acc}, s{sTAG}, v{q+3}" if i == 0 else f"v_bitop3_b32 v{acc}, v{q+3}, s{sTAG}, v{acc} bitop3:0xbe")
            if i == n - 1: A(f"v_cmp_ne_u32 vcc, 0, v{acc}")
            for c in (0, 2, 1, 3):
                A(f"v_dot2_f32_bf16 v{dst+c}, v{q + (c & 2)}, s{sHI if c & 1 else sLO}, {'0' if i == 0 else 'v%d' % (dst+c)}")
    def flagwait(lbl, va, so, vt, mask):
        A(f"s_mov_b32 s{sCNT}, 0"); setexec(mask)
        A(f"{lbl}:")
        A(f"buffer_load_dword v{vt}, v{va}, {s(srdWS,4)}, s{so} offen sc1")
        A(f"s_add_u32 s{sCNT}, s{sCNT}, 1"); A(f"s_cmp_gt_u32 s{sCNT}, {NT}")
        A("s_waitcnt vmcnt(0)")
        A(f"s_cbranch_scc1 {lbl}_x")
        A(f"v_cmp_ne_u32 vcc, s{sTAG}, v{vt}")
        A(f"s_cbranch_vccnz {lbl}")
        A(f"{lbl}_x:")
        A("s_mov_b64 exec, -1")
    def flagset(vt, so):
        A("s_waitcnt vmcnt(0)")
        A("s_mov_b64 exec, 1")
        A(f"v_mov_b32 v{vt}, 0"); A(f"v_mov_b32 v{vt+1}, s{sTAG}")
        A(f"buffer_store_dword v{vt+1}, v{vt}, {s(srdWS,4)}, s{so} offen sc1")
        A("s_mov_b64 exec, -1")
    def sum_pairs(dst, srcs):
        for i, q in enumerate(srcs):
            for c in range(4):
                A(f"v_dot2_f32_bf16 v{dst+c}, v{q + (c & 2)}, s{sHI if c & 1 else sLO}, {'0' if i == 0 else 'v%d' % (dst+c)}")
    def dot_consts():
        A(f"s_mov_b32 s{sLO}, 0x3f80"); A(f"s_mov_b32 s{sHI}, 0x3f800000")

    srdWM, srdWQ, srdK, srdV, srdW, srdW2, srdF = 8, 12, 20, 24, 4, 28, 4
    if dbg or DUR: A(f"s_memrealtime {s(sST+2,2)}")
    A(f"s_load_dwordx2 {s(srdK,2)}, s[0:1], 8")
    A(f"s_load_dwordx2 {s(srdWM,2)}, s[0:1], 72")
    A("s_cmp_ge_u32 s2, 256"); A("s_cbranch_scc1 L_end")
    A("v_lshrrev_b32 v1, 6, v0")
    A(f"s_and_b32 s{sX8}, s2, 7"); A(f"s_lshr_b32 s{sR}, s2, 3")
    A(f"v_readfirstlane_b32 s{sWV}, v1")
    A("v_and_b32 v1, 63, v0")
    A("v_lshrrev_b32 v2, 4, v1"); A("v_and_b32 v3, 15, v1")
    A(f"s_lshr_b32 s{sB}, s{sR}, 4"); A(f"s_and_b32 s{sS}, s{sR}, 15")
    sRHO = 35; P = dict(cl=34, rp=33)
    A(f"s_cmp_lg_u32 s{sWV}, 0"); A("s_cbranch_scc1 L_notloader")
    def prod_decode():
        A(f"s_bfe_u32 s{P['cl']}, s2, 0x40002"); A(f"s_and_b32 s{P['rp']}, s2, 3")

    Lr = Regs(4)
    lWM = Lr.a(4); lWQ = Lr.a(4); lK = Lr.a(4); lV = Lr.a(2); lW = Lr.a(4); lW1 = Lr.a(4); lT0 = Lr.a(); lT1 = Lr.a(); lF = Lr.a(); lOne = Lr.a(); lS = Lr.a(6, 4); lA = Lr.a(4)
    sRO = 32
    A("")
    prod_decode()
    A(f"v_xor_b32 v{lT0}, v{vG}, v{vN}"); A(f"v_lshlrev_b32 v{lT0}, 4, v{lT0}"); A(f"v_lshl_or_b32 v{lK}, v{vG}, 8, v{lT0}")
    for j in range(1, 4): A(f"v_xor_b32 v{lK+j}, {64*j}, v{lK}")
    A(f"v_and_b32 v{lT0}, 7, v{vL}"); A(f"v_lshlrev_b32 v{lT1}, 1, v{vG}"); A(f"v_xor_b32 v{lT0}, v{lT0}, v{lT1}"); A(f"v_lshlrev_b32 v{lT0}, 4, v{lT0}")
    A(f"v_lshrrev_b32 v{lT1}, 3, v{vL}")
    A(f"v_mad_u32_u24 v{lWM}, v{lT1}, s{sT4}, v{lT0}") if False else None
    A(f"v_mul_u32_u24 v{lWM}, 6144, v{lT1}"); A(f"v_add_u32 v{lWM}, v{lWM}, v{lT0}")
    for j in range(1, 4): A(f"v_add_u32 v{lWM+j}, {j*(8*6144-1024)}, v{lWM}")
    smul_add(sT0, [(P['rp'], "mul", 128*6144), (P['cl'], "shl", 7)])
    smul_add(sKO, [(sB, "shl", 26), (sX8, "shl", 23), (sS, "shl", 16)], 28672*256)
    smul_add(sT2, [(sR, "mul", RA), (sX8, "mul", RX)]); A(f"s_and_b32 s{sT2}, s{sT2}, 15"); A(f"s_lshl_b32 s{sT2}, s{sT2}, 12")
    srd_tail(srdWM, 512*6144); srd_tail(srdK, 65536)
    A(f"s_cmp_ge_u32 s{sR}, 24")
    A("s_cselect_b64 vcc, -1, 0")
    A(f"s_cselect_b32 s{sT1}, s{sT0}, s{sT2}"); A(f"s_cselect_b32 m0, {SM}, 0")
    A(f"s_mov_b32 s{sT5}, {65536*ST}")
    A(f"s_cselect_b32 s{sT5}, {32*6144}, s{sT5}"); A(f"s_cselect_b32 s{sT6}, -1, 0xffff"); A(f"s_cselect_b32 s{srdF+2}, s{srdWM+2}, s{srdK+2}")
    A(f"s_cselect_b32 s{sT3}, 0, 4"); A(f"s_lshr_b32 s{sT5}, s{sT5}, s{sT3}")
    for j in range(4): A(f"v_cndmask_b32 v{lA+j}, v{lK+j}, v{lWM+j}, vcc")
    A(f"s_mov_b32 s{srdF+3}, 0x20000")
    A("s_waitcnt lgkmcnt(0)")
    A(f"s_add_u32 s{srdK}, s{srdK}, s{sKO}"); A(f"s_addc_u32 s{srdK+1}, s{srdK+1}, 0")
    A(f"s_cmp_ge_u32 s{sR}, 24")
    A(f"s_cselect_b64 {s(srdF,2)}, {s(srdWM,2)}, {s(srdK,2)}")
    assert KF >= 4 and TI >= 16
    for gi in range(4):
        for j in range(4): A(f"buffer_load_dwordx4 v{lA+j}, {s(srdF,4)}, s{sT1} offen offset:{j*1024} {ntk} lds")
        if gi == 0: stamp(2)
        A(f"s_add_u32 s{sT1}, s{sT1}, s{sT5}"); A(f"s_and_b32 s{sT1}, s{sT1}, s{sT6}")
        if gi < 3: A("s_add_u32 m0, m0, 4096")
        if TB and gi == TB - 1:
            A(f"s_cmp_ge_u32 s{sR}, 24"); A("s_cbranch_scc1 L_l_go")
            A(f"s_waitcnt vmcnt({4*TB-1})")
            A("L_l_go:")
    A("s_setprio 3")
    A(f"s_load_dwordx2 {s(srdWQ,2)}, s[0:1], 24")
    A(f"s_load_dwordx2 {s(srdV,2)}, s[0:1], 16")
    A(f"v_lshlrev_b32 v{lF}, 4, v{vL}"); A(f"v_add_u32 v{lF}, {FL}, v{lF}")
    A(f"v_subrev_u32 v{lOne}, 4, v{vL}"); A(f"v_cmp_gt_u32 vcc, 8, v{lOne}"); A(f"v_cndmask_b32 v{lS}, 0, -1, vcc")
    for i in range(1, 4): A(f"v_mov_b32 v{lS+i}, v{lS}")
    A("s_mov_b64 exec, 0xffff")
    A(f"ds_write_b128 v{lF}, {v(lS,4)}")
    A("s_mov_b64 exec, -1")
    A(f"v_lshl_or_b32 v{lWQ}, v{lT1}, 13, v{lT0}")
    A(f"s_lshr_b32 s{sRHO}, s{sR}, 3")
    A(f"s_cmp_ge_u32 s{sR}, 24"); A(f"s_cselect_b32 s{sT2}, s{sT2}, s{sT1}")
    A("s_waitcnt lgkmcnt(0)")
    A("s_barrier")
    def group(srd, vr, so, wait, nt=ntk):
        for j in range(4):
            if wait is not None: A(f"s_waitcnt vmcnt({wait})")
            A(f"buffer_load_dwordx4 v{vr[j]}, {s(srd,4)}, s{so} offen offset:{j*1024} {nt} lds")
    def flag(off, cnt):
        A(f"s_waitcnt vmcnt({cnt})"); A(f"ds_write_b32 v{lF}, v{lOne} offset:{off}")
    kr = [lK+j for j in range(4)]
    def late_setup():
        for j in range(1, 4): A(f"v_add_u32 v{lWQ+j}, {j*(8*8192-1024)}, v{lWQ}")
        srd_tail(srdWQ, 512*8192)
        A(f"s_and_b32 s{sT3}, s{sR}, 7")
        smul_add(sT1, [(sRHO, "shl", 20), (sX8, "shl", 10), (sT3, "shl", 7)])
        A(f"v_mov_b32 v{lF}, {FL}"); A(f"v_mov_b32 v{lOne}, 1")
        A(f"s_lshr_b32 s{sT3}, s2, 2"); A(f"s_add_u32 s{sT3}, s{sT3}, {-16 if RP else 16}")
        smul_add(sRO, [(P['rp'], "mul", 128*6144), (sT3, "shl", 7)])
    def kbase():
        A(f"s_add_u32 s{srdK}, s{srdK}, s{sKO}"); A(f"s_addc_u32 s{srdK+1}, s{srdK+1}, 0")
    def pace(extra=0):
        if PS: A(f"s_sleep {PS}")
        n = PN + (extra if PS or PN else 0)
        while n >= 4: k = min(n // 4, 16); A(f"s_nop {k-1}"); n -= 4*k
    vr = [lV, lV+1, lV, lV+1]
    def kvloop(name, srd, vr, end, TT):
        A(f"{name}:")
        group(srd, vr, sT2, TT-1)
        A(f"s_add_u32 s{sT2}, s{sT2}, {4096*ST}"); A(f"s_and_b32 s{sT2}, s{sT2}, 0xffff")
        A("s_add_u32 m0, m0, 4096"); A(f"s_cmp_lt_u32 m0, {end}"); A(f"s_cbranch_scc1 {name}")
    def setup2():
        A(f"s_cmp_lt_u32 s{sR}, 16"); A(f"s_cselect_b32 s{sT4}, 32, 48")
        A(f"s_load_dwordx2 {s(srdW,2)}, s[0:1], s{sT4}")
        A(f"s_load_dwordx2 {s(srdW2,2)}, s[0:1], 56")
        if dbg: A(f"s_load_dwordx2 {s(srdWS,2)}, s[0:1], 96"); srd_tail(srdWS, WSN)
        A(f"s_add_u32 s{srdV}, s{srdV}, s{sKO}"); A(f"s_addc_u32 s{srdV+1}, s{srdV+1}, 0"); srd_tail(srdV, 65536)
        A(f"v_lshlrev_b32 v{lT0}, 1, v{vG}"); A(f"v_xor_b32 v{lT0}, v{lT0}, v{vN}"); A(f"v_lshlrev_b32 v{lT0}, 4, v{lT0}")
        A(f"v_lshl_or_b32 v{lV}, v{vG}, 8, v{lT0}"); A(f"v_xor_b32 v{lV+1}, 128, v{lV}")
        A(f"v_lshl_or_b32 v{lW}, v{vG}, 10, v{lT0}"); A(f"v_xor_b32 v{lT0}, 128, v{lW}")
        A(f"v_add_u32 v{lW+1}, 3072, v{lT0}"); A(f"v_add_u32 v{lW+2}, 6144, v{lW}"); A(f"v_add_u32 v{lW+3}, 9216, v{lT0}")
    wr = [lW+j for j in range(4)]
    def wo_setup():
        spin(lF, F_KR, lS, 4)
        srd_tail(srdW, 4096*1024)
        A(f"s_lshr_b32 s{sT1}, s{sR}, 2"); A(f"s_and_b32 s{sT3}, s{sR}, 3")
        smul_add(sT0, [(sX8, "shl", 19), (sT1, "shl", 17), (sT3, "shl", 8)])
        A("s_mov_b32 m0, 0")
    def wog(i):
        def f(w):
            group(srdW, wr, sT0, w, ntw)
            if i < 7: A(f"s_add_u32 s{sT0}, s{sT0}, 16384"); A("s_add_u32 m0, m0, 4096")
        return f
    def mlp_setup():
        A(f"v_and_b32 v{lT0}, 1, v{vG}"); A(f"v_lshlrev_b32 v{lT0}, 1, v{lT0}"); A(f"v_and_b32 v{lT1}, 3, v{vL}"); A(f"v_xor_b32 v{lT0}, v{lT0}, v{lT1}"); A(f"v_lshlrev_b32 v{lT0}, 4, v{lT0}")
        A(f"v_lshrrev_b32 v{lT1}, 2, v{vL}"); A(f"v_mul_u32_u24 v{lT1}, 3584, v{lT1}"); A(f"v_add_u32 v{lW1}, v{lT0}, v{lT1}")
        for j in range(1, 4): A(f"v_add_u32 v{lW1+j}, {j*(16*3584-1024)}, v{lW1}")
        srd_tail(srdW, 512*3584); srd_tail(srdW2, 1792*1024)
        spin(lF, F_KR, lS, 4)
        A(f"s_mul_i32 s{sJ}, s{sX8}, 7"); A(f"s_add_u32 s{sJ}, s{sJ}, s{sR}"); A(f"s_sub_u32 s{sJ}, s{sJ}, 16")
        A(f"s_lshl_b32 s{sT0}, s{sJ}, 6"); A(f"s_lshl_b32 s{sT1}, s{sJ}, 15")
        A("s_mov_b32 m0, 0")
    def w1g(i, nt=ntw):
        def f(w):
            group(srdW, [lW1+j for j in range(4)], sT0, w, nt)
            A(f"s_add_u32 s{sT0}, s{sT0}, {64*3584}"); A("s_add_u32 m0, m0, 4096")
        return f
    def w2g(i, nt=ntw):
        def f(w):
            group(srdW2, wr, sT1, w, nt)
            if i < 7:
                A(f"s_add_u32 s{sT1}, s{sT1}, 16384" if i % 2 == 0 else f"s_sub_u32 s{sT1}, s{sT1}, {16384-256}"); A("s_add_u32 m0, m0, 4096")
        return f
    def stream(sfx, seq, W, WV, NI=NI):
        seq = list(seq); n = 16; pend = [(16, F_M)] if seq[0] == "m" else []; kidx = 0 if pend else 4; cnt = {"m": 0, "q": 0, "r": 0}
        i = 4
        while i < len(seq) or pend:
            TT = TI if n < NI else W
            while pend and n - pend[0][0] >= TT - 1:
                flag(pend[0][1], n - pend[0][0])
                if pend[0][1] == F_M: stamp(7)
                pend.pop(0)
            if n == NI and pend and n - pend[0][0] >= TI:
                flag(pend[0][1], n - pend[0][0])
                if pend[0][1] == F_M: stamp(7)
                pend.pop(0)
            if i >= len(seq) and not pend: break
            kind = seq[i] if i < len(seq) else "k"
            w = TT - 1 if n + 3 >= TT else None
            if kind == "k":
                A(f"s_mov_b32 m0, {kidx*4096}")
                group(srdK, kr, sT2, w)
                A(f"s_add_u32 s{sT2}, s{sT2}, {4096*ST}"); A(f"s_and_b32 s{sT2}, s{sT2}, 0xffff"); kidx += 1
            else:
                srd, vq, so, base, st, fo = {"m": (srdWM, lWM, sT0, SM, 6144, F_M), "q": (srdWQ, lWQ, sT1, S1, 8192, F_W), "r": (srdWM, lWM, sRO, SR, 6144, F_R)}[kind]
                A(f"s_mov_b32 m0, {base + 4096*cnt[kind]}")
                group(srd, [vq+j for j in range(4)], so, w, ntw)
                cnt[kind] += 1
                if cnt[kind] < 4: A(f"s_add_u32 s{so}, s{so}, {32*st}")
                else: pend.append((n + 4, fo))
            n += 4; i += 1
        A(f"s_mov_b32 m0, {kidx*4096}")
        assert kidx < 16
        stamp(1)
        kvloop("L_k3" + sfx, srdK, kr, LV, W)
        stamp(3)
        gv = min((W + 3) // 4, GK)
        assert WV >= W
        late_r = RP == 2 and sfx != "a"
        if late_r:
            if "m" in seq: spin(lF, F_MC, lS)
            for gi in range(4):
                A(f"s_mov_b32 m0, {SM + 4096*gi}")
                group(srdWM, [lWM+j for j in range(4)], sRO, W-1, ntw)
                if gi < 3: A(f"s_add_u32 s{sRO}, s{sRO}, {32*6144}")
            A(f"s_mov_b32 m0, {LV}")
            gk = max(gv - 4, 1)
            kvloop("L_v0" + sfx, srdV, vr, LV + gk*4096, W)
            flag(F_K, min(W-1, 16 + 4*gk))
            if gv > gk: kvloop("L_v1" + sfx, srdV, vr, LV + gv*4096, W)
            flag(F_R, min(W-1, 4*gv))
        else:
            kvloop("L_v1" + sfx, srdV, vr, LV + gv*4096, W)
            flag(F_K, min(W-1, 4*gv))
        stamp(4)
        assert gv < 8
        kvloop("L_v2" + sfx, srdV, vr, SR, WV)
        if late_r:
            kvloop("L_v6" + sfx, srdV, vr, SM, WV)
            spin(lF, F_RC, lS)
        else:
            if "r" in seq: spin(lF, F_RC, lS)
            if "m" in seq: spin(lF, F_MC, lS)
        if EW and sfx == "a":
            if EW > 8: kvloop("L_v4" + sfx, srdV, vr, LV + EW*4096, WV)
            wo_setup()
            for i in range(8): wog(i)(WV - 1)
            A(f"s_mov_b32 m0, {LV + EW*4096}")
        if EM and sfx == "b":
            if EM > 8: kvloop("L_v4" + sfx, srdV, vr, LV + EM*4096, WV)
            A(f"s_cmp_eq_u32 s{sR}, 23"); A("s_cbranch_scc1 L_v5b")
            mlp_setup()
            for i in range(8): w1g(i)(TME - 1)
            A(f"s_mov_b32 m0, {LV + EM*4096}")
            A("L_v5b:")
        kvloop("L_v3" + sfx, srdV, vr, S0, WV)
        stamp(5)
    A("")
    late_setup(); setup2()
    A(f"s_cmp_ge_u32 s{sR}, 24"); A("s_cbranch_scc1 L_l_crit")
    A(f"s_cmp_lt_u32 s{sR}, 16"); A("s_cbranch_scc1 L_l_light")
    stream("b", "k"*KF + "qqqq" + "rrrr"*(RP == 1), WB, VB)
    A(f"s_sub_u32 s{sT0}, s{sR}, 16"); A(f"s_cmp_lt_u32 s{sT0}, 7"); A("s_cbranch_scc1 L_l_mlp")
    A("s_branch L_l_plain")
    A("L_l_light:")
    stream("a", "k"*KF + "qqqq" + "rrrr"*(RP == 0), WA, VA)
    A("s_branch L_l_t1")
    A("L_l_crit:")
    stream("c", "mmmm" + "k"*KF + "qqqq" + "rrrr"*(RP == 1), WC, VC, NC)
    if SH:
        A(f"s_cmp_eq_u32 s{sR}, 31"); A("s_cbranch_scc1 L_l_plain")
        A(f"s_sub_u32 s{sR}, s{sR}, 8")
        mlp_setup()
        A(f"s_add_u32 s{sT0}, s{sT0}, {(8-SH+1)*64*3584}")
        flag(F_V, 8)
        A("s_waitcnt vmcnt(0)"); A("s_barrier")
        A("s_barrier")
        backoff(DM)
        for i in range(SH - 1): w1g(i, nts)(TM1 - 1)
        for i in range(8): w2g(i, nts)(TMA - 1)
        A("s_branch L_l_end")
    A("L_l_plain:")
    flag(F_V, 8)
    A("s_waitcnt vmcnt(0)"); A("s_barrier")
    if WBL:
        A(f"s_cmp_eq_u32 s{sR}, 31"); A("s_cbranch_scc0 L_l_end")
        backoff(WBL)
        A("buffer_wbl2 sc1"); A("s_waitcnt vmcnt(0)")
    A("L_l_end:")
    stamp_flush()
    A("s_endpgm")
    def post_v(name, groups, TT, marks):
        n = 0; gi = 0
        def rd(): A(f"ds_read_b128 {v(lS,4)}, v{lF} offset:{F_CR}")
        def ck():
            A("s_waitcnt lgkmcnt(0)")
            A(f"v_min3_u32 v{lS+4}, v{lS}, v{lS+1}, v{lS+2}"); A(f"v_min_u32 v{lS+4}, v{lS+4}, v{lS+3}"); A(f"v_cmp_eq_u32 vcc, 0, v{lS+4}")
        while gi < len(groups) and n - TT < -8: groups[gi](TT - 1); n += 4; gi += 1
        flag(F_V, n + 8)
        rd(); ck()
        while gi < len(groups) and n - TT < 0: groups[gi](TT - 1); n += 4; gi += 1
        g0 = gi
        A(f"s_cbranch_vccnz {name}_late")
        A(f"s_waitcnt vmcnt({n})")
        for g in range(g0, len(groups)):
            if g > g0: A(f"s_branch {name}_c{g}"); A(f"{name}_b{g}:")
            A("s_barrier")
            A(f"{name}_c{g}:")
            groups[g](T3 - 1)
        A(f"s_branch {name}_e")
        A(f"{name}_late:")
        A(f"s_waitcnt vmcnt({n})")
        for g in range(g0, len(groups)):
            if g > g0: ck(); A(f"s_cbranch_vccz {name}_b{g}")
            rd()
            groups[g](T3 - 1)
        A("s_barrier")
        A(f"{name}_e:")
        if marks: A("s_waitcnt vmcnt(0)"); A("s_barrier")
    A("")
    A("L_l_t1:")
    if EW: A("s_branch L_l_plain")
    wo_setup()
    if BT:
        for i in range(BT - 1): wog(i)(VA - 1)
        flag(F_V, 8 + 4*(BT-1))
        A(f"s_waitcnt vmcnt({4*(BT-1)})"); A("s_barrier")
        A("s_barrier")
        for i in range(BT - 1, 8): wog(i)(63)
        A("s_waitcnt vmcnt(0)"); A("s_barrier")
    else:
        post_v("L_pw", [wog(i) for i in range(8)], T2, [32])
    A("s_branch L_l_end")
    A("")
    A("L_l_mlp:")
    if not EM: mlp_setup()
    else: srd_tail(srdW2, 1792*1024)
    def w1s(i):
        def f(w): w1g(i)(min(w, TM1 - 1))
        return f
    def w2s(i):
        def f(w): w2g(i)(TMA - 1)
        return f
    flag(F_V, 8)
    def rd(): A(f"ds_read_b128 {v(lS,4)}, v{lF} offset:{F_CR}")
    def ck():
        A("s_waitcnt lgkmcnt(0)")
        A(f"v_max3_u32 v{lS+4}, v{lS}, v{lS+1}, v{lS+2}"); A(f"v_max_u32 v{lS+4}, v{lS+4}, v{lS+3}"); A(f"v_cmp_eq_u32 vcc, 0, v{lS+4}")
    if EI:
        rd(); ck()
        A("s_waitcnt vmcnt(0)")
        for g in range(8):
            if g: ck()
            A(f"s_cbranch_vccz L_m_b{g}")
            rd()
            w1g(g)(TME - 1)
        A("s_barrier"); A("s_barrier")
        A("s_branch L_m_w2")
        for g in range(8):
            if g: A(f"s_branch L_m_c{g}")
            A(f"L_m_b{g}:")
            A("s_barrier"); A("s_barrier")
            A(f"L_m_c{g}:")
            w1s(g)(63)
        A("L_m_w2:")
    else:
        A("s_waitcnt vmcnt(0)"); A("s_barrier"); A("s_barrier")
        for i in range(8): w1s(i)(63)
    for i in range(8): w2s(i)(0)
    A("s_waitcnt vmcnt(0)"); A("s_barrier")
    A("s_branch L_l_end")

    A("L_notloader:")
    A(f"s_load_dwordx2 {s(srdWS,2)}, s[0:1], 96")
    A(f"s_load_dwordx2 {s(srdX,2)}, s[0:1], 0")
    A(f"s_cmp_lg_u32 s{sWV}, 1"); A("s_cbranch_scc1 L_compute")

    H = Regs(4)
    srdC, srdCode = 4, 24
    hT0 = H.a(); hT1 = H.a(); hT2 = H.a(); hT3 = H.a()
    hE = H.a(); hC = H.a(2); hX0 = H.a(4, 4); hX1 = H.a(4, 4); hXa = H.a(); hXb = H.a()
    hTR = H.a(4); hA = H.a(16, 4); hB = H.a(64, 4); hBq = H.a(64, 4); hD = H.a(16, 4); hF = H.a(4, 4)
    hM = H.a(4); hU = H.a(12, 4); hL16 = H.a(); hAcc = H.a(); hDum = H.a(); hFl = H.a(); hOne = H.a()
    xn = H.a(4); hHa = H.a(); hHr = H.a(); hQa = H.a(); hGa = H.a(); hGr = H.a()
    hG, hN = vG, vN
    A("")
    A("s_setprio 2")
    A(f"s_load_dwordx2 {s(srdC,2)}, s[0:1], 64")
    A(f"s_lshr_b32 s{sRHO}, s{sR}, 3")
    prod_decode()
    def c_addr(t0, t1):
        A(f"v_and_b32 v{t0}, 1, v{vN}"); A(f"v_lshlrev_b32 v{t0}, 10, v{t0}")
        A(f"v_lshrrev_b32 v{t1}, 1, v{vN}"); A(f"v_lshl_or_b32 v{t0}, v{t1}, 5, v{t0}"); A(f"v_lshl_or_b32 v{t0}, v{vG}, 3, v{t0}")
    c_addr(hT0, hT1)
    A(f"v_lshlrev_b32 v{hL16}, 4, v{vL}"); A(f"v_mov_b32 v{hT2}, 0"); A(f"v_lshlrev_b32 v{hT3}, 2, v{vL}")
    srd_tail(srdWS, WSN); srd_tail(srdC, 2048); srd_tail(srdX, 2048)
    A(f"s_lshl_b32 s{sT0}, s{P['rp']}, 8"); A(f"s_lshl_b32 s{sT1}, s{sRHO}, 8")
    A("s_waitcnt lgkmcnt(0)")
    A(f"buffer_load_dword v{hE}, v{hT2}, {s(srdWS,4)}, 0 offen sc1")
    A(f"buffer_load_dwordx2 {v(hC,2)}, v{hT0}, {s(srdC,4)}, s{sT0} offen")
    A(f"buffer_load_dwordx4 {v(hX0,4)}, v{hL16}, {s(srdX,4)}, 0 offen")
    A(f"buffer_load_dwordx4 {v(hX1,4)}, v{hL16}, {s(srdX,4)}, 0 offen offset:1024")
    for i in range(4): A(f"v_mov_b32 v{hF+i}, -1")
    A(f"v_mov_b32 v{hFl}, {FL}"); A(f"v_mov_b32 v{hOne}, 1")
    A("")
    smul_add(sT0, [(sX8, "shl", 15), (sR, "shl", 10)], OPA)
    hTch = hBq
    if OT: A(f"buffer_load_dwordx4 {v(hTch,4)}, v{hL16}, {s(srdWS,4)}, s{sT0} offen")
    A(f"buffer_store_dwordx4 {v(hF,4)}, v{hL16}, {s(srdWS,4)}, s{sT0} offen")
    sQA = 32
    A(f"v_and_b32 v{hT0}, 1, v{hG}"); A(f"v_lshlrev_b32 v{hT0}, 13, v{hT0}"); A(f"v_lshrrev_b32 v{hT1}, 1, v{hG}"); A(f"v_lshl_or_b32 v{hT0}, v{hT1}, 6, v{hT0}")
    A(f"v_and_b32 v{hT1}, 1, v{hN}"); A(f"v_lshl_or_b32 v{hT0}, v{hT1}, 7, v{hT0}"); A(f"v_cmp_eq_u32 {s(sM0,2)}, 1, v{hT1}")
    A(f"v_lshrrev_b32 v{hT1}, 1, v{hN}"); A(f"v_lshl_or_b32 v{hQa}, v{hT1}, 3, v{hT0}")
    A(f"s_and_b32 s{sT4}, s{sR}, 7")
    smul_add(sQA, [(sX8, "shl", 14), (sRHO, "shl", 11), (sT4, "shl", 8)], QPA)
    if QT:
        A(f"buffer_load_dwordx2 {v(hU+8,2)}, v{hQa}, {s(srdWS,4)}, s{sQA} offen")
    A(f"s_cmp_lg_u32 s{sS}, 0"); A("s_cbranch_scc1 L_h_c2")
    smul_add(sT0, [(sX8, "shl", 10), (sB, "shl", 9)], STA)
    setexec(0xffffffff)
    if OT: A(f"buffer_load_dwordx4 {v(hTch+4,4)}, v{hL16}, {s(srdWS,4)}, s{sT0} offen")
    A(f"buffer_store_dwordx4 {v(hF,4)}, v{hL16}, {s(srdWS,4)}, s{sT0} offen")
    A("s_mov_b64 exec, -1")
    A("L_h_c2:")
    A(f"s_cmp_ge_u32 s{sR}, 16"); A("s_cbranch_scc1 L_h_c3")
    smul_add(sT0, [(sX8, "mul", YX), (sR, "shl", 9)], YA)
    A(f"s_mul_i32 s{sT1}, s{sR}, {16-512}"); A(f"s_add_u32 s{sT1}, s{sT1}, 8192")
    A(f"v_mov_b32 v{hT0}, v{hL16}"); A(f"v_writelane_b32 v{hT0}, s{sT1}, 32")
    setexec(0x1ffffffff)
    if OT: A(f"buffer_load_dwordx4 {v(hTch+8,4)}, v{hT0}, {s(srdWS,4)}, s{sT0} offen")
    A(f"buffer_store_dwordx4 {v(hF,4)}, v{hT0}, {s(srdWS,4)}, s{sT0} offen")
    A("s_mov_b64 exec, -1")
    A("L_h_c3:")
    if CODE_PF:
        A(f"s_getpc_b64 {s(srdCode,2)}")
        A("L_pc:")
        A(f"s_sub_u32 s{srdCode}, s{srdCode}, L_pc-{NAME}_kernel"); A(f"s_subb_u32 s{srdCode+1}, s{srdCode+1}, 0")
        srd_tail(srdCode, f"L_code_end-{NAME}_kernel")
        A(f"v_lshlrev_b32 v{hT1}, 7, v{vL}"); A(f"s_mul_i32 s{sT0}, s{sR}, 768")
        A("s_mov_b64 exec, 0x3f")
        A(f"buffer_load_dword v{hDum}, v{hT1}, {s(srdCode,4)}, s{sT0} offen")
        A("s_mov_b64 exec, -1")
    NPF = 1 if CODE_PF else 0
    def tr128_base(dst4, t0, t1, lbase):
        A(f"v_lshrrev_b32 v{t0}, 2, v{vL}"); A(f"v_bfe_u32 v{t1}, v{vL}, 3, 2")
        A(f"v_lshlrev_b32 v{t1}, 5, v{t1}"); A(f"v_lshl_or_b32 v{t0}, v{t0}, 7, v{t1}")
        A(f"v_and_b32 v{t1}, 3, v{vL}"); A(f"v_lshl_or_b32 v{t0}, v{t1}, 3, v{t0}")
        A(f"v_add_u32 v{dst4}, {lbase}, v{t0}")
        for t in range(1, 4): A(f"v_xor_b32 v{dst4+t}, {32*t}, v{dst4}")
    def tr128_read(dst, base4, off):
        for sg in range(4):
            for t in range(4):
                for u in range(2):
                    A(f"ds_read_b64_tr_b16 {v(dst + (sg*4 + t)*4 + 2*u, 2)}, v{base4+t} offset:{off + (32*sg + 16*u)*128}")
    A("s_barrier")
    tr128_base(hTR, hT0, hT1, SM)
    A(f"s_getreg_b32 s{sTQ}, hwreg(HW_REG_XCC_ID, 0, 3)")
    dot_consts()
    stamp(1)
    A(f"s_waitcnt vmcnt({2+1+OT+QT+NPF})")
    A(f"v_readfirstlane_b32 s{sTAG}, v{hE}")
    A(f"s_add_u32 s{sTAG}, s{sTAG}, 0x9E3779B1")
    A(f"s_add_u32 s{sTQ}, s{sTQ}, s{sTAG}")
    def mod_block(rC, rU, rA, rB, rD, rTR, rT0, rT1, rFl, rOne, crit):
        A(f"v_lshlrev_b32 v{rU+0}, 16, v{rC}"); A(f"v_and_b32 v{rU+1}, 0xffff0000, v{rC}")
        A(f"v_lshlrev_b32 v{rU+2}, 16, v{rC+1}"); A(f"v_and_b32 v{rU+3}, 0xffff0000, v{rC+1}")
        for i in range(4): A(f"v_mul_f32 v{rU+4+i}, {hex(f2u(-LOG2E))}, v{rU+i}")
        for i in range(4): A(f"v_exp_f32 v{rU+4+i}, v{rU+4+i}")
        for i in range(4): A(f"v_add_f32 v{rU+4+i}, 1.0, v{rU+4+i}")
        for i in range(4): A(f"v_rcp_f32 v{rU+4+i}, v{rU+4+i}")
        for i in range(4): A(f"v_mul_f32 v{rU+i}, v{rU+i}, v{rU+4+i}")
        A(f"v_cvt_pk_bf16_f32 v{rA}, v{rU}, v{rU+1}"); A(f"v_cvt_pk_bf16_f32 v{rA+1}, v{rU+2}, v{rU+3}")
        for sg in range(4):
            for q in range(4):
                sh = 4*sg + 2*(q >> 1)
                if sh: A(f"v_mov_b32_dpp v{rA+4*sg+q}, v{rA+(q&1)} row_shl:{sh} row_mask:0xf bank_mask:0xf bound_ctrl:1")
        smul_add(sT0, [(P['cl'], "shl", 11), (P['rp'], "shl", 9)], MODP)
        A(f"v_lshlrev_b32 v{rT0}, 3, v{vL}")
        A(f"v_mov_b32 v{rU+1}, s{sTAG}")
        spin(rFl, F_M if crit else F_R, rT1, sleep=0 if crit else 2)
        if crit: stamp(2)
        tr128_read(rB, rTR, 0)
        A(f"ds_write_b32 v{rFl}, v{rOne} offset:{F_MC if crit else F_RC}")
        for sg in range(4):
            A(f"s_waitcnt lgkmcnt({lg(25-8*sg)})")
            for t in range(4):
                A(f"v_mfma_f32_16x16x32_bf16 {v(rD+4*t,4)}, {v(rA+4*sg,4)}, {v(rB+(sg*4+t)*4,4)}, {'0' if sg == 0 else v(rD+4*t,4)}")
        for t in range(4): A(f"v_cvt_pk_bf16_f32 v{rU+2*t}, v{rD+4*t}, v{rD+4*t+1}")
        A(f"v_permlane16_swap_b32 v{rU}, v{rU+2}"); A(f"v_permlane16_swap_b32 v{rU+4}, v{rU+6}")
        A(f"v_permlane32_swap_b32 v{rU}, v{rU+4}")
        A(f"buffer_store_dwordx2 {v(rU,2)}, v{rT0}, {s(srdWS,4)}, s{sT0} offen sc1")
        if crit: stamp(3)
    A("")
    A(f"s_cmp_lt_u32 s{sR}, 24"); A("s_cbranch_scc1 L_h_m1")
    mod_block(hC, hU, hA, hB, hD, hTR, hT0, hT1, hFl, hOne, True)
    A("L_h_m1:")
    A(f"v_lshrrev_b32 v{hT0}, 5, v{vL}"); A(f"v_and_b32 v{hT1}, 31, v{vL}"); A(f"v_lshlrev_b32 v{hT1}, 4, v{hT1}"); A(f"v_lshl_or_b32 v{hGa}, v{hT0}, 11, v{hT1}")
    A(f"s_lshl_b32 s{sT0}, s{sRHO}, 12"); A(f"s_add_u32 s{sT0}, s{sT0}, {MODP}"); A(f"s_add_u32 s{sT1}, s{sT0}, {8*2048}")
    def modp_loads():
        for rp in range(4):
            A(f"buffer_load_dwordx4 {v(hB+4*rp,4)}, v{hGa}, {s(srdWS,4)}, s{sT0} offen offset:{rp*512} sc1")
            A(f"buffer_load_dwordx4 {v(hB+16+4*rp,4)}, v{hGa}, {s(srdWS,4)}, s{sT1} offen offset:{rp*512} sc1")
    A("")
    A("s_waitcnt vmcnt(0)")
    spin(hFl, F_T1, hT1, sleep=1)
    stamp(10)
    modp_loads()
    def unpack(dst, src, n):
        for i in range(n):
            A(f"v_lshlrev_b32 v{dst+2*i}, 16, v{src+i}"); A(f"v_and_b32 v{dst+2*i+1}, 0xffff0000, v{src+i}")
    def allreduce64(regs, op, tmp):
        for pat in ("quad_perm:[1,0,3,2]", "quad_perm:[2,3,0,1]", "row_half_mirror", "row_mirror"):
            for r in regs: A(f"{op}_dpp v{r}, v{r}, v{r} {pat} row_mask:0xf bank_mask:0xf bound_ctrl:1")
        for sw in ("v_permlane16_swap_b32", "v_permlane32_swap_b32"):
            for i, r in enumerate(regs): A(f"v_mov_b32 v{tmp+i}, v{r}")
            for i, r in enumerate(regs): A(f"{sw} v{tmp+i}, v{r}")
            for i, r in enumerate(regs): A(f"{op} v{r}, v{r}, v{tmp+i}")
    xs = hB + 32
    A(f"s_lshl_b32 s{sT4}, s{sRHO}, 6"); A(f"v_and_b32 v{hT0}, 60, v{vL}"); A(f"v_add_u32 v{hT0}, s{sT4}, v{hT0}")
    for b, src in enumerate((hX0, hX1)):
        for i in range(4): A(f"ds_bpermute_b32 v{hD+4*b+i}, v{hT0}, v{src+i}")
    unpack(xs, hX0, 4); unpack(xs+8, hX1, 4)
    for b in range(2):
        A(f"v_add_f32 v{hM+b}, v{xs+8*b}, v{xs+8*b+1}")
        for i in range(2, 8): A(f"v_add_f32 v{hM+b}, v{hM+b}, v{xs+8*b+i}")
    allreduce64([hM, hM+1], "v_add_f32", hU)
    for b in range(2): A(f"v_mul_f32 v{hM+b}, {hex(f2u(1/512))}, v{hM+b}")
    for b in range(2):
        for i in range(8): A(f"v_sub_f32 v{xs+8*b+i}, v{xs+8*b+i}, v{hM+b}")
        A(f"v_mul_f32 v{hM+2+b}, v{xs+8*b}, v{xs+8*b}")
        for i in range(1, 8): A(f"v_fmac_f32 v{hM+2+b}, v{xs+8*b+i}, v{xs+8*b+i}")
    allreduce64([hM+2, hM+3], "v_add_f32", hU)
    for b in range(2): A(f"v_mov_b32 v{hU+b}, {hex(f2u(1e-5))}"); A(f"v_fmac_f32 v{hU+b}, {hex(f2u(1/512))}, v{hM+2+b}")
    for b in range(2): A(f"v_rsq_f32 v{hM+2+b}, v{hU+b}")
    A("s_waitcnt lgkmcnt(0)")
    A(f"v_and_b32 v{hT0}, 1, v{vL}"); A(f"v_cmp_eq_u32 vcc, 1, v{hT0}")
    for b in range(2):
        A(f"v_cndmask_b32 v{hD+4*b}, v{hD+4*b}, v{hD+4*b+1}, vcc"); A(f"v_cndmask_b32 v{hD+4*b+2}, v{hD+4*b+2}, v{hD+4*b+3}, vcc")
    A(f"v_and_b32 v{hT0}, 2, v{vL}"); A(f"v_cmp_eq_u32 vcc, 2, v{hT0}")
    A(f"v_cndmask_b32 v{hXa}, v{hD}, v{hD+2}, vcc"); A(f"v_cndmask_b32 v{hXb}, v{hD+4}, v{hD+6}, vcc")
    unpack(xn, hXa, 1); unpack(xn+2, hXb, 1)
    for b in range(2):
        for c in range(2):
            A(f"v_sub_f32 v{xn+2*b+c}, v{xn+2*b+c}, v{hM+b}"); A(f"v_mul_f32 v{xn+2*b+c}, v{xn+2*b+c}, v{hM+2+b}")
    spin(hFl, F_W, hT1)
    tr128_read(hBq, hTR, S1 - SM)
    def perm_pos(dst, src, t1, hi):
        A(f"v_bfe_u32 v{dst}, v{src}, 1, 2"); A(f"v_lshlrev_b32 v{dst}, {hi}, v{dst}")
        A(f"v_and_b32 v{t1}, 8, v{src}"); A(f"v_or_b32 v{dst}, v{dst}, v{t1}"); A(f"v_and_b32 v{t1}, 1, v{src}"); A(f"v_lshl_or_b32 v{dst}, v{t1}, 2, v{dst}")
    perm_pos(hT0, vL, hT1, 4); A(f"v_lshl_or_b32 v{hT0}, v{hG}, 6, v{hT0}"); A(f"v_add_u32 v{hHa}, {HS}, v{hT0}")
    A(f"v_bfe_u32 v{hT1}, v{vL}, 2, 1"); A(f"v_lshlrev_b32 v{hT1}, 8, v{hT1}"); A(f"v_lshl_or_b32 v{hT1}, v{hG}, 4, v{hT1}"); A(f"v_add_u32 v{hHr}, {HS}, v{hT1}")
    A(f"s_mov_b32 s{sT6}, s{sQA}"); A(f"s_add_u32 s{sT5}, s{sT6}, {QB}")
    A(f"v_lshlrev_b32 v{hT0}, 14, v{hG}"); A(f"v_lshl_or_b32 v{hGr}, v{hN}, 4, v{hT0}")
    A(f"s_lshr_b32 s{sT4}, s{sR}, 1"); A(f"s_and_b32 s{sT3}, s{sR}, 1")
    smul_add(sT2, [(sT4, "shl", 11), (sT3, "shl", 8)], MODP + 16*2048)
    A(f"v_mov_b32 v{hF+1}, s{sTQ}"); A(f"v_mov_b32 v{hF+3}, s{sTQ}")
    poll("L_h_p1", modp_loads, lambda: tagcheck([hB+4*i+k for i in range(8) for k in (1, 3)], hAcc))
    stamp(4)
    if dbg and not FINE: A(f"s_mov_b32 s80, s{sCNT}")
    A("")
    sum_pairs(hU, [hB+4*i for i in range(4)]); sum_pairs(hU+4, [hB+16+4*i for i in range(4)])
    for c in range(2):
        for b in range(2):
            A(f"v_add_f32 v{hU+4+2*c+b}, 1.0, v{hU+4+2*c+b}")
            A(f"v_fmac_f32 v{hU+2*c+b}, v{xn+2*b+c}, v{hU+4+2*c+b}")
    A(f"v_cvt_pk_bf16_f32 v{hU+8}, v{hU}, v{hU+2}"); A(f"v_cvt_pk_bf16_f32 v{hU+9}, v{hU+1}, v{hU+3}")
    A(f"ds_write_b32 v{hHa}, v{hU+8}"); A(f"ds_write_b32 v{hHa}, v{hU+9} offset:256")
    for sg in range(4): A(f"ds_read_b128 {v(hA+4*sg,4)}, v{hHr} offset:{64*sg}")
    for sg in range(4):
        A(f"s_waitcnt lgkmcnt({lg(3-sg)})")
        for t in range(4):
            A(f"v_mfma_f32_16x16x32_bf16 {v(hD+4*t,4)}, {v(hA+4*sg,4)}, {v(hBq+(sg*4+t)*4,4)}, {'0' if sg == 0 else v(hD+4*t,4)}")
    A(f"v_mov_b32 v{hT1}, s{sTAG}"); A(f"ds_write_b32 v{hFl}, v{hT1} offset:{TAGL-FL}")
    A(f"v_mov_b32 v{hF}, v{hD}"); A(f"v_mov_b32 v{hF+2}, v{hD+8}")
    A(f"v_mov_b32_dpp v{hF}, v{hD+4} quad_perm:[0,1,2,3] row_mask:0xc bank_mask:0xf")
    A(f"v_mov_b32_dpp v{hF+2}, v{hD+12} quad_perm:[0,1,2,3] row_mask:0xc bank_mask:0xf")
    A(f"v_mov_b32_dpp v{hU}, v{hF} quad_perm:[1,0,3,2] row_mask:0xf bank_mask:0xf bound_ctrl:1")
    A(f"v_mov_b32_dpp v{hU+1}, v{hF+2} quad_perm:[1,0,3,2] row_mask:0xf bank_mask:0xf bound_ctrl:1")
    A(f"v_cvt_pk_bf16_f32 v{hF}, v{hF}, v{hU}"); A(f"v_cvt_pk_bf16_f32 v{hF+2}, v{hU+1}, v{hF+2}")
    A(f"v_cndmask_b32 v{hF}, v{hF}, v{hF+2}, {s(sM0,2)}")
    A(f"buffer_store_dwordx2 {v(hF,2)}, v{hQa}, {s(srdWS,4)}, s{sT6} offen")
    A(f"ds_write_b32 v{hFl}, v{hOne} offset:{F_QP}")
    if not QBD: A(f"buffer_store_dwordx2 {v(hF,2)}, v{hQa}, {s(srdWS,4)}, s{sT5} offen sc1")
    stamp(5)
    A(f"s_cmp_ge_u32 s{sR}, 16"); A("s_cbranch_scc1 " + ("L_h_rest" if RP == 2 else "L_h_qb" if QBD else "L_h_end"))
    A("")
    hPr = hA
    def par_loads():
        for rp in range(4):
            A(f"buffer_load_dwordx4 {v(hPr+4*rp,4)}, v{hGr}, {s(srdWS,4)}, s{sT2} offen offset:{rp*512} sc1")
    backoff(DP)
    par_loads()
    A(f"v_cmp_eq_u32 vcc, 2, v{hG}"); A(f"v_cndmask_b32 v{hT2}, 0, 1.0, vcc")
    A(f"v_lshlrev_b32 v{hT0}, 8, v{hG}"); A(f"v_lshl_or_b32 v{hT0}, v{hN}, 3, v{hT0}"); A(f"v_add_u32 v{hT3}, {PAR}, v{hT0}")
    perm_pos(hT0, hN, hT1, 6); A(f"v_and_b32 v{hT1}, 1, v{hG}"); A(f"v_lshl_or_b32 v{hT0}, v{hT1}, 4, v{hT0}")
    smul_add(sT0, [(sX8, "mul", YX), (sR, "shl", 9)], YA)
    poll("L_h_p2", par_loads, lambda: tagcheck([hPr+4*i+k for i in range(4) for k in (1, 3)], hAcc))
    stamp(6)
    if dbg and not FINE: A(f"s_mov_b32 s82, s{sCNT}")
    sum_pairs(hU, [hPr+4*i for i in range(4)])
    def round_pairs():
        A(f"v_cvt_pk_bf16_f32 v{hU+4}, v{hU}, v{hU+2}"); A(f"v_cvt_pk_bf16_f32 v{hU+5}, v{hU+1}, v{hU+3}")
        for b in range(2):
            A(f"v_lshlrev_b32 v{hU+b}, 16, v{hU+4+b}"); A(f"v_and_b32 v{hU+2+b}, 0xffff0000, v{hU+4+b}")
    round_pairs()
    for i in range(4): A(f"v_add_f32 v{hU+i}, v{hU+i}, v{hT2}")
    round_pairs()
    A(f"v_mov_b32 v{hU+6}, v{hU}"); A(f"v_mov_b32 v{hU+7}, v{hU+2}"); A(f"v_mov_b32 v{hU+8}, v{hU+1}"); A(f"v_mov_b32 v{hU+9}, v{hU+3}")
    A(f"ds_write_b64 v{hT3}, {v(hU+6,2)}"); A(f"ds_write_b64 v{hT3}, {v(hU+8,2)} offset:128")
    def qb_wait(lbl):
        A(f"s_mov_b32 s{sCNT}, 0")
        A(f"{lbl}:")
        A(f"ds_read_b128 {v(hD,4)}, v{hFl} offset:{F_Q}")
        A(f"s_add_u32 s{sCNT}, s{sCNT}, 1"); A(f"s_cmp_eq_u32 s{sCNT}, {NQ}"); A(f"s_cbranch_scc0 {lbl}_n")
        A(f"buffer_store_dwordx2 {v(hF,2)}, v{hQa}, {s(srdWS,4)}, s{sT5} offen sc1")
        A(f"{lbl}_n:")
        A("s_waitcnt lgkmcnt(0)")
        A(f"v_min3_u32 v{hD+4}, v{hD}, v{hD+1}, v{hD+2}"); A(f"v_min_u32 v{hD+4}, v{hD+4}, v{hD+3}"); A(f"v_cmp_eq_u32 vcc, 0, v{hD+4}")
        A(f"s_cbranch_vccz {lbl}_x"); A("s_sleep 2"); A(f"s_branch {lbl}")
        A(f"{lbl}_x:")
        A(f"v_max3_u32 v{hD+4}, v{hD}, v{hD+1}, v{hD+2}"); A(f"v_max_u32 v{hD+4}, v{hD+4}, v{hD+3}"); A(f"v_cmp_lt_u32 vcc, 1, v{hD+4}")
        A(f"s_cbranch_vccz {lbl}_y")
        A(f"buffer_store_dwordx2 {v(hF,2)}, v{hQa}, {s(srdWS,4)}, s{sT5} offen sc1")
        A(f"{lbl}_y:")
    if QBD: qb_wait("L_h_qw1")
    else: spin(hFl, F_Q, hD, 4, sleep=1)
    A(f"v_max3_u32 v{hD}, v{hD}, v{hD+1}, v{hD+2}"); A(f"v_max_u32 v{hD}, v{hD}, v{hD+3}")
    A(f"v_cmp_lt_u32 vcc, 1, v{hD}")
    A("s_cbranch_vccnz L_h_cprem")
    setexec(0xffffffff0000)
    for b in range(2): A(f"buffer_store_dword v{hU+4+b}, v{hT0}, {s(srdWS,4)}, s{sT0} offen offset:{256+32*b}")
    A("L_h_end:")
    A("s_waitcnt lgkmcnt(0)")
    stamp(7)
    stamp_flush()
    A("s_endpgm")
    if RP == 2:
        A("L_h_rest:")
        A(f"s_lshr_b32 s{P['cl']}, s2, 2"); A(f"s_sub_u32 s{P['cl']}, s{P['cl']}, 16")
        mod_block(hC, hU, hA, hB, hD, hTR, hT0, hT1, hFl, hOne, False)
        A("s_branch L_h_end")
    if QBD:
        A("L_h_qb:")
        qb_wait("L_h_qw2")
        A("s_branch L_h_end")
    A("L_h_cprem:")
    A(f"s_add_u32 s{sT0}, s{sT0}, {YBO}")
    setexec(0xffffffff0000)
    for b in range(2): A(f"buffer_store_dword v{hU+4+b}, v{hT0}, {s(srdWS,4)}, s{sT0} offen offset:{256+32*b} sc1")
    smul_add(sT0, [(sX8, "shl", 7), (sR, "shl", 2)], CF)
    flagset(hU, sT0)
    A("s_branch L_h_end")
    for blk in out_of_line: blk()
    out_of_line.clear()

    A("")
    A("L_compute:")
    R = Regs(4)
    srdO = 32
    vT0 = R.a(); vT1 = R.a(); vT2 = R.a(); vT3 = R.a(); vFl = R.a(); vH4 = R.a(); vC3 = R.a(); vFw = R.a(); vOne = R.a()
    vKa = R.a(4); vQa = R.a(); vVa = R.a(2); vTRV = R.a(); vMLw = R.a(); vMLr = R.a(); vPw = R.a(); vPr = R.a(); vOa = R.a(); vSa = R.a(); vL16 = R.a(); vQw = R.a(); vQg = R.a()
    vM = R.a(); vLs = R.a(); vMc = R.a(); vU = R.a(8, 4); vS = R.a(16, 4); vSt = R.a(2, 2)
    vKb = R.a(64, 4); vQ = R.a(48, 4); vO = R.a(8, 4); vX = R.a(24, 4); vG2 = R.a(32, 4)
    vP = vKb; vVb = vKb + 32
    A(f"s_sub_u32 s{sW}, s{sWV}, 2")
    A("s_waitcnt lgkmcnt(0)")
    A("s_barrier")
    if TLB:
        A(f"s_cmp_eq_u32 s{sR}, 23"); A("s_cbranch_scc0 L_c_notlb")
        A(f"s_cmp_eq_u32 s{sW}, 2"); A("s_cbranch_scc0 L_c_notlb")
        A("s_load_dwordx2 s[20:21], s[0:1], 16"); A("s_load_dwordx2 s[24:25], s[0:1], 32")
        A("s_load_dwordx2 s[4:5], s[0:1], 48"); A("s_load_dwordx2 s[8:9], s[0:1], 56")
        srd_tail(20, 0x8000000); srd_tail(24, 4096*1024); srd_tail(4, 512*3584); srd_tail(8, 1792*1024)
        A(f"v_lshlrev_b32 v{vT0}, 16, v{vL}"); A(f"v_and_b32 v{vT1}, 1, v{vG}"); A(f"v_lshlrev_b32 v{vT1}, 26, v{vT1}"); A(f"v_lshl_or_b32 v{vT1}, v{vN}, 16, v{vT1}")
        smul_add(sT0, [(sX8, "shl", 23)], 28672*256 + 65536 - 128); smul_add(sT1, [(sX8, "shl", 19)]); smul_add(sT2, [(sX8, "shl", 7)]); smul_add(sT3, [(sX8, "mul", 7*32768)])
        backoff(TLB)
        A("s_waitcnt lgkmcnt(0)")
        setexec(0xffffffff)
        A(f"buffer_load_dword v{vG2}, v{vT1}, s[20:23], s{sT0} offen")
        A(f"buffer_load_dword v{vG2+1}, v{vT0}, s[4:7], s{sT2} offen")
        A("s_mov_b64 exec, 0xff")
        A(f"buffer_load_dword v{vG2+2}, v{vT0}, s[24:27], s{sT1} offen")
        A("s_mov_b64 exec, 0xf")
        A(f"buffer_load_dword v{vG2+3}, v{vT0}, s[8:11], s{sT3} offen")
        A("s_mov_b64 exec, -1")
        A("L_c_notlb:")
    A(f"s_load_dwordx2 {s(srdO,2)}, s[0:1], 80")
    if DUR: A("s_load_dwordx2 s[88:89], s[0:1], 88")
    A(f"v_mov_b32 v{vFl}, {FL}"); A(f"v_mov_b32 v{vOne}, 1"); A(f"s_lshl_b32 s{sT0}, s{sW}, 2"); A(f"v_add_u32 v{vFw}, s{sT0}, v{vFl}")
    A(f"v_and_b32 v{vH4}, 3, v{vN}"); A(f"v_and_b32 v{vC3}, 3, v{vL}"); A(f"v_lshlrev_b32 v{vL16}, 4, v{vL}")
    A(f"v_xor_b32 v{vT0}, v{vG}, v{vN}"); A(f"v_lshlrev_b32 v{vT0}, 4, v{vT0}"); A(f"v_lshl_or_b32 v{vT0}, v{vN}, 8, v{vT0}")
    A(f"s_lshl_b32 s{sT0}, s{sW}, 14"); A(f"v_add_u32 v{vKa}, s{sT0}, v{vT0}")
    for sg in range(1, 4): A(f"v_xor_b32 v{vKa+sg}, {64*sg}, v{vKa}")
    A(f"v_mul_u32_u24 v{vT0}, 288, v{vH4}"); A(f"v_lshl_add_u32 v{vT0}, v{vG}, 4, v{vT0}"); A(f"v_add_u32 v{vQa}, {QL}, v{vT0}")
    A(f"v_lshrrev_b32 v{vT0}, 2, v{vL}"); A(f"v_and_b32 v{vT1}, 7, v{vT0}"); A(f"v_lshlrev_b32 v{vT1}, 5, v{vT1}"); A(f"v_lshl_or_b32 v{vT0}, v{vT0}, 8, v{vT1}")
    A(f"v_lshl_or_b32 v{vTRV}, v{vC3}, 3, v{vT0}")
    A(f"s_lshl_b32 s{sT0}, s{sW}, 6"); A(f"v_xor_b32 v{vT0}, s{sT0}, v{vTRV}"); A(f"v_add_u32 v{vVa}, {LV}, v{vT0}"); A(f"v_xor_b32 v{vVa+1}, 32, v{vVa}")
    A(f"v_lshlrev_b32 v{vT0}, 5, v{vH4}"); A(f"v_add_u32 v{vMLr}, {ML}, v{vT0}"); A(f"s_lshl_b32 s{sT0}, s{sW}, 3"); A(f"v_add_u32 v{vMLw}, s{sT0}, v{vMLr}")
    A(f"v_lshlrev_b32 v{vT0}, 6, v{vG}"); A(f"v_lshl_or_b32 v{vT0}, v{vH4}, 4, v{vT0}"); A(f"v_add_u32 v{vPr}, {PX}, v{vT0}")
    A(f"v_lshrrev_b32 v{vT0}, 3, v{vN}"); A(f"v_bfe_u32 v{vT1}, v{vN}, 2, 1"); A(f"v_lshlrev_b32 v{vT1}, 3, v{vT1}"); A(f"v_lshl_or_b32 v{vT0}, v{vT0}, 8, v{vT1}")
    A(f"s_lshl_b32 s{sT0}, s{sW}, 9"); A(f"v_add3_u32 v{vPw}, v{vT0}, s{sT0}, v{vPr}")
    A(f"v_lshlrev_b32 v{vOa}, 12, v{vH4}"); A(f"v_lshl_or_b32 v{vOa}, v{vG}, 8, v{vOa}"); A(f"v_lshlrev_b32 v{vSa}, 7, v{vH4}")
    A(f"s_mul_i32 s{sT5}, s{sW}, 288"); A(f"s_add_u32 s{sT5}, s{sT5}, {QL}")
    A(f"v_and_b32 v{vT0}, 31, v{vL}"); A(f"v_lshrrev_b32 v{vT1}, 5, v{vL}"); A(f"v_lshlrev_b32 v{vQg}, 4, v{vT0}"); A(f"v_lshl_or_b32 v{vQg}, v{vT1}, 11, v{vQg}")
    A(f"v_lshl_or_b32 v{vT0}, v{vT0}, 1, v{vT1}"); A(f"v_lshl_add_u32 v{vQw}, v{vT0}, 2, s{sT5}")
    A(f"v_cmp_gt_u32 {s(sM0,2)}, 4, v{vN}")
    A(f"s_cmp_eq_u32 s{sW}, 0"); A(f"s_cselect_b64 {s(sM1,2)}, 15, 0")
    sOA, sSA, sSC = 4, 5, 6
    smul_add(sOA, [(sX8, "shl", 15), (sB, "shl", 14), (sW, "shl", 10), (sS, "shl", 4)], OPA)
    smul_add(sSA, [(sX8, "shl", 10), (sB, "shl", 9), (sS, "shl", 3)], STA)
    A(f"s_mov_b32 s{sSC}, {hex(SC)}")
    dot_consts()
    A(f"s_getreg_b32 s{sTQ}, hwreg(HW_REG_XCC_ID, 0, 3)")
    srd_tail(srdWS, WSN); srd_tail(srdX, 2048); srd_tail(srdO, 2048)
    tSa = vX; tX = vX + 1; tCol = vX + 2; tAP = vX + 3; tPar = vX + 4; tY = vX + 8; tPa = vX + 10; tOut = vX + 11; tTR = vX + 12; tW = vX + 16; tYv = vX + 20
    mYa = vX; mSa = vX + 1; mXw = vX + 2; mXr = vX + 3; mBp = vX + 4; mMP = vX + 5; mA1 = vX + 6; mA2 = vX + 8; mMQ = vX + 16; mXr2 = vX + 18
    sA0, sA1, sA2, sA3, sA4, sA5, sA6, sA7, sA8, sA9 = 7, 8, 9, 10, 11, 12, 13, 14, 15, 26
    for i in range(12): A(f"v_mov_b32 v{vX+i}, 0")
    A("s_waitcnt lgkmcnt(0)")
    def rest_block():
        A(f"s_cmp_eq_u32 s{sW}, 1"); A("s_cbranch_scc0 L_c_roledone")
        srdC2 = 20; P['cl'], P['rp'] = 24, 25
        A(f"s_load_dwordx2 {s(srdC2,2)}, s[0:1], 64")
        A(f"s_lshr_b32 s{P['cl']}, s2, 2"); A(f"s_add_u32 s{P['cl']}, s{P['cl']}, {-16 if RP else 16}"); A(f"s_and_b32 s{P['rp']}, s2, 3")
        c_addr(vT0, vT1)
        A(f"v_mov_b32 v{vT1}, 0"); A(f"s_lshl_b32 s{sT0}, s{P['rp']}, 8")
        srd_tail(srdC2, 2048)
        A("s_waitcnt lgkmcnt(0)")
        A(f"buffer_load_dword v{vO+2}, v{vT1}, {s(srdWS,4)}, 0 offen sc1")
        A(f"buffer_load_dwordx2 {v(vO,2)}, v{vT0}, {s(srdC2,4)}, s{sT0} offen")
        tr128_base(vO+4, vT0, vT1, SM if RP == 2 else SR)
        A("s_waitcnt vmcnt(0)")
        A(f"v_readfirstlane_b32 s{sTAG}, v{vO+2}")
        A(f"s_add_u32 s{sTAG}, s{sTAG}, 0x9E3779B1")
        mod_block(vO, vU, vQ, vKb, vQ+16, vO+4, vT0, vT1, vFl, vOne, False)
    A(f"s_cmp_lt_u32 s{sR}, 16"); A("s_cbranch_scc0 L_c_nt1")
    A(f"s_and_b32 s{sAB}, s{sW}, 1"); A(f"s_lshr_b32 s{sT0}, s{sW}, 1"); A(f"s_lshr_b32 s{sT1}, s{sR}, 2"); A(f"s_and_b32 s{sT2}, s{sR}, 3")
    A(f"v_lshlrev_b32 v{tSa}, 5, v{vG}"); A(f"v_lshl_or_b32 v{tSa}, v{vH4}, 3, v{tSa}")
    smul_add(sA0, [(sX8, "shl", 15), (sAB, "shl", 14), (sT1, "shl", 12)], OPA)
    smul_add(sA1, [(sX8, "shl", 10), (sAB, "shl", 9), (sT1, "shl", 7)], STA)
    A(f"v_and_b32 v{vT0}, 7, v{vL}"); A(f"v_lshl_or_b32 v{tCol}, v{vT0}, 2, v{vG}")
    A(f"v_lshlrev_b32 v{tOut}, 1, v{tCol}")
    smul_add(sA7, [(sAB, "shl", 10), (sR, "shl", 6)])
    A(f"s_lshl_b32 s{sT3}, s{sT0}, 7"); A(f"v_xor_b32 v{tTR}, s{sT3}, v{vTRV}")
    for t in range(1, 4): A(f"v_xor_b32 v{tTR+t}, {32*t}, v{tTR}")
    A(f"v_lshrrev_b32 v{vT0}, 5, v{vL}"); A(f"v_and_b32 v{vT1}, 30, v{vL}"); A(f"v_lshlrev_b32 v{vT1}, 2, v{vT1}"); A(f"v_lshl_or_b32 v{tAP}, v{vT0}, 13, v{vT1}")
    smul_add(sA2, [(sT2, "shl", 15), (sT0, "shl", 14), (sAB, "shl", 12), (sX8, "shl", 9), (sT1, "shl", 7)], AP)
    smul_add(sA3, [(sR, "shl", 13), (sAB, "shl", 12)], AP)
    A(f"v_lshlrev_b32 v{vT0}, 6, v{vC3}"); A(f"v_bfe_u32 v{vT1}, v{vL}, 2, 1"); A(f"v_lshl_or_b32 v{vT0}, v{vT1}, 3, v{vT0}")
    A(f"v_and_b32 v{vT1}, 1, v{vG}"); A(f"v_lshl_or_b32 v{vT0}, v{vT1}, 4, v{vT0}"); A(f"v_lshrrev_b32 v{vT1}, 1, v{vG}"); A(f"v_lshl_or_b32 v{tY}, v{vT1}, 2, v{vT0}")
    A(f"v_lshrrev_b32 v{tY+1}, 1, v{vL}")
    smul_add(sA4, [(sX8, "mul", YX), (sR, "shl", 9), (sAB, "shl", 5)], YA)
    smul_add(sA5, [(sX8, "mul", YX), (sR, "shl", 4), (sAB, "shl", 3)], YA + 8192)
    A(f"s_lshl_b32 s{sT4}, s{sR}, 1"); A(f"s_add_u32 s{sA8}, s{sT4}, s{sAB}"); A(f"s_mul_i32 s{sA6}, s{sA8}, 7168"); A(f"s_add_u32 s{sA6}, s{sA6}, {MP}"); A(f"s_add_u32 s{sA9}, s{sA6}, 4096")
    A(f"s_sub_u32 s{sJ}, s{sX8}, s{sT4}"); A(f"s_and_b32 s{sJ}, s{sJ}, 7")
    smul_add(sT4, [(sAB, "shl", 7)], PAR); A(f"v_lshl_add_u32 v{tPa}, v{tCol}, 2, s{sT4}")
    if not RP: rest_block()
    A("s_branch L_c_roledone")
    A("L_c_nt1:")
    A(f"s_sub_u32 s{sT0}, s{sR}, 16"); A(f"s_mul_i32 s{sJ}, s{sX8}, 7"); A(f"s_add_u32 s{sJ}, s{sJ}, s{sT0}")
    A(f"v_lshrrev_b32 v{vT0}, 2, v{vN}"); A(f"v_lshlrev_b32 v{vT0}, 9, v{vT0}"); A(f"v_lshl_or_b32 v{vT0}, v{vG}, 6, v{vT0}"); A(f"v_lshl_or_b32 v{mYa}, v{vH4}, 4, v{vT0}")
    A(f"v_and_b32 v{vT0}, 31, v{vL}"); A(f"v_lshlrev_b32 v{mSa}, 3, v{vT0}")
    smul_add(sA1, [(sX8, "mul", YX)], YA + 8192); smul_add(sA0, [(sX8, "mul", YX), (sW, "shl", 11)], YA)
    A(f"v_and_b32 v{vT0}, 7, v{vN}"); A(f"v_mul_u32_u24 v{mXw}, {RS}, v{vT0}"); A(f"v_lshl_add_u32 v{mXw}, v{vG}, 4, v{mXw}"); smul_add(sT1, [(sW, "shl", 6)], RED); A(f"v_add_u32 v{mXw}, s{sT1}, v{mXw}")
    A(f"v_lshrrev_b32 v{vT0}, 3, v{vN}"); A(f"v_and_b32 v{vT1}, 1, v{vN}"); A(f"v_mul_u32_u24 v{vT0}, {8*RS+64}, v{vT0}"); A(f"v_mul_u32_u24 v{mXr}, {2*RS}, v{vT1}"); A(f"v_add_u32 v{mXr}, v{mXr}, v{vT0}")
    A(f"v_lshl_add_u32 v{mXr}, v{vG}, 4, v{mXr}"); A(f"v_bfe_u32 v{vT0}, v{vN}, 1, 2"); A(f"v_lshl_add_u32 v{mXr}, v{vT0}, 2, v{mXr}"); A(f"v_add_u32 v{mXr}, {RED}, v{mXr}"); A(f"v_add_u32 v{mXr2}, {4*RS}, v{mXr}")
    A(f"v_lshlrev_b32 v{mBp}, 6, v{vG}"); A(f"v_lshl_or_b32 v{mBp}, v{vT1}, 2, v{mBp}")
    A(f"v_lshrrev_b32 v{vT0}, 2, v{vL}"); A(f"v_lshlrev_b32 v{vT0}, 6, v{vT0}"); A(f"v_and_b32 v{vT2}, 1, v{vG}"); A(f"v_lshl_or_b32 v{vT0}, v{vT2}, 5, v{vT0}"); A(f"v_lshl_or_b32 v{vT0}, v{vC3}, 3, v{vT0}")
    A(f"s_lshl_b32 s{sT1}, s{sW}, 13"); A(f"v_add_u32 v{mA1}, s{sT1}, v{vT0}"); A(f"v_xor_b32 v{mA1+1}, 32, v{mA1}")
    A(f"s_add_u32 s{sT1}, s{sT1}, 32768"); A(f"v_add_u32 v{mA2}, s{sT1}, v{vTRV}")
    for t in range(1, 8): A(f"v_xor_b32 v{mA2+t}, {32*t}, v{mA2}")
    A(f"v_lshrrev_b32 v{vT0}, 2, v{vN}"); A(f"v_lshl_or_b32 v{vT0}, v{vT0}, 1, v{vT1}"); A(f"v_mul_u32_u24 v{mMP}, 7168, v{vT0}")
    A(f"v_bfe_u32 v{vT0}, v{vN}, 1, 1"); A(f"v_lshl_add_u32 v{mMP}, v{vT0}, 6, v{mMP}"); A(f"v_lshl_add_u32 v{mMP}, v{vG}, 4, v{mMP}")
    smul_add(sA3, [(sW, "mul", 4*14336), (sJ, "shl", 7)], MP)
    smul_add(sA4, [(sX8, "shl", 7), (sT0, "shl", 4), (sW, "shl", 2)], MF)
    A(f"s_mov_b32 s{sM2}, 0xcccccccc"); A(f"s_mov_b32 s{sM2+1}, 0xcccccccc")
    if RP == 1: rest_block()
    A("L_c_roledone:")
    A("")
    smul_add(sT0, [(sX8, "shl", 14), (sB, "shl", 13), (sW, "shl", 9)], QPA)
    A(f"s_add_u32 s{sT1}, s{sT0}, 4096")
    stamp(1)
    A(f"s_cmp_lg_u32 s{sW}, 0"); A("s_cbranch_scc1 L_c_nt")
    backoff(DG)
    A(f"ds_write_b32 v{vFl}, v{vOne} offset:{F_T1}")
    backoff(DQ)
    A(f"ds_write_b32 v{vFl}, v{vOne} offset:{F_T2}")
    A("L_c_nt:")
    spin(vFl, F_T2, vT0, sleep=2)
    spin(vFl, F_QP, vT0, sleep=1)
    A(f"ds_read_b32 v{vT0}, v{vFl} offset:{TAGL-FL}")
    def q_loads(Pq=vG2):
        for q, so in enumerate((sT0, sT1)):
            A(f"buffer_load_dwordx4 {v(Pq+4*q,4)}, v{vQg}, {s(srdWS,4)}, s{so} offen sc1")
    def k_reads():
        spin(vFl, F_K, vT1, sleep=1)
        for t in range(4):
            for sg in range(4): A(f"ds_read_b128 {v(vKb+(t*4+sg)*4,4)}, v{vKa+sg} offset:{t*4096}")
        A(f"ds_write_b32 v{vFw}, v{vOne} offset:{F_KR}")
    qtags = [vG2+4*i+k for i in range(2) for k in (1, 3)]
    q_loads()
    A("s_waitcnt lgkmcnt(0)")
    A(f"v_readfirstlane_b32 s{sTAG}, v{vT0}")
    A(f"v_mov_b32 v{vT3}, 1")
    A(f"s_add_u32 s{sTQ}, s{sTQ}, s{sTAG}")
    if FREM: A(f"s_add_u32 s{sTQ}, s{sTQ}, 9")
    k_reads()
    A("s_waitcnt vmcnt(0)")
    tagcheck(qtags, vT0, sTQ)
    A("s_cbranch_vccnz L_c_qre")
    A("L_c_qok:")
    sum_pairs(vU, [vG2, vG2+4])
    def qretry():
        A("L_c_qre:")
        A(f"s_mov_b32 s{sCNT}, 0")
        A("L_c_qre2:")
        q_loads()
        A(f"s_add_u32 s{sCNT}, s{sCNT}, 1"); A(f"s_cmp_ge_u32 s{sCNT}, {NA}")
        A("s_waitcnt vmcnt(0)")
        A("s_cbranch_scc1 L_c_qB")
        tagcheck(qtags, vT0, sTQ)
        A("s_cbranch_vccnz L_c_qre2")
        A("s_branch L_c_qok")
        A("L_c_qB:")
        for so in (sT0, sT1): A(f"s_add_u32 s{so}, s{so}, {QB}")
        A("L_c_qB2:")
        q_loads()
        A(f"s_add_u32 s{sCNT}, s{sCNT}, 1"); A(f"s_cmp_gt_u32 s{sCNT}, {NT}")
        A("s_waitcnt vmcnt(0)")
        A("s_cbranch_scc1 L_c_qB3")
        for i, r in enumerate(qtags): A(f"v_subrev_u32 v{vU+i}, s{sTAG}, v{r}")
        A(f"v_max3_u32 v{vT0}, v{vU}, v{vU+1}, v{vU+2}"); A(f"v_max_u32 v{vT0}, v{vT0}, v{vU+3}")
        A(f"v_cmp_lt_u32 vcc, 7, v{vT0}")
        A("s_cbranch_vccnz L_c_qB2")
        A("L_c_qB3:")
        tagcheck(qtags, vT0, sTQ)
        A("s_cbranch_vccz L_c_qok")
        A(f"v_mov_b32 v{vT3}, 2")
        A("s_branch L_c_qok")
    out_of_line.append(qretry)
    A(f"v_permlane32_swap_b32 v{vU}, v{vU+2}"); A(f"v_permlane32_swap_b32 v{vU+1}, v{vU+3}")
    A(f"v_pk_add_f32 {v(vU,2)}, {v(vU,2)}, {v(vU+2,2)}")
    A(f"v_cvt_pk_bf16_f32 v{vT0}, v{vU}, v{vU+1}")
    A(f"ds_write_b32 v{vQw}, v{vT0}")
    A(f"ds_write_b32 v{vFw}, v{vT3} offset:{F_Q}")
    stamp(2)
    spin(vFl, F_Q, vU, 4)
    stamp(3); fine(2, 1)
    for sg in range(4): A(f"ds_read_b128 {v(vQ+sg*4,4)}, v{vQa} offset:{64*sg}")
    A(f"ds_write_b32 v{vFw}, v{vOne} offset:{F_CR}")
    A(f"v_max3_u32 v{vU}, v{vU}, v{vU+1}, v{vU+2}"); A(f"v_max_u32 v{vU}, v{vU}, v{vU+3}")
    A(f"v_readfirstlane_b32 s{sREM}, v{vU}")
    for sg in range(4):
        A(f"s_waitcnt lgkmcnt({lg(4-sg)})")
        for t in range(4):
            A(f"v_mfma_f32_16x16x32_bf16 {v(vS+4*t,4)}, {v(vKb+(t*4+sg)*4,4)}, {v(vQ+sg*4,4)}, {'0' if sg == 0 else v(vS+4*t,4)}")
    fine(2, 2)
    A("")
    for t in range(1, 4):
        for r in range(4): A(f"v_mov_b32_dpp v{vS+r}, v{vS+4*t+r} quad_perm:[0,1,2,3] row_mask:0xf bank_mask:{hex(1 << t)}")
    def red_all(r, op, t):
        for ro in (4, 8): A(f"{op}_dpp v{r}, v{r}, v{r} row_ror:{ro} row_mask:0xf bank_mask:0xf bound_ctrl:1")
        for sw in ("v_permlane16_swap_b32", "v_permlane32_swap_b32"):
            A(f"v_mov_b32 v{t}, v{r}"); A(f"{sw} v{t}, v{r}"); A(f"{op} v{r}, v{r}, v{t}")
    A(f"v_max3_f32 v{vM}, v{vS}, v{vS+1}, v{vS+2}"); A(f"v_max_f32 v{vM}, v{vM}, v{vS+3}")
    red_all(vM, "v_max_f32", vT0)
    A(f"v_mul_f32 v{vSt}, s{sSC}, v{vM}")
    for i in range(4): A(f"v_fma_f32 v{vS+i}, v{vS+i}, s{sSC}, -v{vSt}")
    for i in range(4): A(f"v_exp_f32 v{vS+i}, v{vS+i}")
    A(f"v_add_f32 v{vT0}, v{vS}, v{vS+1}"); A(f"v_add_f32 v{vT1}, v{vS+2}, v{vS+3}"); A(f"v_add_f32 v{vSt+1}, v{vT0}, v{vT1}")
    red_all(vSt+1, "v_add_f32", vT0)
    fine(2, 3)
    A("s_mov_b64 exec, 0xf")
    A(f"ds_write_b64 v{vMLw}, {v(vSt,2)}")
    A("s_mov_b64 exec, -1")
    A(f"s_mov_b32 s{sCNT}, 0")
    A("L_c_ml:")
    A(f"ds_read_b128 {v(vU,4)}, v{vMLr}"); A(f"ds_read_b128 {v(vU+4,4)}, v{vMLr} offset:16")
    A(f"s_add_u32 s{sCNT}, s{sCNT}, 1"); A(f"s_cmp_gt_u32 s{sCNT}, {NT}")
    A("s_waitcnt lgkmcnt(0)")
    A("s_cbranch_scc1 L_c_mlok")
    A(f"v_max3_u32 v{vT0}, v{vU+1}, v{vU+3}, v{vU+5}"); A(f"v_max_u32 v{vT0}, v{vT0}, v{vU+7}")
    A(f"v_cmp_eq_u32 vcc, -1, v{vT0}")
    A("s_cbranch_vccnz L_c_ml")
    A("L_c_mlok:")
    fine(2, 4)
    A(f"v_max3_f32 v{vMc}, v{vU}, v{vU+2}, v{vU+4}"); A(f"v_max_f32 v{vMc}, v{vMc}, v{vU+6}")
    for i in range(4): A(f"v_sub_f32 v{vU+2*i}, v{vU+2*i}, v{vMc}")
    A(f"v_sub_f32 v{vT0}, v{vSt}, v{vMc}")
    for i in range(4): A(f"v_exp_f32 v{vU+2*i}, v{vU+2*i}")
    A(f"v_exp_f32 v{vT0}, v{vT0}")
    A(f"v_mul_f32 v{vLs}, v{vU}, v{vU+1}")
    for i in range(1, 4): A(f"v_fmac_f32 v{vLs}, v{vU+2*i}, v{vU+2*i+1}")
    A(f"v_rcp_f32 v{vT1}, v{vLs}")
    A(f"v_mov_b32 v{vSt}, v{vMc}"); A(f"v_mov_b32 v{vSt+1}, v{vLs}")
    A(f"v_mul_f32 v{vT0}, v{vT0}, v{vT1}")
    for i in range(4): A(f"v_mul_f32 v{vS+i}, v{vS+i}, v{vT0}")
    A(f"v_cvt_pk_bf16_f32 v{vU}, v{vS}, v{vS+1}"); A(f"v_cvt_pk_bf16_f32 v{vU+1}, v{vS+2}, v{vS+3}")
    A(f"ds_write_b64 v{vPw}, {v(vU,2)}")
    A(f"ds_write_b32 v{vFw}, v{vOne} offset:{F_P}")
    A(f"s_cmp_gt_u32 s{sREM}, 1")
    A(f"s_mov_b64 exec, {s(sM1,2)}")
    A("s_cbranch_scc1 L_c_strem")
    A("s_cbranch_execz L_c_stdone")
    A(f"buffer_store_dwordx2 {v(vSt,2)}, v{vSa}, {s(srdWS,4)}, s{sSA} offen")
    A("L_c_stdone:")
    def strem():
        A("L_c_strem:")
        A(f"s_add_u32 s{sSA}, s{sSA}, {SB}"); A(f"s_add_u32 s{sOA}, s{sOA}, {OB}")
        A("s_cbranch_execz L_c_stdone")
        A(f"buffer_store_dwordx2 {v(vSt,2)}, v{vSa}, {s(srdWS,4)}, s{sSA} offen sc1")
        A("s_branch L_c_stdone")
    out_of_line.append(strem)
    A("s_mov_b64 exec, -1")
    stamp(4); fine(2, 5)
    A("")
    spin(vFl, F_P, vU, 4)
    fine(2, 7)
    for k in range(8): A(f"ds_read_b128 {v(vP+4*k,4)}, v{vPr} offset:{k*256}")
    spin(vFl, F_V, vT0)
    stamp(5); fine(2, 8)
    def vreads(k, dst):
        for t in range(2):
            for u in range(2):
                A(f"ds_read_b64_tr_b16 {v(dst+4*t+2*u,2)}, v{vVa+t} offset:{(32*k+16*u)*256}")
    for k in range(7): vreads(k, vVb+8*k)
    tSt = vG2; tA = vG2 + 8
    def st_loads():
        A(f"buffer_load_dwordx2 {v(tSt,2)}, v{tSa}, {s(srdWS,4)}, s{sA1} offen sc1")
    for k in range(7):
        A(f"s_waitcnt lgkmcnt({lg(4*(6-k))})")
        for t in range(2):
            A(f"v_mfma_f32_16x16x32_bf16 {v(vO+4*t,4)}, {v(vVb+8*k+4*t,4)}, {v(vP+4*k,4)}, {'0' if k == 0 else v(vO+4*t,4)}")
    A(f"s_cmp_gt_u32 s{sREM}, 1")
    fine(2, 9)
    A("s_barrier")
    fine(2, 10)
    vreads(7, vVb)
    A(f"s_waitcnt lgkmcnt({lg(2)})")
    A(f"v_mfma_f32_16x16x32_bf16 {v(vO,4)}, {v(vVb,4)}, {v(vP+28,4)}, {v(vO,4)}")
    A("s_waitcnt lgkmcnt(0)")
    A(f"v_mfma_f32_16x16x32_bf16 {v(vO+4,4)}, {v(vVb+4,4)}, {v(vP+28,4)}, {v(vO+4,4)}")
    stamp(6)
    A(f"s_mov_b64 exec, {s(sM0,2)}")
    for i in range(4): A(f"v_cvt_pk_bf16_f32 v{vU+i}, v{vO+2*i}, v{vO+2*i+1}")
    A("s_cbranch_scc1 L_c_orem")
    A(f"buffer_store_dwordx4 {v(vU,4)}, v{vOa}, {s(srdWS,4)}, s{sOA} offen")
    A("s_mov_b64 exec, -1")
    stamp(7); fine(2, 11)
    A(f"s_cmp_lt_u32 s{sR}, 16")
    A("s_cbranch_scc0 L_c_other")

    if BT: A("s_barrier")
    A("")
    tB = vKb; tD = vS
    def t1_loads():
        for k in range(4): A(f"buffer_load_dwordx4 {v(tA+4*k,4)}, v{vL16}, {s(srdWS,4)}, s{sA0} offen offset:{1024*k} sc1")
    def wo_reads():
        for k in range(4):
            for t in range(4):
                for u in range(2):
                    A(f"ds_read_b64_tr_b16 {v(tB+(k*4+t)*4+2*u,2)}, v{tTR+t} offset:{(32*k+16*u)*256}")
    def t1_mf(k, ts=(0, 2, 1, 3)):
        for t in ts:
            A(f"v_mfma_f32_16x16x32_bf16 {v(tD+4*t,4)}, {v(tA+4*k,4)}, {v(tB+(k*4+t)*4,4)}, {'0' if k == 0 else v(tD+4*t,4)}")
    def dp(op, r, pat): return f"{op}_dpp v{r}, v{r}, v{r} {pat} row_mask:0xf bank_mask:0xf bound_ctrl:1"
    def xg(r, op, t):
        o = [dp(op, r, "quad_perm:[1,0,3,2]"), None, dp(op, r, "quad_perm:[2,3,0,1]")]
        for sw in ("v_permlane16_swap_b32", "v_permlane32_swap_b32"):
            o += [f"v_mov_b32 v{t}, v{r}", None, f"{sw} v{t}, v{r}", f"{op} v{r}, v{r}, v{t}"]
        return o
    bc = [f"v_mov_b32_dpp v{tW+r}, v{vM} quad_perm:[{r},{r},{r},{r}] row_mask:0xf bank_mask:0xf bound_ctrl:1" for r in range(4)]
    sm = xg(vLs, "v_add_f32", vT1)
    wts = [f"v_max_f32_dpp v{vM}, v{tSt}, v{tSt} quad_perm:[1,0,3,2] row_mask:0xf bank_mask:0xf bound_ctrl:1", None] + xg(vM, "v_max_f32", vT1)[2:]
    wts += [f"v_sub_f32 v{vM}, v{tSt}, v{vM}", f"v_exp_f32 v{vM}, v{vM}", None, f"v_mul_f32 v{vM}, v{vM}, v{tSt+1}", None,
            f"v_add_f32_dpp v{vLs}, v{vM}, v{vM} quad_perm:[1,0,3,2] row_mask:0xf bank_mask:0xf bound_ctrl:1", bc[0], bc[1],
            sm[2], sm[3], bc[2], bc[3], sm[5], sm[6], sm[7], None, sm[9], sm[10], f"v_rcp_f32 v{vLs}, v{vLs}"]
    A("L_t1_w:")
    stamp(13)
    A(f"ds_read_b32 v{tPar}, v{tPa}"); A(f"ds_read_b32 v{tPar+1}, v{tPa} offset:512"); A(f"ds_read_b32 v{tPar+2}, v{tPa} offset:768")
    A(f"v_mov_b32 v{tYv+1}, s{sTAG}")
    A(f"v_and_b32 v{vT0}, 8, v{vL}"); A(f"v_cmp_ne_u32 {s(sM0,2)}, 0, v{vT0}")
    A(f"v_and_b32 v{vT0}, 16, v{vL}"); A(f"v_cmp_ne_u32 {s(sM1,2)}, 0, v{vT0}")
    A(f"s_cmp_gt_u32 s{sREM}, 1")
    if not EW: A("s_barrier")
    A("s_cbranch_scc1 L_t1rem")
    def so_loads(): st_loads(); t1_loads()
    so_loads()
    wo_reads()
    stamp(8)
    def t1_body():
        A("s_waitcnt vmcnt(3) lgkmcnt(0)")
        t1_mf(0, (0, 2))
        A("s_waitcnt vmcnt(0)")
        sentcheck([tA+3, tA+7, tA+11, tA+15, tSt+1], vT0)
        t1_mf(0, (1, 3))
    ipoll("L_t1p", so_loads, t1_body, GT)
    stamp(9); fine(3, 1)
    if dbg and not FINE: A(f"s_mov_b32 s88, s{sCNT}")
    wi = 0
    for k in range(1, 4):
        for t in (0, 2, 1, 3):
            cnt = 0
            while wi < len(wts) and cnt < 3:
                if wts[wi] is None: wi += 1; break
                A(wts[wi]); wi += 1; cnt += 1
            t1_mf(k, (t,))
    while wi < len(wts):
        if wts[wi]: A(wts[wi])
        wi += 1
    fine(3, 2)
    A(f"s_cmp_lt_u32 s{sW}, 2")
    for t in (0, 2, 1, 3):
        A(f"v_pk_mul_f32 {v(tD+4*t,2)}, {v(tD+4*t,2)}, {v(tW,2)}")
        A(f"v_pk_fma_f32 {v(tD+4*t,2)}, {v(tD+4*t+2,2)}, {v(tW+2,2)}, {v(tD+4*t,2)}")
        A(f"v_add_f32 v{vU+t}, v{tD+4*t}, v{tD+4*t+1}")
    def reduce4(u):
        A(f"v_permlane32_swap_b32 v{u}, v{u+2}"); A(f"v_permlane32_swap_b32 v{u+1}, v{u+3}")
        A(f"v_pk_add_f32 {v(u,2)}, {v(u,2)}, {v(u+2,2)}")
        A(f"v_permlane16_swap_b32 v{u}, v{u+1}")
        A(f"v_add_f32 v{u}, v{u}, v{u+1}")
    reduce4(vU)
    A(f"v_mul_f32 v{vU}, v{vU}, v{vLs}")
    A(f"v_mov_b32_dpp v{vU+1}, v{vU} quad_perm:[1,0,3,2] row_mask:0xf bank_mask:0xf bound_ctrl:1")
    setexec(0x5555555555555555)
    A(f"v_cvt_pk_bf16_f32 v{tYv}, v{vU}, v{vU+1}")
    A("s_barrier")
    A(f"buffer_store_dwordx2 {v(tYv,2)}, v{tAP}, {s(srdWS,4)}, s{sA2} offen sc1")
    A("s_mov_b64 exec, -1")
    stamp(10); fine(3, 3)
    A("s_cbranch_scc0 L_fin_end")
    A("")
    def red_loads():
        for q in range(4): A(f"buffer_load_dwordx4 {v(tA+4*q,4)}, v{vL16}, {s(srdWS,4)}, s{sA3} offen offset:{1024*q} sc1")
    A(f"buffer_load_ushort v{tX}, v{tOut}, {s(srdX,4)}, s{sA7} offen")
    A("s_waitcnt vmcnt(0)")
    red_loads()
    A(f"v_lshlrev_b32 v{tX}, 16, v{tX}")
    ipoll("L_rdp", red_loads, lambda: gather_sum(vU, [tA+4*q for q in range(4)], vT0), GR)
    stamp(11); fine(3, 4)
    reduce4(vU)
    A(f"v_add_f32_dpp v{vU}, v{vU}, v{vU} row_ror:8 row_mask:0xf bank_mask:0xf bound_ctrl:1")
    A(f"s_cmp_gt_u32 s{sREM}, 1")
    A(f"v_fmac_f32 v{tX}, v{tPar}, v{vU}")
    A(f"v_mul_f32 v{vU}, v{tX}, v{tPar+1}")
    A(f"v_mul_f32 v{vU+4}, v{tX}, v{tX}")
    A(f"v_mov_b32 v{vU+1}, v{vU}")
    A(f"v_cndmask_b32 v{vU+4}, v{tX}, v{vU+4}, {s(sM0,2)}")
    A(f"v_permlane16_swap_b32 v{vU}, v{vU+1}")
    A(f"v_add_f32_dpp v{vU+4}, v{vU+4}, v{vU+4} quad_perm:[1,0,3,2] row_mask:0xf bank_mask:0xf bound_ctrl:1")
    A(f"v_cvt_pk_bf16_f32 v{vU+2}, v{vU}, v{vU+1}")
    A(f"v_lshlrev_b32 v{vT0}, 16, v{vU+2}")
    A(f"v_add_f32_dpp v{vU+4}, v{vU+4}, v{vU+4} quad_perm:[2,3,0,1] row_mask:0xf bank_mask:0xf bound_ctrl:1")
    A(f"v_and_b32 v{vT1}, 0xffff0000, v{vU+2}")
    A(f"v_sub_f32 v{vU}, v{vU}, v{vT0}")
    A(f"v_add_f32_dpp v{vU+4}, v{vU+4}, v{vU+4} row_half_mirror row_mask:0xf bank_mask:0xf bound_ctrl:1")
    A(f"v_sub_f32 v{vU+1}, v{vU+1}, v{vT1}")
    A(f"v_mov_b32 v{vU+5}, v{vU+4}")
    A(f"v_cvt_pk_bf16_f32 v{vU+3}, v{vU}, v{vU+1}")
    A(f"v_permlane16_swap_b32 v{vU+5}, v{vU+4}")
    A(f"v_cndmask_b32 v{vU+2}, v{vU+2}, v{vU+3}, {s(sM1,2)}")
    A(f"v_add_f32 v{vU+4}, v{vU+4}, v{vU+5}")
    A("s_cbranch_scc1 L_yrem")
    setexec(0x00ff00ff00ff00ff)
    A(f"buffer_store_dword v{vU+2}, v{tY}, {s(srdWS,4)}, s{sA4} offen")
    A("s_mov_b64 exec, -1")
    A(f"v_mov_b32 v{vU+5}, v{vU+4}")
    A(f"v_permlane32_swap_b32 v{vU+5}, v{vU+4}")
    A(f"v_add_f32 v{vU+4}, v{vU+4}, v{vU+5}")
    A("s_mov_b64 exec, 0x101")
    A(f"buffer_store_dword v{vU+4}, v{tY+1}, {s(srdWS,4)}, s{sA5} offen")
    A("s_mov_b64 exec, -1")
    stamp(12); fine(3, 5)
    A(f"s_cmp_eq_u32 s{sJ}, s{sAB}"); A("s_cbranch_scc0 L_notfin")
    if OPT: A(f"buffer_load_ushort v{vT3}, v{tOut}, {s(srdO,4)}, s{sA7} offen")
    if MFG:
        smul_add(sT0, [(sX8, "shl", 7)], MF); A(f"v_lshlrev_b32 v{vT1}, 2, v{vL}")
        flagwait("L_mfw", vT1, sT0, vT0, 0xfffffff)
        backoff(DF)
    A("")
    A("L_fin:")
    def fin_loads():
        for q in range(7):
            A(f"buffer_load_dwordx4 {v(tB+4*q,4)}, v{vL16}, {s(srdWS,4)}, s{sA6 if q < 4 else sA9} offen offset:{1024*(q%4)} sc1")
    fin_loads()
    A(f"v_mov_b32 v{vT2}, 0")
    ipoll("L_fnp", fin_loads, lambda: gather_sum(vU, [tB+4*q for q in range(7)], vT0), GF)
    fine(3, 6)
    reduce4(vU)
    A(f"v_add_f32_dpp v{vU}, v{vU}, v{vU} row_ror:8 row_mask:0xf bank_mask:0xf bound_ctrl:1")
    A(f"v_fmac_f32 v{tX}, v{tPar+2}, v{vU}")
    A(f"v_mov_b32 v{vU+1}, v{tX}")
    A(f"v_permlane16_swap_b32 v{tX}, v{vU+1}")
    setexec(0x000000ff000000ff)
    A(f"v_cvt_pk_bf16_f32 v{vU+2}, v{tX}, v{vU+1}")
    A(f"buffer_store_dword v{vU+2}, v{tOut}, {s(srdO,4)}, s{sA7} offen {osf}")
    if DUR:
        A(f"s_memrealtime {s(sST,2)}"); A("s_mov_b32 s90, 256"); A("s_mov_b32 s91, 0x20000"); A("s_waitcnt lgkmcnt(0)")
        A("s_mov_b64 exec, 1"); A(f"s_not_b32 s{sST+2}, s{sST+2}"); A(f"v_mov_b32 v{vU+4}, s{sST+2}"); A(f"v_mov_b32 v{vU+5}, s{sST}")
        A(f"buffer_atomic_umax v{vU+4}, v{vT2}, s[88:91], 0 offen"); A(f"buffer_atomic_umax v{vU+5}, v{vT2}, s[88:91], 0 offen offset:4")
    A("L_fin_end:")
    stamp_flush()
    A("s_endpgm")
    A("")
    A("L_c_orem:")
    A(f"buffer_store_dwordx4 {v(vU,4)}, v{vOa}, {s(srdWS,4)}, s{sOA} offen sc1")
    smul_add(sT0, [(sX8, "shl", 9), (sR, "shl", 4), (sW, "shl", 2)], OF)
    flagset(vT0, sT0)
    A(f"s_cmp_lt_u32 s{sR}, 16"); A("s_cbranch_scc0 L_c_other")
    if BT: A("s_barrier")
    smul_add(sT0, [(sX8, "shl", 9), (sAB, "shl", 8)], OF); A(f"v_lshlrev_b32 v{vT1}, 2, v{vL}")
    flagwait("L_ofw", vT1, sT0, vT0, (1 << 64) - 1)
    A(f"s_add_u32 s{sA0}, s{sA0}, {OB}"); A(f"s_add_u32 s{sA1}, s{sA1}, {SB}")
    st_loads(); t1_loads()
    A("s_waitcnt vmcnt(0)")
    A("s_branch L_t1_w")
    A("L_t1rem:")
    wo_reads()
    A("s_waitcnt lgkmcnt(0)")
    t1_mf(0)
    A("s_branch L_t1p_ok")
    A("L_yrem:")
    A(f"s_add_u32 s{sA4}, s{sA4}, {YBO}"); A(f"s_add_u32 s{sA5}, s{sA5}, {YBO}")
    setexec(0x00ff00ff00ff00ff)
    A(f"buffer_store_dword v{vU+2}, v{tY}, {s(srdWS,4)}, s{sA4} offen sc1")
    A("s_mov_b64 exec, -1")
    A(f"v_mov_b32 v{vU+5}, v{vU+4}")
    A(f"v_permlane32_swap_b32 v{vU+5}, v{vU+4}")
    A(f"v_add_f32 v{vU+4}, v{vU+4}, v{vU+5}")
    A("s_mov_b64 exec, 0x101")
    A(f"buffer_store_dword v{vU+4}, v{tY+1}, {s(srdWS,4)}, s{sA5} offen sc1")
    smul_add(sT0, [(sX8, "shl", 7), (sA8, "shl", 2)], YF)
    flagset(vT0, sT0)
    A(f"s_cmp_eq_u32 s{sJ}, s{sAB}"); A("s_cbranch_scc0 L_notfin")
    A("s_branch L_fin")
    A("L_notfin:")
    A(f"s_cmp_eq_u32 s2, 4"); A("s_cbranch_scc0 L_fin_end")
    A(f"s_cmp_eq_u32 s{sW}, 0"); A("s_cbranch_scc0 L_fin_end")
    A("s_mov_b64 exec, 1"); A(f"v_mov_b32 v{vT2}, 0")
    A(f"buffer_store_dword v{tYv+1}, v{vT2}, {s(srdWS,4)}, 0 offen sc1")
    A("s_branch L_fin_end")
    for blk in out_of_line: blk()
    out_of_line.clear()

    A("")
    A("L_c_other:")
    if dbg and not FINE: A("s_waitcnt vmcnt(0)"); stamp(11)
    A(f"s_sub_u32 s{sT0}, s{sR}, 16"); A(f"s_cmp_lt_u32 s{sT0}, 7"); A("s_cbranch_scc0 L_fin_end")
    mW1 = vKb; mW2 = vKb + 32; mB = vQ; mD = vQ + 16; mSt = vQ + 24; mR = vS; mD2 = vQ + 36; mO = vQ + 40; mY = vQ + 28; mH = vG2
    sY0, sY1, sFW = 22, 23, 25
    def y_loads():
        A(f"buffer_load_dwordx4 {v(mY,4)}, v{mYa}, {s(srdWS,4)}, s{sA0} offen sc1")
        A(f"buffer_load_dwordx2 {v(mSt,2)}, v{mSa}, {s(srdWS,4)}, s{sA1} offen sc1")
    def cp_load(): A(f"buffer_load_dwordx4 {v(mY,4)}, v{mYa}, {s(srdWS,4)}, s{sA0} offen offset:256 sc1")
    A(f"s_cmp_gt_u32 s{sREM}, 1"); A("s_cbranch_scc1 L_mrem0")
    cp_load()
    A("s_barrier")
    poll("L_mcp", cp_load, lambda: sentcheck([mY+3], vT0))
    def mrem0():
        A("L_mrem0:")
        A("s_barrier")
        A(f"s_add_u32 s{sA0}, s{sA0}, {YBO}"); A(f"s_add_u32 s{sA1}, s{sA1}, {YBO}")
        smul_add(sFW, [(sX8, "shl", 7)], CF); A(f"v_lshlrev_b32 v{vT1}, 2, v{vL}")
        flagwait("L_cfw", vT1, sFW, vT0, 0xffff)
        cp_load()
        A("s_waitcnt vmcnt(0)")
        A("s_branch L_mcp_ok")
        A("L_mrem:")
        A(f"s_add_u32 s{sFW}, s{sFW}, {YF-CF}")
        flagwait("L_yfw", vT1, sFW, vT0, 0xffffffff)
        y_loads()
        A("s_waitcnt vmcnt(0)")
        A("s_branch L_myp_ok")
    out_of_line.append(mrem0)
    def shift(d): return "quad_perm:[0,1,2,3]" if d == 0 else (f"row_shr:{d}" if d > 0 else f"row_shl:{-d}")
    for sg in range(4):
        for q in range(4): A(f"v_mov_b32_dpp v{mB+4*sg+q}, v{mY+q} {shift(4 - 4*sg)} row_mask:0xf bank_mask:0xf bound_ctrl:1")
    A(f"v_mov_b32 v{mO+1}, s{sTAG}"); A(f"v_mov_b32 v{mO+3}, s{sTAG}")
    A(f"v_mov_b32 v{mMQ}, v{mMP}"); A(f"v_mov_b32 v{mMQ+1}, 0")
    for i in range(32): A(f"v_mov_b32 v{mH+i}, 0")
    A(f"v_cmp_gt_u32 {s(sM0,2)}, 8, v{vN}")
    A(f"s_cmp_gt_u32 s{sREM}, 1")
    A("s_barrier")
    stamp(12)
    for sg in range(4):
        for t in range(2):
            for u in range(2):
                A(f"ds_read_b64_tr_b16 {v(mW1+(t*4+sg)*4+2*u,2)}, v{mA1+t} offset:{(32*sg+16*u)*64}")
    for t in range(8):
        for u in range(2):
            A(f"ds_read_b64_tr_b16 {v(mW2+4*t+2*u,2)}, v{mA2+t} offset:{16*u*256}")
    A("s_cbranch_scc1 L_mrem")
    y_loads()
    stamp(8)
    ipoll("L_myp", y_loads, lambda: (A("s_waitcnt vmcnt(0)"), sentcheck([mY+3, mSt, mSt+1], vT0)))
    stamp(9); fine(1, 1)
    va = []
    for ro in (2, 4, 8):
        va += [f"v_add_f32_dpp v{mSt+i}, v{mSt+i}, v{mSt+i} row_ror:{ro} row_mask:0xf bank_mask:0xf bound_ctrl:1" for i in range(2)]
    va += [f"v_mov_b32 v{mSt+2}, v{mSt}", f"v_mov_b32 v{mSt+3}, v{mSt+1}", f"v_permlane16_swap_b32 v{mSt+2}, v{mSt}", f"v_permlane16_swap_b32 v{mSt+3}, v{mSt+1}",
           f"v_pk_add_f32 {v(mSt,2)}, {v(mSt,2)}, {v(mSt+2,2)}",
           f"v_mul_f32 v{mSt}, {hex(f2u(1/512))}, v{mSt}", f"v_mul_f32 v{mSt+2}, {hex(f2u(1/512))}, v{mSt+1}",
           f"v_fma_f32 v{mSt+2}, -v{mSt}, v{mSt}, v{mSt+2}", f"v_max_f32 v{mSt+2}, 0, v{mSt+2}", f"v_add_f32 v{mSt+2}, {hex(f2u(1e-5))}, v{mSt+2}",
           f"v_rsq_f32 v{mSt+2}, v{mSt+2}"]
    def shl(sg):
        for q in range(4): A(f"v_mov_b32_dpp v{mB+4*sg+q}, v{mY+q} {shift(-4*sg)} row_mask:0xf bank_mask:0x1 bound_ctrl:1")
    def mf1(sg, t): A(f"v_mfma_f32_16x16x32_bf16 {v(mD+4*t,4)}, {v(mW1+(t*4+sg)*4,4)}, {v(mB+4*sg,4)}, {'0' if sg == 0 else v(mD+4*t,4)}")
    shl(0); A("s_waitcnt lgkmcnt(0)"); shl(1); mf1(0, 0); mf1(0, 1); shl(2); mf1(1, 0); mf1(1, 1); shl(3); mf1(2, 0); mf1(2, 1)
    A(va[0]); A(va[1]); mf1(3, 0); A(va[2]); A(va[3]); mf1(3, 1); vi = 4
    for _ in range(6): A(va[vi]); vi += 1
    fine(1, 2)
    A(f"s_mov_b64 exec, {s(sM0,2)}")
    for t in range(2): A(f"ds_write_b128 v{mXw}, {v(mD+4*t,4)} offset:{t*(8*RS+64)}")
    A("s_mov_b64 exec, -1")
    while vi < len(va): A(va[vi]); vi += 1
    A("s_waitcnt lgkmcnt(0)")
    fine(1, 3)
    A("s_barrier")
    fine(1, 4)
    for part in range(2):
        for cw in range(4): A(f"ds_read2_b32 {v(mR+8*part+2*cw,2)}, v{mXr + part*(mXr2-mXr)} offset0:{16*cw} offset1:{16*cw+RS//4}")
    A(f"s_waitcnt lgkmcnt({lg(4)})")
    A(f"v_pk_add_f32 {v(mR,2)}, {v(mR,2)}, {v(mR+2,2)}"); A(f"v_pk_add_f32 {v(mR+4,2)}, {v(mR+4,2)}, {v(mR+6,2)}")
    A(f"v_pk_add_f32 {v(mR,2)}, {v(mR,2)}, {v(mR+4,2)}")
    A(f"v_add_f32 v{mR+2}, v{mR}, v{mR+1}")
    A("s_waitcnt lgkmcnt(0)")
    A(f"v_pk_add_f32 {v(mR+8,2)}, {v(mR+8,2)}, {v(mR+10,2)}"); A(f"v_pk_add_f32 {v(mR+12,2)}, {v(mR+12,2)}, {v(mR+14,2)}")
    A(f"v_pk_add_f32 {v(mR+8,2)}, {v(mR+8,2)}, {v(mR+12,2)}")
    A(f"v_fma_f32 v{mR+2}, -v{mSt}, v{mR+8}, v{mR+2}")
    fine(1, 5)
    A(f"v_fma_f32 v{mR+2}, v{mR+2}, v{mSt+2}, v{mR+9}")
    A(f"v_mul_f32 v{mR+3}, {hex(f2u(-LOG2E))}, v{mR+2}")
    A(f"v_exp_f32 v{mR+3}, v{mR+3}")
    A(f"v_add_f32 v{mR+3}, 1.0, v{mR+3}"); A(f"v_rcp_f32 v{mR+3}, v{mR+3}")
    A(f"v_mul_f32 v{mR+2}, v{mR+2}, v{mR+3}")
    A(f"v_mov_b32_dpp v{mR+3}, v{mR+2} row_shl:2 row_mask:0xf bank_mask:0xf bound_ctrl:1")
    A(f"v_cvt_pk_bf16_f32 v{mR+4}, v{mR+2}, v{mR+3}")
    A(f"v_cndmask_b32 v{mR+4}, v{mR+4}, 0, {s(sM2,2)}")
    fine(1, 6)
    def bt(t):
        for q in range(4):
            d = 2*t - 4*q
            pat = "quad_perm:[0,1,2,3]" if d == 0 else (f"row_shr:{d}" if d > 0 else f"row_shl:{-d}")
            A(f"v_mov_b32_dpp v{mH+4*t+q}, v{mR+4} {pat} row_mask:0xf bank_mask:{hex(1 << (t >> 1))} bound_ctrl:1")
    def mf2(t): A(f"v_mfma_f32_16x16x32_bf16 {v(mD2,4)}, {v(mW2+4*t,4)}, {v(mH+4*t,4)}, {'0' if t == 0 else v(mD2,4)}")
    bt(0); bt(1)
    for t in range(8):
        mf2(t)
        if t + 2 < 8: bt(t + 2)
    fine(1, 7)
    if MFE == 2:
        A("s_mov_b64 exec, 1")
        A(f"buffer_store_dword v{mO+1}, v{mMQ+1}, {s(srdWS,4)}, s{sA4} offen")
        A("s_mov_b64 exec, -1")
    A(f"v_cvt_pk_bf16_f32 v{mO}, v{mD2}, v{mD2+1}"); A(f"v_cvt_pk_bf16_f32 v{mO+2}, v{mD2+2}, v{mD2+3}")
    A(f"buffer_store_dwordx4 {v(mO,4)}, v{mMQ}, {s(srdWS,4)}, s{sA3} offen sc1")
    if not MFE:
        A("s_mov_b64 exec, 1")
        A(f"buffer_store_dword v{mO+1}, v{mMQ+1}, {s(srdWS,4)}, s{sA4} offen")
    stamp(10); fine(1, 8)
    A("s_branch L_fin_end")
    for blk in out_of_line: blk()
    A("L_end:"); A("s_endpgm")
    A("L_code_end:")
    A('.section .rodata,"a"'); A(".p2align 6"); A(f".amdhsa_kernel {NAME}_kernel")
    nv = 256 if dbg else max(R.hi, H.hi, Lr.hi)
    nv_al = (nv + 3) // 4 * 4
    for l in (f"next_free_vgpr {nv}", "next_free_sgpr 96", f"accum_offset {nv_al}", "group_segment_fixed_size 0", "kernarg_size 104", "user_sgpr_count 2", "user_sgpr_kernarg_segment_ptr 1", "system_sgpr_workgroup_id_x 1", "float_denorm_mode_32 3"):
        A(".amdhsa_" + l)
    A(".end_amdhsa_kernel")
    bad = A.check_branches()
    for b in bad: print("BRANCH HAZARD", b, file=sys.stderr)
    print(f"compute regs {R.hi}, helper regs {H.hi}, loader regs {Lr.hi}, nops {A.nops}, instrs {sum(1 for i in A.ins if i.ws)}", file=sys.stderr)
    return "\n".join(hdr) + "\n" + A.text()

if __name__ == "__main__":
    out = sys.argv[1] if len(sys.argv) > 1 else "k.s"
    kw = {}
    for a in sys.argv[2:]:
        k, val = a.split("=")
        kw[k] = val.replace("_", " ") if k in STRK else int(val)
    open(out, "w").write(gen(**kw))
```

```python
import sys, struct
from asmlib import Asm
NAME = "adaLN_cond__sliding_block_cached__dense_activation_silu__decode"

EPOCH = 0
MODP = 0x1000
QPA  = 0x20000
QPB  = 0x60000
OPA  = 0xA0000
OPB  = 0xE0000
STA  = 0x120000
STB  = 0x122000
YX   = 0x2100
YA   = 0x124000
YB   = 0x138000
MF   = 0x14C000
OF   = 0x14D000
CF   = 0x14E000
YF   = 0x14F000
AP   = 0x150000
MP   = 0x170000
WS_USED = 0x1B0000
DBG  = 0x200000
QB = QPB - QPA; OB = OPB - OPA; SB = STB - STA; YBO = YB - YA

LK = 0; LV = 65536; S0 = 131072; S1 = 147456
SM = LV + 49152
SR = LV + 32768
FL = S0
F_M, F_W, F_K, F_QP, F_KR, F_MC, F_V, F_Q, F_P = 0, 4, 8, 12, 16, 32, 40, 48, 192
F_T1, F_T2, F_CR, F_R, F_RC = 36, 44, 208, 224, 228
ML = S0 + 64
HS = S0 + 512; QL = S0 + 1024; PAR = S0 + 2304; TAGL = S0 + 3328; PX = S0 + 3584; RED = S0 + 5632
RS = 272

LOG2E = 1.4426950408889634
def f2u(x): return struct.unpack("<I", struct.pack("<f", x))[0]
SC = f2u(128 ** -0.5 * LOG2E)
STRK = ("ntw", "ntk", "nts", "osf", "nt1")

HEADER = """
;
;   * across groups: 8-byte granules {bf16 pair, tag}, write-through stores, L1-bypassing loads; tag = f(epoch word of ws),
; @launch grid=(256,1,1) block=(384,1,1) lds=163840
"""

class Regs:
    def __init__(self, start=1):
        self.n = start; self.hi = start
    def a(self, cnt=1, al=None):
        al = al or (1 if cnt == 1 else 2)
        self.n = (self.n + al - 1) // al * al
        r = self.n; self.n += cnt; self.hi = max(self.hi, self.n)
        return r
def v(r, n=1): return f"v{r}" if n == 1 else f"v[{r}:{r+n-1}]"
def s(r, n=1): return f"s{r}" if n == 1 else f"s[{r}:{r+n-1}]"

def gen(WA=20, WB=20, WC=22, VA=32, VB=24, VC=28, TI=16, NI=48, NC=48, RP=0, QT=0, OT=1, TLB=0, BO=1, BT=9, EW=0, EM=0, SH=1, DM=0, DA=0, DF=0, MFE=0, ST=1, GR=0, GF=0, GT=1, RH=0, PW=0, nt1='nt', KE=0, EI=0, TB=0, WM=1, QBD=0, NQ=48, WBL=0, DIRTY=0, OPT=0, osf='', nts='', W1F=1, TMA=40, TME=16, KF=4, T2=20, TM=12, TM1=16, T3=32, QD=0, D2=8, PS=0, PN=0, PB=16, GK=7, TH=99, RA=1, RX=2, DG=60, DQ=64, DP=0, QORD=0, MFG=1,
        dbg=False, FINE=0, NA=8, NT=100000, CODE_PF=1, ntw="nt", ntk="nt", DUR=0, FREM=0):
    A = Asm()
    hdr = HEADER.strip().split("\n")
    A('.amdgcn_target "amdgcn-amd-amdhsa--gfx950"')
    A(".text"); A(f".globl {NAME}_kernel"); A(".p2align 8"); A(f".type {NAME}_kernel,@function"); A(f"{NAME}_kernel:")
    sWV, sX8, sR = 3, 36, 37
    sKO, sT0, sT1, sT2, sT3 = 38, 39, 40, 41, 42
    sTAG, sCNT, sB, sS, sW = 43, 44, 45, 46, 47
    sM0, sM1, sM2 = 48, 50, 52
    sAB = 54; sJ = 55; sT4 = 56; sT5 = 57; sT6 = 58; sT7 = 59
    sST = 60
    sREM, sLO, sHI, sTQ = 94, 95, 93, 92
    if DUR: pass
    srdWS, srdX = 16, 28
    vL, vG, vN = 1, 2, 3
    WSN = WS_USED if not dbg else 0x400000
    out_of_line = []
    def stamp(idx):
        if dbg and not FINE: A(f"s_memrealtime {s(64+2*idx,2)}")
    def fine(sec, idx):
        if dbg and FINE == sec: A(f"s_memtime {s(64+2*idx,2)}")
    def stamp_flush():
        if dbg:
            A("s_waitcnt lgkmcnt(0)")
            A("s_mov_b64 exec, -1")
            A(f"v_writelane_b32 v255, s{sST+2}, 0")
            for i in range(1, 14): A(f"v_writelane_b32 v255, s{64+2*i}, {i}")
            A(f"s_memrealtime {s(sST,2)}" if not FINE else f"s_memtime {s(sST,2)}"); A("s_waitcnt lgkmcnt(0)"); A(f"v_writelane_b32 v255, s{sST}, 14")
            A(f"s_mul_i32 s{sST}, s2, 6"); A(f"s_add_u32 s{sST}, s{sST}, s{sWV}"); A(f"s_lshl_b32 s{sST}, s{sST}, 7"); A(f"s_add_u32 s{sST}, s{sST}, {DBG}")
            A("v_and_b32 v254, 63, v0"); A("v_lshlrev_b32 v254, 2, v254")
            A("s_mov_b64 exec, 0xffff")
            A(f"buffer_store_dword v255, v254, {s(srdWS,4)}, s{sST} offen")
    def lg(n): return 0 if dbg else min(n, 15)
    def setexec(m):
        lo, hi = m & 0xffffffff, m >> 32
        if m == (1 << 64) - 1: A("s_mov_b64 exec, -1")
        elif hi == 0 and lo < 0x80000000: A(f"s_mov_b64 exec, {hex(lo)}")
        else: A(f"s_mov_b32 exec_lo, {hex(lo)}"); A(f"s_mov_b32 exec_hi, {hex(hi)}")
    def srd_tail(r, nbytes):
        A(f"s_mov_b32 s{r+2}, {nbytes}"); A(f"s_mov_b32 s{r+3}, 0x20000")
    def backoff(n):
        while n > 0: A(f"s_sleep {min(n, 100)}"); n -= 100
    lab = [0]
    def spin(va, off, vt, n=1, sleep=0):
        lab[0] += 1; L = f"L_spin{lab[0]}"
        A(f"{L}:")
        if n == 1: A(f"ds_read_b32 v{vt}, v{va} offset:{off}")
        else: A(f"ds_read_b128 {v(vt,4)}, v{va} offset:{off}")
        A("s_waitcnt lgkmcnt(0)")
        if n == 4:
            A(f"v_min3_u32 v{vt+4}, v{vt}, v{vt+1}, v{vt+2}"); A(f"v_min_u32 v{vt+4}, v{vt+4}, v{vt+3}")
        A(f"v_cmp_eq_u32 vcc, 0, v{vt + (4 if n == 4 else 0)}")
        if sleep:
            A(f"s_cbranch_vccz {L}_ok"); A(f"s_sleep {sleep}"); A(f"s_branch {L}"); A(f"{L}_ok:")
        else:
            A(f"s_cbranch_vccnz {L}")
    def smul_add(dst, terms, const=0, tmp=sT7):
        first = True
        for (r, op, k) in terms:
            d = dst if first else tmp
            A(f"s_lshl_b32 s{d}, s{r}, {k}" if op == "shl" else f"s_mul_i32 s{d}, s{r}, {k}")
            if not first: A(f"s_add_u32 s{dst}, s{dst}, s{tmp}")
            first = False
        if const: A(f"s_add_u32 s{dst}, s{dst}, {const}")
    def tagcheck(rs, acc, tag=sTAG):
        A(f"v_xor_b32 v{acc}, s{tag}, v{rs[0]}")
        for r in rs[1:]: A(f"v_bitop3_b32 v{acc}, v{r}, s{tag}, v{acc} bitop3:0xbe")
        A(f"v_cmp_ne_u32 vcc, 0, v{acc}")
    def sentcheck(rs, acc):
        if len(rs) == 1: A(f"v_cmp_eq_u32 vcc, -1, v{rs[0]}"); return
        if len(rs) == 2: A(f"v_max_u32 v{acc}, v{rs[0]}, v{rs[1]}"); i = 2
        else: A(f"v_max3_u32 v{acc}, v{rs[0]}, v{rs[1]}, v{rs[2]}"); i = 3
        while i < len(rs):
            if i + 1 < len(rs): A(f"v_max3_u32 v{acc}, v{acc}, v{rs[i]}, v{rs[i+1]}"); i += 2
            else: A(f"v_max_u32 v{acc}, v{acc}, v{rs[i]}"); i += 1
        A(f"v_cmp_eq_u32 vcc, -1, v{acc}")
    def poll(lbl, loads, check, first_wait=0):
        A(f"s_waitcnt vmcnt({first_wait})")
        check()
        A(f"s_cbranch_vccnz {lbl}_re")
        A(f"{lbl}_ok:")
        def blk():
            A(f"{lbl}_re:")
            A(f"s_mov_b32 s{sCNT}, 0")
            A(f"{lbl}_re2:")
            loads()
            A(f"s_add_u32 s{sCNT}, s{sCNT}, 1"); A(f"s_cmp_gt_u32 s{sCNT}, {NT}")
            A("s_waitcnt vmcnt(0)")
            A(f"s_cbranch_scc1 {lbl}_ok")
            check()
            A(f"s_cbranch_vccnz {lbl}_re2")
            A(f"s_branch {lbl}_ok")
        out_of_line.append(blk)
    def ipoll(lbl, loads, body, gap=0):
        A(f"s_mov_b32 s{sCNT}, 0")
        A(f"s_branch {lbl}_m")
        A(f"{lbl}_re:")
        A(f"s_add_u32 s{sCNT}, s{sCNT}, 1"); A(f"s_cmp_gt_u32 s{sCNT}, {NT}"); A(f"s_cbranch_scc1 {lbl}_ok")
        backoff(gap)
        loads()
        A(f"{lbl}_m:")
        body()
        A(f"s_cbranch_vccnz {lbl}_re")
        A(f"{lbl}_ok:")
    def gather_sum(dst, srcs, acc):
        n = len(srcs)
        for i, q in enumerate(srcs):
            A(f"s_waitcnt vmcnt({n-1-i})")
            A(f"v_xor_b32 v{acc}, s{sTAG}, v{q+3}" if i == 0 else f"v_bitop3_b32 v{acc}, v{q+3}, s{sTAG}, v{acc} bitop3:0xbe")
            if i == n - 1: A(f"v_cmp_ne_u32 vcc, 0, v{acc}")
            for c in (0, 2, 1, 3):
                A(f"v_dot2_f32_bf16 v{dst+c}, v{q + (c & 2)}, s{sHI if c & 1 else sLO}, {'0' if i == 0 else 'v%d' % (dst+c)}")
    def flagwait(lbl, va, so, vt, mask):
        A(f"s_mov_b32 s{sCNT}, 0"); setexec(mask)
        A(f"{lbl}:")
        A(f"buffer_load_dword v{vt}, v{va}, {s(srdWS,4)}, s{so} offen sc1")
        A(f"s_add_u32 s{sCNT}, s{sCNT}, 1"); A(f"s_cmp_gt_u32 s{sCNT}, {NT}")
        A("s_waitcnt vmcnt(0)")
        A(f"s_cbranch_scc1 {lbl}_x")
        A(f"v_cmp_ne_u32 vcc, s{sTAG}, v{vt}")
        A(f"s_cbranch_vccnz {lbl}")
        A(f"{lbl}_x:")
        A("s_mov_b64 exec, -1")
    def flagset(vt, so):
        A("s_waitcnt vmcnt(0)")
        A("s_mov_b64 exec, 1")
        A(f"v_mov_b32 v{vt}, 0"); A(f"v_mov_b32 v{vt+1}, s{sTAG}")
        A(f"buffer_store_dword v{vt+1}, v{vt}, {s(srdWS,4)}, s{so} offen sc1")
        A("s_mov_b64 exec, -1")
    def sum_pairs(dst, srcs):
        for i, q in enumerate(srcs):
            for c in range(4):
                A(f"v_dot2_f32_bf16 v{dst+c}, v{q + (c & 2)}, s{sHI if c & 1 else sLO}, {'0' if i == 0 else 'v%d' % (dst+c)}")
    def dot_consts():
        A(f"s_mov_b32 s{sLO}, 0x3f80"); A(f"s_mov_b32 s{sHI}, 0x3f800000")

    srdWM, srdWQ, srdK, srdV, srdW, srdW2, srdF = 8, 12, 20, 24, 4, 28, 4
    if dbg or DUR: A(f"s_memrealtime {s(sST+2,2)}")
    A(f"s_load_dwordx2 {s(srdK,2)}, s[0:1], 8")
    A(f"s_load_dwordx2 {s(srdWM,2)}, s[0:1], 72")
    A("s_cmp_ge_u32 s2, 256"); A("s_cbranch_scc1 L_end")
    A("v_lshrrev_b32 v1, 6, v0")
    A(f"s_and_b32 s{sX8}, s2, 7"); A(f"s_lshr_b32 s{sR}, s2, 3")
    A(f"v_readfirstlane_b32 s{sWV}, v1")
    A("v_and_b32 v1, 63, v0")
    A("v_lshrrev_b32 v2, 4, v1"); A("v_and_b32 v3, 15, v1")
    A(f"s_lshr_b32 s{sB}, s{sR}, 4"); A(f"s_and_b32 s{sS}, s{sR}, 15")
    sRHO = 35; P = dict(cl=34, rp=33)
    A(f"s_cmp_lg_u32 s{sWV}, 0"); A("s_cbranch_scc1 L_notloader")
    def prod_decode():
        A(f"s_bfe_u32 s{P['cl']}, s2, 0x40002"); A(f"s_and_b32 s{P['rp']}, s2, 3")

    Lr = Regs(4)
    lWM = Lr.a(4); lWQ = Lr.a(4); lK = Lr.a(4); lV = Lr.a(2); lW = Lr.a(4); lW1 = Lr.a(4); lT0 = Lr.a(); lT1 = Lr.a(); lF = Lr.a(); lOne = Lr.a(); lS = Lr.a(6, 4); lA = Lr.a(4)
    sRO = 32
    A("")
    prod_decode()
    A(f"v_xor_b32 v{lT0}, v{vG}, v{vN}"); A(f"v_lshlrev_b32 v{lT0}, 4, v{lT0}"); A(f"v_lshl_or_b32 v{lK}, v{vG}, 8, v{lT0}")
    for j in range(1, 4): A(f"v_xor_b32 v{lK+j}, {64*j}, v{lK}")
    A(f"v_and_b32 v{lT0}, 7, v{vL}"); A(f"v_lshlrev_b32 v{lT1}, 1, v{vG}"); A(f"v_xor_b32 v{lT0}, v{lT0}, v{lT1}"); A(f"v_lshlrev_b32 v{lT0}, 4, v{lT0}")
    A(f"v_lshrrev_b32 v{lT1}, 3, v{vL}")
    A(f"v_mad_u32_u24 v{lWM}, v{lT1}, s{sT4}, v{lT0}") if False else None
    A(f"v_mul_u32_u24 v{lWM}, 6144, v{lT1}"); A(f"v_add_u32 v{lWM}, v{lWM}, v{lT0}")
    for j in range(1, 4): A(f"v_add_u32 v{lWM+j}, {j*(8*6144-1024)}, v{lWM}")
    smul_add(sT0, [(P['rp'], "mul", 128*6144), (P['cl'], "shl", 7)])
    smul_add(sKO, [(sB, "shl", 26), (sX8, "shl", 23), (sS, "shl", 16)], 28672*256)
    smul_add(sT2, [(sR, "mul", RA), (sX8, "mul", RX)]); A(f"s_and_b32 s{sT2}, s{sT2}, 15"); A(f"s_lshl_b32 s{sT2}, s{sT2}, 12")
    srd_tail(srdWM, 512*6144); srd_tail(srdK, 65536)
    A(f"s_cmp_ge_u32 s{sR}, 24")
    A("s_cselect_b64 vcc, -1, 0")
    A(f"s_cselect_b32 s{sT1}, s{sT0}, s{sT2}"); A(f"s_cselect_b32 m0, {SM}, 0")
    A(f"s_mov_b32 s{sT5}, {65536*ST}")
    A(f"s_cselect_b32 s{sT5}, {32*6144}, s{sT5}"); A(f"s_cselect_b32 s{sT6}, -1, 0xffff"); A(f"s_cselect_b32 s{srdF+2}, s{srdWM+2}, s{srdK+2}")
    A(f"s_cselect_b32 s{sT3}, 0, 4"); A(f"s_lshr_b32 s{sT5}, s{sT5}, s{sT3}")
    for j in range(4): A(f"v_cndmask_b32 v{lA+j}, v{lK+j}, v{lWM+j}, vcc")
    A(f"s_mov_b32 s{srdF+3}, 0x20000")
    A("s_waitcnt lgkmcnt(0)")
    A(f"s_add_u32 s{srdK}, s{srdK}, s{sKO}"); A(f"s_addc_u32 s{srdK+1}, s{srdK+1}, 0")
    A(f"s_cmp_ge_u32 s{sR}, 24")
    A(f"s_cselect_b64 {s(srdF,2)}, {s(srdWM,2)}, {s(srdK,2)}")
    assert KF >= 4 and TI >= 16
    for gi in range(4):
        for j in range(4): A(f"buffer_load_dwordx4 v{lA+j}, {s(srdF,4)}, s{sT1} offen offset:{j*1024} {ntk} lds")
        if gi == 0: stamp(2)
        A(f"s_add_u32 s{sT1}, s{sT1}, s{sT5}"); A(f"s_and_b32 s{sT1}, s{sT1}, s{sT6}")
        if gi < 3: A("s_add_u32 m0, m0, 4096")
        if TB and gi == TB - 1:
            A(f"s_cmp_ge_u32 s{sR}, 24"); A("s_cbranch_scc1 L_l_go")
            A(f"s_waitcnt vmcnt({4*TB-1})")
            A("L_l_go:")
    A("s_setprio 3")
    A(f"s_load_dwordx2 {s(srdWQ,2)}, s[0:1], 24")
    A(f"s_load_dwordx2 {s(srdV,2)}, s[0:1], 16")
    A(f"v_lshlrev_b32 v{lF}, 4, v{vL}"); A(f"v_add_u32 v{lF}, {FL}, v{lF}")
    A(f"v_subrev_u32 v{lOne}, 4, v{vL}"); A(f"v_cmp_gt_u32 vcc, 8, v{lOne}"); A(f"v_cndmask_b32 v{lS}, 0, -1, vcc")
    for i in range(1, 4): A(f"v_mov_b32 v{lS+i}, v{lS}")
    A("s_mov_b64 exec, 0xffff")
    A(f"ds_write_b128 v{lF}, {v(lS,4)}")
    A("s_mov_b64 exec, -1")
    A(f"v_lshl_or_b32 v{lWQ}, v{lT1}, 13, v{lT0}")
    A(f"s_lshr_b32 s{sRHO}, s{sR}, 3")
    A(f"s_cmp_ge_u32 s{sR}, 24"); A(f"s_cselect_b32 s{sT2}, s{sT2}, s{sT1}")
    A("s_waitcnt lgkmcnt(0)")
    A("s_barrier")
    def group(srd, vr, so, wait, nt=ntk):
        for j in range(4):
            if wait is not None: A(f"s_waitcnt vmcnt({wait})")
            A(f"buffer_load_dwordx4 v{vr[j]}, {s(srd,4)}, s{so} offen offset:{j*1024} {nt} lds")
    def flag(off, cnt):
        A(f"s_waitcnt vmcnt({cnt})"); A(f"ds_write_b32 v{lF}, v{lOne} offset:{off}")
    kr = [lK+j for j in range(4)]
    def late_setup():
        for j in range(1, 4): A(f"v_add_u32 v{lWQ+j}, {j*(8*8192-1024)}, v{lWQ}")
        srd_tail(srdWQ, 512*8192)
        A(f"s_and_b32 s{sT3}, s{sR}, 7")
        smul_add(sT1, [(sRHO, "shl", 20), (sX8, "shl", 10), (sT3, "shl", 7)])
        A(f"v_mov_b32 v{lF}, {FL}"); A(f"v_mov_b32 v{lOne}, 1")
        A(f"s_lshr_b32 s{sT3}, s2, 2"); A(f"s_add_u32 s{sT3}, s{sT3}, {-16 if RP else 16}")
        smul_add(sRO, [(P['rp'], "mul", 128*6144), (sT3, "shl", 7)])
    def kbase():
        A(f"s_add_u32 s{srdK}, s{srdK}, s{sKO}"); A(f"s_addc_u32 s{srdK+1}, s{srdK+1}, 0")
    def pace(extra=0):
        if PS: A(f"s_sleep {PS}")
        n = PN + (extra if PS or PN else 0)
        while n >= 4: k = min(n // 4, 16); A(f"s_nop {k-1}"); n -= 4*k
    vr = [lV, lV+1, lV, lV+1]
    def kvloop(name, srd, vr, end, TT):
        A(f"{name}:")
        group(srd, vr, sT2, TT-1)
        A(f"s_add_u32 s{sT2}, s{sT2}, {4096*ST}"); A(f"s_and_b32 s{sT2}, s{sT2}, 0xffff")
        A("s_add_u32 m0, m0, 4096"); A(f"s_cmp_lt_u32 m0, {end}"); A(f"s_cbranch_scc1 {name}")
    def setup2():
        A(f"s_cmp_lt_u32 s{sR}, 16"); A(f"s_cselect_b32 s{sT4}, 32, 48")
        A(f"s_load_dwordx2 {s(srdW,2)}, s[0:1], s{sT4}")
        A(f"s_load_dwordx2 {s(srdW2,2)}, s[0:1], 56")
        if dbg: A(f"s_load_dwordx2 {s(srdWS,2)}, s[0:1], 96"); srd_tail(srdWS, WSN)
        A(f"s_add_u32 s{srdV}, s{srdV}, s{sKO}"); A(f"s_addc_u32 s{srdV+1}, s{srdV+1}, 0"); srd_tail(srdV, 65536)
        A(f"v_lshlrev_b32 v{lT0}, 1, v{vG}"); A(f"v_xor_b32 v{lT0}, v{lT0}, v{vN}"); A(f"v_lshlrev_b32 v{lT0}, 4, v{lT0}")
        A(f"v_lshl_or_b32 v{lV}, v{vG}, 8, v{lT0}"); A(f"v_xor_b32 v{lV+1}, 128, v{lV}")
        A(f"v_lshl_or_b32 v{lW}, v{vG}, 10, v{lT0}"); A(f"v_xor_b32 v{lT0}, 128, v{lW}")
        A(f"v_add_u32 v{lW+1}, 3072, v{lT0}"); A(f"v_add_u32 v{lW+2}, 6144, v{lW}"); A(f"v_add_u32 v{lW+3}, 9216, v{lT0}")
    wr = [lW+j for j in range(4)]
    def wo_setup():
        spin(lF, F_KR, lS, 4)
        srd_tail(srdW, 4096*1024)
        A(f"s_lshr_b32 s{sT1}, s{sR}, 2"); A(f"s_and_b32 s{sT3}, s{sR}, 3")
        smul_add(sT0, [(sX8, "shl", 19), (sT1, "shl", 17), (sT3, "shl", 8)])
        A("s_mov_b32 m0, 0")
    def wog(i):
        def f(w):
            group(srdW, wr, sT0, w, ntw)
            if i < 7: A(f"s_add_u32 s{sT0}, s{sT0}, 16384"); A("s_add_u32 m0, m0, 4096")
        return f
    def mlp_setup():
        A(f"v_and_b32 v{lT0}, 1, v{vG}"); A(f"v_lshlrev_b32 v{lT0}, 1, v{lT0}"); A(f"v_and_b32 v{lT1}, 3, v{vL}"); A(f"v_xor_b32 v{lT0}, v{lT0}, v{lT1}"); A(f"v_lshlrev_b32 v{lT0}, 4, v{lT0}")
        A(f"v_lshrrev_b32 v{lT1}, 2, v{vL}"); A(f"v_mul_u32_u24 v{lT1}, 3584, v{lT1}"); A(f"v_add_u32 v{lW1}, v{lT0}, v{lT1}")
        for j in range(1, 4): A(f"v_add_u32 v{lW1+j}, {j*(16*3584-1024)}, v{lW1}")
        srd_tail(srdW, 512*3584); srd_tail(srdW2, 1792*1024)
        spin(lF, F_KR, lS, 4)
        A(f"s_mul_i32 s{sJ}, s{sX8}, 7"); A(f"s_add_u32 s{sJ}, s{sJ}, s{sR}"); A(f"s_sub_u32 s{sJ}, s{sJ}, 16")
        A(f"s_lshl_b32 s{sT0}, s{sJ}, 6"); A(f"s_lshl_b32 s{sT1}, s{sJ}, 15")
        A("s_mov_b32 m0, 0")
    def w1g(i, nt=ntw):
        def f(w):
            group(srdW, [lW1+j for j in range(4)], sT0, w, nt)
            A(f"s_add_u32 s{sT0}, s{sT0}, {64*3584}"); A("s_add_u32 m0, m0, 4096")
        return f
    def w2g(i, nt=ntw):
        def f(w):
            group(srdW2, wr, sT1, w, nt)
            if i < 7:
                A(f"s_add_u32 s{sT1}, s{sT1}, 16384" if i % 2 == 0 else f"s_sub_u32 s{sT1}, s{sT1}, {16384-256}"); A("s_add_u32 m0, m0, 4096")
        return f
    def stream(sfx, seq, W, WV, NI=NI):
        seq = list(seq); n = 16; pend = [(16, F_M)] if seq[0] == "m" else []; kidx = 0 if pend else 4; cnt = {"m": 0, "q": 0, "r": 0}
        i = 4
        while i < len(seq) or pend:
            TT = TI if n < NI else W
            while pend and n - pend[0][0] >= TT - 1:
                flag(pend[0][1], n - pend[0][0])
                if pend[0][1] == F_M: stamp(7)
                pend.pop(0)
            if n == NI and pend and n - pend[0][0] >= TI:
                flag(pend[0][1], n - pend[0][0])
                if pend[0][1] == F_M: stamp(7)
                pend.pop(0)
            if i >= len(seq) and not pend: break
            kind = seq[i] if i < len(seq) else "k"
            w = TT - 1 if n + 3 >= TT else None
            if kind == "k":
                A(f"s_mov_b32 m0, {kidx*4096}")
                group(srdK, kr, sT2, w)
                A(f"s_add_u32 s{sT2}, s{sT2}, {4096*ST}"); A(f"s_and_b32 s{sT2}, s{sT2}, 0xffff"); kidx += 1
            else:
                srd, vq, so, base, st, fo = {"m": (srdWM, lWM, sT0, SM, 6144, F_M), "q": (srdWQ, lWQ, sT1, S1, 8192, F_W), "r": (srdWM, lWM, sRO, SR, 6144, F_R)}[kind]
                A(f"s_mov_b32 m0, {base + 4096*cnt[kind]}")
                group(srd, [vq+j for j in range(4)], so, w, ntw)
                cnt[kind] += 1
                if cnt[kind] < 4: A(f"s_add_u32 s{so}, s{so}, {32*st}")
                else: pend.append((n + 4, fo))
            n += 4; i += 1
        A(f"s_mov_b32 m0, {kidx*4096}")
        assert kidx < 16
        stamp(1)
        kvloop("L_k3" + sfx, srdK, kr, LV, W)
        stamp(3)
        gv = min((W + 3) // 4, GK)
        assert WV >= W
        late_r = RP == 2 and sfx != "a"
        if late_r:
            if "m" in seq: spin(lF, F_MC, lS)
            for gi in range(4):
                A(f"s_mov_b32 m0, {SM + 4096*gi}")
                group(srdWM, [lWM+j for j in range(4)], sRO, W-1, ntw)
                if gi < 3: A(f"s_add_u32 s{sRO}, s{sRO}, {32*6144}")
            A(f"s_mov_b32 m0, {LV}")
            gk = max(gv - 4, 1)
            kvloop("L_v0" + sfx, srdV, vr, LV + gk*4096, W)
            flag(F_K, min(W-1, 16 + 4*gk))
            if gv > gk: kvloop("L_v1" + sfx, srdV, vr, LV + gv*4096, W)
            flag(F_R, min(W-1, 4*gv))
        else:
            kvloop("L_v1" + sfx, srdV, vr, LV + gv*4096, W)
            flag(F_K, min(W-1, 4*gv))
        stamp(4)
        assert gv < 8
        kvloop("L_v2" + sfx, srdV, vr, SR, WV)
        if late_r:
            kvloop("L_v6" + sfx, srdV, vr, SM, WV)
            spin(lF, F_RC, lS)
        else:
            if "r" in seq: spin(lF, F_RC, lS)
            if "m" in seq: spin(lF, F_MC, lS)
        if EW and sfx == "a":
            if EW > 8: kvloop("L_v4" + sfx, srdV, vr, LV + EW*4096, WV)
            wo_setup()
            for i in range(8): wog(i)(WV - 1)
            A(f"s_mov_b32 m0, {LV + EW*4096}")
        if EM and sfx == "b":
            if EM > 8: kvloop("L_v4" + sfx, srdV, vr, LV + EM*4096, WV)
            A(f"s_cmp_eq_u32 s{sR}, 23"); A("s_cbranch_scc1 L_v5b")
            mlp_setup()
            for i in range(8): w1g(i)(TME - 1)
            A(f"s_mov_b32 m0, {LV + EM*4096}")
            A("L_v5b:")
        kvloop("L_v3" + sfx, srdV, vr, S0, WV)
        stamp(5)
    A("")
    late_setup(); setup2()
    A(f"s_cmp_ge_u32 s{sR}, 24"); A("s_cbranch_scc1 L_l_crit")
    A(f"s_cmp_lt_u32 s{sR}, 16"); A("s_cbranch_scc1 L_l_light")
    stream("b", "k"*KF + "qqqq" + "rrrr"*(RP == 1), WB, VB)
    A(f"s_sub_u32 s{sT0}, s{sR}, 16"); A(f"s_cmp_lt_u32 s{sT0}, 7"); A("s_cbranch_scc1 L_l_mlp")
    A("s_branch L_l_plain")
    A("L_l_light:")
    stream("a", "k"*KF + ("rrrrqqqq" if RH else "qqqq" + "rrrr"*(RP == 0)), WA, VA)
    A("s_branch L_l_t1")
    A("L_l_crit:")
    stream("c", "mmmm" + "k"*KF + "qqqq" + "rrrr"*(RP == 1), WC, VC, NC)
    if SH:
        A(f"s_cmp_eq_u32 s{sR}, 31"); A("s_cbranch_scc1 L_l_plain")
        A(f"s_sub_u32 s{sR}, s{sR}, 8")
        mlp_setup()
        A(f"s_add_u32 s{sT0}, s{sT0}, {(8-SH+1)*64*3584}")
        flag(F_V, 8)
        A("s_waitcnt vmcnt(0)"); A("s_barrier")
        A("s_barrier")
        backoff(DM)
        if PW == 2:
            A(f"s_and_b32 s{sT3}, s{sX8}, 1"); A(f"s_mul_i32 s{sT3}, s{sT3}, 6"); A(f"s_add_u32 s{sT3}, s{sT3}, s{sR}"); A(f"s_cmp_eq_u32 s{sT3}, 22"); A("s_cbranch_scc0 L_l_sh2")
            A(f"s_lshl_b32 s{sT0}, s{sJ}, 6"); A(f"s_and_b32 s{sT3}, s{sJ}, 1"); A(f"s_xor_b32 s{sT3}, s{sT3}, 1"); A(f"s_mul_i32 s{sT3}, s{sT3}, {4*64*3584}"); A(f"s_add_u32 s{sT0}, s{sT0}, s{sT3}")
            for i in range(4): w1g(i, nts)(TM1 - 1)
            A("L_l_sh2:")
        for i in range(SH - 1): w1g(i, nts)(TM1 - 1)
        for i in range(8): w2g(i, nts)(TMA - 1)
        A("s_branch L_l_end")
    A("L_l_plain:")
    flag(F_V, 8)
    A("s_waitcnt vmcnt(0)"); A("s_barrier")
    if DIRTY:
        A(f"s_cmp_eq_u32 s{sR}, 31"); A("s_cbranch_scc0 L_l_nd")
        A(f"s_load_dwordx2 {s(srdWS,2)}, s[0:1], 96"); srd_tail(srdWS, 0x4000000); A(f"v_lshlrev_b32 v{lT0}, 4, v{vL}")
        smul_add(sT0, [(sX8, "shl", 21)], 0x1000000); A("s_waitcnt lgkmcnt(0)")
        for i in range(DIRTY):
            A(f"buffer_store_dwordx4 {v(lS,4)}, v{lT0}, {s(srdWS,4)}, s{sT0} offen"); A(f"s_add_u32 s{sT0}, s{sT0}, 1024")
        A("L_l_nd:")
    if WBL:
        A(f"s_cmp_eq_u32 s{sR}, 31"); A("s_cbranch_scc0 L_l_end")
        backoff(WBL)
        A("buffer_wbl2 sc1"); A("s_waitcnt vmcnt(0)")
    A("L_l_end:")
    stamp_flush()
    A("s_endpgm")
    def post_v(name, groups, TT, marks):
        n = 0; gi = 0
        def rd(): A(f"ds_read_b128 {v(lS,4)}, v{lF} offset:{F_CR}")
        def ck():
            A("s_waitcnt lgkmcnt(0)")
            A(f"v_min3_u32 v{lS+4}, v{lS}, v{lS+1}, v{lS+2}"); A(f"v_min_u32 v{lS+4}, v{lS+4}, v{lS+3}"); A(f"v_cmp_eq_u32 vcc, 0, v{lS+4}")
        while gi < len(groups) and n - TT < -8: groups[gi](TT - 1); n += 4; gi += 1
        flag(F_V, n + 8)
        rd(); ck()
        while gi < len(groups) and n - TT < 0: groups[gi](TT - 1); n += 4; gi += 1
        g0 = gi
        A(f"s_cbranch_vccnz {name}_late")
        A(f"s_waitcnt vmcnt({n})")
        for g in range(g0, len(groups)):
            if g > g0: A(f"s_branch {name}_c{g}"); A(f"{name}_b{g}:")
            A("s_barrier")
            A(f"{name}_c{g}:")
            groups[g](T3 - 1)
        A(f"s_branch {name}_e")
        A(f"{name}_late:")
        A(f"s_waitcnt vmcnt({n})")
        for g in range(g0, len(groups)):
            if g > g0: ck(); A(f"s_cbranch_vccz {name}_b{g}")
            rd()
            groups[g](T3 - 1)
        A("s_barrier")
        A(f"{name}_e:")
        if marks: A("s_waitcnt vmcnt(0)"); A("s_barrier")
    A("")
    A("L_l_t1:")
    if EW: A("s_branch L_l_plain")
    wo_setup()
    if BT:
        for i in range(BT - 1): wog(i)(VA - 1)
        flag(F_V, 8 + 4*(BT-1))
        A(f"s_waitcnt vmcnt({4*(BT-1)})"); A("s_barrier")
        A("s_barrier")
        for i in range(BT - 1, 8): wog(i)(63)
        A("s_waitcnt vmcnt(0)"); A("s_barrier")
    else:
        post_v("L_pw", [wog(i) for i in range(8)], T2, [32])
    A("s_branch L_l_end")
    A("")
    A("L_l_mlp:")
    if not EM: mlp_setup()
    else: srd_tail(srdW2, 1792*1024)
    def w1s(i):
        def f(w): w1g(i)(min(w, TM1 - 1))
        return f
    def w2s(i):
        def f(w): w2g(i)(TMA - 1)
        return f
    flag(F_V, 8)
    def rd(): A(f"ds_read_b128 {v(lS,4)}, v{lF} offset:{F_CR}")
    def ck():
        A("s_waitcnt lgkmcnt(0)")
        A(f"v_max3_u32 v{lS+4}, v{lS}, v{lS+1}, v{lS+2}"); A(f"v_max_u32 v{lS+4}, v{lS+4}, v{lS+3}"); A(f"v_cmp_eq_u32 vcc, 0, v{lS+4}")
    if EI:
        rd(); ck()
        A("s_waitcnt vmcnt(0)")
        for g in range(8):
            if g: ck()
            A(f"s_cbranch_vccz L_m_b{g}")
            rd()
            w1g(g)(TME - 1)
        A("s_barrier"); A("s_barrier")
        A("s_branch L_m_w2")
        for g in range(8):
            if g: A(f"s_branch L_m_c{g}")
            A(f"L_m_b{g}:")
            A("s_barrier"); A("s_barrier")
            A(f"L_m_c{g}:")
            w1s(g)(63)
        A("L_m_w2:")
    else:
        if PW:
            A(f"s_and_b32 s{sT3}, s{sJ}, 1"); A(f"s_mul_i32 s{sT4}, s{sT3}, {4*64*3584}"); A(f"s_add_u32 s{sT0}, s{sT0}, s{sT4}")
            A(f"s_lshl_b32 m0, s{sT3}, 14"); A(f"s_lshl_b32 s{sT4}, s{sT4}, 1"); A(f"s_lshl_b32 s{sT3}, s{sT3}, 15")
        A("s_waitcnt vmcnt(0)"); A("s_barrier"); A("s_barrier")
        for i in range(8):
            w1g(i, nt1)(TM1 - 1)
            if PW and i == 3: A(f"s_sub_u32 s{sT0}, s{sT0}, s{sT4}"); A(f"s_sub_u32 m0, m0, s{sT3}")
        A("s_mov_b32 m0, 32768")
    for i in range(8): w2s(i)(0)
    A("s_waitcnt vmcnt(0)"); A("s_barrier")
    A("s_branch L_l_end")

    A("L_notloader:")
    A(f"s_load_dwordx2 {s(srdWS,2)}, s[0:1], 96")
    A(f"s_load_dwordx2 {s(srdX,2)}, s[0:1], 0")
    A(f"s_cmp_lg_u32 s{sWV}, 1"); A("s_cbranch_scc1 L_compute")

    H = Regs(4)
    srdC, srdCode = 4, 24
    hT0 = H.a(); hT1 = H.a(); hT2 = H.a(); hT3 = H.a()
    hE = H.a(); hC = H.a(2); hX0 = H.a(4, 4); hX1 = H.a(4, 4); hXa = H.a(); hXb = H.a()
    hTR = H.a(4); hA = H.a(16, 4); hB = H.a(64, 4); hBq = H.a(64, 4); hD = H.a(16, 4); hF = H.a(4, 4)
    hM = H.a(4); hU = H.a(12, 4); hL16 = H.a(); hAcc = H.a(); hDum = H.a(); hFl = H.a(); hOne = H.a()
    xn = H.a(4); hHa = H.a(); hHr = H.a(); hQa = H.a(); hGa = H.a(); hGr = H.a()
    hG, hN = vG, vN
    A("")
    A("s_setprio 2")
    A(f"s_load_dwordx2 {s(srdC,2)}, s[0:1], 64")
    A(f"s_lshr_b32 s{sRHO}, s{sR}, 3")
    prod_decode()
    def c_addr(t0, t1):
        A(f"v_and_b32 v{t0}, 1, v{vN}"); A(f"v_lshlrev_b32 v{t0}, 10, v{t0}")
        A(f"v_lshrrev_b32 v{t1}, 1, v{vN}"); A(f"v_lshl_or_b32 v{t0}, v{t1}, 5, v{t0}"); A(f"v_lshl_or_b32 v{t0}, v{vG}, 3, v{t0}")
    c_addr(hT0, hT1)
    A(f"v_lshlrev_b32 v{hL16}, 4, v{vL}"); A(f"v_mov_b32 v{hT2}, 0"); A(f"v_lshlrev_b32 v{hT3}, 2, v{vL}")
    srd_tail(srdWS, WSN); srd_tail(srdC, 2048); srd_tail(srdX, 2048)
    A(f"s_lshl_b32 s{sT0}, s{P['rp']}, 8"); A(f"s_lshl_b32 s{sT1}, s{sRHO}, 8")
    A("s_waitcnt lgkmcnt(0)")
    A(f"buffer_load_dword v{hE}, v{hT2}, {s(srdWS,4)}, 0 offen sc1")
    A(f"buffer_load_dwordx2 {v(hC,2)}, v{hT0}, {s(srdC,4)}, s{sT0} offen")
    A(f"buffer_load_dwordx4 {v(hX0,4)}, v{hL16}, {s(srdX,4)}, 0 offen")
    A(f"buffer_load_dwordx4 {v(hX1,4)}, v{hL16}, {s(srdX,4)}, 0 offen offset:1024")
    for i in range(4): A(f"v_mov_b32 v{hF+i}, -1")
    A(f"v_mov_b32 v{hFl}, {FL}"); A(f"v_mov_b32 v{hOne}, 1")
    A("")
    smul_add(sT0, [(sX8, "shl", 15), (sR, "shl", 10)], OPA)
    hTch = hBq
    if OT: A(f"buffer_load_dwordx4 {v(hTch,4)}, v{hL16}, {s(srdWS,4)}, s{sT0} offen")
    A(f"buffer_store_dwordx4 {v(hF,4)}, v{hL16}, {s(srdWS,4)}, s{sT0} offen")
    sQA = 32
    A(f"v_and_b32 v{hT0}, 1, v{hG}"); A(f"v_lshlrev_b32 v{hT0}, 13, v{hT0}"); A(f"v_lshrrev_b32 v{hT1}, 1, v{hG}"); A(f"v_lshl_or_b32 v{hT0}, v{hT1}, 6, v{hT0}")
    A(f"v_and_b32 v{hT1}, 1, v{hN}"); A(f"v_lshl_or_b32 v{hT0}, v{hT1}, 7, v{hT0}"); A(f"v_cmp_eq_u32 {s(sM0,2)}, 1, v{hT1}")
    A(f"v_lshrrev_b32 v{hT1}, 1, v{hN}"); A(f"v_lshl_or_b32 v{hQa}, v{hT1}, 3, v{hT0}")
    A(f"s_and_b32 s{sT4}, s{sR}, 7")
    smul_add(sQA, [(sX8, "shl", 14), (sRHO, "shl", 11), (sT4, "shl", 8)], QPA)
    if QT:
        A(f"buffer_load_dwordx2 {v(hU+8,2)}, v{hQa}, {s(srdWS,4)}, s{sQA} offen")
    A(f"s_cmp_lg_u32 s{sS}, 0"); A("s_cbranch_scc1 L_h_c2")
    smul_add(sT0, [(sX8, "shl", 10), (sB, "shl", 9)], STA)
    setexec(0xffffffff)
    if OT: A(f"buffer_load_dwordx4 {v(hTch+4,4)}, v{hL16}, {s(srdWS,4)}, s{sT0} offen")
    A(f"buffer_store_dwordx4 {v(hF,4)}, v{hL16}, {s(srdWS,4)}, s{sT0} offen")
    A("s_mov_b64 exec, -1")
    A("L_h_c2:")
    A(f"s_cmp_ge_u32 s{sR}, 16"); A("s_cbranch_scc1 L_h_c3")
    smul_add(sT0, [(sX8, "mul", YX), (sR, "shl", 9)], YA)
    A(f"s_mul_i32 s{sT1}, s{sR}, {16-512}"); A(f"s_add_u32 s{sT1}, s{sT1}, 8192")
    A(f"v_mov_b32 v{hT0}, v{hL16}"); A(f"v_writelane_b32 v{hT0}, s{sT1}, 32")
    setexec(0x1ffffffff)
    if OT: A(f"buffer_load_dwordx4 {v(hTch+8,4)}, v{hT0}, {s(srdWS,4)}, s{sT0} offen")
    A(f"buffer_store_dwordx4 {v(hF,4)}, v{hT0}, {s(srdWS,4)}, s{sT0} offen")
    A("s_mov_b64 exec, -1")
    A("L_h_c3:")
    if CODE_PF:
        A(f"s_getpc_b64 {s(srdCode,2)}")
        A("L_pc:")
        A(f"s_sub_u32 s{srdCode}, s{srdCode}, L_pc-{NAME}_kernel"); A(f"s_subb_u32 s{srdCode+1}, s{srdCode+1}, 0")
        srd_tail(srdCode, f"L_code_end-{NAME}_kernel")
        A(f"v_lshlrev_b32 v{hT1}, 7, v{vL}"); A(f"s_mul_i32 s{sT0}, s{sR}, 768")
        A("s_mov_b64 exec, 0x3f")
        A(f"buffer_load_dword v{hDum}, v{hT1}, {s(srdCode,4)}, s{sT0} offen")
        A("s_mov_b64 exec, -1")
    NPF = 1 if CODE_PF else 0
    def tr128_base(dst4, t0, t1, lbase):
        A(f"v_lshrrev_b32 v{t0}, 2, v{vL}"); A(f"v_bfe_u32 v{t1}, v{vL}, 3, 2")
        A(f"v_lshlrev_b32 v{t1}, 5, v{t1}"); A(f"v_lshl_or_b32 v{t0}, v{t0}, 7, v{t1}")
        A(f"v_and_b32 v{t1}, 3, v{vL}"); A(f"v_lshl_or_b32 v{t0}, v{t1}, 3, v{t0}")
        A(f"v_add_u32 v{dst4}, {lbase}, v{t0}")
        for t in range(1, 4): A(f"v_xor_b32 v{dst4+t}, {32*t}, v{dst4}")
    def tr128_read(dst, base4, off):
        for sg in range(4):
            for t in range(4):
                for u in range(2):
                    A(f"ds_read_b64_tr_b16 {v(dst + (sg*4 + t)*4 + 2*u, 2)}, v{base4+t} offset:{off + (32*sg + 16*u)*128}")
    A("s_barrier")
    tr128_base(hTR, hT0, hT1, SM)
    A(f"s_getreg_b32 s{sTQ}, hwreg(HW_REG_XCC_ID, 0, 3)")
    dot_consts()
    stamp(1)
    A(f"s_waitcnt vmcnt({2+1+OT+QT+NPF})")
    A(f"v_readfirstlane_b32 s{sTAG}, v{hE}")
    A(f"s_add_u32 s{sTAG}, s{sTAG}, 0x9E3779B1")
    A(f"s_add_u32 s{sTQ}, s{sTQ}, s{sTAG}")
    def mod_block(rC, rU, rA, rB, rD, rTR, rT0, rT1, rFl, rOne, crit):
        A(f"v_lshlrev_b32 v{rU+0}, 16, v{rC}"); A(f"v_and_b32 v{rU+1}, 0xffff0000, v{rC}")
        A(f"v_lshlrev_b32 v{rU+2}, 16, v{rC+1}"); A(f"v_and_b32 v{rU+3}, 0xffff0000, v{rC+1}")
        for i in range(4): A(f"v_mul_f32 v{rU+4+i}, {hex(f2u(-LOG2E))}, v{rU+i}")
        for i in range(4): A(f"v_exp_f32 v{rU+4+i}, v{rU+4+i}")
        for i in range(4): A(f"v_add_f32 v{rU+4+i}, 1.0, v{rU+4+i}")
        for i in range(4): A(f"v_rcp_f32 v{rU+4+i}, v{rU+4+i}")
        for i in range(4): A(f"v_mul_f32 v{rU+i}, v{rU+i}, v{rU+4+i}")
        A(f"v_cvt_pk_bf16_f32 v{rA}, v{rU}, v{rU+1}"); A(f"v_cvt_pk_bf16_f32 v{rA+1}, v{rU+2}, v{rU+3}")
        for sg in range(4):
            for q in range(4):
                sh = 4*sg + 2*(q >> 1)
                if sh: A(f"v_mov_b32_dpp v{rA+4*sg+q}, v{rA+(q&1)} row_shl:{sh} row_mask:0xf bank_mask:0xf bound_ctrl:1")
        smul_add(sT0, [(P['cl'], "shl", 11), (P['rp'], "shl", 9)], MODP)
        A(f"v_lshlrev_b32 v{rT0}, 3, v{vL}")
        A(f"v_mov_b32 v{rU+1}, s{sTAG}")
        spin(rFl, F_M if crit else F_R, rT1, sleep=0 if crit else 2)
        if crit: stamp(2)
        tr128_read(rB, rTR, 0)
        A(f"ds_write_b32 v{rFl}, v{rOne} offset:{F_MC if crit else F_RC}")
        for sg in range(4):
            A(f"s_waitcnt lgkmcnt({lg(25-8*sg)})")
            for t in range(4):
                A(f"v_mfma_f32_16x16x32_bf16 {v(rD+4*t,4)}, {v(rA+4*sg,4)}, {v(rB+(sg*4+t)*4,4)}, {'0' if sg == 0 else v(rD+4*t,4)}")
        for t in range(4): A(f"v_cvt_pk_bf16_f32 v{rU+2*t}, v{rD+4*t}, v{rD+4*t+1}")
        A(f"v_permlane16_swap_b32 v{rU}, v{rU+2}"); A(f"v_permlane16_swap_b32 v{rU+4}, v{rU+6}")
        A(f"v_permlane32_swap_b32 v{rU}, v{rU+4}")
        A(f"buffer_store_dwordx2 {v(rU,2)}, v{rT0}, {s(srdWS,4)}, s{sT0} offen sc1")
        if crit: stamp(3)
    A("")
    A(f"s_cmp_lt_u32 s{sR}, 24"); A("s_cbranch_scc1 L_h_m1")
    mod_block(hC, hU, hA, hB, hD, hTR, hT0, hT1, hFl, hOne, True)
    if RH:
        A("s_branch L_h_m2")
        A("L_h_m1:")
        A(f"s_cmp_lt_u32 s{sR}, 16"); A("s_cbranch_scc0 L_h_m2")
        A(f"s_lshr_b32 s{P['cl']}, s2, 2"); A(f"s_add_u32 s{P['cl']}, s{P['cl']}, 16")
        for t in range(4): A(f"v_subrev_u32 v{hTR+t}, {SM-SR}, v{hTR+t}")
        A("s_waitcnt vmcnt(0)")
        mod_block(hC, hU, hA, hB, hD, hTR, hT0, hT1, hFl, hOne, False)
        for t in range(4): A(f"v_add_u32 v{hTR+t}, {SM-SR}, v{hTR+t}")
        A("s_branch L_h_m3")
        A("L_h_m2:")
        A("s_waitcnt vmcnt(0)")
        A("L_h_m3:")
    else:
        A("L_h_m1:")
    A(f"v_lshrrev_b32 v{hT0}, 5, v{vL}"); A(f"v_and_b32 v{hT1}, 31, v{vL}"); A(f"v_lshlrev_b32 v{hT1}, 4, v{hT1}"); A(f"v_lshl_or_b32 v{hGa}, v{hT0}, 11, v{hT1}")
    A(f"s_lshl_b32 s{sT0}, s{sRHO}, 12"); A(f"s_add_u32 s{sT0}, s{sT0}, {MODP}"); A(f"s_add_u32 s{sT1}, s{sT0}, {8*2048}")
    def modp_loads():
        for rp in range(4):
            A(f"buffer_load_dwordx4 {v(hB+4*rp,4)}, v{hGa}, {s(srdWS,4)}, s{sT0} offen offset:{rp*512} sc1")
            A(f"buffer_load_dwordx4 {v(hB+16+4*rp,4)}, v{hGa}, {s(srdWS,4)}, s{sT1} offen offset:{rp*512} sc1")
    A("")
    if not RH: A("s_waitcnt vmcnt(0)")
    spin(hFl, F_T1, hT1, sleep=1)
    stamp(10)
    modp_loads()
    def unpack(dst, src, n):
        for i in range(n):
            A(f"v_lshlrev_b32 v{dst+2*i}, 16, v{src+i}"); A(f"v_and_b32 v{dst+2*i+1}, 0xffff0000, v{src+i}")
    def allreduce64(regs, op, tmp):
        for pat in ("quad_perm:[1,0,3,2]", "quad_perm:[2,3,0,1]", "row_half_mirror", "row_mirror"):
            for r in regs: A(f"{op}_dpp v{r}, v{r}, v{r} {pat} row_mask:0xf bank_mask:0xf bound_ctrl:1")
        for sw in ("v_permlane16_swap_b32", "v_permlane32_swap_b32"):
            for i, r in enumerate(regs): A(f"v_mov_b32 v{tmp+i}, v{r}")
            for i, r in enumerate(regs): A(f"{sw} v{tmp+i}, v{r}")
            for i, r in enumerate(regs): A(f"{op} v{r}, v{r}, v{tmp+i}")
    xs = hB + 32
    A(f"s_lshl_b32 s{sT4}, s{sRHO}, 6"); A(f"v_and_b32 v{hT0}, 60, v{vL}"); A(f"v_add_u32 v{hT0}, s{sT4}, v{hT0}")
    for b, src in enumerate((hX0, hX1)):
        for i in range(4): A(f"ds_bpermute_b32 v{hD+4*b+i}, v{hT0}, v{src+i}")
    unpack(xs, hX0, 4); unpack(xs+8, hX1, 4)
    for b in range(2):
        A(f"v_add_f32 v{hM+b}, v{xs+8*b}, v{xs+8*b+1}")
        for i in range(2, 8): A(f"v_add_f32 v{hM+b}, v{hM+b}, v{xs+8*b+i}")
    allreduce64([hM, hM+1], "v_add_f32", hU)
    for b in range(2): A(f"v_mul_f32 v{hM+b}, {hex(f2u(1/512))}, v{hM+b}")
    for b in range(2):
        for i in range(8): A(f"v_sub_f32 v{xs+8*b+i}, v{xs+8*b+i}, v{hM+b}")
        A(f"v_mul_f32 v{hM+2+b}, v{xs+8*b}, v{xs+8*b}")
        for i in range(1, 8): A(f"v_fmac_f32 v{hM+2+b}, v{xs+8*b+i}, v{xs+8*b+i}")
    allreduce64([hM+2, hM+3], "v_add_f32", hU)
    for b in range(2): A(f"v_mov_b32 v{hU+b}, {hex(f2u(1e-5))}"); A(f"v_fmac_f32 v{hU+b}, {hex(f2u(1/512))}, v{hM+2+b}")
    for b in range(2): A(f"v_rsq_f32 v{hM+2+b}, v{hU+b}")
    A("s_waitcnt lgkmcnt(0)")
    A(f"v_and_b32 v{hT0}, 1, v{vL}"); A(f"v_cmp_eq_u32 vcc, 1, v{hT0}")
    for b in range(2):
        A(f"v_cndmask_b32 v{hD+4*b}, v{hD+4*b}, v{hD+4*b+1}, vcc"); A(f"v_cndmask_b32 v{hD+4*b+2}, v{hD+4*b+2}, v{hD+4*b+3}, vcc")
    A(f"v_and_b32 v{hT0}, 2, v{vL}"); A(f"v_cmp_eq_u32 vcc, 2, v{hT0}")
    A(f"v_cndmask_b32 v{hXa}, v{hD}, v{hD+2}, vcc"); A(f"v_cndmask_b32 v{hXb}, v{hD+4}, v{hD+6}, vcc")
    unpack(xn, hXa, 1); unpack(xn+2, hXb, 1)
    for b in range(2):
        for c in range(2):
            A(f"v_sub_f32 v{xn+2*b+c}, v{xn+2*b+c}, v{hM+b}"); A(f"v_mul_f32 v{xn+2*b+c}, v{xn+2*b+c}, v{hM+2+b}")
    spin(hFl, F_W, hT1)
    tr128_read(hBq, hTR, S1 - SM)
    def perm_pos(dst, src, t1, hi):
        A(f"v_bfe_u32 v{dst}, v{src}, 1, 2"); A(f"v_lshlrev_b32 v{dst}, {hi}, v{dst}")
        A(f"v_and_b32 v{t1}, 8, v{src}"); A(f"v_or_b32 v{dst}, v{dst}, v{t1}"); A(f"v_and_b32 v{t1}, 1, v{src}"); A(f"v_lshl_or_b32 v{dst}, v{t1}, 2, v{dst}")
    perm_pos(hT0, vL, hT1, 4); A(f"v_lshl_or_b32 v{hT0}, v{hG}, 6, v{hT0}"); A(f"v_add_u32 v{hHa}, {HS}, v{hT0}")
    A(f"v_bfe_u32 v{hT1}, v{vL}, 2, 1"); A(f"v_lshlrev_b32 v{hT1}, 8, v{hT1}"); A(f"v_lshl_or_b32 v{hT1}, v{hG}, 4, v{hT1}"); A(f"v_add_u32 v{hHr}, {HS}, v{hT1}")
    A(f"s_mov_b32 s{sT6}, s{sQA}"); A(f"s_add_u32 s{sT5}, s{sT6}, {QB}")
    A(f"v_lshlrev_b32 v{hT0}, 14, v{hG}"); A(f"v_lshl_or_b32 v{hGr}, v{hN}, 4, v{hT0}")
    A(f"s_lshr_b32 s{sT4}, s{sR}, 1"); A(f"s_and_b32 s{sT3}, s{sR}, 1")
    smul_add(sT2, [(sT4, "shl", 11), (sT3, "shl", 8)], MODP + 16*2048)
    A(f"v_mov_b32 v{hF+1}, s{sTQ}"); A(f"v_mov_b32 v{hF+3}, s{sTQ}")
    poll("L_h_p1", modp_loads, lambda: tagcheck([hB+4*i+k for i in range(8) for k in (1, 3)], hAcc))
    stamp(4)
    if dbg and not FINE: A(f"s_mov_b32 s80, s{sCNT}")
    A("")
    sum_pairs(hU, [hB+4*i for i in range(4)]); sum_pairs(hU+4, [hB+16+4*i for i in range(4)])
    for c in range(2):
        for b in range(2):
            A(f"v_add_f32 v{hU+4+2*c+b}, 1.0, v{hU+4+2*c+b}")
            A(f"v_fmac_f32 v{hU+2*c+b}, v{xn+2*b+c}, v{hU+4+2*c+b}")
    A(f"v_cvt_pk_bf16_f32 v{hU+8}, v{hU}, v{hU+2}"); A(f"v_cvt_pk_bf16_f32 v{hU+9}, v{hU+1}, v{hU+3}")
    A(f"ds_write_b32 v{hHa}, v{hU+8}"); A(f"ds_write_b32 v{hHa}, v{hU+9} offset:256")
    for sg in range(4): A(f"ds_read_b128 {v(hA+4*sg,4)}, v{hHr} offset:{64*sg}")
    for sg in range(4):
        A(f"s_waitcnt lgkmcnt({lg(3-sg)})")
        for t in range(4):
            A(f"v_mfma_f32_16x16x32_bf16 {v(hD+4*t,4)}, {v(hA+4*sg,4)}, {v(hBq+(sg*4+t)*4,4)}, {'0' if sg == 0 else v(hD+4*t,4)}")
    A(f"v_mov_b32 v{hT1}, s{sTAG}"); A(f"ds_write_b32 v{hFl}, v{hT1} offset:{TAGL-FL}")
    A(f"v_mov_b32 v{hF}, v{hD}"); A(f"v_mov_b32 v{hF+2}, v{hD+8}")
    A(f"v_mov_b32_dpp v{hF}, v{hD+4} quad_perm:[0,1,2,3] row_mask:0xc bank_mask:0xf")
    A(f"v_mov_b32_dpp v{hF+2}, v{hD+12} quad_perm:[0,1,2,3] row_mask:0xc bank_mask:0xf")
    A(f"v_mov_b32_dpp v{hU}, v{hF} quad_perm:[1,0,3,2] row_mask:0xf bank_mask:0xf bound_ctrl:1")
    A(f"v_mov_b32_dpp v{hU+1}, v{hF+2} quad_perm:[1,0,3,2] row_mask:0xf bank_mask:0xf bound_ctrl:1")
    A(f"v_cvt_pk_bf16_f32 v{hF}, v{hF}, v{hU}"); A(f"v_cvt_pk_bf16_f32 v{hF+2}, v{hU+1}, v{hF+2}")
    A(f"v_cndmask_b32 v{hF}, v{hF}, v{hF+2}, {s(sM0,2)}")
    A(f"buffer_store_dwordx2 {v(hF,2)}, v{hQa}, {s(srdWS,4)}, s{sT6} offen")
    A(f"ds_write_b32 v{hFl}, v{hOne} offset:{F_QP}")
    if not QBD: A(f"buffer_store_dwordx2 {v(hF,2)}, v{hQa}, {s(srdWS,4)}, s{sT5} offen sc1")
    stamp(5)
    A(f"s_cmp_ge_u32 s{sR}, 16"); A("s_cbranch_scc1 " + ("L_h_rest" if RP == 2 else "L_h_qb" if QBD else "L_h_end"))
    A("")
    hPr = hA
    def par_loads():
        for rp in range(4):
            A(f"buffer_load_dwordx4 {v(hPr+4*rp,4)}, v{hGr}, {s(srdWS,4)}, s{sT2} offen offset:{rp*512} sc1")
    backoff(DP)
    par_loads()
    A(f"v_cmp_eq_u32 vcc, 2, v{hG}"); A(f"v_cndmask_b32 v{hT2}, 0, 1.0, vcc")
    A(f"v_lshlrev_b32 v{hT0}, 8, v{hG}"); A(f"v_lshl_or_b32 v{hT0}, v{hN}, 3, v{hT0}"); A(f"v_add_u32 v{hT3}, {PAR}, v{hT0}")
    perm_pos(hT0, hN, hT1, 6); A(f"v_and_b32 v{hT1}, 1, v{hG}"); A(f"v_lshl_or_b32 v{hT0}, v{hT1}, 4, v{hT0}")
    smul_add(sT0, [(sX8, "mul", YX), (sR, "shl", 9)], YA)
    poll("L_h_p2", par_loads, lambda: tagcheck([hPr+4*i+k for i in range(4) for k in (1, 3)], hAcc))
    stamp(6)
    if dbg and not FINE: A(f"s_mov_b32 s82, s{sCNT}")
    sum_pairs(hU, [hPr+4*i for i in range(4)])
    def round_pairs():
        A(f"v_cvt_pk_bf16_f32 v{hU+4}, v{hU}, v{hU+2}"); A(f"v_cvt_pk_bf16_f32 v{hU+5}, v{hU+1}, v{hU+3}")
        for b in range(2):
            A(f"v_lshlrev_b32 v{hU+b}, 16, v{hU+4+b}"); A(f"v_and_b32 v{hU+2+b}, 0xffff0000, v{hU+4+b}")
    round_pairs()
    for i in range(4): A(f"v_add_f32 v{hU+i}, v{hU+i}, v{hT2}")
    round_pairs()
    A(f"v_mov_b32 v{hU+6}, v{hU}"); A(f"v_mov_b32 v{hU+7}, v{hU+2}"); A(f"v_mov_b32 v{hU+8}, v{hU+1}"); A(f"v_mov_b32 v{hU+9}, v{hU+3}")
    A(f"ds_write_b64 v{hT3}, {v(hU+6,2)}"); A(f"ds_write_b64 v{hT3}, {v(hU+8,2)} offset:128")
    def qb_wait(lbl):
        A(f"s_mov_b32 s{sCNT}, 0")
        A(f"{lbl}:")
        A(f"ds_read_b128 {v(hD,4)}, v{hFl} offset:{F_Q}")
        A(f"s_add_u32 s{sCNT}, s{sCNT}, 1"); A(f"s_cmp_eq_u32 s{sCNT}, {NQ}"); A(f"s_cbranch_scc0 {lbl}_n")
        A(f"buffer_store_dwordx2 {v(hF,2)}, v{hQa}, {s(srdWS,4)}, s{sT5} offen sc1")
        A(f"{lbl}_n:")
        A("s_waitcnt lgkmcnt(0)")
        A(f"v_min3_u32 v{hD+4}, v{hD}, v{hD+1}, v{hD+2}"); A(f"v_min_u32 v{hD+4}, v{hD+4}, v{hD+3}"); A(f"v_cmp_eq_u32 vcc, 0, v{hD+4}")
        A(f"s_cbranch_vccz {lbl}_x"); A("s_sleep 2"); A(f"s_branch {lbl}")
        A(f"{lbl}_x:")
        A(f"v_max3_u32 v{hD+4}, v{hD}, v{hD+1}, v{hD+2}"); A(f"v_max_u32 v{hD+4}, v{hD+4}, v{hD+3}"); A(f"v_cmp_lt_u32 vcc, 1, v{hD+4}")
        A(f"s_cbranch_vccz {lbl}_y")
        A(f"buffer_store_dwordx2 {v(hF,2)}, v{hQa}, {s(srdWS,4)}, s{sT5} offen sc1")
        A(f"{lbl}_y:")
    if QBD: qb_wait("L_h_qw1")
    else: spin(hFl, F_Q, hD, 4, sleep=1)
    A(f"v_max3_u32 v{hD}, v{hD}, v{hD+1}, v{hD+2}"); A(f"v_max_u32 v{hD}, v{hD}, v{hD+3}")
    A(f"v_cmp_lt_u32 vcc, 1, v{hD}")
    A("s_cbranch_vccnz L_h_cprem")
    setexec(0xffffffff0000)
    for b in range(2): A(f"buffer_store_dword v{hU+4+b}, v{hT0}, {s(srdWS,4)}, s{sT0} offen offset:{256+32*b}")
    A("L_h_end:")
    A("s_waitcnt lgkmcnt(0)")
    stamp(7)
    stamp_flush()
    A("s_endpgm")
    if RP == 2:
        A("L_h_rest:")
        A(f"s_lshr_b32 s{P['cl']}, s2, 2"); A(f"s_sub_u32 s{P['cl']}, s{P['cl']}, 16")
        mod_block(hC, hU, hA, hB, hD, hTR, hT0, hT1, hFl, hOne, False)
        A("s_branch L_h_end")
    if QBD:
        A("L_h_qb:")
        qb_wait("L_h_qw2")
        A("s_branch L_h_end")
    A("L_h_cprem:")
    A(f"s_add_u32 s{sT0}, s{sT0}, {YBO}")
    setexec(0xffffffff0000)
    for b in range(2): A(f"buffer_store_dword v{hU+4+b}, v{hT0}, {s(srdWS,4)}, s{sT0} offen offset:{256+32*b} sc1")
    smul_add(sT0, [(sX8, "shl", 7), (sR, "shl", 2)], CF)
    flagset(hU, sT0)
    A("s_branch L_h_end")
    for blk in out_of_line: blk()
    out_of_line.clear()

    A("")
    A("L_compute:")
    R = Regs(4)
    srdO = 32
    vT0 = R.a(); vT1 = R.a(); vT2 = R.a(); vT3 = R.a(); vFl = R.a(); vH4 = R.a(); vC3 = R.a(); vFw = R.a(); vOne = R.a()
    vKa = R.a(4); vQa = R.a(); vVa = R.a(2); vTRV = R.a(); vMLw = R.a(); vMLr = R.a(); vPw = R.a(); vPr = R.a(); vOa = R.a(); vSa = R.a(); vL16 = R.a(); vQw = R.a(); vQg = R.a()
    vM = R.a(); vLs = R.a(); vMc = R.a(); vU = R.a(8, 4); vS = R.a(16, 4); vSt = R.a(2, 2)
    vKb = R.a(64, 4); vQ = R.a(48, 4); vO = R.a(8, 4); vX = R.a(24, 4); vG2 = R.a(32, 4)
    vP = vKb; vVb = vKb + 32
    A(f"s_sub_u32 s{sW}, s{sWV}, 2")
    A("s_waitcnt lgkmcnt(0)")
    A("s_barrier")
    if TLB:
        A(f"s_cmp_eq_u32 s{sR}, 23"); A("s_cbranch_scc0 L_c_notlb")
        A(f"s_cmp_eq_u32 s{sW}, 2"); A("s_cbranch_scc0 L_c_notlb")
        A("s_load_dwordx2 s[20:21], s[0:1], 16"); A("s_load_dwordx2 s[24:25], s[0:1], 32")
        A("s_load_dwordx2 s[4:5], s[0:1], 48"); A("s_load_dwordx2 s[8:9], s[0:1], 56")
        srd_tail(20, 0x8000000); srd_tail(24, 4096*1024); srd_tail(4, 512*3584); srd_tail(8, 1792*1024)
        A(f"v_lshlrev_b32 v{vT0}, 16, v{vL}"); A(f"v_and_b32 v{vT1}, 1, v{vG}"); A(f"v_lshlrev_b32 v{vT1}, 26, v{vT1}"); A(f"v_lshl_or_b32 v{vT1}, v{vN}, 16, v{vT1}")
        smul_add(sT0, [(sX8, "shl", 23)], 28672*256 + 65536 - 128); smul_add(sT1, [(sX8, "shl", 19)]); smul_add(sT2, [(sX8, "shl", 7)]); smul_add(sT3, [(sX8, "mul", 7*32768)])
        backoff(TLB)
        A("s_waitcnt lgkmcnt(0)")
        setexec(0xffffffff)
        A(f"buffer_load_dword v{vG2}, v{vT1}, s[20:23], s{sT0} offen")
        A(f"buffer_load_dword v{vG2+1}, v{vT0}, s[4:7], s{sT2} offen")
        A("s_mov_b64 exec, 0xff")
        A(f"buffer_load_dword v{vG2+2}, v{vT0}, s[24:27], s{sT1} offen")
        A("s_mov_b64 exec, 0xf")
        A(f"buffer_load_dword v{vG2+3}, v{vT0}, s[8:11], s{sT3} offen")
        A("s_mov_b64 exec, -1")
        A("L_c_notlb:")
    A(f"s_load_dwordx2 {s(srdO,2)}, s[0:1], 80")
    if DUR: A("s_load_dwordx2 s[88:89], s[0:1], 88")
    A(f"v_mov_b32 v{vFl}, {FL}"); A(f"v_mov_b32 v{vOne}, 1"); A(f"s_lshl_b32 s{sT0}, s{sW}, 2"); A(f"v_add_u32 v{vFw}, s{sT0}, v{vFl}")
    A(f"v_and_b32 v{vH4}, 3, v{vN}"); A(f"v_and_b32 v{vC3}, 3, v{vL}"); A(f"v_lshlrev_b32 v{vL16}, 4, v{vL}")
    A(f"v_xor_b32 v{vT0}, v{vG}, v{vN}"); A(f"v_lshlrev_b32 v{vT0}, 4, v{vT0}"); A(f"v_lshl_or_b32 v{vT0}, v{vN}, 8, v{vT0}")
    A(f"s_lshl_b32 s{sT0}, s{sW}, 14"); A(f"v_add_u32 v{vKa}, s{sT0}, v{vT0}")
    for sg in range(1, 4): A(f"v_xor_b32 v{vKa+sg}, {64*sg}, v{vKa}")
    A(f"v_mul_u32_u24 v{vT0}, 288, v{vH4}"); A(f"v_lshl_add_u32 v{vT0}, v{vG}, 4, v{vT0}"); A(f"v_add_u32 v{vQa}, {QL}, v{vT0}")
    A(f"v_lshrrev_b32 v{vT0}, 2, v{vL}"); A(f"v_and_b32 v{vT1}, 7, v{vT0}"); A(f"v_lshlrev_b32 v{vT1}, 5, v{vT1}"); A(f"v_lshl_or_b32 v{vT0}, v{vT0}, 8, v{vT1}")
    A(f"v_lshl_or_b32 v{vTRV}, v{vC3}, 3, v{vT0}")
    A(f"s_lshl_b32 s{sT0}, s{sW}, 6"); A(f"v_xor_b32 v{vT0}, s{sT0}, v{vTRV}"); A(f"v_add_u32 v{vVa}, {LV}, v{vT0}"); A(f"v_xor_b32 v{vVa+1}, 32, v{vVa}")
    A(f"v_lshlrev_b32 v{vT0}, 5, v{vH4}"); A(f"v_add_u32 v{vMLr}, {ML}, v{vT0}"); A(f"s_lshl_b32 s{sT0}, s{sW}, 3"); A(f"v_add_u32 v{vMLw}, s{sT0}, v{vMLr}")
    A(f"v_lshlrev_b32 v{vT0}, 6, v{vG}"); A(f"v_lshl_or_b32 v{vT0}, v{vH4}, 4, v{vT0}"); A(f"v_add_u32 v{vPr}, {PX}, v{vT0}")
    A(f"v_lshrrev_b32 v{vT0}, 3, v{vN}"); A(f"v_bfe_u32 v{vT1}, v{vN}, 2, 1"); A(f"v_lshlrev_b32 v{vT1}, 3, v{vT1}"); A(f"v_lshl_or_b32 v{vT0}, v{vT0}, 8, v{vT1}")
    A(f"s_lshl_b32 s{sT0}, s{sW}, 9"); A(f"v_add3_u32 v{vPw}, v{vT0}, s{sT0}, v{vPr}")
    A(f"v_lshlrev_b32 v{vOa}, 12, v{vH4}"); A(f"v_lshl_or_b32 v{vOa}, v{vG}, 8, v{vOa}"); A(f"v_lshlrev_b32 v{vSa}, 7, v{vH4}")
    A(f"s_mul_i32 s{sT5}, s{sW}, 288"); A(f"s_add_u32 s{sT5}, s{sT5}, {QL}")
    A(f"v_and_b32 v{vT0}, 31, v{vL}"); A(f"v_lshrrev_b32 v{vT1}, 5, v{vL}"); A(f"v_lshlrev_b32 v{vQg}, 4, v{vT0}"); A(f"v_lshl_or_b32 v{vQg}, v{vT1}, 11, v{vQg}")
    A(f"v_lshl_or_b32 v{vT0}, v{vT0}, 1, v{vT1}"); A(f"v_lshl_add_u32 v{vQw}, v{vT0}, 2, s{sT5}")
    A(f"v_cmp_gt_u32 {s(sM0,2)}, 4, v{vN}")
    A(f"s_cmp_eq_u32 s{sW}, 0"); A(f"s_cselect_b64 {s(sM1,2)}, 15, 0")
    sOA, sSA, sSC = 4, 5, 6
    smul_add(sOA, [(sX8, "shl", 15), (sB, "shl", 14), (sW, "shl", 10), (sS, "shl", 4)], OPA)
    smul_add(sSA, [(sX8, "shl", 10), (sB, "shl", 9), (sS, "shl", 3)], STA)
    A(f"s_mov_b32 s{sSC}, {hex(SC)}")
    dot_consts()
    A(f"s_getreg_b32 s{sTQ}, hwreg(HW_REG_XCC_ID, 0, 3)")
    srd_tail(srdWS, WSN); srd_tail(srdX, 2048); srd_tail(srdO, 2048)
    tSa = vX; tX = vX + 1; tCol = vX + 2; tAP = vX + 3; tPar = vX + 4; tY = vX + 8; tPa = vX + 10; tOut = vX + 11; tTR = vX + 12; tW = vX + 16; tYv = vX + 20
    mYa = vX; mSa = vX + 1; mXw = vX + 2; mXr = vX + 3; mBp = vX + 4; mMP = vX + 5; mA1 = vX + 6; mA2 = vX + 8; mMQ = vX + 16; mXr2 = vX + 18
    sA0, sA1, sA2, sA3, sA4, sA5, sA6, sA7, sA8, sA9 = 7, 8, 9, 10, 11, 12, 13, 14, 15, 26
    for i in range(12): A(f"v_mov_b32 v{vX+i}, 0")
    A("s_waitcnt lgkmcnt(0)")
    def rest_block():
        A(f"s_cmp_eq_u32 s{sW}, 1"); A("s_cbranch_scc0 L_c_roledone")
        srdC2 = 20; P['cl'], P['rp'] = 24, 25
        A(f"s_load_dwordx2 {s(srdC2,2)}, s[0:1], 64")
        A(f"s_lshr_b32 s{P['cl']}, s2, 2"); A(f"s_add_u32 s{P['cl']}, s{P['cl']}, {-16 if RP else 16}"); A(f"s_and_b32 s{P['rp']}, s2, 3")
        c_addr(vT0, vT1)
        A(f"v_mov_b32 v{vT1}, 0"); A(f"s_lshl_b32 s{sT0}, s{P['rp']}, 8")
        srd_tail(srdC2, 2048)
        A("s_waitcnt lgkmcnt(0)")
        A(f"buffer_load_dword v{vO+2}, v{vT1}, {s(srdWS,4)}, 0 offen sc1")
        A(f"buffer_load_dwordx2 {v(vO,2)}, v{vT0}, {s(srdC2,4)}, s{sT0} offen")
        tr128_base(vO+4, vT0, vT1, SM if RP == 2 else SR)
        A("s_waitcnt vmcnt(0)")
        A(f"v_readfirstlane_b32 s{sTAG}, v{vO+2}")
        A(f"s_add_u32 s{sTAG}, s{sTAG}, 0x9E3779B1")
        mod_block(vO, vU, vQ, vKb, vQ+16, vO+4, vT0, vT1, vFl, vOne, False)
    A(f"s_cmp_lt_u32 s{sR}, 16"); A("s_cbranch_scc0 L_c_nt1")
    A(f"s_and_b32 s{sAB}, s{sW}, 1"); A(f"s_lshr_b32 s{sT0}, s{sW}, 1"); A(f"s_lshr_b32 s{sT1}, s{sR}, 2"); A(f"s_and_b32 s{sT2}, s{sR}, 3")
    A(f"v_lshlrev_b32 v{tSa}, 5, v{vG}"); A(f"v_lshl_or_b32 v{tSa}, v{vH4}, 3, v{tSa}")
    smul_add(sA0, [(sX8, "shl", 15), (sAB, "shl", 14), (sT1, "shl", 12)], OPA)
    smul_add(sA1, [(sX8, "shl", 10), (sAB, "shl", 9), (sT1, "shl", 7)], STA)
    A(f"v_and_b32 v{vT0}, 7, v{vL}"); A(f"v_lshl_or_b32 v{tCol}, v{vT0}, 2, v{vG}")
    A(f"v_lshlrev_b32 v{tOut}, 1, v{tCol}")
    smul_add(sA7, [(sAB, "shl", 10), (sR, "shl", 6)])
    A(f"s_lshl_b32 s{sT3}, s{sT0}, 7"); A(f"v_xor_b32 v{tTR}, s{sT3}, v{vTRV}")
    for t in range(1, 4): A(f"v_xor_b32 v{tTR+t}, {32*t}, v{tTR}")
    A(f"v_lshrrev_b32 v{vT0}, 5, v{vL}"); A(f"v_and_b32 v{vT1}, 30, v{vL}"); A(f"v_lshlrev_b32 v{vT1}, 2, v{vT1}"); A(f"v_lshl_or_b32 v{tAP}, v{vT0}, 13, v{vT1}")
    smul_add(sA2, [(sT2, "shl", 15), (sT0, "shl", 14), (sAB, "shl", 12), (sX8, "shl", 9), (sT1, "shl", 7)], AP)
    smul_add(sA3, [(sR, "shl", 13), (sAB, "shl", 12)], AP)
    A(f"v_lshlrev_b32 v{vT0}, 6, v{vC3}"); A(f"v_bfe_u32 v{vT1}, v{vL}, 2, 1"); A(f"v_lshl_or_b32 v{vT0}, v{vT1}, 3, v{vT0}")
    A(f"v_and_b32 v{vT1}, 1, v{vG}"); A(f"v_lshl_or_b32 v{vT0}, v{vT1}, 4, v{vT0}"); A(f"v_lshrrev_b32 v{vT1}, 1, v{vG}"); A(f"v_lshl_or_b32 v{tY}, v{vT1}, 2, v{vT0}")
    A(f"v_lshrrev_b32 v{tY+1}, 1, v{vL}")
    smul_add(sA4, [(sX8, "mul", YX), (sR, "shl", 9), (sAB, "shl", 5)], YA)
    smul_add(sA5, [(sX8, "mul", YX), (sR, "shl", 4), (sAB, "shl", 3)], YA + 8192)
    A(f"s_lshl_b32 s{sT4}, s{sR}, 1"); A(f"s_add_u32 s{sA8}, s{sT4}, s{sAB}"); A(f"s_mul_i32 s{sA6}, s{sA8}, 7168"); A(f"s_add_u32 s{sA6}, s{sA6}, {MP}"); A(f"s_add_u32 s{sA9}, s{sA6}, 4096")
    A(f"s_sub_u32 s{sJ}, s{sX8}, s{sT4}"); A(f"s_and_b32 s{sJ}, s{sJ}, 7")
    smul_add(sT4, [(sAB, "shl", 7)], PAR); A(f"v_lshl_add_u32 v{tPa}, v{tCol}, 2, s{sT4}")
    if not RP and not RH: rest_block()
    A("s_branch L_c_roledone")
    A("L_c_nt1:")
    A(f"s_sub_u32 s{sT0}, s{sR}, 16"); A(f"s_mul_i32 s{sJ}, s{sX8}, 7"); A(f"s_add_u32 s{sJ}, s{sJ}, s{sT0}")
    A(f"v_lshrrev_b32 v{vT0}, 2, v{vN}"); A(f"v_lshlrev_b32 v{vT0}, 9, v{vT0}"); A(f"v_lshl_or_b32 v{vT0}, v{vG}, 6, v{vT0}"); A(f"v_lshl_or_b32 v{mYa}, v{vH4}, 4, v{vT0}")
    A(f"v_and_b32 v{vT0}, 31, v{vL}"); A(f"v_lshlrev_b32 v{mSa}, 3, v{vT0}")
    smul_add(sA1, [(sX8, "mul", YX)], YA + 8192); smul_add(sA0, [(sX8, "mul", YX), (sW, "shl", 11)], YA)
    A(f"v_and_b32 v{vT0}, 7, v{vN}"); A(f"v_mul_u32_u24 v{mXw}, {RS}, v{vT0}"); A(f"v_lshl_add_u32 v{mXw}, v{vG}, 4, v{mXw}"); smul_add(sT1, [(sW, "shl", 6)], RED); A(f"v_add_u32 v{mXw}, s{sT1}, v{mXw}")
    A(f"v_lshrrev_b32 v{vT0}, 3, v{vN}"); A(f"v_and_b32 v{vT1}, 1, v{vN}"); A(f"v_mul_u32_u24 v{vT0}, {8*RS+64}, v{vT0}"); A(f"v_mul_u32_u24 v{mXr}, {2*RS}, v{vT1}"); A(f"v_add_u32 v{mXr}, v{mXr}, v{vT0}")
    A(f"v_lshl_add_u32 v{mXr}, v{vG}, 4, v{mXr}"); A(f"v_bfe_u32 v{vT0}, v{vN}, 1, 2"); A(f"v_lshl_add_u32 v{mXr}, v{vT0}, 2, v{mXr}"); A(f"v_add_u32 v{mXr}, {RED}, v{mXr}"); A(f"v_add_u32 v{mXr2}, {4*RS}, v{mXr}")
    A(f"v_lshlrev_b32 v{mBp}, 6, v{vG}"); A(f"v_lshl_or_b32 v{mBp}, v{vT1}, 2, v{mBp}")
    A(f"v_lshrrev_b32 v{vT0}, 2, v{vL}"); A(f"v_lshlrev_b32 v{vT0}, 6, v{vT0}"); A(f"v_and_b32 v{vT2}, 1, v{vG}"); A(f"v_lshl_or_b32 v{vT0}, v{vT2}, 5, v{vT0}"); A(f"v_lshl_or_b32 v{vT0}, v{vC3}, 3, v{vT0}")
    A(f"s_lshl_b32 s{sT1}, s{sW}, 13"); A(f"v_add_u32 v{mA1}, s{sT1}, v{vT0}"); A(f"v_xor_b32 v{mA1+1}, 32, v{mA1}")
    A(f"s_add_u32 s{sT1}, s{sT1}, 32768"); A(f"v_add_u32 v{mA2}, s{sT1}, v{vTRV}")
    for t in range(1, 8): A(f"v_xor_b32 v{mA2+t}, {32*t}, v{mA2}")
    A(f"v_lshrrev_b32 v{vT0}, 2, v{vN}"); A(f"v_lshl_or_b32 v{vT0}, v{vT0}, 1, v{vT1}"); A(f"v_mul_u32_u24 v{mMP}, 7168, v{vT0}")
    A(f"v_bfe_u32 v{vT0}, v{vN}, 1, 1"); A(f"v_lshl_add_u32 v{mMP}, v{vT0}, 6, v{mMP}"); A(f"v_lshl_add_u32 v{mMP}, v{vG}, 4, v{mMP}")
    smul_add(sA3, [(sW, "mul", 4*14336), (sJ, "shl", 7)], MP)
    smul_add(sA4, [(sX8, "shl", 7), (sT0, "shl", 4), (sW, "shl", 2)], MF)
    A(f"s_mov_b32 s{sM2}, 0xcccccccc"); A(f"s_mov_b32 s{sM2+1}, 0xcccccccc")
    if RP == 1: rest_block()
    A("L_c_roledone:")
    A("")
    smul_add(sT0, [(sX8, "shl", 14), (sB, "shl", 13), (sW, "shl", 9)], QPA)
    A(f"s_add_u32 s{sT1}, s{sT0}, 4096")
    stamp(1)
    def k_only():
        for t in range(4):
            for sg in range(4): A(f"ds_read_b128 {v(vKb+(t*4+sg)*4,4)}, v{vKa+sg} offset:{t*4096}")
        A(f"ds_write_b32 v{vFw}, v{vOne} offset:{F_KR}")
    A(f"s_cmp_lg_u32 s{sW}, 0"); A("s_cbranch_scc1 L_c_nt")
    backoff(DG)
    A(f"ds_write_b32 v{vFl}, v{vOne} offset:{F_T1}")
    if KE:
        A(f"s_mov_b32 s{sCNT}, 0"); A(f"s_mov_b32 s{sT3}, 0")
        A("L_c_t2:")
        A(f"ds_read_b32 v{vT0}, v{vFl} offset:{F_K}")
        A("s_sleep 2")
        A("s_waitcnt lgkmcnt(0)")
        A(f"v_readfirstlane_b32 s{sT4}, v{vT0}")
        A(f"s_cmp_gt_u32 s{sT4}, s{sT3}"); A("s_cbranch_scc0 L_c_t2n")
        k_only()
        A(f"s_mov_b32 s{sT3}, 1")
        A("L_c_t2n:")
        A(f"s_add_u32 s{sCNT}, s{sCNT}, 1"); A(f"s_cmp_lt_u32 s{sCNT}, {DQ * 64 // 230}"); A("s_cbranch_scc1 L_c_t2")
        A(f"ds_write_b32 v{vFl}, v{vOne} offset:{F_T2}")
        A(f"s_branch L_c_t3")
        A("L_c_nt:")
        A(f"s_mov_b32 s{sT3}, 0")
        A("L_c_t4:")
        A(f"ds_read_b32 v{vT0}, v{vFl} offset:{F_K}"); A(f"ds_read_b32 v{vT1}, v{vFl} offset:{F_T2}")
        A("s_waitcnt lgkmcnt(0)")
        A(f"v_readfirstlane_b32 s{sT4}, v{vT0}"); A(f"v_readfirstlane_b32 s{sT5}, v{vT1}")
        A(f"s_cmp_gt_u32 s{sT4}, s{sT3}"); A("s_cbranch_scc0 L_c_t4n")
        k_only()
        A(f"s_mov_b32 s{sT3}, 1")
        A("L_c_t4n:")
        A(f"s_cmp_lg_u32 s{sT5}, 0"); A("s_cbranch_scc1 L_c_t3")
        A("s_sleep 2"); A("s_branch L_c_t4")
        A("L_c_t3:")
    elif DQ:
        backoff(DQ)
        A(f"ds_write_b32 v{vFl}, v{vOne} offset:{F_T2}")
        A("L_c_nt:")
        spin(vFl, F_T2, vT0, sleep=2)
    else:
        A("L_c_nt:")
        spin(vFl, F_K, vT1, sleep=2)
        k_only()
    spin(vFl, F_QP, vT0, sleep=1)
    A(f"ds_read_b32 v{vT0}, v{vFl} offset:{TAGL-FL}")
    def q_loads(Pq=vG2):
        for q, so in enumerate((sT0, sT1)):
            A(f"buffer_load_dwordx4 {v(Pq+4*q,4)}, v{vQg}, {s(srdWS,4)}, s{so} offen sc1")
    def k_reads():
        if not DQ: return
        if KE: A(f"s_cmp_lg_u32 s{sT3}, 0"); A("s_cbranch_scc1 L_c_kd")
        spin(vFl, F_K, vT1, sleep=1)
        k_only()
        if KE: A("L_c_kd:")
    qtags = [vG2+4*i+k for i in range(2) for k in (1, 3)]
    q_loads()
    A("s_waitcnt lgkmcnt(0)")
    A(f"v_readfirstlane_b32 s{sTAG}, v{vT0}")
    A(f"v_mov_b32 v{vT3}, 1")
    A(f"s_add_u32 s{sTQ}, s{sTQ}, s{sTAG}")
    if FREM: A(f"s_add_u32 s{sTQ}, s{sTQ}, 9")
    k_reads()
    A("s_waitcnt vmcnt(0)")
    tagcheck(qtags, vT0, sTQ)
    A("s_cbranch_vccnz L_c_qre")
    A("L_c_qok:")
    sum_pairs(vU, [vG2, vG2+4])
    def qretry():
        A("L_c_qre:")
        A(f"s_mov_b32 s{sCNT}, 0")
        A("L_c_qre2:")
        q_loads()
        A(f"s_add_u32 s{sCNT}, s{sCNT}, 1"); A(f"s_cmp_ge_u32 s{sCNT}, {NA}")
        A("s_waitcnt vmcnt(0)")
        A("s_cbranch_scc1 L_c_qB")
        tagcheck(qtags, vT0, sTQ)
        A("s_cbranch_vccnz L_c_qre2")
        A("s_branch L_c_qok")
        A("L_c_qB:")
        for so in (sT0, sT1): A(f"s_add_u32 s{so}, s{so}, {QB}")
        A("L_c_qB2:")
        q_loads()
        A(f"s_add_u32 s{sCNT}, s{sCNT}, 1"); A(f"s_cmp_gt_u32 s{sCNT}, {NT}")
        A("s_waitcnt vmcnt(0)")
        A("s_cbranch_scc1 L_c_qB3")
        for i, r in enumerate(qtags): A(f"v_subrev_u32 v{vU+i}, s{sTAG}, v{r}")
        A(f"v_max3_u32 v{vT0}, v{vU}, v{vU+1}, v{vU+2}"); A(f"v_max_u32 v{vT0}, v{vT0}, v{vU+3}")
        A(f"v_cmp_lt_u32 vcc, 7, v{vT0}")
        A("s_cbranch_vccnz L_c_qB2")
        A("L_c_qB3:")
        tagcheck(qtags, vT0, sTQ)
        A("s_cbranch_vccz L_c_qok")
        A(f"v_mov_b32 v{vT3}, 2")
        A("s_branch L_c_qok")
    out_of_line.append(qretry)
    A(f"v_permlane32_swap_b32 v{vU}, v{vU+2}"); A(f"v_permlane32_swap_b32 v{vU+1}, v{vU+3}")
    A(f"v_pk_add_f32 {v(vU,2)}, {v(vU,2)}, {v(vU+2,2)}")
    A(f"v_cvt_pk_bf16_f32 v{vT0}, v{vU}, v{vU+1}")
    A(f"ds_write_b32 v{vQw}, v{vT0}")
    A(f"ds_write_b32 v{vFw}, v{vT3} offset:{F_Q}")
    stamp(2)
    spin(vFl, F_Q, vU, 4)
    stamp(3); fine(2, 1)
    for sg in range(4): A(f"ds_read_b128 {v(vQ+sg*4,4)}, v{vQa} offset:{64*sg}")
    A(f"ds_write_b32 v{vFw}, v{vOne} offset:{F_CR}")
    A(f"v_max3_u32 v{vU}, v{vU}, v{vU+1}, v{vU+2}"); A(f"v_max_u32 v{vU}, v{vU}, v{vU+3}")
    A(f"v_readfirstlane_b32 s{sREM}, v{vU}")
    for sg in range(4):
        A(f"s_waitcnt lgkmcnt({lg(4-sg)})")
        for t in range(4):
            A(f"v_mfma_f32_16x16x32_bf16 {v(vS+4*t,4)}, {v(vKb+(t*4+sg)*4,4)}, {v(vQ+sg*4,4)}, {'0' if sg == 0 else v(vS+4*t,4)}")
    fine(2, 2)
    A("")
    for t in range(1, 4):
        for r in range(4): A(f"v_mov_b32_dpp v{vS+r}, v{vS+4*t+r} quad_perm:[0,1,2,3] row_mask:0xf bank_mask:{hex(1 << t)}")
    def red_all(r, op, t):
        for ro in (4, 8): A(f"{op}_dpp v{r}, v{r}, v{r} row_ror:{ro} row_mask:0xf bank_mask:0xf bound_ctrl:1")
        for sw in ("v_permlane16_swap_b32", "v_permlane32_swap_b32"):
            A(f"v_mov_b32 v{t}, v{r}"); A(f"{sw} v{t}, v{r}"); A(f"{op} v{r}, v{r}, v{t}")
    A(f"v_max3_f32 v{vM}, v{vS}, v{vS+1}, v{vS+2}"); A(f"v_max_f32 v{vM}, v{vM}, v{vS+3}")
    red_all(vM, "v_max_f32", vT0)
    A(f"v_mul_f32 v{vSt}, s{sSC}, v{vM}")
    for i in range(4): A(f"v_fma_f32 v{vS+i}, v{vS+i}, s{sSC}, -v{vSt}")
    for i in range(4): A(f"v_exp_f32 v{vS+i}, v{vS+i}")
    A(f"v_add_f32 v{vT0}, v{vS}, v{vS+1}"); A(f"v_add_f32 v{vT1}, v{vS+2}, v{vS+3}"); A(f"v_add_f32 v{vSt+1}, v{vT0}, v{vT1}")
    red_all(vSt+1, "v_add_f32", vT0)
    fine(2, 3)
    A("s_mov_b64 exec, 0xf")
    A(f"ds_write_b64 v{vMLw}, {v(vSt,2)}")
    A("s_mov_b64 exec, -1")
    A(f"s_mov_b32 s{sCNT}, 0")
    A("L_c_ml:")
    A(f"ds_read_b128 {v(vU,4)}, v{vMLr}"); A(f"ds_read_b128 {v(vU+4,4)}, v{vMLr} offset:16")
    A(f"s_add_u32 s{sCNT}, s{sCNT}, 1"); A(f"s_cmp_gt_u32 s{sCNT}, {NT}")
    A("s_waitcnt lgkmcnt(0)")
    A("s_cbranch_scc1 L_c_mlok")
    A(f"v_max3_u32 v{vT0}, v{vU+1}, v{vU+3}, v{vU+5}"); A(f"v_max_u32 v{vT0}, v{vT0}, v{vU+7}")
    A(f"v_cmp_eq_u32 vcc, -1, v{vT0}")
    A("s_cbranch_vccnz L_c_ml")
    A("L_c_mlok:")
    fine(2, 4)
    A(f"v_max3_f32 v{vMc}, v{vU}, v{vU+2}, v{vU+4}"); A(f"v_max_f32 v{vMc}, v{vMc}, v{vU+6}")
    for i in range(4): A(f"v_sub_f32 v{vU+2*i}, v{vU+2*i}, v{vMc}")
    A(f"v_sub_f32 v{vT0}, v{vSt}, v{vMc}")
    for i in range(4): A(f"v_exp_f32 v{vU+2*i}, v{vU+2*i}")
    A(f"v_exp_f32 v{vT0}, v{vT0}")
    A(f"v_mul_f32 v{vLs}, v{vU}, v{vU+1}")
    for i in range(1, 4): A(f"v_fmac_f32 v{vLs}, v{vU+2*i}, v{vU+2*i+1}")
    A(f"v_rcp_f32 v{vT1}, v{vLs}")
    A(f"v_mov_b32 v{vSt}, v{vMc}"); A(f"v_mov_b32 v{vSt+1}, v{vLs}")
    A(f"v_mul_f32 v{vT0}, v{vT0}, v{vT1}")
    for i in range(4): A(f"v_mul_f32 v{vS+i}, v{vS+i}, v{vT0}")
    A(f"v_cvt_pk_bf16_f32 v{vU}, v{vS}, v{vS+1}"); A(f"v_cvt_pk_bf16_f32 v{vU+1}, v{vS+2}, v{vS+3}")
    A(f"ds_write_b64 v{vPw}, {v(vU,2)}")
    A(f"ds_write_b32 v{vFw}, v{vOne} offset:{F_P}")
    A(f"s_cmp_gt_u32 s{sREM}, 1")
    A(f"s_mov_b64 exec, {s(sM1,2)}")
    A("s_cbranch_scc1 L_c_strem")
    A("s_cbranch_execz L_c_stdone")
    A(f"buffer_store_dwordx2 {v(vSt,2)}, v{vSa}, {s(srdWS,4)}, s{sSA} offen")
    A("L_c_stdone:")
    def strem():
        A("L_c_strem:")
        A(f"s_add_u32 s{sSA}, s{sSA}, {SB}"); A(f"s_add_u32 s{sOA}, s{sOA}, {OB}")
        A("s_cbranch_execz L_c_stdone")
        A(f"buffer_store_dwordx2 {v(vSt,2)}, v{vSa}, {s(srdWS,4)}, s{sSA} offen sc1")
        A("s_branch L_c_stdone")
    out_of_line.append(strem)
    A("s_mov_b64 exec, -1")
    stamp(4); fine(2, 5)
    A("")
    spin(vFl, F_P, vU, 4)
    fine(2, 7)
    for k in range(8): A(f"ds_read_b128 {v(vP+4*k,4)}, v{vPr} offset:{k*256}")
    spin(vFl, F_V, vT0)
    stamp(5); fine(2, 8)
    def vreads(k, dst):
        for t in range(2):
            for u in range(2):
                A(f"ds_read_b64_tr_b16 {v(dst+4*t+2*u,2)}, v{vVa+t} offset:{(32*k+16*u)*256}")
    for k in range(7): vreads(k, vVb+8*k)
    tSt = vG2; tA = vG2 + 8
    def st_loads():
        A(f"buffer_load_dwordx2 {v(tSt,2)}, v{tSa}, {s(srdWS,4)}, s{sA1} offen sc1")
    for k in range(7):
        A(f"s_waitcnt lgkmcnt({lg(4*(6-k))})")
        for t in range(2):
            A(f"v_mfma_f32_16x16x32_bf16 {v(vO+4*t,4)}, {v(vVb+8*k+4*t,4)}, {v(vP+4*k,4)}, {'0' if k == 0 else v(vO+4*t,4)}")
    A(f"s_cmp_gt_u32 s{sREM}, 1")
    fine(2, 9)
    A("s_barrier")
    fine(2, 10)
    vreads(7, vVb)
    A(f"s_waitcnt lgkmcnt({lg(2)})")
    A(f"v_mfma_f32_16x16x32_bf16 {v(vO,4)}, {v(vVb,4)}, {v(vP+28,4)}, {v(vO,4)}")
    A("s_waitcnt lgkmcnt(0)")
    A(f"v_mfma_f32_16x16x32_bf16 {v(vO+4,4)}, {v(vVb+4,4)}, {v(vP+28,4)}, {v(vO+4,4)}")
    stamp(6)
    A(f"s_mov_b64 exec, {s(sM0,2)}")
    for i in range(4): A(f"v_cvt_pk_bf16_f32 v{vU+i}, v{vO+2*i}, v{vO+2*i+1}")
    A("s_cbranch_scc1 L_c_orem")
    A(f"buffer_store_dwordx4 {v(vU,4)}, v{vOa}, {s(srdWS,4)}, s{sOA} offen")
    A("s_mov_b64 exec, -1")
    stamp(7); fine(2, 11)
    A(f"s_cmp_lt_u32 s{sR}, 16")
    A("s_cbranch_scc0 L_c_other")

    if BT: A("s_barrier")
    A("")
    tB = vKb; tD = vS
    def t1_loads():
        for k in range(4): A(f"buffer_load_dwordx4 {v(tA+4*k,4)}, v{vL16}, {s(srdWS,4)}, s{sA0} offen offset:{1024*k} sc1")
    def wo_reads():
        for k in range(4):
            for t in range(4):
                for u in range(2):
                    A(f"ds_read_b64_tr_b16 {v(tB+(k*4+t)*4+2*u,2)}, v{tTR+t} offset:{(32*k+16*u)*256}")
    def t1_mf(k, ts=(0, 2, 1, 3)):
        for t in ts:
            A(f"v_mfma_f32_16x16x32_bf16 {v(tD+4*t,4)}, {v(tA+4*k,4)}, {v(tB+(k*4+t)*4,4)}, {'0' if k == 0 else v(tD+4*t,4)}")
    def dp(op, r, pat): return f"{op}_dpp v{r}, v{r}, v{r} {pat} row_mask:0xf bank_mask:0xf bound_ctrl:1"
    def xg(r, op, t):
        o = [dp(op, r, "quad_perm:[1,0,3,2]"), None, dp(op, r, "quad_perm:[2,3,0,1]")]
        for sw in ("v_permlane16_swap_b32", "v_permlane32_swap_b32"):
            o += [f"v_mov_b32 v{t}, v{r}", None, f"{sw} v{t}, v{r}", f"{op} v{r}, v{r}, v{t}"]
        return o
    bc = [f"v_mov_b32_dpp v{tW+r}, v{vM} quad_perm:[{r},{r},{r},{r}] row_mask:0xf bank_mask:0xf bound_ctrl:1" for r in range(4)]
    sm = xg(vLs, "v_add_f32", vT1)
    wts = [f"v_max_f32_dpp v{vM}, v{tSt}, v{tSt} quad_perm:[1,0,3,2] row_mask:0xf bank_mask:0xf bound_ctrl:1", None] + xg(vM, "v_max_f32", vT1)[2:]
    wts += [f"v_sub_f32 v{vM}, v{tSt}, v{vM}", f"v_exp_f32 v{vM}, v{vM}", None, f"v_mul_f32 v{vM}, v{vM}, v{tSt+1}", None,
            f"v_add_f32_dpp v{vLs}, v{vM}, v{vM} quad_perm:[1,0,3,2] row_mask:0xf bank_mask:0xf bound_ctrl:1", bc[0], bc[1],
            sm[2], sm[3], bc[2], bc[3], sm[5], sm[6], sm[7], None, sm[9], sm[10], f"v_rcp_f32 v{vLs}, v{vLs}"]
    A("L_t1_w:")
    stamp(13)
    A(f"ds_read_b32 v{tPar}, v{tPa}"); A(f"ds_read_b32 v{tPar+1}, v{tPa} offset:512"); A(f"ds_read_b32 v{tPar+2}, v{tPa} offset:768")
    A(f"v_mov_b32 v{tYv+1}, s{sTAG}")
    A(f"v_and_b32 v{vT0}, 8, v{vL}"); A(f"v_cmp_ne_u32 {s(sM0,2)}, 0, v{vT0}")
    A(f"v_and_b32 v{vT0}, 16, v{vL}"); A(f"v_cmp_ne_u32 {s(sM1,2)}, 0, v{vT0}")
    A(f"s_cmp_gt_u32 s{sREM}, 1")
    if not EW: A("s_barrier")
    A("s_cbranch_scc1 L_t1rem")
    def so_loads(): st_loads(); t1_loads()
    so_loads()
    wo_reads()
    stamp(8)
    def t1_body():
        A("s_waitcnt vmcnt(3) lgkmcnt(0)")
        t1_mf(0, (0, 2))
        A("s_waitcnt vmcnt(0)")
        sentcheck([tA+3, tA+7, tA+11, tA+15, tSt+1], vT0)
        t1_mf(0, (1, 3))
    ipoll("L_t1p", so_loads, t1_body, GT)
    stamp(9); fine(3, 1)
    if dbg and not FINE: A(f"s_mov_b32 s88, s{sCNT}")
    wi = 0
    for k in range(1, 4):
        for t in (0, 2, 1, 3):
            cnt = 0
            while wi < len(wts) and cnt < 3:
                if wts[wi] is None: wi += 1; break
                A(wts[wi]); wi += 1; cnt += 1
            t1_mf(k, (t,))
    while wi < len(wts):
        if wts[wi]: A(wts[wi])
        wi += 1
    fine(3, 2)
    A(f"s_cmp_lt_u32 s{sW}, 2")
    for t in (0, 2, 1, 3):
        A(f"v_pk_mul_f32 {v(tD+4*t,2)}, {v(tD+4*t,2)}, {v(tW,2)}")
        A(f"v_pk_fma_f32 {v(tD+4*t,2)}, {v(tD+4*t+2,2)}, {v(tW+2,2)}, {v(tD+4*t,2)}")
        A(f"v_add_f32 v{vU+t}, v{tD+4*t}, v{tD+4*t+1}")
    def reduce4(u):
        A(f"v_permlane32_swap_b32 v{u}, v{u+2}"); A(f"v_permlane32_swap_b32 v{u+1}, v{u+3}")
        A(f"v_pk_add_f32 {v(u,2)}, {v(u,2)}, {v(u+2,2)}")
        A(f"v_permlane16_swap_b32 v{u}, v{u+1}")
        A(f"v_add_f32 v{u}, v{u}, v{u+1}")
    reduce4(vU)
    A(f"v_mul_f32 v{vU}, v{vU}, v{vLs}")
    A(f"v_mov_b32_dpp v{vU+1}, v{vU} quad_perm:[1,0,3,2] row_mask:0xf bank_mask:0xf bound_ctrl:1")
    setexec(0x5555555555555555)
    A(f"v_cvt_pk_bf16_f32 v{tYv}, v{vU}, v{vU+1}")
    A("s_barrier")
    A(f"buffer_store_dwordx2 {v(tYv,2)}, v{tAP}, {s(srdWS,4)}, s{sA2} offen sc1")
    A("s_mov_b64 exec, -1")
    stamp(10); fine(3, 3)
    A("s_cbranch_scc0 L_fin_end")
    A("")
    def red_loads():
        for q in range(4): A(f"buffer_load_dwordx4 {v(tA+4*q,4)}, v{vL16}, {s(srdWS,4)}, s{sA3} offen offset:{1024*q} sc1")
    A(f"buffer_load_ushort v{tX}, v{tOut}, {s(srdX,4)}, s{sA7} offen")
    A("s_waitcnt vmcnt(0)")
    red_loads()
    A(f"v_lshlrev_b32 v{tX}, 16, v{tX}")
    ipoll("L_rdp", red_loads, lambda: gather_sum(vU, [tA+4*q for q in range(4)], vT0), GR)
    stamp(11); fine(3, 4)
    reduce4(vU)
    A(f"v_add_f32_dpp v{vU}, v{vU}, v{vU} row_ror:8 row_mask:0xf bank_mask:0xf bound_ctrl:1")
    A(f"s_cmp_gt_u32 s{sREM}, 1")
    A(f"v_fmac_f32 v{tX}, v{tPar}, v{vU}")
    A(f"v_mul_f32 v{vU}, v{tX}, v{tPar+1}")
    A(f"v_mul_f32 v{vU+4}, v{tX}, v{tX}")
    A(f"v_mov_b32 v{vU+1}, v{vU}")
    A(f"v_cndmask_b32 v{vU+4}, v{tX}, v{vU+4}, {s(sM0,2)}")
    A(f"v_permlane16_swap_b32 v{vU}, v{vU+1}")
    A(f"v_add_f32_dpp v{vU+4}, v{vU+4}, v{vU+4} quad_perm:[1,0,3,2] row_mask:0xf bank_mask:0xf bound_ctrl:1")
    A(f"v_cvt_pk_bf16_f32 v{vU+2}, v{vU}, v{vU+1}")
    A(f"v_lshlrev_b32 v{vT0}, 16, v{vU+2}")
    A(f"v_add_f32_dpp v{vU+4}, v{vU+4}, v{vU+4} quad_perm:[2,3,0,1] row_mask:0xf bank_mask:0xf bound_ctrl:1")
    A(f"v_and_b32 v{vT1}, 0xffff0000, v{vU+2}")
    A(f"v_sub_f32 v{vU}, v{vU}, v{vT0}")
    A(f"v_add_f32_dpp v{vU+4}, v{vU+4}, v{vU+4} row_half_mirror row_mask:0xf bank_mask:0xf bound_ctrl:1")
    A(f"v_sub_f32 v{vU+1}, v{vU+1}, v{vT1}")
    A(f"v_mov_b32 v{vU+5}, v{vU+4}")
    A(f"v_cvt_pk_bf16_f32 v{vU+3}, v{vU}, v{vU+1}")
    A(f"v_permlane16_swap_b32 v{vU+5}, v{vU+4}")
    A(f"v_cndmask_b32 v{vU+2}, v{vU+2}, v{vU+3}, {s(sM1,2)}")
    A(f"v_add_f32 v{vU+4}, v{vU+4}, v{vU+5}")
    A("s_cbranch_scc1 L_yrem")
    setexec(0x00ff00ff00ff00ff)
    A(f"buffer_store_dword v{vU+2}, v{tY}, {s(srdWS,4)}, s{sA4} offen")
    A("s_mov_b64 exec, -1")
    A(f"v_mov_b32 v{vU+5}, v{vU+4}")
    A(f"v_permlane32_swap_b32 v{vU+5}, v{vU+4}")
    A(f"v_add_f32 v{vU+4}, v{vU+4}, v{vU+5}")
    A("s_mov_b64 exec, 0x101")
    A(f"buffer_store_dword v{vU+4}, v{tY+1}, {s(srdWS,4)}, s{sA5} offen")
    A("s_mov_b64 exec, -1")
    stamp(12); fine(3, 5)
    A(f"s_cmp_eq_u32 s{sJ}, s{sAB}"); A("s_cbranch_scc0 L_notfin")
    if OPT: A(f"buffer_load_ushort v{vT3}, v{tOut}, {s(srdO,4)}, s{sA7} offen")
    if MFG:
        smul_add(sT0, [(sX8, "shl", 7)], MF); A(f"v_lshlrev_b32 v{vT1}, 2, v{vL}")
        flagwait("L_mfw", vT1, sT0, vT0, 0xfffffff)
        backoff(DF)
    A("")
    A("L_fin:")
    def fin_loads():
        for q in range(7):
            A(f"buffer_load_dwordx4 {v(tB+4*q,4)}, v{vL16}, {s(srdWS,4)}, s{sA6 if q < 4 else sA9} offen offset:{1024*(q%4)} sc1")
    fin_loads()
    A(f"v_mov_b32 v{vT2}, 0")
    ipoll("L_fnp", fin_loads, lambda: gather_sum(vU, [tB+4*q for q in range(7)], vT0), GF)
    fine(3, 6)
    reduce4(vU)
    A(f"v_add_f32_dpp v{vU}, v{vU}, v{vU} row_ror:8 row_mask:0xf bank_mask:0xf bound_ctrl:1")
    A(f"v_fmac_f32 v{tX}, v{tPar+2}, v{vU}")
    A(f"v_mov_b32 v{vU+1}, v{tX}")
    A(f"v_permlane16_swap_b32 v{tX}, v{vU+1}")
    setexec(0x000000ff000000ff)
    A(f"v_cvt_pk_bf16_f32 v{vU+2}, v{tX}, v{vU+1}")
    A(f"buffer_store_dword v{vU+2}, v{tOut}, {s(srdO,4)}, s{sA7} offen {osf}")
    if DUR:
        A(f"s_memrealtime {s(sST,2)}"); A("s_mov_b32 s90, 256"); A("s_mov_b32 s91, 0x20000"); A("s_waitcnt lgkmcnt(0)")
        A("s_mov_b64 exec, 1"); A(f"s_not_b32 s{sST+2}, s{sST+2}"); A(f"v_mov_b32 v{vU+4}, s{sST+2}"); A(f"v_mov_b32 v{vU+5}, s{sST}")
        A(f"buffer_atomic_umax v{vU+4}, v{vT2}, s[88:91], 0 offen"); A(f"buffer_atomic_umax v{vU+5}, v{vT2}, s[88:91], 0 offen offset:4")
    A("L_fin_end:")
    stamp_flush()
    A("s_endpgm")
    A("")
    A("L_c_orem:")
    A(f"buffer_store_dwordx4 {v(vU,4)}, v{vOa}, {s(srdWS,4)}, s{sOA} offen sc1")
    smul_add(sT0, [(sX8, "shl", 9), (sR, "shl", 4), (sW, "shl", 2)], OF)
    flagset(vT0, sT0)
    A(f"s_cmp_lt_u32 s{sR}, 16"); A("s_cbranch_scc0 L_c_other")
    if BT: A("s_barrier")
    smul_add(sT0, [(sX8, "shl", 9), (sAB, "shl", 8)], OF); A(f"v_lshlrev_b32 v{vT1}, 2, v{vL}")
    flagwait("L_ofw", vT1, sT0, vT0, (1 << 64) - 1)
    A(f"s_add_u32 s{sA0}, s{sA0}, {OB}"); A(f"s_add_u32 s{sA1}, s{sA1}, {SB}")
    st_loads(); t1_loads()
    A("s_waitcnt vmcnt(0)")
    A("s_branch L_t1_w")
    A("L_t1rem:")
    wo_reads()
    A("s_waitcnt lgkmcnt(0)")
    t1_mf(0)
    A("s_branch L_t1p_ok")
    A("L_yrem:")
    A(f"s_add_u32 s{sA4}, s{sA4}, {YBO}"); A(f"s_add_u32 s{sA5}, s{sA5}, {YBO}")
    setexec(0x00ff00ff00ff00ff)
    A(f"buffer_store_dword v{vU+2}, v{tY}, {s(srdWS,4)}, s{sA4} offen sc1")
    A("s_mov_b64 exec, -1")
    A(f"v_mov_b32 v{vU+5}, v{vU+4}")
    A(f"v_permlane32_swap_b32 v{vU+5}, v{vU+4}")
    A(f"v_add_f32 v{vU+4}, v{vU+4}, v{vU+5}")
    A("s_mov_b64 exec, 0x101")
    A(f"buffer_store_dword v{vU+4}, v{tY+1}, {s(srdWS,4)}, s{sA5} offen sc1")
    smul_add(sT0, [(sX8, "shl", 7), (sA8, "shl", 2)], YF)
    flagset(vT0, sT0)
    A(f"s_cmp_eq_u32 s{sJ}, s{sAB}"); A("s_cbranch_scc0 L_notfin")
    A("s_branch L_fin")
    A("L_notfin:")
    A(f"s_cmp_eq_u32 s2, 4"); A("s_cbranch_scc0 L_fin_end")
    A(f"s_cmp_eq_u32 s{sW}, 0"); A("s_cbranch_scc0 L_fin_end")
    A("s_mov_b64 exec, 1"); A(f"v_mov_b32 v{vT2}, 0")
    A(f"buffer_store_dword v{tYv+1}, v{vT2}, {s(srdWS,4)}, 0 offen sc1")
    A("s_branch L_fin_end")
    for blk in out_of_line: blk()
    out_of_line.clear()

    A("")
    A("L_c_other:")
    if dbg and not FINE: A("s_waitcnt vmcnt(0)"); stamp(11)
    A(f"s_sub_u32 s{sT0}, s{sR}, 16"); A(f"s_cmp_lt_u32 s{sT0}, 7"); A("s_cbranch_scc0 L_fin_end")
    mW1 = vKb; mW2 = vKb + 32; mB = vQ; mD = vQ + 16; mSt = vQ + 24; mR = vS; mD2 = vQ + 36; mO = vQ + 40; mY = vQ + 28; mH = vG2
    sY0, sY1, sFW = 22, 23, 25
    def y_loads():
        A(f"buffer_load_dwordx4 {v(mY,4)}, v{mYa}, {s(srdWS,4)}, s{sA0} offen sc1")
        A(f"buffer_load_dwordx2 {v(mSt,2)}, v{mSa}, {s(srdWS,4)}, s{sA1} offen sc1")
    def cp_load(): A(f"buffer_load_dwordx4 {v(mY,4)}, v{mYa}, {s(srdWS,4)}, s{sA0} offen offset:256 sc1")
    A(f"s_cmp_gt_u32 s{sREM}, 1"); A("s_cbranch_scc1 L_mrem0")
    cp_load()
    A("s_barrier")
    poll("L_mcp", cp_load, lambda: sentcheck([mY+3], vT0))
    def mrem0():
        A("L_mrem0:")
        A("s_barrier")
        A(f"s_add_u32 s{sA0}, s{sA0}, {YBO}"); A(f"s_add_u32 s{sA1}, s{sA1}, {YBO}")
        smul_add(sFW, [(sX8, "shl", 7)], CF); A(f"v_lshlrev_b32 v{vT1}, 2, v{vL}")
        flagwait("L_cfw", vT1, sFW, vT0, 0xffff)
        cp_load()
        A("s_waitcnt vmcnt(0)")
        A("s_branch L_mcp_ok")
        A("L_mrem:")
        A(f"s_add_u32 s{sFW}, s{sFW}, {YF-CF}")
        flagwait("L_yfw", vT1, sFW, vT0, 0xffffffff)
        y_loads()
        A("s_waitcnt vmcnt(0)")
        A("s_branch L_myp_ok")
    out_of_line.append(mrem0)
    def shift(d): return "quad_perm:[0,1,2,3]" if d == 0 else (f"row_shr:{d}" if d > 0 else f"row_shl:{-d}")
    for sg in range(4):
        for q in range(4): A(f"v_mov_b32_dpp v{mB+4*sg+q}, v{mY+q} {shift(4 - 4*sg)} row_mask:0xf bank_mask:0xf bound_ctrl:1")
    A(f"v_mov_b32 v{mO+1}, s{sTAG}"); A(f"v_mov_b32 v{mO+3}, s{sTAG}")
    A(f"v_mov_b32 v{mMQ}, v{mMP}"); A(f"v_mov_b32 v{mMQ+1}, 0")
    for i in range(32): A(f"v_mov_b32 v{mH+i}, 0")
    A(f"v_cmp_gt_u32 {s(sM0,2)}, 8, v{vN}")
    A(f"s_cmp_gt_u32 s{sREM}, 1")
    A("s_barrier")
    stamp(12)
    for sg in range(4):
        for t in range(2):
            for u in range(2):
                A(f"ds_read_b64_tr_b16 {v(mW1+(t*4+sg)*4+2*u,2)}, v{mA1+t} offset:{(32*sg+16*u)*64}")
    for t in range(8):
        for u in range(2):
            A(f"ds_read_b64_tr_b16 {v(mW2+4*t+2*u,2)}, v{mA2+t} offset:{16*u*256}")
    A("s_cbranch_scc1 L_mrem")
    y_loads()
    stamp(8)
    ipoll("L_myp", y_loads, lambda: (A("s_waitcnt vmcnt(0)"), sentcheck([mY+3, mSt, mSt+1], vT0)))
    stamp(9); fine(1, 1)
    va = []
    for ro in (2, 4, 8):
        va += [f"v_add_f32_dpp v{mSt+i}, v{mSt+i}, v{mSt+i} row_ror:{ro} row_mask:0xf bank_mask:0xf bound_ctrl:1" for i in range(2)]
    va += [f"v_mov_b32 v{mSt+2}, v{mSt}", f"v_mov_b32 v{mSt+3}, v{mSt+1}", f"v_permlane16_swap_b32 v{mSt+2}, v{mSt}", f"v_permlane16_swap_b32 v{mSt+3}, v{mSt+1}",
           f"v_pk_add_f32 {v(mSt,2)}, {v(mSt,2)}, {v(mSt+2,2)}",
           f"v_mul_f32 v{mSt}, {hex(f2u(1/512))}, v{mSt}", f"v_mul_f32 v{mSt+2}, {hex(f2u(1/512))}, v{mSt+1}",
           f"v_fma_f32 v{mSt+2}, -v{mSt}, v{mSt}, v{mSt+2}", f"v_max_f32 v{mSt+2}, 0, v{mSt+2}", f"v_add_f32 v{mSt+2}, {hex(f2u(1e-5))}, v{mSt+2}",
           f"v_rsq_f32 v{mSt+2}, v{mSt+2}"]
    def shl(sg):
        for q in range(4): A(f"v_mov_b32_dpp v{mB+4*sg+q}, v{mY+q} {shift(-4*sg)} row_mask:0xf bank_mask:0x1 bound_ctrl:1")
    def mf1(sg, t): A(f"v_mfma_f32_16x16x32_bf16 {v(mD+4*t,4)}, {v(mW1+(t*4+sg)*4,4)}, {v(mB+4*sg,4)}, {'0' if sg == 0 else v(mD+4*t,4)}")
    shl(0); A("s_waitcnt lgkmcnt(0)"); shl(1); mf1(0, 0); mf1(0, 1); shl(2); mf1(1, 0); mf1(1, 1); shl(3); mf1(2, 0); mf1(2, 1)
    A(va[0]); A(va[1]); mf1(3, 0); A(va[2]); A(va[3]); mf1(3, 1); vi = 4
    for _ in range(6): A(va[vi]); vi += 1
    fine(1, 2)
    A(f"s_mov_b64 exec, {s(sM0,2)}")
    for t in range(2): A(f"ds_write_b128 v{mXw}, {v(mD+4*t,4)} offset:{t*(8*RS+64)}")
    A("s_mov_b64 exec, -1")
    while vi < len(va): A(va[vi]); vi += 1
    A("s_waitcnt lgkmcnt(0)")
    fine(1, 3)
    A("s_barrier")
    fine(1, 4)
    for part in range(2):
        for cw in range(4): A(f"ds_read2_b32 {v(mR+8*part+2*cw,2)}, v{mXr + part*(mXr2-mXr)} offset0:{16*cw} offset1:{16*cw+RS//4}")
    A(f"s_waitcnt lgkmcnt({lg(4)})")
    A(f"v_pk_add_f32 {v(mR,2)}, {v(mR,2)}, {v(mR+2,2)}"); A(f"v_pk_add_f32 {v(mR+4,2)}, {v(mR+4,2)}, {v(mR+6,2)}")
    A(f"v_pk_add_f32 {v(mR,2)}, {v(mR,2)}, {v(mR+4,2)}")
    A(f"v_add_f32 v{mR+2}, v{mR}, v{mR+1}")
    A("s_waitcnt lgkmcnt(0)")
    A(f"v_pk_add_f32 {v(mR+8,2)}, {v(mR+8,2)}, {v(mR+10,2)}"); A(f"v_pk_add_f32 {v(mR+12,2)}, {v(mR+12,2)}, {v(mR+14,2)}")
    A(f"v_pk_add_f32 {v(mR+8,2)}, {v(mR+8,2)}, {v(mR+12,2)}")
    A(f"v_fma_f32 v{mR+2}, -v{mSt}, v{mR+8}, v{mR+2}")
    fine(1, 5)
    A(f"v_fma_f32 v{mR+2}, v{mR+2}, v{mSt+2}, v{mR+9}")
    A(f"v_mul_f32 v{mR+3}, {hex(f2u(-LOG2E))}, v{mR+2}")
    A(f"v_exp_f32 v{mR+3}, v{mR+3}")
    A(f"v_add_f32 v{mR+3}, 1.0, v{mR+3}"); A(f"v_rcp_f32 v{mR+3}, v{mR+3}")
    A(f"v_mul_f32 v{mR+2}, v{mR+2}, v{mR+3}")
    A(f"v_mov_b32_dpp v{mR+3}, v{mR+2} row_shl:2 row_mask:0xf bank_mask:0xf bound_ctrl:1")
    A(f"v_cvt_pk_bf16_f32 v{mR+4}, v{mR+2}, v{mR+3}")
    A(f"v_cndmask_b32 v{mR+4}, v{mR+4}, 0, {s(sM2,2)}")
    fine(1, 6)
    def bt(t):
        for q in range(4):
            d = 2*t - 4*q
            pat = "quad_perm:[0,1,2,3]" if d == 0 else (f"row_shr:{d}" if d > 0 else f"row_shl:{-d}")
            A(f"v_mov_b32_dpp v{mH+4*t+q}, v{mR+4} {pat} row_mask:0xf bank_mask:{hex(1 << (t >> 1))} bound_ctrl:1")
    def mf2(t): A(f"v_mfma_f32_16x16x32_bf16 {v(mD2,4)}, {v(mW2+4*t,4)}, {v(mH+4*t,4)}, {'0' if t == 0 else v(mD2,4)}")
    bt(0); bt(1)
    for t in range(8):
        mf2(t)
        if t + 2 < 8: bt(t + 2)
    fine(1, 7)
    if MFE == 2:
        A("s_mov_b64 exec, 1")
        A(f"buffer_store_dword v{mO+1}, v{mMQ+1}, {s(srdWS,4)}, s{sA4} offen")
        A("s_mov_b64 exec, -1")
    A(f"v_cvt_pk_bf16_f32 v{mO}, v{mD2}, v{mD2+1}"); A(f"v_cvt_pk_bf16_f32 v{mO+2}, v{mD2+2}, v{mD2+3}")
    A(f"buffer_store_dwordx4 {v(mO,4)}, v{mMQ}, {s(srdWS,4)}, s{sA3} offen sc1")
    if not MFE:
        A("s_mov_b64 exec, 1")
        A(f"buffer_store_dword v{mO+1}, v{mMQ+1}, {s(srdWS,4)}, s{sA4} offen")
    stamp(10); fine(1, 8)
    A("s_branch L_fin_end")
    for blk in out_of_line: blk()
    A("L_end:"); A("s_endpgm")
    A("L_code_end:")
    A('.section .rodata,"a"'); A(".p2align 6"); A(f".amdhsa_kernel {NAME}_kernel")
    nv = 256 if dbg else max(R.hi, H.hi, Lr.hi)
    nv_al = (nv + 3) // 4 * 4
    for l in (f"next_free_vgpr {nv}", "next_free_sgpr 96", f"accum_offset {nv_al}", "group_segment_fixed_size 0", "kernarg_size 104", "user_sgpr_count 2", "user_sgpr_kernarg_segment_ptr 1", "system_sgpr_workgroup_id_x 1", "float_denorm_mode_32 3"):
        A(".amdhsa_" + l)
    A(".end_amdhsa_kernel")
    bad = A.check_branches()
    for b in bad: print("BRANCH HAZARD", b, file=sys.stderr)
    print(f"compute regs {R.hi}, helper regs {H.hi}, loader regs {Lr.hi}, nops {A.nops}, instrs {sum(1 for i in A.ins if i.ws)}", file=sys.stderr)
    return "\n".join(hdr) + "\n" + A.text()

if __name__ == "__main__":
    out = sys.argv[1] if len(sys.argv) > 1 else "k.s"
    kw = {}
    for a in sys.argv[2:]:
        k, val = a.split("=")
        kw[k] = val.replace("_", " ") if k in STRK else int(val)
    open(out, "w").write(gen(**kw))
```

```python
import sys, struct
from asmlib import Asm
NAME = "adaLN_cond__sliding_block_cached__dense_activation_silu__decode"

EPOCH = 0
MODP = 0x1000
QPA  = 0x20000
QPB  = 0x60000
OPA  = 0xA0000
OPB  = 0xE0000
STA  = 0x120000
STB  = 0x122000
YX   = 0x2100
YA   = 0x124000
YB   = 0x138000
MF   = 0x14C000
OF   = 0x14D000
CF   = 0x14E000
YF   = 0x14F000
AP   = 0x150000
MP   = 0x170000
WS_USED = 0x1B0000
DBG  = 0x200000
QB = QPB - QPA; OB = OPB - OPA; SB = STB - STA; YBO = YB - YA

LK = 0; LV = 65536; S0 = 131072; S1 = 147456
SM = LV + 49152
SR = LV + 32768
FL = S0
F_M, F_W, F_K, F_QP, F_KR, F_MC, F_V, F_Q, F_P = 0, 4, 8, 12, 16, 32, 40, 48, 192
F_T1, F_T2, F_CR, F_R, F_RC = 36, 44, 208, 224, 228
ML = S0 + 64
HS = S0 + 512; QL = S0 + 1024; PAR = S0 + 2304; TAGL = S0 + 3328; PX = S0 + 3584; RED = S0 + 5632
RS = 272

LOG2E = 1.4426950408889634
def f2u(x): return struct.unpack("<I", struct.pack("<f", x))[0]
SC = f2u(128 ** -0.5 * LOG2E)
STRK = ("ntw", "ntk", "nts", "osf", "nt1")

HEADER = """
;
;   * across groups: 8-byte granules {bf16 pair, tag}, write-through stores, L1-bypassing loads; tag = f(epoch word of ws),
; @launch grid=(256,1,1) block=(384,1,1) lds=163840
"""

class Regs:
    def __init__(self, start=1):
        self.n = start; self.hi = start
    def a(self, cnt=1, al=None):
        al = al or (1 if cnt == 1 else 2)
        self.n = (self.n + al - 1) // al * al
        r = self.n; self.n += cnt; self.hi = max(self.hi, self.n)
        return r
def v(r, n=1): return f"v{r}" if n == 1 else f"v[{r}:{r+n-1}]"
def s(r, n=1): return f"s{r}" if n == 1 else f"s[{r}:{r+n-1}]"

def gen(WA=20, WB=20, WC=22, VA=32, VB=24, VC=28, TI=16, NI=48, NC=48, RP=0, QT=0, OT=1, TLB=0, BO=1, BT=9, EW=0, EM=0, SH=1, DM=0, DA=0, DF=0, MFE=0, ST=1, GR=0, GF=0, GT=1, G1=0, G2=0, G1B=0, G1C=0, G2B=0, G2C=0, RH=0, PW=0, nt1='nt', KE=0, EI=0, TB=0, WM=1, QBD=0, NQ=48, WBL=0, DIRTY=0, OPT=0, osf='', nts='', W1F=1, TMA=40, TME=16, KF=4, T2=20, TM=12, TM1=16, T3=32, QD=0, D2=8, PS=0, PN=0, PB=16, GK=7, TH=99, RA=1, RX=2, DG=60, DQ=64, DP=0, QORD=0, MFG=1,
        dbg=False, FINE=0, NA=8, NT=100000, CODE_PF=1, ntw="nt", ntk="nt", DUR=0, FREM=0):
    A = Asm()
    hdr = HEADER.strip().split("\n")
    A('.amdgcn_target "amdgcn-amd-amdhsa--gfx950"')
    A(".text"); A(f".globl {NAME}_kernel"); A(".p2align 8"); A(f".type {NAME}_kernel,@function"); A(f"{NAME}_kernel:")
    sWV, sX8, sR = 3, 36, 37
    sKO, sT0, sT1, sT2, sT3 = 38, 39, 40, 41, 42
    sTAG, sCNT, sB, sS, sW = 43, 44, 45, 46, 47
    sM0, sM1, sM2 = 48, 50, 52
    sAB = 54; sJ = 55; sT4 = 56; sT5 = 57; sT6 = 58; sT7 = 59
    sST = 60
    sREM, sLO, sHI, sTQ = 94, 95, 93, 92
    if DUR: pass
    srdWS, srdX = 16, 28
    vL, vG, vN = 1, 2, 3
    WSN = WS_USED if not dbg else 0x400000
    out_of_line = []
    def stamp(idx):
        if dbg and not FINE: A(f"s_memrealtime {s(64+2*idx,2)}")
    def fine(sec, idx):
        if dbg and FINE == sec: A(f"s_memtime {s(64+2*idx,2)}")
    def stamp_flush():
        if dbg:
            A("s_waitcnt lgkmcnt(0)")
            A("s_mov_b64 exec, -1")
            A(f"v_writelane_b32 v255, s{sST+2}, 0")
            for i in range(1, 14): A(f"v_writelane_b32 v255, s{64+2*i}, {i}")
            A(f"s_memrealtime {s(sST,2)}" if not FINE else f"s_memtime {s(sST,2)}"); A("s_waitcnt lgkmcnt(0)"); A(f"v_writelane_b32 v255, s{sST}, 14")
            A(f"s_mul_i32 s{sST}, s2, 6"); A(f"s_add_u32 s{sST}, s{sST}, s{sWV}"); A(f"s_lshl_b32 s{sST}, s{sST}, 7"); A(f"s_add_u32 s{sST}, s{sST}, {DBG}")
            A("v_and_b32 v254, 63, v0"); A("v_lshlrev_b32 v254, 2, v254")
            A("s_mov_b64 exec, 0xffff")
            A(f"buffer_store_dword v255, v254, {s(srdWS,4)}, s{sST} offen")
    def lg(n): return 0 if dbg else min(n, 15)
    def setexec(m):
        lo, hi = m & 0xffffffff, m >> 32
        if m == (1 << 64) - 1: A("s_mov_b64 exec, -1")
        elif hi == 0 and lo < 0x80000000: A(f"s_mov_b64 exec, {hex(lo)}")
        else: A(f"s_mov_b32 exec_lo, {hex(lo)}"); A(f"s_mov_b32 exec_hi, {hex(hi)}")
    def srd_tail(r, nbytes):
        A(f"s_mov_b32 s{r+2}, {nbytes}"); A(f"s_mov_b32 s{r+3}, 0x20000")
    def backoff(n):
        while n > 0: A(f"s_sleep {min(n, 100)}"); n -= 100
    lab = [0]
    def spin(va, off, vt, n=1, sleep=0):
        lab[0] += 1; L = f"L_spin{lab[0]}"
        A(f"{L}:")
        if n == 1: A(f"ds_read_b32 v{vt}, v{va} offset:{off}")
        else: A(f"ds_read_b128 {v(vt,4)}, v{va} offset:{off}")
        A("s_waitcnt lgkmcnt(0)")
        if n == 4:
            A(f"v_min3_u32 v{vt+4}, v{vt}, v{vt+1}, v{vt+2}"); A(f"v_min_u32 v{vt+4}, v{vt+4}, v{vt+3}")
        A(f"v_cmp_eq_u32 vcc, 0, v{vt + (4 if n == 4 else 0)}")
        if sleep:
            A(f"s_cbranch_vccz {L}_ok"); A(f"s_sleep {sleep}"); A(f"s_branch {L}"); A(f"{L}_ok:")
        else:
            A(f"s_cbranch_vccnz {L}")
    def smul_add(dst, terms, const=0, tmp=sT7):
        first = True
        for (r, op, k) in terms:
            d = dst if first else tmp
            A(f"s_lshl_b32 s{d}, s{r}, {k}" if op == "shl" else f"s_mul_i32 s{d}, s{r}, {k}")
            if not first: A(f"s_add_u32 s{dst}, s{dst}, s{tmp}")
            first = False
        if const: A(f"s_add_u32 s{dst}, s{dst}, {const}")
    def tagcheck(rs, acc, tag=sTAG):
        A(f"v_xor_b32 v{acc}, s{tag}, v{rs[0]}")
        for r in rs[1:]: A(f"v_bitop3_b32 v{acc}, v{r}, s{tag}, v{acc} bitop3:0xbe")
        A(f"v_cmp_ne_u32 vcc, 0, v{acc}")
    def sentcheck(rs, acc):
        if len(rs) == 1: A(f"v_cmp_eq_u32 vcc, -1, v{rs[0]}"); return
        if len(rs) == 2: A(f"v_max_u32 v{acc}, v{rs[0]}, v{rs[1]}"); i = 2
        else: A(f"v_max3_u32 v{acc}, v{rs[0]}, v{rs[1]}, v{rs[2]}"); i = 3
        while i < len(rs):
            if i + 1 < len(rs): A(f"v_max3_u32 v{acc}, v{acc}, v{rs[i]}, v{rs[i+1]}"); i += 2
            else: A(f"v_max_u32 v{acc}, v{acc}, v{rs[i]}"); i += 1
        A(f"v_cmp_eq_u32 vcc, -1, v{acc}")
    def poll(lbl, loads, check, first_wait=0):
        A(f"s_waitcnt vmcnt({first_wait})")
        check()
        A(f"s_cbranch_vccnz {lbl}_re")
        A(f"{lbl}_ok:")
        def blk():
            A(f"{lbl}_re:")
            A(f"s_mov_b32 s{sCNT}, 0")
            A(f"{lbl}_re2:")
            loads()
            A(f"s_add_u32 s{sCNT}, s{sCNT}, 1"); A(f"s_cmp_gt_u32 s{sCNT}, {NT}")
            A("s_waitcnt vmcnt(0)")
            A(f"s_cbranch_scc1 {lbl}_ok")
            check()
            A(f"s_cbranch_vccnz {lbl}_re2")
            A(f"s_branch {lbl}_ok")
        out_of_line.append(blk)
    def ipoll(lbl, loads, body, gap=0):
        A(f"s_mov_b32 s{sCNT}, 0")
        A(f"s_branch {lbl}_m")
        A(f"{lbl}_re:")
        A(f"s_add_u32 s{sCNT}, s{sCNT}, 1"); A(f"s_cmp_gt_u32 s{sCNT}, {NT}"); A(f"s_cbranch_scc1 {lbl}_ok")
        backoff(gap)
        loads()
        A(f"{lbl}_m:")
        body()
        A(f"s_cbranch_vccnz {lbl}_re")
        A(f"{lbl}_ok:")
    def gather_sum(dst, srcs, acc):
        n = len(srcs)
        for i, q in enumerate(srcs):
            A(f"s_waitcnt vmcnt({n-1-i})")
            A(f"v_xor_b32 v{acc}, s{sTAG}, v{q+3}" if i == 0 else f"v_bitop3_b32 v{acc}, v{q+3}, s{sTAG}, v{acc} bitop3:0xbe")
            if i == n - 1: A(f"v_cmp_ne_u32 vcc, 0, v{acc}")
            for c in (0, 2, 1, 3):
                A(f"v_dot2_f32_bf16 v{dst+c}, v{q + (c & 2)}, s{sHI if c & 1 else sLO}, {'0' if i == 0 else 'v%d' % (dst+c)}")
    def flagwait(lbl, va, so, vt, mask):
        A(f"s_mov_b32 s{sCNT}, 0"); setexec(mask)
        A(f"{lbl}:")
        A(f"buffer_load_dword v{vt}, v{va}, {s(srdWS,4)}, s{so} offen sc1")
        A(f"s_add_u32 s{sCNT}, s{sCNT}, 1"); A(f"s_cmp_gt_u32 s{sCNT}, {NT}")
        A("s_waitcnt vmcnt(0)")
        A(f"s_cbranch_scc1 {lbl}_x")
        A(f"v_cmp_ne_u32 vcc, s{sTAG}, v{vt}")
        A(f"s_cbranch_vccnz {lbl}")
        A(f"{lbl}_x:")
        A("s_mov_b64 exec, -1")
    def flagset(vt, so):
        A("s_waitcnt vmcnt(0)")
        A("s_mov_b64 exec, 1")
        A(f"v_mov_b32 v{vt}, 0"); A(f"v_mov_b32 v{vt+1}, s{sTAG}")
        A(f"buffer_store_dword v{vt+1}, v{vt}, {s(srdWS,4)}, s{so} offen sc1")
        A("s_mov_b64 exec, -1")
    def sum_pairs(dst, srcs):
        for i, q in enumerate(srcs):
            for c in range(4):
                A(f"v_dot2_f32_bf16 v{dst+c}, v{q + (c & 2)}, s{sHI if c & 1 else sLO}, {'0' if i == 0 else 'v%d' % (dst+c)}")
    def dot_consts():
        A(f"s_mov_b32 s{sLO}, 0x3f80"); A(f"s_mov_b32 s{sHI}, 0x3f800000")

    srdWM, srdWQ, srdK, srdV, srdW, srdW2, srdF = 8, 12, 20, 24, 4, 28, 4
    if dbg or DUR: A(f"s_memrealtime {s(sST+2,2)}")
    A(f"s_load_dwordx2 {s(srdK,2)}, s[0:1], 8")
    A(f"s_load_dwordx2 {s(srdWM,2)}, s[0:1], 72")
    A("s_cmp_ge_u32 s2, 256"); A("s_cbranch_scc1 L_end")
    A("v_lshrrev_b32 v1, 6, v0")
    A(f"s_and_b32 s{sX8}, s2, 7"); A(f"s_lshr_b32 s{sR}, s2, 3")
    A(f"v_readfirstlane_b32 s{sWV}, v1")
    A("v_and_b32 v1, 63, v0")
    A("v_lshrrev_b32 v2, 4, v1"); A("v_and_b32 v3, 15, v1")
    A(f"s_lshr_b32 s{sB}, s{sR}, 4"); A(f"s_and_b32 s{sS}, s{sR}, 15")
    sRHO = 35; P = dict(cl=34, rp=33)
    A(f"s_cmp_lg_u32 s{sWV}, 0"); A("s_cbranch_scc1 L_notloader")
    def prod_decode():
        A(f"s_bfe_u32 s{P['cl']}, s2, 0x40002"); A(f"s_and_b32 s{P['rp']}, s2, 3")

    Lr = Regs(4)
    lWM = Lr.a(4); lWQ = Lr.a(4); lK = Lr.a(4); lV = Lr.a(2); lW = Lr.a(4); lW1 = Lr.a(4); lT0 = Lr.a(); lT1 = Lr.a(); lF = Lr.a(); lOne = Lr.a(); lS = Lr.a(6, 4); lA = Lr.a(4)
    sRO = 32
    A("")
    prod_decode()
    A(f"v_xor_b32 v{lT0}, v{vG}, v{vN}"); A(f"v_lshlrev_b32 v{lT0}, 4, v{lT0}"); A(f"v_lshl_or_b32 v{lK}, v{vG}, 8, v{lT0}")
    for j in range(1, 4): A(f"v_xor_b32 v{lK+j}, {64*j}, v{lK}")
    A(f"v_and_b32 v{lT0}, 7, v{vL}"); A(f"v_lshlrev_b32 v{lT1}, 1, v{vG}"); A(f"v_xor_b32 v{lT0}, v{lT0}, v{lT1}"); A(f"v_lshlrev_b32 v{lT0}, 4, v{lT0}")
    A(f"v_lshrrev_b32 v{lT1}, 3, v{vL}")
    A(f"v_mad_u32_u24 v{lWM}, v{lT1}, s{sT4}, v{lT0}") if False else None
    A(f"v_mul_u32_u24 v{lWM}, 6144, v{lT1}"); A(f"v_add_u32 v{lWM}, v{lWM}, v{lT0}")
    for j in range(1, 4): A(f"v_add_u32 v{lWM+j}, {j*(8*6144-1024)}, v{lWM}")
    smul_add(sT0, [(P['rp'], "mul", 128*6144), (P['cl'], "shl", 7)])
    smul_add(sKO, [(sB, "shl", 26), (sX8, "shl", 23), (sS, "shl", 16)], 28672*256)
    smul_add(sT2, [(sR, "mul", RA), (sX8, "mul", RX)]); A(f"s_and_b32 s{sT2}, s{sT2}, 15"); A(f"s_lshl_b32 s{sT2}, s{sT2}, 12")
    srd_tail(srdWM, 512*6144); srd_tail(srdK, 65536)
    A(f"s_cmp_ge_u32 s{sR}, 24")
    A("s_cselect_b64 vcc, -1, 0")
    A(f"s_cselect_b32 s{sT1}, s{sT0}, s{sT2}"); A(f"s_cselect_b32 m0, {SM}, 0")
    A(f"s_mov_b32 s{sT5}, {65536*ST}")
    A(f"s_cselect_b32 s{sT5}, {32*6144}, s{sT5}"); A(f"s_cselect_b32 s{sT6}, -1, 0xffff"); A(f"s_cselect_b32 s{srdF+2}, s{srdWM+2}, s{srdK+2}")
    A(f"s_cselect_b32 s{sT3}, 0, 4"); A(f"s_lshr_b32 s{sT5}, s{sT5}, s{sT3}")
    for j in range(4): A(f"v_cndmask_b32 v{lA+j}, v{lK+j}, v{lWM+j}, vcc")
    A(f"s_mov_b32 s{srdF+3}, 0x20000")
    A("s_waitcnt lgkmcnt(0)")
    A(f"s_add_u32 s{srdK}, s{srdK}, s{sKO}"); A(f"s_addc_u32 s{srdK+1}, s{srdK+1}, 0")
    A(f"s_cmp_ge_u32 s{sR}, 24")
    A(f"s_cselect_b64 {s(srdF,2)}, {s(srdWM,2)}, {s(srdK,2)}")
    assert KF >= 4 and TI >= 16
    for gi in range(4):
        for j in range(4): A(f"buffer_load_dwordx4 v{lA+j}, {s(srdF,4)}, s{sT1} offen offset:{j*1024} {ntk} lds")
        if gi == 0: stamp(2)
        A(f"s_add_u32 s{sT1}, s{sT1}, s{sT5}"); A(f"s_and_b32 s{sT1}, s{sT1}, s{sT6}")
        if gi < 3: A("s_add_u32 m0, m0, 4096")
        if TB and gi == TB - 1:
            A(f"s_cmp_ge_u32 s{sR}, 24"); A("s_cbranch_scc1 L_l_go")
            A(f"s_waitcnt vmcnt({4*TB-1})")
            A("L_l_go:")
    A("s_setprio 3")
    A(f"s_load_dwordx2 {s(srdWQ,2)}, s[0:1], 24")
    A(f"s_load_dwordx2 {s(srdV,2)}, s[0:1], 16")
    A(f"v_lshlrev_b32 v{lF}, 4, v{vL}"); A(f"v_add_u32 v{lF}, {FL}, v{lF}")
    A(f"v_subrev_u32 v{lOne}, 4, v{vL}"); A(f"v_cmp_gt_u32 vcc, 8, v{lOne}"); A(f"v_cndmask_b32 v{lS}, 0, -1, vcc")
    for i in range(1, 4): A(f"v_mov_b32 v{lS+i}, v{lS}")
    A("s_mov_b64 exec, 0xffff")
    A(f"ds_write_b128 v{lF}, {v(lS,4)}")
    A("s_mov_b64 exec, -1")
    A(f"v_lshl_or_b32 v{lWQ}, v{lT1}, 13, v{lT0}")
    A(f"s_lshr_b32 s{sRHO}, s{sR}, 3")
    A(f"s_cmp_ge_u32 s{sR}, 24"); A(f"s_cselect_b32 s{sT2}, s{sT2}, s{sT1}")
    A("s_waitcnt lgkmcnt(0)")
    A("s_barrier")
    def group(srd, vr, so, wait, nt=ntk):
        for j in range(4):
            if wait is not None: A(f"s_waitcnt vmcnt({wait})")
            A(f"buffer_load_dwordx4 v{vr[j]}, {s(srd,4)}, s{so} offen offset:{j*1024} {nt} lds")
    def flag(off, cnt):
        A(f"s_waitcnt vmcnt({cnt})"); A(f"ds_write_b32 v{lF}, v{lOne} offset:{off}")
    kr = [lK+j for j in range(4)]
    def late_setup():
        for j in range(1, 4): A(f"v_add_u32 v{lWQ+j}, {j*(8*8192-1024)}, v{lWQ}")
        srd_tail(srdWQ, 512*8192)
        A(f"s_and_b32 s{sT3}, s{sR}, 7")
        smul_add(sT1, [(sRHO, "shl", 20), (sX8, "shl", 10), (sT3, "shl", 7)])
        A(f"v_mov_b32 v{lF}, {FL}"); A(f"v_mov_b32 v{lOne}, 1")
        A(f"s_lshr_b32 s{sT3}, s2, 2"); A(f"s_add_u32 s{sT3}, s{sT3}, {-16 if RP else 16}")
        smul_add(sRO, [(P['rp'], "mul", 128*6144), (sT3, "shl", 7)])
    def kbase():
        A(f"s_add_u32 s{srdK}, s{srdK}, s{sKO}"); A(f"s_addc_u32 s{srdK+1}, s{srdK+1}, 0")
    def pace(extra=0):
        if PS: A(f"s_sleep {PS}")
        n = PN + (extra if PS or PN else 0)
        while n >= 4: k = min(n // 4, 16); A(f"s_nop {k-1}"); n -= 4*k
    vr = [lV, lV+1, lV, lV+1]
    def kvloop(name, srd, vr, end, TT):
        A(f"{name}:")
        group(srd, vr, sT2, TT-1)
        A(f"s_add_u32 s{sT2}, s{sT2}, {4096*ST}"); A(f"s_and_b32 s{sT2}, s{sT2}, 0xffff")
        A("s_add_u32 m0, m0, 4096"); A(f"s_cmp_lt_u32 m0, {end}"); A(f"s_cbranch_scc1 {name}")
    def setup2():
        A(f"s_cmp_lt_u32 s{sR}, 16"); A(f"s_cselect_b32 s{sT4}, 32, 48")
        A(f"s_load_dwordx2 {s(srdW,2)}, s[0:1], s{sT4}")
        A(f"s_load_dwordx2 {s(srdW2,2)}, s[0:1], 56")
        if dbg: A(f"s_load_dwordx2 {s(srdWS,2)}, s[0:1], 96"); srd_tail(srdWS, WSN)
        A(f"s_add_u32 s{srdV}, s{srdV}, s{sKO}"); A(f"s_addc_u32 s{srdV+1}, s{srdV+1}, 0"); srd_tail(srdV, 65536)
        A(f"v_lshlrev_b32 v{lT0}, 1, v{vG}"); A(f"v_xor_b32 v{lT0}, v{lT0}, v{vN}"); A(f"v_lshlrev_b32 v{lT0}, 4, v{lT0}")
        A(f"v_lshl_or_b32 v{lV}, v{vG}, 8, v{lT0}"); A(f"v_xor_b32 v{lV+1}, 128, v{lV}")
        A(f"v_lshl_or_b32 v{lW}, v{vG}, 10, v{lT0}"); A(f"v_xor_b32 v{lT0}, 128, v{lW}")
        A(f"v_add_u32 v{lW+1}, 3072, v{lT0}"); A(f"v_add_u32 v{lW+2}, 6144, v{lW}"); A(f"v_add_u32 v{lW+3}, 9216, v{lT0}")
    wr = [lW+j for j in range(4)]
    def wo_setup():
        spin(lF, F_KR, lS, 4)
        srd_tail(srdW, 4096*1024)
        A(f"s_lshr_b32 s{sT1}, s{sR}, 2"); A(f"s_and_b32 s{sT3}, s{sR}, 3")
        smul_add(sT0, [(sX8, "shl", 19), (sT1, "shl", 17), (sT3, "shl", 8)])
        A("s_mov_b32 m0, 0")
    def wog(i):
        def f(w):
            group(srdW, wr, sT0, w, ntw)
            if i < 7: A(f"s_add_u32 s{sT0}, s{sT0}, 16384"); A("s_add_u32 m0, m0, 4096")
        return f
    def mlp_setup():
        A(f"v_and_b32 v{lT0}, 1, v{vG}"); A(f"v_lshlrev_b32 v{lT0}, 1, v{lT0}"); A(f"v_and_b32 v{lT1}, 3, v{vL}"); A(f"v_xor_b32 v{lT0}, v{lT0}, v{lT1}"); A(f"v_lshlrev_b32 v{lT0}, 4, v{lT0}")
        A(f"v_lshrrev_b32 v{lT1}, 2, v{vL}"); A(f"v_mul_u32_u24 v{lT1}, 3584, v{lT1}"); A(f"v_add_u32 v{lW1}, v{lT0}, v{lT1}")
        for j in range(1, 4): A(f"v_add_u32 v{lW1+j}, {j*(16*3584-1024)}, v{lW1}")
        srd_tail(srdW, 512*3584); srd_tail(srdW2, 1792*1024)
        spin(lF, F_KR, lS, 4)
        A(f"s_mul_i32 s{sJ}, s{sX8}, 7"); A(f"s_add_u32 s{sJ}, s{sJ}, s{sR}"); A(f"s_sub_u32 s{sJ}, s{sJ}, 16")
        A(f"s_lshl_b32 s{sT0}, s{sJ}, 6"); A(f"s_lshl_b32 s{sT1}, s{sJ}, 15")
        A("s_mov_b32 m0, 0")
    def w1g(i, nt=ntw):
        def f(w):
            group(srdW, [lW1+j for j in range(4)], sT0, w, nt)
            A(f"s_add_u32 s{sT0}, s{sT0}, {64*3584}"); A("s_add_u32 m0, m0, 4096")
        return f
    def w2g(i, nt=ntw):
        def f(w):
            group(srdW2, wr, sT1, w, nt)
            if i < 7:
                A(f"s_add_u32 s{sT1}, s{sT1}, 16384" if i % 2 == 0 else f"s_sub_u32 s{sT1}, s{sT1}, {16384-256}"); A("s_add_u32 m0, m0, 4096")
        return f
    def stream(sfx, seq, W, WV, NI=NI):
        seq = list(seq); n = 16; pend = [(16, F_M)] if seq[0] == "m" else []; kidx = 0 if pend else 4; g1 = [G1 + {'a': 0, 'b': G1B, 'c': G1C}[sfx]] if G1 else []; G2r = G2 + {'a': 0, 'b': G2B, 'c': G2C}[sfx] if G2 else 0; cnt = {"m": 0, "q": 0, "r": 0}
        i = 4
        while i < len(seq) or pend or g1:
            TT = TI if n < NI else W
            while pend and n - pend[0][0] >= TT - 1:
                flag(pend[0][1], n - pend[0][0])
                if pend[0][1] == F_M: stamp(7)
                pend.pop(0)
            if n == NI and pend and n - pend[0][0] >= TI:
                flag(pend[0][1], n - pend[0][0])
                if pend[0][1] == F_M: stamp(7)
                pend.pop(0)
            if g1 and n - g1[0] >= min(TT, TI if n <= NI else W) - 1: flag(F_T1, n - g1[0]); g1.pop()
            if i >= len(seq) and not pend and not g1: break
            kind = seq[i] if i < len(seq) else "k"
            w = TT - 1 if n + 3 >= TT else None
            if kind == "k":
                A(f"s_mov_b32 m0, {kidx*4096}")
                group(srdK, kr, sT2, w)
                A(f"s_add_u32 s{sT2}, s{sT2}, {4096*ST}"); A(f"s_and_b32 s{sT2}, s{sT2}, 0xffff"); kidx += 1
            else:
                srd, vq, so, base, st, fo = {"m": (srdWM, lWM, sT0, SM, 6144, F_M), "q": (srdWQ, lWQ, sT1, S1, 8192, F_W), "r": (srdWM, lWM, sRO, SR, 6144, F_R)}[kind]
                A(f"s_mov_b32 m0, {base + 4096*cnt[kind]}")
                group(srd, [vq+j for j in range(4)], so, w, ntw)
                cnt[kind] += 1
                if cnt[kind] < 4: A(f"s_add_u32 s{so}, s{so}, {32*st}")
                else: pend.append((n + 4, fo))
            n += 4; i += 1
        A(f"s_mov_b32 m0, {kidx*4096}")
        assert kidx < 16
        stamp(1)
        kvloop("L_k3" + sfx, srdK, kr, LV, W)
        stamp(3)
        gv = min((W + 3) // 4, GK)
        assert WV >= W
        late_r = RP == 2 and sfx != "a"
        if late_r:
            if "m" in seq: spin(lF, F_MC, lS)
            for gi in range(4):
                A(f"s_mov_b32 m0, {SM + 4096*gi}")
                group(srdWM, [lWM+j for j in range(4)], sRO, W-1, ntw)
                if gi < 3: A(f"s_add_u32 s{sRO}, s{sRO}, {32*6144}")
            A(f"s_mov_b32 m0, {LV}")
            gk = max(gv - 4, 1)
            kvloop("L_v0" + sfx, srdV, vr, LV + gk*4096, W)
            flag(F_K, min(W-1, 16 + 4*gk))
            if gv > gk: kvloop("L_v1" + sfx, srdV, vr, LV + gv*4096, W)
            flag(F_R, min(W-1, 4*gv))
        else:
            kvloop("L_v1" + sfx, srdV, vr, LV + gv*4096, W)
            flag(F_K, min(W-1, 4*gv))
        stamp(4)
        assert gv < 8
        assert G2r <= 8
        if G2 and G2r > gv:
            kvloop("L_v7" + sfx, srdV, vr, LV + G2r*4096, W)
        if G2: A(f"ds_write_b32 v{lF}, v{lOne} offset:{F_T2}")
        if G2r < 8: kvloop("L_v2" + sfx, srdV, vr, SR, WV)
        if late_r:
            kvloop("L_v6" + sfx, srdV, vr, SM, WV)
            spin(lF, F_RC, lS)
        else:
            if "r" in seq: spin(lF, F_RC, lS)
            if "m" in seq: spin(lF, F_MC, lS)
        if EW and sfx == "a":
            if EW > 8: kvloop("L_v4" + sfx, srdV, vr, LV + EW*4096, WV)
            wo_setup()
            for i in range(8): wog(i)(WV - 1)
            A(f"s_mov_b32 m0, {LV + EW*4096}")
        if EM and sfx == "b":
            if EM > 8: kvloop("L_v4" + sfx, srdV, vr, LV + EM*4096, WV)
            A(f"s_cmp_eq_u32 s{sR}, 23"); A("s_cbranch_scc1 L_v5b")
            mlp_setup()
            for i in range(8): w1g(i)(TME - 1)
            A(f"s_mov_b32 m0, {LV + EM*4096}")
            A("L_v5b:")
        kvloop("L_v3" + sfx, srdV, vr, S0, WV)
        stamp(5)
    A("")
    late_setup(); setup2()
    A(f"s_cmp_ge_u32 s{sR}, 24"); A("s_cbranch_scc1 L_l_crit")
    A(f"s_cmp_lt_u32 s{sR}, 16"); A("s_cbranch_scc1 L_l_light")
    stream("b", "k"*KF + "qqqq" + "rrrr"*(RP == 1), WB, VB)
    A(f"s_sub_u32 s{sT0}, s{sR}, 16"); A(f"s_cmp_lt_u32 s{sT0}, 7"); A("s_cbranch_scc1 L_l_mlp")
    A("s_branch L_l_plain")
    A("L_l_light:")
    stream("a", "k"*KF + ("rrrrqqqq" if RH else "qqqq" + "rrrr"*(RP == 0)), WA, VA)
    A("s_branch L_l_t1")
    A("L_l_crit:")
    stream("c", "mmmm" + "k"*KF + "qqqq" + "rrrr"*(RP == 1), WC, VC, NC)
    if SH:
        A(f"s_cmp_eq_u32 s{sR}, 31"); A("s_cbranch_scc1 L_l_plain")
        A(f"s_sub_u32 s{sR}, s{sR}, 8")
        mlp_setup()
        A(f"s_add_u32 s{sT0}, s{sT0}, {(8-SH+1)*64*3584}")
        flag(F_V, 8)
        A("s_waitcnt vmcnt(0)"); A("s_barrier")
        A("s_barrier")
        backoff(DM)
        if PW == 2:
            A(f"s_and_b32 s{sT3}, s{sX8}, 1"); A(f"s_mul_i32 s{sT3}, s{sT3}, 6"); A(f"s_add_u32 s{sT3}, s{sT3}, s{sR}"); A(f"s_cmp_eq_u32 s{sT3}, 22"); A("s_cbranch_scc0 L_l_sh2")
            A(f"s_lshl_b32 s{sT0}, s{sJ}, 6"); A(f"s_and_b32 s{sT3}, s{sJ}, 1"); A(f"s_xor_b32 s{sT3}, s{sT3}, 1"); A(f"s_mul_i32 s{sT3}, s{sT3}, {4*64*3584}"); A(f"s_add_u32 s{sT0}, s{sT0}, s{sT3}")
            for i in range(4): w1g(i, nts)(TM1 - 1)
            A("L_l_sh2:")
        for i in range(SH - 1): w1g(i, nts)(TM1 - 1)
        for i in range(8): w2g(i, nts)(TMA - 1)
        A("s_branch L_l_end")
    A("L_l_plain:")
    flag(F_V, 8)
    A("s_waitcnt vmcnt(0)"); A("s_barrier")
    if DIRTY:
        A(f"s_cmp_eq_u32 s{sR}, 31"); A("s_cbranch_scc0 L_l_nd")
        A(f"s_load_dwordx2 {s(srdWS,2)}, s[0:1], 96"); srd_tail(srdWS, 0x4000000); A(f"v_lshlrev_b32 v{lT0}, 4, v{vL}")
        smul_add(sT0, [(sX8, "shl", 21)], 0x1000000); A("s_waitcnt lgkmcnt(0)")
        for i in range(DIRTY):
            A(f"buffer_store_dwordx4 {v(lS,4)}, v{lT0}, {s(srdWS,4)}, s{sT0} offen"); A(f"s_add_u32 s{sT0}, s{sT0}, 1024")
        A("L_l_nd:")
    if WBL:
        A(f"s_cmp_eq_u32 s{sR}, 31"); A("s_cbranch_scc0 L_l_end")
        backoff(WBL)
        A("buffer_wbl2 sc1"); A("s_waitcnt vmcnt(0)")
    A("L_l_end:")
    stamp_flush()
    A("s_endpgm")
    def post_v(name, groups, TT, marks):
        n = 0; gi = 0
        def rd(): A(f"ds_read_b128 {v(lS,4)}, v{lF} offset:{F_CR}")
        def ck():
            A("s_waitcnt lgkmcnt(0)")
            A(f"v_min3_u32 v{lS+4}, v{lS}, v{lS+1}, v{lS+2}"); A(f"v_min_u32 v{lS+4}, v{lS+4}, v{lS+3}"); A(f"v_cmp_eq_u32 vcc, 0, v{lS+4}")
        while gi < len(groups) and n - TT < -8: groups[gi](TT - 1); n += 4; gi += 1
        flag(F_V, n + 8)
        rd(); ck()
        while gi < len(groups) and n - TT < 0: groups[gi](TT - 1); n += 4; gi += 1
        g0 = gi
        A(f"s_cbranch_vccnz {name}_late")
        A(f"s_waitcnt vmcnt({n})")
        for g in range(g0, len(groups)):
            if g > g0: A(f"s_branch {name}_c{g}"); A(f"{name}_b{g}:")
            A("s_barrier")
            A(f"{name}_c{g}:")
            groups[g](T3 - 1)
        A(f"s_branch {name}_e")
        A(f"{name}_late:")
        A(f"s_waitcnt vmcnt({n})")
        for g in range(g0, len(groups)):
            if g > g0: ck(); A(f"s_cbranch_vccz {name}_b{g}")
            rd()
            groups[g](T3 - 1)
        A("s_barrier")
        A(f"{name}_e:")
        if marks: A("s_waitcnt vmcnt(0)"); A("s_barrier")
    A("")
    A("L_l_t1:")
    if EW: A("s_branch L_l_plain")
    wo_setup()
    if BT:
        for i in range(BT - 1): wog(i)(VA - 1)
        flag(F_V, 8 + 4*(BT-1))
        A(f"s_waitcnt vmcnt({4*(BT-1)})"); A("s_barrier")
        A("s_barrier")
        for i in range(BT - 1, 8): wog(i)(63)
        A("s_waitcnt vmcnt(0)"); A("s_barrier")
    else:
        post_v("L_pw", [wog(i) for i in range(8)], T2, [32])
    A("s_branch L_l_end")
    A("")
    A("L_l_mlp:")
    if not EM: mlp_setup()
    else: srd_tail(srdW2, 1792*1024)
    def w1s(i):
        def f(w): w1g(i)(min(w, TM1 - 1))
        return f
    def w2s(i):
        def f(w): w2g(i)(TMA - 1)
        return f
    flag(F_V, 8)
    def rd(): A(f"ds_read_b128 {v(lS,4)}, v{lF} offset:{F_CR}")
    def ck():
        A("s_waitcnt lgkmcnt(0)")
        A(f"v_max3_u32 v{lS+4}, v{lS}, v{lS+1}, v{lS+2}"); A(f"v_max_u32 v{lS+4}, v{lS+4}, v{lS+3}"); A(f"v_cmp_eq_u32 vcc, 0, v{lS+4}")
    if EI:
        rd(); ck()
        A("s_waitcnt vmcnt(0)")
        for g in range(8):
            if g: ck()
            A(f"s_cbranch_vccz L_m_b{g}")
            rd()
            w1g(g)(TME - 1)
        A("s_barrier"); A("s_barrier")
        A("s_branch L_m_w2")
        for g in range(8):
            if g: A(f"s_branch L_m_c{g}")
            A(f"L_m_b{g}:")
            A("s_barrier"); A("s_barrier")
            A(f"L_m_c{g}:")
            w1s(g)(63)
        A("L_m_w2:")
    else:
        if PW:
            A(f"s_and_b32 s{sT3}, s{sJ}, 1"); A(f"s_mul_i32 s{sT4}, s{sT3}, {4*64*3584}"); A(f"s_add_u32 s{sT0}, s{sT0}, s{sT4}")
            A(f"s_lshl_b32 m0, s{sT3}, 14"); A(f"s_lshl_b32 s{sT4}, s{sT4}, 1"); A(f"s_lshl_b32 s{sT3}, s{sT3}, 15")
        A("s_waitcnt vmcnt(0)"); A("s_barrier"); A("s_barrier")
        for i in range(8):
            w1g(i, nt1)(TM1 - 1)
            if PW and i == 3: A(f"s_sub_u32 s{sT0}, s{sT0}, s{sT4}"); A(f"s_sub_u32 m0, m0, s{sT3}")
        A("s_mov_b32 m0, 32768")
    for i in range(8): w2s(i)(0)
    A("s_waitcnt vmcnt(0)"); A("s_barrier")
    A("s_branch L_l_end")

    A("L_notloader:")
    A(f"s_load_dwordx2 {s(srdWS,2)}, s[0:1], 96")
    A(f"s_load_dwordx2 {s(srdX,2)}, s[0:1], 0")
    A(f"s_cmp_lg_u32 s{sWV}, 1"); A("s_cbranch_scc1 L_compute")

    H = Regs(4)
    srdC, srdCode = 4, 24
    hT0 = H.a(); hT1 = H.a(); hT2 = H.a(); hT3 = H.a()
    hE = H.a(); hC = H.a(2); hX0 = H.a(4, 4); hX1 = H.a(4, 4); hXa = H.a(); hXb = H.a()
    hTR = H.a(4); hA = H.a(16, 4); hB = H.a(64, 4); hBq = H.a(64, 4); hD = H.a(16, 4); hF = H.a(4, 4)
    hM = H.a(4); hU = H.a(12, 4); hL16 = H.a(); hAcc = H.a(); hDum = H.a(); hFl = H.a(); hOne = H.a()
    xn = H.a(4); hHa = H.a(); hHr = H.a(); hQa = H.a(); hGa = H.a(); hGr = H.a()
    hG, hN = vG, vN
    A("")
    A("s_setprio 2")
    A(f"s_load_dwordx2 {s(srdC,2)}, s[0:1], 64")
    A(f"s_lshr_b32 s{sRHO}, s{sR}, 3")
    prod_decode()
    def c_addr(t0, t1):
        A(f"v_and_b32 v{t0}, 1, v{vN}"); A(f"v_lshlrev_b32 v{t0}, 10, v{t0}")
        A(f"v_lshrrev_b32 v{t1}, 1, v{vN}"); A(f"v_lshl_or_b32 v{t0}, v{t1}, 5, v{t0}"); A(f"v_lshl_or_b32 v{t0}, v{vG}, 3, v{t0}")
    c_addr(hT0, hT1)
    A(f"v_lshlrev_b32 v{hL16}, 4, v{vL}"); A(f"v_mov_b32 v{hT2}, 0"); A(f"v_lshlrev_b32 v{hT3}, 2, v{vL}")
    srd_tail(srdWS, WSN); srd_tail(srdC, 2048); srd_tail(srdX, 2048)
    A(f"s_lshl_b32 s{sT0}, s{P['rp']}, 8"); A(f"s_lshl_b32 s{sT1}, s{sRHO}, 8")
    A("s_waitcnt lgkmcnt(0)")
    A(f"buffer_load_dword v{hE}, v{hT2}, {s(srdWS,4)}, 0 offen sc1")
    A(f"buffer_load_dwordx2 {v(hC,2)}, v{hT0}, {s(srdC,4)}, s{sT0} offen")
    A(f"buffer_load_dwordx4 {v(hX0,4)}, v{hL16}, {s(srdX,4)}, 0 offen")
    A(f"buffer_load_dwordx4 {v(hX1,4)}, v{hL16}, {s(srdX,4)}, 0 offen offset:1024")
    for i in range(4): A(f"v_mov_b32 v{hF+i}, -1")
    A(f"v_mov_b32 v{hFl}, {FL}"); A(f"v_mov_b32 v{hOne}, 1")
    A("")
    smul_add(sT0, [(sX8, "shl", 15), (sR, "shl", 10)], OPA)
    hTch = hBq
    if OT: A(f"buffer_load_dwordx4 {v(hTch,4)}, v{hL16}, {s(srdWS,4)}, s{sT0} offen")
    A(f"buffer_store_dwordx4 {v(hF,4)}, v{hL16}, {s(srdWS,4)}, s{sT0} offen")
    sQA = 32
    A(f"v_and_b32 v{hT0}, 1, v{hG}"); A(f"v_lshlrev_b32 v{hT0}, 13, v{hT0}"); A(f"v_lshrrev_b32 v{hT1}, 1, v{hG}"); A(f"v_lshl_or_b32 v{hT0}, v{hT1}, 6, v{hT0}")
    A(f"v_and_b32 v{hT1}, 1, v{hN}"); A(f"v_lshl_or_b32 v{hT0}, v{hT1}, 7, v{hT0}"); A(f"v_cmp_eq_u32 {s(sM0,2)}, 1, v{hT1}")
    A(f"v_lshrrev_b32 v{hT1}, 1, v{hN}"); A(f"v_lshl_or_b32 v{hQa}, v{hT1}, 3, v{hT0}")
    A(f"s_and_b32 s{sT4}, s{sR}, 7")
    smul_add(sQA, [(sX8, "shl", 14), (sRHO, "shl", 11), (sT4, "shl", 8)], QPA)
    if QT:
        A(f"buffer_load_dwordx2 {v(hU+8,2)}, v{hQa}, {s(srdWS,4)}, s{sQA} offen")
    A(f"s_cmp_lg_u32 s{sS}, 0"); A("s_cbranch_scc1 L_h_c2")
    smul_add(sT0, [(sX8, "shl", 10), (sB, "shl", 9)], STA)
    setexec(0xffffffff)
    if OT: A(f"buffer_load_dwordx4 {v(hTch+4,4)}, v{hL16}, {s(srdWS,4)}, s{sT0} offen")
    A(f"buffer_store_dwordx4 {v(hF,4)}, v{hL16}, {s(srdWS,4)}, s{sT0} offen")
    A("s_mov_b64 exec, -1")
    A("L_h_c2:")
    A(f"s_cmp_ge_u32 s{sR}, 16"); A("s_cbranch_scc1 L_h_c3")
    smul_add(sT0, [(sX8, "mul", YX), (sR, "shl", 9)], YA)
    A(f"s_mul_i32 s{sT1}, s{sR}, {16-512}"); A(f"s_add_u32 s{sT1}, s{sT1}, 8192")
    A(f"v_mov_b32 v{hT0}, v{hL16}"); A(f"v_writelane_b32 v{hT0}, s{sT1}, 32")
    setexec(0x1ffffffff)
    if OT: A(f"buffer_load_dwordx4 {v(hTch+8,4)}, v{hT0}, {s(srdWS,4)}, s{sT0} offen")
    A(f"buffer_store_dwordx4 {v(hF,4)}, v{hT0}, {s(srdWS,4)}, s{sT0} offen")
    A("s_mov_b64 exec, -1")
    A("L_h_c3:")
    if CODE_PF:
        A(f"s_getpc_b64 {s(srdCode,2)}")
        A("L_pc:")
        A(f"s_sub_u32 s{srdCode}, s{srdCode}, L_pc-{NAME}_kernel"); A(f"s_subb_u32 s{srdCode+1}, s{srdCode+1}, 0")
        srd_tail(srdCode, f"L_code_end-{NAME}_kernel")
        A(f"v_lshlrev_b32 v{hT1}, 7, v{vL}"); A(f"s_mul_i32 s{sT0}, s{sR}, 768")
        A("s_mov_b64 exec, 0x3f")
        A(f"buffer_load_dword v{hDum}, v{hT1}, {s(srdCode,4)}, s{sT0} offen")
        A("s_mov_b64 exec, -1")
    NPF = 1 if CODE_PF else 0
    def tr128_base(dst4, t0, t1, lbase):
        A(f"v_lshrrev_b32 v{t0}, 2, v{vL}"); A(f"v_bfe_u32 v{t1}, v{vL}, 3, 2")
        A(f"v_lshlrev_b32 v{t1}, 5, v{t1}"); A(f"v_lshl_or_b32 v{t0}, v{t0}, 7, v{t1}")
        A(f"v_and_b32 v{t1}, 3, v{vL}"); A(f"v_lshl_or_b32 v{t0}, v{t1}, 3, v{t0}")
        A(f"v_add_u32 v{dst4}, {lbase}, v{t0}")
        for t in range(1, 4): A(f"v_xor_b32 v{dst4+t}, {32*t}, v{dst4}")
    def tr128_read(dst, base4, off):
        for sg in range(4):
            for t in range(4):
                for u in range(2):
                    A(f"ds_read_b64_tr_b16 {v(dst + (sg*4 + t)*4 + 2*u, 2)}, v{base4+t} offset:{off + (32*sg + 16*u)*128}")
    A("s_barrier")
    tr128_base(hTR, hT0, hT1, SM)
    A(f"s_getreg_b32 s{sTQ}, hwreg(HW_REG_XCC_ID, 0, 3)")
    dot_consts()
    stamp(1)
    A(f"s_waitcnt vmcnt({2+1+OT+QT+NPF})")
    A(f"v_readfirstlane_b32 s{sTAG}, v{hE}")
    A(f"s_add_u32 s{sTAG}, s{sTAG}, 0x9E3779B1")
    A(f"s_add_u32 s{sTQ}, s{sTQ}, s{sTAG}")
    def mod_block(rC, rU, rA, rB, rD, rTR, rT0, rT1, rFl, rOne, crit):
        A(f"v_lshlrev_b32 v{rU+0}, 16, v{rC}"); A(f"v_and_b32 v{rU+1}, 0xffff0000, v{rC}")
        A(f"v_lshlrev_b32 v{rU+2}, 16, v{rC+1}"); A(f"v_and_b32 v{rU+3}, 0xffff0000, v{rC+1}")
        for i in range(4): A(f"v_mul_f32 v{rU+4+i}, {hex(f2u(-LOG2E))}, v{rU+i}")
        for i in range(4): A(f"v_exp_f32 v{rU+4+i}, v{rU+4+i}")
        for i in range(4): A(f"v_add_f32 v{rU+4+i}, 1.0, v{rU+4+i}")
        for i in range(4): A(f"v_rcp_f32 v{rU+4+i}, v{rU+4+i}")
        for i in range(4): A(f"v_mul_f32 v{rU+i}, v{rU+i}, v{rU+4+i}")
        A(f"v_cvt_pk_bf16_f32 v{rA}, v{rU}, v{rU+1}"); A(f"v_cvt_pk_bf16_f32 v{rA+1}, v{rU+2}, v{rU+3}")
        for sg in range(4):
            for q in range(4):
                sh = 4*sg + 2*(q >> 1)
                if sh: A(f"v_mov_b32_dpp v{rA+4*sg+q}, v{rA+(q&1)} row_shl:{sh} row_mask:0xf bank_mask:0xf bound_ctrl:1")
        smul_add(sT0, [(P['cl'], "shl", 11), (P['rp'], "shl", 9)], MODP)
        A(f"v_lshlrev_b32 v{rT0}, 3, v{vL}")
        A(f"v_mov_b32 v{rU+1}, s{sTAG}")
        spin(rFl, F_M if crit else F_R, rT1, sleep=0 if crit else 2)
        if crit: stamp(2)
        tr128_read(rB, rTR, 0)
        A(f"ds_write_b32 v{rFl}, v{rOne} offset:{F_MC if crit else F_RC}")
        for sg in range(4):
            A(f"s_waitcnt lgkmcnt({lg(25-8*sg)})")
            for t in range(4):
                A(f"v_mfma_f32_16x16x32_bf16 {v(rD+4*t,4)}, {v(rA+4*sg,4)}, {v(rB+(sg*4+t)*4,4)}, {'0' if sg == 0 else v(rD+4*t,4)}")
        for t in range(4): A(f"v_cvt_pk_bf16_f32 v{rU+2*t}, v{rD+4*t}, v{rD+4*t+1}")
        A(f"v_permlane16_swap_b32 v{rU}, v{rU+2}"); A(f"v_permlane16_swap_b32 v{rU+4}, v{rU+6}")
        A(f"v_permlane32_swap_b32 v{rU}, v{rU+4}")
        A(f"buffer_store_dwordx2 {v(rU,2)}, v{rT0}, {s(srdWS,4)}, s{sT0} offen sc1")
        if crit: stamp(3)
    A("")
    A(f"s_cmp_lt_u32 s{sR}, 24"); A("s_cbranch_scc1 L_h_m1")
    mod_block(hC, hU, hA, hB, hD, hTR, hT0, hT1, hFl, hOne, True)
    if RH:
        A("s_branch L_h_m2")
        A("L_h_m1:")
        A(f"s_cmp_lt_u32 s{sR}, 16"); A("s_cbranch_scc0 L_h_m2")
        A(f"s_lshr_b32 s{P['cl']}, s2, 2"); A(f"s_add_u32 s{P['cl']}, s{P['cl']}, 16")
        for t in range(4): A(f"v_subrev_u32 v{hTR+t}, {SM-SR}, v{hTR+t}")
        A("s_waitcnt vmcnt(0)")
        mod_block(hC, hU, hA, hB, hD, hTR, hT0, hT1, hFl, hOne, False)
        for t in range(4): A(f"v_add_u32 v{hTR+t}, {SM-SR}, v{hTR+t}")
        A("s_branch L_h_m3")
        A("L_h_m2:")
        A("s_waitcnt vmcnt(0)")
        A("L_h_m3:")
    else:
        A("L_h_m1:")
    A(f"v_lshrrev_b32 v{hT0}, 5, v{vL}"); A(f"v_and_b32 v{hT1}, 31, v{vL}"); A(f"v_lshlrev_b32 v{hT1}, 4, v{hT1}"); A(f"v_lshl_or_b32 v{hGa}, v{hT0}, 11, v{hT1}")
    A(f"s_lshl_b32 s{sT0}, s{sRHO}, 12"); A(f"s_add_u32 s{sT0}, s{sT0}, {MODP}"); A(f"s_add_u32 s{sT1}, s{sT0}, {8*2048}")
    def modp_loads():
        for rp in range(4):
            A(f"buffer_load_dwordx4 {v(hB+4*rp,4)}, v{hGa}, {s(srdWS,4)}, s{sT0} offen offset:{rp*512} sc1")
            A(f"buffer_load_dwordx4 {v(hB+16+4*rp,4)}, v{hGa}, {s(srdWS,4)}, s{sT1} offen offset:{rp*512} sc1")
    A("")
    if not RH: A("s_waitcnt vmcnt(0)")
    spin(hFl, F_T1, hT1, sleep=1)
    stamp(10)
    modp_loads()
    def unpack(dst, src, n):
        for i in range(n):
            A(f"v_lshlrev_b32 v{dst+2*i}, 16, v{src+i}"); A(f"v_and_b32 v{dst+2*i+1}, 0xffff0000, v{src+i}")
    def allreduce64(regs, op, tmp):
        for pat in ("quad_perm:[1,0,3,2]", "quad_perm:[2,3,0,1]", "row_half_mirror", "row_mirror"):
            for r in regs: A(f"{op}_dpp v{r}, v{r}, v{r} {pat} row_mask:0xf bank_mask:0xf bound_ctrl:1")
        for sw in ("v_permlane16_swap_b32", "v_permlane32_swap_b32"):
            for i, r in enumerate(regs): A(f"v_mov_b32 v{tmp+i}, v{r}")
            for i, r in enumerate(regs): A(f"{sw} v{tmp+i}, v{r}")
            for i, r in enumerate(regs): A(f"{op} v{r}, v{r}, v{tmp+i}")
    xs = hB + 32
    A(f"s_lshl_b32 s{sT4}, s{sRHO}, 6"); A(f"v_and_b32 v{hT0}, 60, v{vL}"); A(f"v_add_u32 v{hT0}, s{sT4}, v{hT0}")
    for b, src in enumerate((hX0, hX1)):
        for i in range(4): A(f"ds_bpermute_b32 v{hD+4*b+i}, v{hT0}, v{src+i}")
    unpack(xs, hX0, 4); unpack(xs+8, hX1, 4)
    for b in range(2):
        A(f"v_add_f32 v{hM+b}, v{xs+8*b}, v{xs+8*b+1}")
        for i in range(2, 8): A(f"v_add_f32 v{hM+b}, v{hM+b}, v{xs+8*b+i}")
    allreduce64([hM, hM+1], "v_add_f32", hU)
    for b in range(2): A(f"v_mul_f32 v{hM+b}, {hex(f2u(1/512))}, v{hM+b}")
    for b in range(2):
        for i in range(8): A(f"v_sub_f32 v{xs+8*b+i}, v{xs+8*b+i}, v{hM+b}")
        A(f"v_mul_f32 v{hM+2+b}, v{xs+8*b}, v{xs+8*b}")
        for i in range(1, 8): A(f"v_fmac_f32 v{hM+2+b}, v{xs+8*b+i}, v{xs+8*b+i}")
    allreduce64([hM+2, hM+3], "v_add_f32", hU)
    for b in range(2): A(f"v_mov_b32 v{hU+b}, {hex(f2u(1e-5))}"); A(f"v_fmac_f32 v{hU+b}, {hex(f2u(1/512))}, v{hM+2+b}")
    for b in range(2): A(f"v_rsq_f32 v{hM+2+b}, v{hU+b}")
    A("s_waitcnt lgkmcnt(0)")
    A(f"v_and_b32 v{hT0}, 1, v{vL}"); A(f"v_cmp_eq_u32 vcc, 1, v{hT0}")
    for b in range(2):
        A(f"v_cndmask_b32 v{hD+4*b}, v{hD+4*b}, v{hD+4*b+1}, vcc"); A(f"v_cndmask_b32 v{hD+4*b+2}, v{hD+4*b+2}, v{hD+4*b+3}, vcc")
    A(f"v_and_b32 v{hT0}, 2, v{vL}"); A(f"v_cmp_eq_u32 vcc, 2, v{hT0}")
    A(f"v_cndmask_b32 v{hXa}, v{hD}, v{hD+2}, vcc"); A(f"v_cndmask_b32 v{hXb}, v{hD+4}, v{hD+6}, vcc")
    unpack(xn, hXa, 1); unpack(xn+2, hXb, 1)
    for b in range(2):
        for c in range(2):
            A(f"v_sub_f32 v{xn+2*b+c}, v{xn+2*b+c}, v{hM+b}"); A(f"v_mul_f32 v{xn+2*b+c}, v{xn+2*b+c}, v{hM+2+b}")
    spin(hFl, F_W, hT1)
    tr128_read(hBq, hTR, S1 - SM)
    def perm_pos(dst, src, t1, hi):
        A(f"v_bfe_u32 v{dst}, v{src}, 1, 2"); A(f"v_lshlrev_b32 v{dst}, {hi}, v{dst}")
        A(f"v_and_b32 v{t1}, 8, v{src}"); A(f"v_or_b32 v{dst}, v{dst}, v{t1}"); A(f"v_and_b32 v{t1}, 1, v{src}"); A(f"v_lshl_or_b32 v{dst}, v{t1}, 2, v{dst}")
    perm_pos(hT0, vL, hT1, 4); A(f"v_lshl_or_b32 v{hT0}, v{hG}, 6, v{hT0}"); A(f"v_add_u32 v{hHa}, {HS}, v{hT0}")
    A(f"v_bfe_u32 v{hT1}, v{vL}, 2, 1"); A(f"v_lshlrev_b32 v{hT1}, 8, v{hT1}"); A(f"v_lshl_or_b32 v{hT1}, v{hG}, 4, v{hT1}"); A(f"v_add_u32 v{hHr}, {HS}, v{hT1}")
    A(f"s_mov_b32 s{sT6}, s{sQA}"); A(f"s_add_u32 s{sT5}, s{sT6}, {QB}")
    A(f"v_lshlrev_b32 v{hT0}, 14, v{hG}"); A(f"v_lshl_or_b32 v{hGr}, v{hN}, 4, v{hT0}")
    A(f"s_lshr_b32 s{sT4}, s{sR}, 1"); A(f"s_and_b32 s{sT3}, s{sR}, 1")
    smul_add(sT2, [(sT4, "shl", 11), (sT3, "shl", 8)], MODP + 16*2048)
    A(f"v_mov_b32 v{hF+1}, s{sTQ}"); A(f"v_mov_b32 v{hF+3}, s{sTQ}")
    poll("L_h_p1", modp_loads, lambda: tagcheck([hB+4*i+k for i in range(8) for k in (1, 3)], hAcc))
    stamp(4)
    if dbg and not FINE: A(f"s_mov_b32 s80, s{sCNT}")
    A("")
    sum_pairs(hU, [hB+4*i for i in range(4)]); sum_pairs(hU+4, [hB+16+4*i for i in range(4)])
    for c in range(2):
        for b in range(2):
            A(f"v_add_f32 v{hU+4+2*c+b}, 1.0, v{hU+4+2*c+b}")
            A(f"v_fmac_f32 v{hU+2*c+b}, v{xn+2*b+c}, v{hU+4+2*c+b}")
    A(f"v_cvt_pk_bf16_f32 v{hU+8}, v{hU}, v{hU+2}"); A(f"v_cvt_pk_bf16_f32 v{hU+9}, v{hU+1}, v{hU+3}")
    A(f"ds_write_b32 v{hHa}, v{hU+8}"); A(f"ds_write_b32 v{hHa}, v{hU+9} offset:256")
    for sg in range(4): A(f"ds_read_b128 {v(hA+4*sg,4)}, v{hHr} offset:{64*sg}")
    for sg in range(4):
        A(f"s_waitcnt lgkmcnt({lg(3-sg)})")
        for t in range(4):
            A(f"v_mfma_f32_16x16x32_bf16 {v(hD+4*t,4)}, {v(hA+4*sg,4)}, {v(hBq+(sg*4+t)*4,4)}, {'0' if sg == 0 else v(hD+4*t,4)}")
    A(f"v_mov_b32 v{hT1}, s{sTAG}"); A(f"ds_write_b32 v{hFl}, v{hT1} offset:{TAGL-FL}")
    A(f"v_mov_b32 v{hF}, v{hD}"); A(f"v_mov_b32 v{hF+2}, v{hD+8}")
    A(f"v_mov_b32_dpp v{hF}, v{hD+4} quad_perm:[0,1,2,3] row_mask:0xc bank_mask:0xf")
    A(f"v_mov_b32_dpp v{hF+2}, v{hD+12} quad_perm:[0,1,2,3] row_mask:0xc bank_mask:0xf")
    A(f"v_mov_b32_dpp v{hU}, v{hF} quad_perm:[1,0,3,2] row_mask:0xf bank_mask:0xf bound_ctrl:1")
    A(f"v_mov_b32_dpp v{hU+1}, v{hF+2} quad_perm:[1,0,3,2] row_mask:0xf bank_mask:0xf bound_ctrl:1")
    A(f"v_cvt_pk_bf16_f32 v{hF}, v{hF}, v{hU}"); A(f"v_cvt_pk_bf16_f32 v{hF+2}, v{hU+1}, v{hF+2}")
    A(f"v_cndmask_b32 v{hF}, v{hF}, v{hF+2}, {s(sM0,2)}")
    A(f"buffer_store_dwordx2 {v(hF,2)}, v{hQa}, {s(srdWS,4)}, s{sT6} offen")
    A(f"ds_write_b32 v{hFl}, v{hOne} offset:{F_QP}")
    if not QBD: A(f"buffer_store_dwordx2 {v(hF,2)}, v{hQa}, {s(srdWS,4)}, s{sT5} offen sc1")
    stamp(5)
    A(f"s_cmp_ge_u32 s{sR}, 16"); A("s_cbranch_scc1 " + ("L_h_rest" if RP == 2 else "L_h_qb" if QBD else "L_h_end"))
    A("")
    hPr = hA
    def par_loads():
        for rp in range(4):
            A(f"buffer_load_dwordx4 {v(hPr+4*rp,4)}, v{hGr}, {s(srdWS,4)}, s{sT2} offen offset:{rp*512} sc1")
    backoff(DP)
    par_loads()
    A(f"v_cmp_eq_u32 vcc, 2, v{hG}"); A(f"v_cndmask_b32 v{hT2}, 0, 1.0, vcc")
    A(f"v_lshlrev_b32 v{hT0}, 8, v{hG}"); A(f"v_lshl_or_b32 v{hT0}, v{hN}, 3, v{hT0}"); A(f"v_add_u32 v{hT3}, {PAR}, v{hT0}")
    perm_pos(hT0, hN, hT1, 6); A(f"v_and_b32 v{hT1}, 1, v{hG}"); A(f"v_lshl_or_b32 v{hT0}, v{hT1}, 4, v{hT0}")
    smul_add(sT0, [(sX8, "mul", YX), (sR, "shl", 9)], YA)
    poll("L_h_p2", par_loads, lambda: tagcheck([hPr+4*i+k for i in range(4) for k in (1, 3)], hAcc))
    stamp(6)
    if dbg and not FINE: A(f"s_mov_b32 s82, s{sCNT}")
    sum_pairs(hU, [hPr+4*i for i in range(4)])
    def round_pairs():
        A(f"v_cvt_pk_bf16_f32 v{hU+4}, v{hU}, v{hU+2}"); A(f"v_cvt_pk_bf16_f32 v{hU+5}, v{hU+1}, v{hU+3}")
        for b in range(2):
            A(f"v_lshlrev_b32 v{hU+b}, 16, v{hU+4+b}"); A(f"v_and_b32 v{hU+2+b}, 0xffff0000, v{hU+4+b}")
    round_pairs()
    for i in range(4): A(f"v_add_f32 v{hU+i}, v{hU+i}, v{hT2}")
    round_pairs()
    A(f"v_mov_b32 v{hU+6}, v{hU}"); A(f"v_mov_b32 v{hU+7}, v{hU+2}"); A(f"v_mov_b32 v{hU+8}, v{hU+1}"); A(f"v_mov_b32 v{hU+9}, v{hU+3}")
    A(f"ds_write_b64 v{hT3}, {v(hU+6,2)}"); A(f"ds_write_b64 v{hT3}, {v(hU+8,2)} offset:128")
    def qb_wait(lbl):
        A(f"s_mov_b32 s{sCNT}, 0")
        A(f"{lbl}:")
        A(f"ds_read_b128 {v(hD,4)}, v{hFl} offset:{F_Q}")
        A(f"s_add_u32 s{sCNT}, s{sCNT}, 1"); A(f"s_cmp_eq_u32 s{sCNT}, {NQ}"); A(f"s_cbranch_scc0 {lbl}_n")
        A(f"buffer_store_dwordx2 {v(hF,2)}, v{hQa}, {s(srdWS,4)}, s{sT5} offen sc1")
        A(f"{lbl}_n:")
        A("s_waitcnt lgkmcnt(0)")
        A(f"v_min3_u32 v{hD+4}, v{hD}, v{hD+1}, v{hD+2}"); A(f"v_min_u32 v{hD+4}, v{hD+4}, v{hD+3}"); A(f"v_cmp_eq_u32 vcc, 0, v{hD+4}")
        A(f"s_cbranch_vccz {lbl}_x"); A("s_sleep 2"); A(f"s_branch {lbl}")
        A(f"{lbl}_x:")
        A(f"v_max3_u32 v{hD+4}, v{hD}, v{hD+1}, v{hD+2}"); A(f"v_max_u32 v{hD+4}, v{hD+4}, v{hD+3}"); A(f"v_cmp_lt_u32 vcc, 1, v{hD+4}")
        A(f"s_cbranch_vccz {lbl}_y")
        A(f"buffer_store_dwordx2 {v(hF,2)}, v{hQa}, {s(srdWS,4)}, s{sT5} offen sc1")
        A(f"{lbl}_y:")
    if QBD: qb_wait("L_h_qw1")
    else: spin(hFl, F_Q, hD, 4, sleep=1)
    A(f"v_max3_u32 v{hD}, v{hD}, v{hD+1}, v{hD+2}"); A(f"v_max_u32 v{hD}, v{hD}, v{hD+3}")
    A(f"v_cmp_lt_u32 vcc, 1, v{hD}")
    A("s_cbranch_vccnz L_h_cprem")
    setexec(0xffffffff0000)
    for b in range(2): A(f"buffer_store_dword v{hU+4+b}, v{hT0}, {s(srdWS,4)}, s{sT0} offen offset:{256+32*b}")
    A("L_h_end:")
    A("s_waitcnt lgkmcnt(0)")
    stamp(7)
    stamp_flush()
    A("s_endpgm")
    if RP == 2:
        A("L_h_rest:")
        A(f"s_lshr_b32 s{P['cl']}, s2, 2"); A(f"s_sub_u32 s{P['cl']}, s{P['cl']}, 16")
        mod_block(hC, hU, hA, hB, hD, hTR, hT0, hT1, hFl, hOne, False)
        A("s_branch L_h_end")
    if QBD:
        A("L_h_qb:")
        qb_wait("L_h_qw2")
        A("s_branch L_h_end")
    A("L_h_cprem:")
    A(f"s_add_u32 s{sT0}, s{sT0}, {YBO}")
    setexec(0xffffffff0000)
    for b in range(2): A(f"buffer_store_dword v{hU+4+b}, v{hT0}, {s(srdWS,4)}, s{sT0} offen offset:{256+32*b} sc1")
    smul_add(sT0, [(sX8, "shl", 7), (sR, "shl", 2)], CF)
    flagset(hU, sT0)
    A("s_branch L_h_end")
    for blk in out_of_line: blk()
    out_of_line.clear()

    A("")
    A("L_compute:")
    R = Regs(4)
    srdO = 32
    vT0 = R.a(); vT1 = R.a(); vT2 = R.a(); vT3 = R.a(); vFl = R.a(); vH4 = R.a(); vC3 = R.a(); vFw = R.a(); vOne = R.a()
    vKa = R.a(4); vQa = R.a(); vVa = R.a(2); vTRV = R.a(); vMLw = R.a(); vMLr = R.a(); vPw = R.a(); vPr = R.a(); vOa = R.a(); vSa = R.a(); vL16 = R.a(); vQw = R.a(); vQg = R.a()
    vM = R.a(); vLs = R.a(); vMc = R.a(); vU = R.a(8, 4); vS = R.a(16, 4); vSt = R.a(2, 2)
    vKb = R.a(64, 4); vQ = R.a(48, 4); vO = R.a(8, 4); vX = R.a(24, 4); vG2 = R.a(32, 4)
    vP = vKb; vVb = vKb + 32
    A(f"s_sub_u32 s{sW}, s{sWV}, 2")
    A("s_waitcnt lgkmcnt(0)")
    A("s_barrier")
    if TLB:
        A(f"s_cmp_eq_u32 s{sR}, 23"); A("s_cbranch_scc0 L_c_notlb")
        A(f"s_cmp_eq_u32 s{sW}, 2"); A("s_cbranch_scc0 L_c_notlb")
        A("s_load_dwordx2 s[20:21], s[0:1], 16"); A("s_load_dwordx2 s[24:25], s[0:1], 32")
        A("s_load_dwordx2 s[4:5], s[0:1], 48"); A("s_load_dwordx2 s[8:9], s[0:1], 56")
        srd_tail(20, 0x8000000); srd_tail(24, 4096*1024); srd_tail(4, 512*3584); srd_tail(8, 1792*1024)
        A(f"v_lshlrev_b32 v{vT0}, 16, v{vL}"); A(f"v_and_b32 v{vT1}, 1, v{vG}"); A(f"v_lshlrev_b32 v{vT1}, 26, v{vT1}"); A(f"v_lshl_or_b32 v{vT1}, v{vN}, 16, v{vT1}")
        smul_add(sT0, [(sX8, "shl", 23)], 28672*256 + 65536 - 128); smul_add(sT1, [(sX8, "shl", 19)]); smul_add(sT2, [(sX8, "shl", 7)]); smul_add(sT3, [(sX8, "mul", 7*32768)])
        backoff(TLB)
        A("s_waitcnt lgkmcnt(0)")
        setexec(0xffffffff)
        A(f"buffer_load_dword v{vG2}, v{vT1}, s[20:23], s{sT0} offen")
        A(f"buffer_load_dword v{vG2+1}, v{vT0}, s[4:7], s{sT2} offen")
        A("s_mov_b64 exec, 0xff")
        A(f"buffer_load_dword v{vG2+2}, v{vT0}, s[24:27], s{sT1} offen")
        A("s_mov_b64 exec, 0xf")
        A(f"buffer_load_dword v{vG2+3}, v{vT0}, s[8:11], s{sT3} offen")
        A("s_mov_b64 exec, -1")
        A("L_c_notlb:")
    A(f"s_load_dwordx2 {s(srdO,2)}, s[0:1], 80")
    if DUR: A("s_load_dwordx2 s[88:89], s[0:1], 88")
    A(f"v_mov_b32 v{vFl}, {FL}"); A(f"v_mov_b32 v{vOne}, 1"); A(f"s_lshl_b32 s{sT0}, s{sW}, 2"); A(f"v_add_u32 v{vFw}, s{sT0}, v{vFl}")
    A(f"v_and_b32 v{vH4}, 3, v{vN}"); A(f"v_and_b32 v{vC3}, 3, v{vL}"); A(f"v_lshlrev_b32 v{vL16}, 4, v{vL}")
    A(f"v_xor_b32 v{vT0}, v{vG}, v{vN}"); A(f"v_lshlrev_b32 v{vT0}, 4, v{vT0}"); A(f"v_lshl_or_b32 v{vT0}, v{vN}, 8, v{vT0}")
    A(f"s_lshl_b32 s{sT0}, s{sW}, 14"); A(f"v_add_u32 v{vKa}, s{sT0}, v{vT0}")
    for sg in range(1, 4): A(f"v_xor_b32 v{vKa+sg}, {64*sg}, v{vKa}")
    A(f"v_mul_u32_u24 v{vT0}, 288, v{vH4}"); A(f"v_lshl_add_u32 v{vT0}, v{vG}, 4, v{vT0}"); A(f"v_add_u32 v{vQa}, {QL}, v{vT0}")
    A(f"v_lshrrev_b32 v{vT0}, 2, v{vL}"); A(f"v_and_b32 v{vT1}, 7, v{vT0}"); A(f"v_lshlrev_b32 v{vT1}, 5, v{vT1}"); A(f"v_lshl_or_b32 v{vT0}, v{vT0}, 8, v{vT1}")
    A(f"v_lshl_or_b32 v{vTRV}, v{vC3}, 3, v{vT0}")
    A(f"s_lshl_b32 s{sT0}, s{sW}, 6"); A(f"v_xor_b32 v{vT0}, s{sT0}, v{vTRV}"); A(f"v_add_u32 v{vVa}, {LV}, v{vT0}"); A(f"v_xor_b32 v{vVa+1}, 32, v{vVa}")
    A(f"v_lshlrev_b32 v{vT0}, 5, v{vH4}"); A(f"v_add_u32 v{vMLr}, {ML}, v{vT0}"); A(f"s_lshl_b32 s{sT0}, s{sW}, 3"); A(f"v_add_u32 v{vMLw}, s{sT0}, v{vMLr}")
    A(f"v_lshlrev_b32 v{vT0}, 6, v{vG}"); A(f"v_lshl_or_b32 v{vT0}, v{vH4}, 4, v{vT0}"); A(f"v_add_u32 v{vPr}, {PX}, v{vT0}")
    A(f"v_lshrrev_b32 v{vT0}, 3, v{vN}"); A(f"v_bfe_u32 v{vT1}, v{vN}, 2, 1"); A(f"v_lshlrev_b32 v{vT1}, 3, v{vT1}"); A(f"v_lshl_or_b32 v{vT0}, v{vT0}, 8, v{vT1}")
    A(f"s_lshl_b32 s{sT0}, s{sW}, 9"); A(f"v_add3_u32 v{vPw}, v{vT0}, s{sT0}, v{vPr}")
    A(f"v_lshlrev_b32 v{vOa}, 12, v{vH4}"); A(f"v_lshl_or_b32 v{vOa}, v{vG}, 8, v{vOa}"); A(f"v_lshlrev_b32 v{vSa}, 7, v{vH4}")
    A(f"s_mul_i32 s{sT5}, s{sW}, 288"); A(f"s_add_u32 s{sT5}, s{sT5}, {QL}")
    A(f"v_and_b32 v{vT0}, 31, v{vL}"); A(f"v_lshrrev_b32 v{vT1}, 5, v{vL}"); A(f"v_lshlrev_b32 v{vQg}, 4, v{vT0}"); A(f"v_lshl_or_b32 v{vQg}, v{vT1}, 11, v{vQg}")
    A(f"v_lshl_or_b32 v{vT0}, v{vT0}, 1, v{vT1}"); A(f"v_lshl_add_u32 v{vQw}, v{vT0}, 2, s{sT5}")
    A(f"v_cmp_gt_u32 {s(sM0,2)}, 4, v{vN}")
    A(f"s_cmp_eq_u32 s{sW}, 0"); A(f"s_cselect_b64 {s(sM1,2)}, 15, 0")
    sOA, sSA, sSC = 4, 5, 6
    smul_add(sOA, [(sX8, "shl", 15), (sB, "shl", 14), (sW, "shl", 10), (sS, "shl", 4)], OPA)
    smul_add(sSA, [(sX8, "shl", 10), (sB, "shl", 9), (sS, "shl", 3)], STA)
    A(f"s_mov_b32 s{sSC}, {hex(SC)}")
    dot_consts()
    A(f"s_getreg_b32 s{sTQ}, hwreg(HW_REG_XCC_ID, 0, 3)")
    srd_tail(srdWS, WSN); srd_tail(srdX, 2048); srd_tail(srdO, 2048)
    tSa = vX; tX = vX + 1; tCol = vX + 2; tAP = vX + 3; tPar = vX + 4; tY = vX + 8; tPa = vX + 10; tOut = vX + 11; tTR = vX + 12; tW = vX + 16; tYv = vX + 20
    mYa = vX; mSa = vX + 1; mXw = vX + 2; mXr = vX + 3; mBp = vX + 4; mMP = vX + 5; mA1 = vX + 6; mA2 = vX + 8; mMQ = vX + 16; mXr2 = vX + 18
    sA0, sA1, sA2, sA3, sA4, sA5, sA6, sA7, sA8, sA9 = 7, 8, 9, 10, 11, 12, 13, 14, 15, 26
    for i in range(12): A(f"v_mov_b32 v{vX+i}, 0")
    A("s_waitcnt lgkmcnt(0)")
    def rest_block():
        A(f"s_cmp_eq_u32 s{sW}, 1"); A("s_cbranch_scc0 L_c_roledone")
        srdC2 = 20; P['cl'], P['rp'] = 24, 25
        A(f"s_load_dwordx2 {s(srdC2,2)}, s[0:1], 64")
        A(f"s_lshr_b32 s{P['cl']}, s2, 2"); A(f"s_add_u32 s{P['cl']}, s{P['cl']}, {-16 if RP else 16}"); A(f"s_and_b32 s{P['rp']}, s2, 3")
        c_addr(vT0, vT1)
        A(f"v_mov_b32 v{vT1}, 0"); A(f"s_lshl_b32 s{sT0}, s{P['rp']}, 8")
        srd_tail(srdC2, 2048)
        A("s_waitcnt lgkmcnt(0)")
        A(f"buffer_load_dword v{vO+2}, v{vT1}, {s(srdWS,4)}, 0 offen sc1")
        A(f"buffer_load_dwordx2 {v(vO,2)}, v{vT0}, {s(srdC2,4)}, s{sT0} offen")
        tr128_base(vO+4, vT0, vT1, SM if RP == 2 else SR)
        A("s_waitcnt vmcnt(0)")
        A(f"v_readfirstlane_b32 s{sTAG}, v{vO+2}")
        A(f"s_add_u32 s{sTAG}, s{sTAG}, 0x9E3779B1")
        mod_block(vO, vU, vQ, vKb, vQ+16, vO+4, vT0, vT1, vFl, vOne, False)
    A(f"s_cmp_lt_u32 s{sR}, 16"); A("s_cbranch_scc0 L_c_nt1")
    A(f"s_and_b32 s{sAB}, s{sW}, 1"); A(f"s_lshr_b32 s{sT0}, s{sW}, 1"); A(f"s_lshr_b32 s{sT1}, s{sR}, 2"); A(f"s_and_b32 s{sT2}, s{sR}, 3")
    A(f"v_lshlrev_b32 v{tSa}, 5, v{vG}"); A(f"v_lshl_or_b32 v{tSa}, v{vH4}, 3, v{tSa}")
    smul_add(sA0, [(sX8, "shl", 15), (sAB, "shl", 14), (sT1, "shl", 12)], OPA)
    smul_add(sA1, [(sX8, "shl", 10), (sAB, "shl", 9), (sT1, "shl", 7)], STA)
    A(f"v_and_b32 v{vT0}, 7, v{vL}"); A(f"v_lshl_or_b32 v{tCol}, v{vT0}, 2, v{vG}")
    A(f"v_lshlrev_b32 v{tOut}, 1, v{tCol}")
    smul_add(sA7, [(sAB, "shl", 10), (sR, "shl", 6)])
    A(f"s_lshl_b32 s{sT3}, s{sT0}, 7"); A(f"v_xor_b32 v{tTR}, s{sT3}, v{vTRV}")
    for t in range(1, 4): A(f"v_xor_b32 v{tTR+t}, {32*t}, v{tTR}")
    A(f"v_lshrrev_b32 v{vT0}, 5, v{vL}"); A(f"v_and_b32 v{vT1}, 30, v{vL}"); A(f"v_lshlrev_b32 v{vT1}, 2, v{vT1}"); A(f"v_lshl_or_b32 v{tAP}, v{vT0}, 13, v{vT1}")
    smul_add(sA2, [(sT2, "shl", 15), (sT0, "shl", 14), (sAB, "shl", 12), (sX8, "shl", 9), (sT1, "shl", 7)], AP)
    smul_add(sA3, [(sR, "shl", 13), (sAB, "shl", 12)], AP)
    A(f"v_lshlrev_b32 v{vT0}, 6, v{vC3}"); A(f"v_bfe_u32 v{vT1}, v{vL}, 2, 1"); A(f"v_lshl_or_b32 v{vT0}, v{vT1}, 3, v{vT0}")
    A(f"v_and_b32 v{vT1}, 1, v{vG}"); A(f"v_lshl_or_b32 v{vT0}, v{vT1}, 4, v{vT0}"); A(f"v_lshrrev_b32 v{vT1}, 1, v{vG}"); A(f"v_lshl_or_b32 v{tY}, v{vT1}, 2, v{vT0}")
    A(f"v_lshrrev_b32 v{tY+1}, 1, v{vL}")
    smul_add(sA4, [(sX8, "mul", YX), (sR, "shl", 9), (sAB, "shl", 5)], YA)
    smul_add(sA5, [(sX8, "mul", YX), (sR, "shl", 4), (sAB, "shl", 3)], YA + 8192)
    A(f"s_lshl_b32 s{sT4}, s{sR}, 1"); A(f"s_add_u32 s{sA8}, s{sT4}, s{sAB}"); A(f"s_mul_i32 s{sA6}, s{sA8}, 7168"); A(f"s_add_u32 s{sA6}, s{sA6}, {MP}"); A(f"s_add_u32 s{sA9}, s{sA6}, 4096")
    A(f"s_sub_u32 s{sJ}, s{sX8}, s{sT4}"); A(f"s_and_b32 s{sJ}, s{sJ}, 7")
    smul_add(sT4, [(sAB, "shl", 7)], PAR); A(f"v_lshl_add_u32 v{tPa}, v{tCol}, 2, s{sT4}")
    if not RP and not RH: rest_block()
    A("s_branch L_c_roledone")
    A("L_c_nt1:")
    A(f"s_sub_u32 s{sT0}, s{sR}, 16"); A(f"s_mul_i32 s{sJ}, s{sX8}, 7"); A(f"s_add_u32 s{sJ}, s{sJ}, s{sT0}")
    A(f"v_lshrrev_b32 v{vT0}, 2, v{vN}"); A(f"v_lshlrev_b32 v{vT0}, 9, v{vT0}"); A(f"v_lshl_or_b32 v{vT0}, v{vG}, 6, v{vT0}"); A(f"v_lshl_or_b32 v{mYa}, v{vH4}, 4, v{vT0}")
    A(f"v_and_b32 v{vT0}, 31, v{vL}"); A(f"v_lshlrev_b32 v{mSa}, 3, v{vT0}")
    smul_add(sA1, [(sX8, "mul", YX)], YA + 8192); smul_add(sA0, [(sX8, "mul", YX), (sW, "shl", 11)], YA)
    A(f"v_and_b32 v{vT0}, 7, v{vN}"); A(f"v_mul_u32_u24 v{mXw}, {RS}, v{vT0}"); A(f"v_lshl_add_u32 v{mXw}, v{vG}, 4, v{mXw}"); smul_add(sT1, [(sW, "shl", 6)], RED); A(f"v_add_u32 v{mXw}, s{sT1}, v{mXw}")
    A(f"v_lshrrev_b32 v{vT0}, 3, v{vN}"); A(f"v_and_b32 v{vT1}, 1, v{vN}"); A(f"v_mul_u32_u24 v{vT0}, {8*RS+64}, v{vT0}"); A(f"v_mul_u32_u24 v{mXr}, {2*RS}, v{vT1}"); A(f"v_add_u32 v{mXr}, v{mXr}, v{vT0}")
    A(f"v_lshl_add_u32 v{mXr}, v{vG}, 4, v{mXr}"); A(f"v_bfe_u32 v{vT0}, v{vN}, 1, 2"); A(f"v_lshl_add_u32 v{mXr}, v{vT0}, 2, v{mXr}"); A(f"v_add_u32 v{mXr}, {RED}, v{mXr}"); A(f"v_add_u32 v{mXr2}, {4*RS}, v{mXr}")
    A(f"v_lshlrev_b32 v{mBp}, 6, v{vG}"); A(f"v_lshl_or_b32 v{mBp}, v{vT1}, 2, v{mBp}")
    A(f"v_lshrrev_b32 v{vT0}, 2, v{vL}"); A(f"v_lshlrev_b32 v{vT0}, 6, v{vT0}"); A(f"v_and_b32 v{vT2}, 1, v{vG}"); A(f"v_lshl_or_b32 v{vT0}, v{vT2}, 5, v{vT0}"); A(f"v_lshl_or_b32 v{vT0}, v{vC3}, 3, v{vT0}")
    A(f"s_lshl_b32 s{sT1}, s{sW}, 13"); A(f"v_add_u32 v{mA1}, s{sT1}, v{vT0}"); A(f"v_xor_b32 v{mA1+1}, 32, v{mA1}")
    A(f"s_add_u32 s{sT1}, s{sT1}, 32768"); A(f"v_add_u32 v{mA2}, s{sT1}, v{vTRV}")
    for t in range(1, 8): A(f"v_xor_b32 v{mA2+t}, {32*t}, v{mA2}")
    A(f"v_lshrrev_b32 v{vT0}, 2, v{vN}"); A(f"v_lshl_or_b32 v{vT0}, v{vT0}, 1, v{vT1}"); A(f"v_mul_u32_u24 v{mMP}, 7168, v{vT0}")
    A(f"v_bfe_u32 v{vT0}, v{vN}, 1, 1"); A(f"v_lshl_add_u32 v{mMP}, v{vT0}, 6, v{mMP}"); A(f"v_lshl_add_u32 v{mMP}, v{vG}, 4, v{mMP}")
    smul_add(sA3, [(sW, "mul", 4*14336), (sJ, "shl", 7)], MP)
    smul_add(sA4, [(sX8, "shl", 7), (sT0, "shl", 4), (sW, "shl", 2)], MF)
    A(f"s_mov_b32 s{sM2}, 0xcccccccc"); A(f"s_mov_b32 s{sM2+1}, 0xcccccccc")
    if RP == 1: rest_block()
    A("L_c_roledone:")
    A("")
    smul_add(sT0, [(sX8, "shl", 14), (sB, "shl", 13), (sW, "shl", 9)], QPA)
    A(f"s_add_u32 s{sT1}, s{sT0}, 4096")
    stamp(1)
    def k_only():
        for t in range(4):
            for sg in range(4): A(f"ds_read_b128 {v(vKb+(t*4+sg)*4,4)}, v{vKa+sg} offset:{t*4096}")
        A(f"ds_write_b32 v{vFw}, v{vOne} offset:{F_KR}")
    if G1 and G2: A("s_branch L_c_nt")
    A(f"s_cmp_lg_u32 s{sW}, 0"); A("s_cbranch_scc1 L_c_nt")
    if not G1:
        A("; poll back-off 1: the sa/ca partials cannot be complete earlier; a cross-XCD load that meets the producers' stores")
        backoff(DG)
        A(f"ds_write_b32 v{vFl}, v{vOne} offset:{F_T1}")
    if KE:
        A(f"s_mov_b32 s{sCNT}, 0"); A(f"s_mov_b32 s{sT3}, 0")
        A("L_c_t2:")
        A(f"ds_read_b32 v{vT0}, v{vFl} offset:{F_K}")
        A("s_sleep 2")
        A("s_waitcnt lgkmcnt(0)")
        A(f"v_readfirstlane_b32 s{sT4}, v{vT0}")
        A(f"s_cmp_gt_u32 s{sT4}, s{sT3}"); A("s_cbranch_scc0 L_c_t2n")
        k_only()
        A(f"s_mov_b32 s{sT3}, 1")
        A("L_c_t2n:")
        A(f"s_add_u32 s{sCNT}, s{sCNT}, 1"); A(f"s_cmp_lt_u32 s{sCNT}, {DQ * 64 // 230}"); A("s_cbranch_scc1 L_c_t2")
        A(f"ds_write_b32 v{vFl}, v{vOne} offset:{F_T2}")
        A(f"s_branch L_c_t3")
        A("L_c_nt:")
        A(f"s_mov_b32 s{sT3}, 0")
        A("L_c_t4:")
        A(f"ds_read_b32 v{vT0}, v{vFl} offset:{F_K}"); A(f"ds_read_b32 v{vT1}, v{vFl} offset:{F_T2}")
        A("s_waitcnt lgkmcnt(0)")
        A(f"v_readfirstlane_b32 s{sT4}, v{vT0}"); A(f"v_readfirstlane_b32 s{sT5}, v{vT1}")
        A(f"s_cmp_gt_u32 s{sT4}, s{sT3}"); A("s_cbranch_scc0 L_c_t4n")
        k_only()
        A(f"s_mov_b32 s{sT3}, 1")
        A("L_c_t4n:")
        A(f"s_cmp_lg_u32 s{sT5}, 0"); A("s_cbranch_scc1 L_c_t3")
        A("s_sleep 2"); A("s_branch L_c_t4")
        A("L_c_t3:")
    elif DQ:
        if not G2:
            A("; poll back-off 2: same for the q partials (a failed gather costs a full round trip behind the V loads)")
            backoff(DQ)
            A(f"ds_write_b32 v{vFl}, v{vOne} offset:{F_T2}")
        A("L_c_nt:")
        spin(vFl, F_T2, vT0, sleep=2)
    else:
        A("L_c_nt:")
        spin(vFl, F_K, vT1, sleep=2)
        k_only()
    spin(vFl, F_QP, vT0, sleep=1)
    A(f"ds_read_b32 v{vT0}, v{vFl} offset:{TAGL-FL}")
    def q_loads(Pq=vG2):
        for q, so in enumerate((sT0, sT1)):
            A(f"buffer_load_dwordx4 {v(Pq+4*q,4)}, v{vQg}, {s(srdWS,4)}, s{so} offen sc1")
    def k_reads():
        if not DQ: return
        if KE: A(f"s_cmp_lg_u32 s{sT3}, 0"); A("s_cbranch_scc1 L_c_kd")
        spin(vFl, F_K, vT1, sleep=1)
        k_only()
        if KE: A("L_c_kd:")
    qtags = [vG2+4*i+k for i in range(2) for k in (1, 3)]
    q_loads()
    A("s_waitcnt lgkmcnt(0)")
    A(f"v_readfirstlane_b32 s{sTAG}, v{vT0}")
    A(f"v_mov_b32 v{vT3}, 1")
    A(f"s_add_u32 s{sTQ}, s{sTQ}, s{sTAG}")
    if FREM: A(f"s_add_u32 s{sTQ}, s{sTQ}, 9")
    k_reads()
    A("s_waitcnt vmcnt(0)")
    tagcheck(qtags, vT0, sTQ)
    A("s_cbranch_vccnz L_c_qre")
    A("L_c_qok:")
    sum_pairs(vU, [vG2, vG2+4])
    def qretry():
        A("L_c_qre:")
        A(f"s_mov_b32 s{sCNT}, 0")
        A("L_c_qre2:")
        q_loads()
        A(f"s_add_u32 s{sCNT}, s{sCNT}, 1"); A(f"s_cmp_ge_u32 s{sCNT}, {NA}")
        A("s_waitcnt vmcnt(0)")
        A("s_cbranch_scc1 L_c_qB")
        tagcheck(qtags, vT0, sTQ)
        A("s_cbranch_vccnz L_c_qre2")
        A("s_branch L_c_qok")
        A("L_c_qB:")
        for so in (sT0, sT1): A(f"s_add_u32 s{so}, s{so}, {QB}")
        A("L_c_qB2:")
        q_loads()
        A(f"s_add_u32 s{sCNT}, s{sCNT}, 1"); A(f"s_cmp_gt_u32 s{sCNT}, {NT}")
        A("s_waitcnt vmcnt(0)")
        A("s_cbranch_scc1 L_c_qB3")
        for i, r in enumerate(qtags): A(f"v_subrev_u32 v{vU+i}, s{sTAG}, v{r}")
        A(f"v_max3_u32 v{vT0}, v{vU}, v{vU+1}, v{vU+2}"); A(f"v_max_u32 v{vT0}, v{vT0}, v{vU+3}")
        A(f"v_cmp_lt_u32 vcc, 7, v{vT0}")
        A("s_cbranch_vccnz L_c_qB2")
        A("L_c_qB3:")
        tagcheck(qtags, vT0, sTQ)
        A("s_cbranch_vccz L_c_qok")
        A(f"v_mov_b32 v{vT3}, 2")
        A("s_branch L_c_qok")
    out_of_line.append(qretry)
    A(f"v_permlane32_swap_b32 v{vU}, v{vU+2}"); A(f"v_permlane32_swap_b32 v{vU+1}, v{vU+3}")
    A(f"v_pk_add_f32 {v(vU,2)}, {v(vU,2)}, {v(vU+2,2)}")
    A(f"v_cvt_pk_bf16_f32 v{vT0}, v{vU}, v{vU+1}")
    A(f"ds_write_b32 v{vQw}, v{vT0}")
    A(f"ds_write_b32 v{vFw}, v{vT3} offset:{F_Q}")
    stamp(2)
    spin(vFl, F_Q, vU, 4)
    stamp(3); fine(2, 1)
    for sg in range(4): A(f"ds_read_b128 {v(vQ+sg*4,4)}, v{vQa} offset:{64*sg}")
    A(f"ds_write_b32 v{vFw}, v{vOne} offset:{F_CR}")
    A(f"v_max3_u32 v{vU}, v{vU}, v{vU+1}, v{vU+2}"); A(f"v_max_u32 v{vU}, v{vU}, v{vU+3}")
    A(f"v_readfirstlane_b32 s{sREM}, v{vU}")
    for sg in range(4):
        A(f"s_waitcnt lgkmcnt({lg(4-sg)})")
        for t in range(4):
            A(f"v_mfma_f32_16x16x32_bf16 {v(vS+4*t,4)}, {v(vKb+(t*4+sg)*4,4)}, {v(vQ+sg*4,4)}, {'0' if sg == 0 else v(vS+4*t,4)}")
    fine(2, 2)
    A("")
    for t in range(1, 4):
        for r in range(4): A(f"v_mov_b32_dpp v{vS+r}, v{vS+4*t+r} quad_perm:[0,1,2,3] row_mask:0xf bank_mask:{hex(1 << t)}")
    def red_all(r, op, t):
        for ro in (4, 8): A(f"{op}_dpp v{r}, v{r}, v{r} row_ror:{ro} row_mask:0xf bank_mask:0xf bound_ctrl:1")
        for sw in ("v_permlane16_swap_b32", "v_permlane32_swap_b32"):
            A(f"v_mov_b32 v{t}, v{r}"); A(f"{sw} v{t}, v{r}"); A(f"{op} v{r}, v{r}, v{t}")
    A(f"v_max3_f32 v{vM}, v{vS}, v{vS+1}, v{vS+2}"); A(f"v_max_f32 v{vM}, v{vM}, v{vS+3}")
    red_all(vM, "v_max_f32", vT0)
    A(f"v_mul_f32 v{vSt}, s{sSC}, v{vM}")
    for i in range(4): A(f"v_fma_f32 v{vS+i}, v{vS+i}, s{sSC}, -v{vSt}")
    for i in range(4): A(f"v_exp_f32 v{vS+i}, v{vS+i}")
    A(f"v_add_f32 v{vT0}, v{vS}, v{vS+1}"); A(f"v_add_f32 v{vT1}, v{vS+2}, v{vS+3}"); A(f"v_add_f32 v{vSt+1}, v{vT0}, v{vT1}")
    red_all(vSt+1, "v_add_f32", vT0)
    fine(2, 3)
    A("s_mov_b64 exec, 0xf")
    A(f"ds_write_b64 v{vMLw}, {v(vSt,2)}")
    A("s_mov_b64 exec, -1")
    A(f"s_mov_b32 s{sCNT}, 0")
    A("L_c_ml:")
    A(f"ds_read_b128 {v(vU,4)}, v{vMLr}"); A(f"ds_read_b128 {v(vU+4,4)}, v{vMLr} offset:16")
    A(f"s_add_u32 s{sCNT}, s{sCNT}, 1"); A(f"s_cmp_gt_u32 s{sCNT}, {NT}")
    A("s_waitcnt lgkmcnt(0)")
    A("s_cbranch_scc1 L_c_mlok")
    A(f"v_max3_u32 v{vT0}, v{vU+1}, v{vU+3}, v{vU+5}"); A(f"v_max_u32 v{vT0}, v{vT0}, v{vU+7}")
    A(f"v_cmp_eq_u32 vcc, -1, v{vT0}")
    A("s_cbranch_vccnz L_c_ml")
    A("L_c_mlok:")
    fine(2, 4)
    A(f"v_max3_f32 v{vMc}, v{vU}, v{vU+2}, v{vU+4}"); A(f"v_max_f32 v{vMc}, v{vMc}, v{vU+6}")
    for i in range(4): A(f"v_sub_f32 v{vU+2*i}, v{vU+2*i}, v{vMc}")
    A(f"v_sub_f32 v{vT0}, v{vSt}, v{vMc}")
    for i in range(4): A(f"v_exp_f32 v{vU+2*i}, v{vU+2*i}")
    A(f"v_exp_f32 v{vT0}, v{vT0}")
    A(f"v_mul_f32 v{vLs}, v{vU}, v{vU+1}")
    for i in range(1, 4): A(f"v_fmac_f32 v{vLs}, v{vU+2*i}, v{vU+2*i+1}")
    A(f"v_rcp_f32 v{vT1}, v{vLs}")
    A(f"v_mov_b32 v{vSt}, v{vMc}"); A(f"v_mov_b32 v{vSt+1}, v{vLs}")
    A(f"v_mul_f32 v{vT0}, v{vT0}, v{vT1}")
    for i in range(4): A(f"v_mul_f32 v{vS+i}, v{vS+i}, v{vT0}")
    A(f"v_cvt_pk_bf16_f32 v{vU}, v{vS}, v{vS+1}"); A(f"v_cvt_pk_bf16_f32 v{vU+1}, v{vS+2}, v{vS+3}")
    A(f"ds_write_b64 v{vPw}, {v(vU,2)}")
    A(f"ds_write_b32 v{vFw}, v{vOne} offset:{F_P}")
    A(f"s_cmp_gt_u32 s{sREM}, 1")
    A(f"s_mov_b64 exec, {s(sM1,2)}")
    A("s_cbranch_scc1 L_c_strem")
    A("s_cbranch_execz L_c_stdone")
    A(f"buffer_store_dwordx2 {v(vSt,2)}, v{vSa}, {s(srdWS,4)}, s{sSA} offen")
    A("L_c_stdone:")
    def strem():
        A("L_c_strem:")
        A(f"s_add_u32 s{sSA}, s{sSA}, {SB}"); A(f"s_add_u32 s{sOA}, s{sOA}, {OB}")
        A("s_cbranch_execz L_c_stdone")
        A(f"buffer_store_dwordx2 {v(vSt,2)}, v{vSa}, {s(srdWS,4)}, s{sSA} offen sc1")
        A("s_branch L_c_stdone")
    out_of_line.append(strem)
    A("s_mov_b64 exec, -1")
    stamp(4); fine(2, 5)
    A("")
    spin(vFl, F_P, vU, 4)
    fine(2, 7)
    for k in range(8): A(f"ds_read_b128 {v(vP+4*k,4)}, v{vPr} offset:{k*256}")
    spin(vFl, F_V, vT0)
    stamp(5); fine(2, 8)
    def vreads(k, dst):
        for t in range(2):
            for u in range(2):
                A(f"ds_read_b64_tr_b16 {v(dst+4*t+2*u,2)}, v{vVa+t} offset:{(32*k+16*u)*256}")
    for k in range(7): vreads(k, vVb+8*k)
    tSt = vG2; tA = vG2 + 8
    def st_loads():
        A(f"buffer_load_dwordx2 {v(tSt,2)}, v{tSa}, {s(srdWS,4)}, s{sA1} offen sc1")
    for k in range(7):
        A(f"s_waitcnt lgkmcnt({lg(4*(6-k))})")
        for t in range(2):
            A(f"v_mfma_f32_16x16x32_bf16 {v(vO+4*t,4)}, {v(vVb+8*k+4*t,4)}, {v(vP+4*k,4)}, {'0' if k == 0 else v(vO+4*t,4)}")
    A(f"s_cmp_gt_u32 s{sREM}, 1")
    fine(2, 9)
    A("s_barrier")
    fine(2, 10)
    vreads(7, vVb)
    A(f"s_waitcnt lgkmcnt({lg(2)})")
    A(f"v_mfma_f32_16x16x32_bf16 {v(vO,4)}, {v(vVb,4)}, {v(vP+28,4)}, {v(vO,4)}")
    A("s_waitcnt lgkmcnt(0)")
    A(f"v_mfma_f32_16x16x32_bf16 {v(vO+4,4)}, {v(vVb+4,4)}, {v(vP+28,4)}, {v(vO+4,4)}")
    stamp(6)
    A(f"s_mov_b64 exec, {s(sM0,2)}")
    for i in range(4): A(f"v_cvt_pk_bf16_f32 v{vU+i}, v{vO+2*i}, v{vO+2*i+1}")
    A("s_cbranch_scc1 L_c_orem")
    A(f"buffer_store_dwordx4 {v(vU,4)}, v{vOa}, {s(srdWS,4)}, s{sOA} offen")
    A("s_mov_b64 exec, -1")
    stamp(7); fine(2, 11)
    A(f"s_cmp_lt_u32 s{sR}, 16")
    A("s_cbranch_scc0 L_c_other")

    if BT: A("s_barrier")
    A("")
    tB = vKb; tD = vS
    def t1_loads():
        for k in range(4): A(f"buffer_load_dwordx4 {v(tA+4*k,4)}, v{vL16}, {s(srdWS,4)}, s{sA0} offen offset:{1024*k} sc1")
    def wo_reads():
        for k in range(4):
            for t in range(4):
                for u in range(2):
                    A(f"ds_read_b64_tr_b16 {v(tB+(k*4+t)*4+2*u,2)}, v{tTR+t} offset:{(32*k+16*u)*256}")
    def t1_mf(k, ts=(0, 2, 1, 3)):
        for t in ts:
            A(f"v_mfma_f32_16x16x32_bf16 {v(tD+4*t,4)}, {v(tA+4*k,4)}, {v(tB+(k*4+t)*4,4)}, {'0' if k == 0 else v(tD+4*t,4)}")
    def dp(op, r, pat): return f"{op}_dpp v{r}, v{r}, v{r} {pat} row_mask:0xf bank_mask:0xf bound_ctrl:1"
    def xg(r, op, t):
        o = [dp(op, r, "quad_perm:[1,0,3,2]"), None, dp(op, r, "quad_perm:[2,3,0,1]")]
        for sw in ("v_permlane16_swap_b32", "v_permlane32_swap_b32"):
            o += [f"v_mov_b32 v{t}, v{r}", None, f"{sw} v{t}, v{r}", f"{op} v{r}, v{r}, v{t}"]
        return o
    bc = [f"v_mov_b32_dpp v{tW+r}, v{vM} quad_perm:[{r},{r},{r},{r}] row_mask:0xf bank_mask:0xf bound_ctrl:1" for r in range(4)]
    sm = xg(vLs, "v_add_f32", vT1)
    wts = [f"v_max_f32_dpp v{vM}, v{tSt}, v{tSt} quad_perm:[1,0,3,2] row_mask:0xf bank_mask:0xf bound_ctrl:1", None] + xg(vM, "v_max_f32", vT1)[2:]
    wts += [f"v_sub_f32 v{vM}, v{tSt}, v{vM}", f"v_exp_f32 v{vM}, v{vM}", None, f"v_mul_f32 v{vM}, v{vM}, v{tSt+1}", None,
            f"v_add_f32_dpp v{vLs}, v{vM}, v{vM} quad_perm:[1,0,3,2] row_mask:0xf bank_mask:0xf bound_ctrl:1", bc[0], bc[1],
            sm[2], sm[3], bc[2], bc[3], sm[5], sm[6], sm[7], None, sm[9], sm[10], f"v_rcp_f32 v{vLs}, v{vLs}"]
    A("L_t1_w:")
    stamp(13)
    A(f"ds_read_b32 v{tPar}, v{tPa}"); A(f"ds_read_b32 v{tPar+1}, v{tPa} offset:512"); A(f"ds_read_b32 v{tPar+2}, v{tPa} offset:768")
    A(f"v_mov_b32 v{tYv+1}, s{sTAG}")
    A(f"v_and_b32 v{vT0}, 8, v{vL}"); A(f"v_cmp_ne_u32 {s(sM0,2)}, 0, v{vT0}")
    A(f"v_and_b32 v{vT0}, 16, v{vL}"); A(f"v_cmp_ne_u32 {s(sM1,2)}, 0, v{vT0}")
    A(f"s_cmp_gt_u32 s{sREM}, 1")
    if not EW: A("s_barrier")
    A("s_cbranch_scc1 L_t1rem")
    def so_loads(): st_loads(); t1_loads()
    so_loads()
    wo_reads()
    stamp(8)
    def t1_body():
        A("s_waitcnt vmcnt(3) lgkmcnt(0)")
        t1_mf(0, (0, 2))
        A("s_waitcnt vmcnt(0)")
        sentcheck([tA+3, tA+7, tA+11, tA+15, tSt+1], vT0)
        t1_mf(0, (1, 3))
    ipoll("L_t1p", so_loads, t1_body, GT)
    stamp(9); fine(3, 1)
    if dbg and not FINE: A(f"s_mov_b32 s88, s{sCNT}")
    wi = 0
    for k in range(1, 4):
        for t in (0, 2, 1, 3):
            cnt = 0
            while wi < len(wts) and cnt < 3:
                if wts[wi] is None: wi += 1; break
                A(wts[wi]); wi += 1; cnt += 1
            t1_mf(k, (t,))
    while wi < len(wts):
        if wts[wi]: A(wts[wi])
        wi += 1
    fine(3, 2)
    A(f"s_cmp_lt_u32 s{sW}, 2")
    for t in (0, 2, 1, 3):
        A(f"v_pk_mul_f32 {v(tD+4*t,2)}, {v(tD+4*t,2)}, {v(tW,2)}")
        A(f"v_pk_fma_f32 {v(tD+4*t,2)}, {v(tD+4*t+2,2)}, {v(tW+2,2)}, {v(tD+4*t,2)}")
        A(f"v_add_f32 v{vU+t}, v{tD+4*t}, v{tD+4*t+1}")
    def reduce4(u):
        A(f"v_permlane32_swap_b32 v{u}, v{u+2}"); A(f"v_permlane32_swap_b32 v{u+1}, v{u+3}")
        A(f"v_pk_add_f32 {v(u,2)}, {v(u,2)}, {v(u+2,2)}")
        A(f"v_permlane16_swap_b32 v{u}, v{u+1}")
        A(f"v_add_f32 v{u}, v{u}, v{u+1}")
    reduce4(vU)
    A(f"v_mul_f32 v{vU}, v{vU}, v{vLs}")
    A(f"v_mov_b32_dpp v{vU+1}, v{vU} quad_perm:[1,0,3,2] row_mask:0xf bank_mask:0xf bound_ctrl:1")
    setexec(0x5555555555555555)
    A(f"v_cvt_pk_bf16_f32 v{tYv}, v{vU}, v{vU+1}")
    A("s_barrier")
    A(f"buffer_store_dwordx2 {v(tYv,2)}, v{tAP}, {s(srdWS,4)}, s{sA2} offen sc1")
    A("s_mov_b64 exec, -1")
    stamp(10); fine(3, 3)
    A("s_cbranch_scc0 L_fin_end")
    A("")
    def red_loads():
        for q in range(4): A(f"buffer_load_dwordx4 {v(tA+4*q,4)}, v{vL16}, {s(srdWS,4)}, s{sA3} offen offset:{1024*q} sc1")
    A(f"buffer_load_ushort v{tX}, v{tOut}, {s(srdX,4)}, s{sA7} offen")
    A("s_waitcnt vmcnt(0)")
    red_loads()
    A(f"v_lshlrev_b32 v{tX}, 16, v{tX}")
    ipoll("L_rdp", red_loads, lambda: gather_sum(vU, [tA+4*q for q in range(4)], vT0), GR)
    stamp(11); fine(3, 4)
    reduce4(vU)
    A(f"v_add_f32_dpp v{vU}, v{vU}, v{vU} row_ror:8 row_mask:0xf bank_mask:0xf bound_ctrl:1")
    A(f"s_cmp_gt_u32 s{sREM}, 1")
    A(f"v_fmac_f32 v{tX}, v{tPar}, v{vU}")
    A(f"v_mul_f32 v{vU}, v{tX}, v{tPar+1}")
    A(f"v_mul_f32 v{vU+4}, v{tX}, v{tX}")
    A(f"v_mov_b32 v{vU+1}, v{vU}")
    A(f"v_cndmask_b32 v{vU+4}, v{tX}, v{vU+4}, {s(sM0,2)}")
    A(f"v_permlane16_swap_b32 v{vU}, v{vU+1}")
    A(f"v_add_f32_dpp v{vU+4}, v{vU+4}, v{vU+4} quad_perm:[1,0,3,2] row_mask:0xf bank_mask:0xf bound_ctrl:1")
    A(f"v_cvt_pk_bf16_f32 v{vU+2}, v{vU}, v{vU+1}")
    A(f"v_lshlrev_b32 v{vT0}, 16, v{vU+2}")
    A(f"v_add_f32_dpp v{vU+4}, v{vU+4}, v{vU+4} quad_perm:[2,3,0,1] row_mask:0xf bank_mask:0xf bound_ctrl:1")
    A(f"v_and_b32 v{vT1}, 0xffff0000, v{vU+2}")
    A(f"v_sub_f32 v{vU}, v{vU}, v{vT0}")
    A(f"v_add_f32_dpp v{vU+4}, v{vU+4}, v{vU+4} row_half_mirror row_mask:0xf bank_mask:0xf bound_ctrl:1")
    A(f"v_sub_f32 v{vU+1}, v{vU+1}, v{vT1}")
    A(f"v_mov_b32 v{vU+5}, v{vU+4}")
    A(f"v_cvt_pk_bf16_f32 v{vU+3}, v{vU}, v{vU+1}")
    A(f"v_permlane16_swap_b32 v{vU+5}, v{vU+4}")
    A(f"v_cndmask_b32 v{vU+2}, v{vU+2}, v{vU+3}, {s(sM1,2)}")
    A(f"v_add_f32 v{vU+4}, v{vU+4}, v{vU+5}")
    A("s_cbranch_scc1 L_yrem")
    setexec(0x00ff00ff00ff00ff)
    A(f"buffer_store_dword v{vU+2}, v{tY}, {s(srdWS,4)}, s{sA4} offen")
    A("s_mov_b64 exec, -1")
    A(f"v_mov_b32 v{vU+5}, v{vU+4}")
    A(f"v_permlane32_swap_b32 v{vU+5}, v{vU+4}")
    A(f"v_add_f32 v{vU+4}, v{vU+4}, v{vU+5}")
    A("s_mov_b64 exec, 0x101")
    A(f"buffer_store_dword v{vU+4}, v{tY+1}, {s(srdWS,4)}, s{sA5} offen")
    A("s_mov_b64 exec, -1")
    stamp(12); fine(3, 5)
    A(f"s_cmp_eq_u32 s{sJ}, s{sAB}"); A("s_cbranch_scc0 L_notfin")
    if OPT: A(f"buffer_load_ushort v{vT3}, v{tOut}, {s(srdO,4)}, s{sA7} offen")
    if MFG:
        smul_add(sT0, [(sX8, "shl", 7)], MF); A(f"v_lshlrev_b32 v{vT1}, 2, v{vL}")
        flagwait("L_mfw", vT1, sT0, vT0, 0xfffffff)
        backoff(DF)
    A("")
    A("L_fin:")
    def fin_loads():
        for q in range(7):
            A(f"buffer_load_dwordx4 {v(tB+4*q,4)}, v{vL16}, {s(srdWS,4)}, s{sA6 if q < 4 else sA9} offen offset:{1024*(q%4)} sc1")
    fin_loads()
    A(f"v_mov_b32 v{vT2}, 0")
    ipoll("L_fnp", fin_loads, lambda: gather_sum(vU, [tB+4*q for q in range(7)], vT0), GF)
    fine(3, 6)
    reduce4(vU)
    A(f"v_add_f32_dpp v{vU}, v{vU}, v{vU} row_ror:8 row_mask:0xf bank_mask:0xf bound_ctrl:1")
    A(f"v_fmac_f32 v{tX}, v{tPar+2}, v{vU}")
    A(f"v_mov_b32 v{vU+1}, v{tX}")
    A(f"v_permlane16_swap_b32 v{tX}, v{vU+1}")
    setexec(0x000000ff000000ff)
    A(f"v_cvt_pk_bf16_f32 v{vU+2}, v{tX}, v{vU+1}")
    A(f"buffer_store_dword v{vU+2}, v{tOut}, {s(srdO,4)}, s{sA7} offen {osf}")
    if DUR:
        A(f"s_memrealtime {s(sST,2)}"); A("s_mov_b32 s90, 256"); A("s_mov_b32 s91, 0x20000"); A("s_waitcnt lgkmcnt(0)")
        A("s_mov_b64 exec, 1"); A(f"s_not_b32 s{sST+2}, s{sST+2}"); A(f"v_mov_b32 v{vU+4}, s{sST+2}"); A(f"v_mov_b32 v{vU+5}, s{sST}")
        A(f"buffer_atomic_umax v{vU+4}, v{vT2}, s[88:91], 0 offen"); A(f"buffer_atomic_umax v{vU+5}, v{vT2}, s[88:91], 0 offen offset:4")
    A("L_fin_end:")
    stamp_flush()
    A("s_endpgm")
    A("")
    A("L_c_orem:")
    A(f"buffer_store_dwordx4 {v(vU,4)}, v{vOa}, {s(srdWS,4)}, s{sOA} offen sc1")
    smul_add(sT0, [(sX8, "shl", 9), (sR, "shl", 4), (sW, "shl", 2)], OF)
    flagset(vT0, sT0)
    A(f"s_cmp_lt_u32 s{sR}, 16"); A("s_cbranch_scc0 L_c_other")
    if BT: A("s_barrier")
    smul_add(sT0, [(sX8, "shl", 9), (sAB, "shl", 8)], OF); A(f"v_lshlrev_b32 v{vT1}, 2, v{vL}")
    flagwait("L_ofw", vT1, sT0, vT0, (1 << 64) - 1)
    A(f"s_add_u32 s{sA0}, s{sA0}, {OB}"); A(f"s_add_u32 s{sA1}, s{sA1}, {SB}")
    st_loads(); t1_loads()
    A("s_waitcnt vmcnt(0)")
    A("s_branch L_t1_w")
    A("L_t1rem:")
    wo_reads()
    A("s_waitcnt lgkmcnt(0)")
    t1_mf(0)
    A("s_branch L_t1p_ok")
    A("L_yrem:")
    A(f"s_add_u32 s{sA4}, s{sA4}, {YBO}"); A(f"s_add_u32 s{sA5}, s{sA5}, {YBO}")
    setexec(0x00ff00ff00ff00ff)
    A(f"buffer_store_dword v{vU+2}, v{tY}, {s(srdWS,4)}, s{sA4} offen sc1")
    A("s_mov_b64 exec, -1")
    A(f"v_mov_b32 v{vU+5}, v{vU+4}")
    A(f"v_permlane32_swap_b32 v{vU+5}, v{vU+4}")
    A(f"v_add_f32 v{vU+4}, v{vU+4}, v{vU+5}")
    A("s_mov_b64 exec, 0x101")
    A(f"buffer_store_dword v{vU+4}, v{tY+1}, {s(srdWS,4)}, s{sA5} offen sc1")
    smul_add(sT0, [(sX8, "shl", 7), (sA8, "shl", 2)], YF)
    flagset(vT0, sT0)
    A(f"s_cmp_eq_u32 s{sJ}, s{sAB}"); A("s_cbranch_scc0 L_notfin")
    A("s_branch L_fin")
    A("L_notfin:")
    A(f"s_cmp_eq_u32 s2, 4"); A("s_cbranch_scc0 L_fin_end")
    A(f"s_cmp_eq_u32 s{sW}, 0"); A("s_cbranch_scc0 L_fin_end")
    A("s_mov_b64 exec, 1"); A(f"v_mov_b32 v{vT2}, 0")
    A(f"buffer_store_dword v{tYv+1}, v{vT2}, {s(srdWS,4)}, 0 offen sc1")
    A("s_branch L_fin_end")
    for blk in out_of_line: blk()
    out_of_line.clear()

    A("")
    A("L_c_other:")
    if dbg and not FINE: A("s_waitcnt vmcnt(0)"); stamp(11)
    A(f"s_sub_u32 s{sT0}, s{sR}, 16"); A(f"s_cmp_lt_u32 s{sT0}, 7"); A("s_cbranch_scc0 L_fin_end")
    mW1 = vKb; mW2 = vKb + 32; mB = vQ; mD = vQ + 16; mSt = vQ + 24; mR = vS; mD2 = vQ + 36; mO = vQ + 40; mY = vQ + 28; mH = vG2
    sY0, sY1, sFW = 22, 23, 25
    def y_loads():
        A(f"buffer_load_dwordx4 {v(mY,4)}, v{mYa}, {s(srdWS,4)}, s{sA0} offen sc1")
        A(f"buffer_load_dwordx2 {v(mSt,2)}, v{mSa}, {s(srdWS,4)}, s{sA1} offen sc1")
    def cp_load(): A(f"buffer_load_dwordx4 {v(mY,4)}, v{mYa}, {s(srdWS,4)}, s{sA0} offen offset:256 sc1")
    A(f"s_cmp_gt_u32 s{sREM}, 1"); A("s_cbranch_scc1 L_mrem0")
    cp_load()
    A("s_barrier")
    poll("L_mcp", cp_load, lambda: sentcheck([mY+3], vT0))
    def mrem0():
        A("L_mrem0:")
        A("s_barrier")
        A(f"s_add_u32 s{sA0}, s{sA0}, {YBO}"); A(f"s_add_u32 s{sA1}, s{sA1}, {YBO}")
        smul_add(sFW, [(sX8, "shl", 7)], CF); A(f"v_lshlrev_b32 v{vT1}, 2, v{vL}")
        flagwait("L_cfw", vT1, sFW, vT0, 0xffff)
        cp_load()
        A("s_waitcnt vmcnt(0)")
        A("s_branch L_mcp_ok")
        A("L_mrem:")
        A(f"s_add_u32 s{sFW}, s{sFW}, {YF-CF}")
        flagwait("L_yfw", vT1, sFW, vT0, 0xffffffff)
        y_loads()
        A("s_waitcnt vmcnt(0)")
        A("s_branch L_myp_ok")
    out_of_line.append(mrem0)
    def shift(d): return "quad_perm:[0,1,2,3]" if d == 0 else (f"row_shr:{d}" if d > 0 else f"row_shl:{-d}")
    for sg in range(4):
        for q in range(4): A(f"v_mov_b32_dpp v{mB+4*sg+q}, v{mY+q} {shift(4 - 4*sg)} row_mask:0xf bank_mask:0xf bound_ctrl:1")
    A(f"v_mov_b32 v{mO+1}, s{sTAG}"); A(f"v_mov_b32 v{mO+3}, s{sTAG}")
    A(f"v_mov_b32 v{mMQ}, v{mMP}"); A(f"v_mov_b32 v{mMQ+1}, 0")
    for i in range(32): A(f"v_mov_b32 v{mH+i}, 0")
    A(f"v_cmp_gt_u32 {s(sM0,2)}, 8, v{vN}")
    A(f"s_cmp_gt_u32 s{sREM}, 1")
    A("s_barrier")
    stamp(12)
    for sg in range(4):
        for t in range(2):
            for u in range(2):
                A(f"ds_read_b64_tr_b16 {v(mW1+(t*4+sg)*4+2*u,2)}, v{mA1+t} offset:{(32*sg+16*u)*64}")
    for t in range(8):
        for u in range(2):
            A(f"ds_read_b64_tr_b16 {v(mW2+4*t+2*u,2)}, v{mA2+t} offset:{16*u*256}")
    A("s_cbranch_scc1 L_mrem")
    y_loads()
    stamp(8)
    ipoll("L_myp", y_loads, lambda: (A("s_waitcnt vmcnt(0)"), sentcheck([mY+3, mSt, mSt+1], vT0)))
    stamp(9); fine(1, 1)
    va = []
    for ro in (2, 4, 8):
        va += [f"v_add_f32_dpp v{mSt+i}, v{mSt+i}, v{mSt+i} row_ror:{ro} row_mask:0xf bank_mask:0xf bound_ctrl:1" for i in range(2)]
    va += [f"v_mov_b32 v{mSt+2}, v{mSt}", f"v_mov_b32 v{mSt+3}, v{mSt+1}", f"v_permlane16_swap_b32 v{mSt+2}, v{mSt}", f"v_permlane16_swap_b32 v{mSt+3}, v{mSt+1}",
           f"v_pk_add_f32 {v(mSt,2)}, {v(mSt,2)}, {v(mSt+2,2)}",
           f"v_mul_f32 v{mSt}, {hex(f2u(1/512))}, v{mSt}", f"v_mul_f32 v{mSt+2}, {hex(f2u(1/512))}, v{mSt+1}",
           f"v_fma_f32 v{mSt+2}, -v{mSt}, v{mSt}, v{mSt+2}", f"v_max_f32 v{mSt+2}, 0, v{mSt+2}", f"v_add_f32 v{mSt+2}, {hex(f2u(1e-5))}, v{mSt+2}",
           f"v_rsq_f32 v{mSt+2}, v{mSt+2}"]
    def shl(sg):
        for q in range(4): A(f"v_mov_b32_dpp v{mB+4*sg+q}, v{mY+q} {shift(-4*sg)} row_mask:0xf bank_mask:0x1 bound_ctrl:1")
    def mf1(sg, t): A(f"v_mfma_f32_16x16x32_bf16 {v(mD+4*t,4)}, {v(mW1+(t*4+sg)*4,4)}, {v(mB+4*sg,4)}, {'0' if sg == 0 else v(mD+4*t,4)}")
    shl(0); A("s_waitcnt lgkmcnt(0)"); shl(1); mf1(0, 0); mf1(0, 1); shl(2); mf1(1, 0); mf1(1, 1); shl(3); mf1(2, 0); mf1(2, 1)
    A(va[0]); A(va[1]); mf1(3, 0); A(va[2]); A(va[3]); mf1(3, 1); vi = 4
    for _ in range(6): A(va[vi]); vi += 1
    fine(1, 2)
    A(f"s_mov_b64 exec, {s(sM0,2)}")
    for t in range(2): A(f"ds_write_b128 v{mXw}, {v(mD+4*t,4)} offset:{t*(8*RS+64)}")
    A("s_mov_b64 exec, -1")
    while vi < len(va): A(va[vi]); vi += 1
    A("s_waitcnt lgkmcnt(0)")
    fine(1, 3)
    A("s_barrier")
    fine(1, 4)
    for part in range(2):
        for cw in range(4): A(f"ds_read2_b32 {v(mR+8*part+2*cw,2)}, v{mXr + part*(mXr2-mXr)} offset0:{16*cw} offset1:{16*cw+RS//4}")
    A(f"s_waitcnt lgkmcnt({lg(4)})")
    A(f"v_pk_add_f32 {v(mR,2)}, {v(mR,2)}, {v(mR+2,2)}"); A(f"v_pk_add_f32 {v(mR+4,2)}, {v(mR+4,2)}, {v(mR+6,2)}")
    A(f"v_pk_add_f32 {v(mR,2)}, {v(mR,2)}, {v(mR+4,2)}")
    A(f"v_add_f32 v{mR+2}, v{mR}, v{mR+1}")
    A("s_waitcnt lgkmcnt(0)")
    A(f"v_pk_add_f32 {v(mR+8,2)}, {v(mR+8,2)}, {v(mR+10,2)}"); A(f"v_pk_add_f32 {v(mR+12,2)}, {v(mR+12,2)}, {v(mR+14,2)}")
    A(f"v_pk_add_f32 {v(mR+8,2)}, {v(mR+8,2)}, {v(mR+12,2)}")
    A(f"v_fma_f32 v{mR+2}, -v{mSt}, v{mR+8}, v{mR+2}")
    fine(1, 5)
    A(f"v_fma_f32 v{mR+2}, v{mR+2}, v{mSt+2}, v{mR+9}")
    A(f"v_mul_f32 v{mR+3}, {hex(f2u(-LOG2E))}, v{mR+2}")
    A(f"v_exp_f32 v{mR+3}, v{mR+3}")
    A(f"v_add_f32 v{mR+3}, 1.0, v{mR+3}"); A(f"v_rcp_f32 v{mR+3}, v{mR+3}")
    A(f"v_mul_f32 v{mR+2}, v{mR+2}, v{mR+3}")
    A(f"v_mov_b32_dpp v{mR+3}, v{mR+2} row_shl:2 row_mask:0xf bank_mask:0xf bound_ctrl:1")
    A(f"v_cvt_pk_bf16_f32 v{mR+4}, v{mR+2}, v{mR+3}")
    A(f"v_cndmask_b32 v{mR+4}, v{mR+4}, 0, {s(sM2,2)}")
    fine(1, 6)
    def bt(t):
        for q in range(4):
            d = 2*t - 4*q
            pat = "quad_perm:[0,1,2,3]" if d == 0 else (f"row_shr:{d}" if d > 0 else f"row_shl:{-d}")
            A(f"v_mov_b32_dpp v{mH+4*t+q}, v{mR+4} {pat} row_mask:0xf bank_mask:{hex(1 << (t >> 1))} bound_ctrl:1")
    def mf2(t): A(f"v_mfma_f32_16x16x32_bf16 {v(mD2,4)}, {v(mW2+4*t,4)}, {v(mH+4*t,4)}, {'0' if t == 0 else v(mD2,4)}")
    bt(0); bt(1)
    for t in range(8):
        mf2(t)
        if t + 2 < 8: bt(t + 2)
    fine(1, 7)
    if MFE == 2:
        A("s_mov_b64 exec, 1")
        A(f"buffer_store_dword v{mO+1}, v{mMQ+1}, {s(srdWS,4)}, s{sA4} offen")
        A("s_mov_b64 exec, -1")
    A(f"v_cvt_pk_bf16_f32 v{mO}, v{mD2}, v{mD2+1}"); A(f"v_cvt_pk_bf16_f32 v{mO+2}, v{mD2+2}, v{mD2+3}")
    A(f"buffer_store_dwordx4 {v(mO,4)}, v{mMQ}, {s(srdWS,4)}, s{sA3} offen sc1")
    if not MFE:
        A("s_mov_b64 exec, 1")
        A(f"buffer_store_dword v{mO+1}, v{mMQ+1}, {s(srdWS,4)}, s{sA4} offen")
    stamp(10); fine(1, 8)
    A("s_branch L_fin_end")
    for blk in out_of_line: blk()
    A("L_end:"); A("s_endpgm")
    A("L_code_end:")
    A('.section .rodata,"a"'); A(".p2align 6"); A(f".amdhsa_kernel {NAME}_kernel")
    nv = 256 if dbg else max(R.hi, H.hi, Lr.hi)
    nv_al = (nv + 3) // 4 * 4
    for l in (f"next_free_vgpr {nv}", "next_free_sgpr 96", f"accum_offset {nv_al}", "group_segment_fixed_size 0", "kernarg_size 104", "user_sgpr_count 2", "user_sgpr_kernarg_segment_ptr 1", "system_sgpr_workgroup_id_x 1", "float_denorm_mode_32 3"):
        A(".amdhsa_" + l)
    A(".end_amdhsa_kernel")
    bad = A.check_branches()
    for b in bad: print("BRANCH HAZARD", b, file=sys.stderr)
    print(f"compute regs {R.hi}, helper regs {H.hi}, loader regs {Lr.hi}, nops {A.nops}, instrs {sum(1 for i in A.ins if i.ws)}", file=sys.stderr)
    return "\n".join(hdr) + "\n" + A.text()

if __name__ == "__main__":
    out = sys.argv[1] if len(sys.argv) > 1 else "k.s"
    kw = {}
    for a in sys.argv[2:]:
        k, val = a.split("=")
        kw[k] = val.replace("_", " ") if k in STRK else int(val)
    open(out, "w").write(gen(**kw))
```

```python
import sys, struct
from asmlib import Asm
NAME = "adaLN_cond__sliding_block_cached__dense_activation_silu__decode"

EPOCH = 0
MODP = 0x1000
QPA  = 0x20000
QPB  = 0x60000
OPA  = 0xA0000
OPB  = 0xE0000
STA  = 0x120000
STB  = 0x122000
YX   = 0x2100
YA   = 0x124000
YB   = 0x138000
MF   = 0x14C000
OF   = 0x14D000
CF   = 0x14E000
YF   = 0x14F000
AP   = 0x150000
MP   = 0x170000
WS_USED = 0x1B0000
DBG  = 0x200000
QB = QPB - QPA; OB = OPB - OPA; SB = STB - STA; YBO = YB - YA

LK = 0; LV = 65536; S0 = 131072; S1 = 147456
SM = LV + 49152
SR = LV + 32768
FL = S0
F_M, F_W, F_K, F_QP, F_KR, F_MC, F_V, F_Q, F_P = 0, 4, 8, 12, 16, 32, 40, 48, 192
F_T1, F_T2, F_CR, F_R, F_RC, F_MP = 36, 44, 208, 224, 228, 232
ML = S0 + 64
HS = S0 + 512; QL = S0 + 1024; PAR = S0 + 2304; TAGL = S0 + 3328; PX = S0 + 3584; RED = S0 + 5632
RS = 272

LOG2E = 1.4426950408889634
def f2u(x): return struct.unpack("<I", struct.pack("<f", x))[0]
SC = f2u(128 ** -0.5 * LOG2E)
STRK = ("ntw", "ntk", "nts", "osf", "nt1")

HEADER = """
;
;   * across groups: 8-byte granules {bf16 pair, tag}, write-through stores, L1-bypassing loads; tag = f(epoch word of ws),
; @launch grid=(256,1,1) block=(384,1,1) lds=163840
"""

class Regs:
    def __init__(self, start=1):
        self.n = start; self.hi = start
    def a(self, cnt=1, al=None):
        al = al or (1 if cnt == 1 else 2)
        self.n = (self.n + al - 1) // al * al
        r = self.n; self.n += cnt; self.hi = max(self.hi, self.n)
        return r
def v(r, n=1): return f"v{r}" if n == 1 else f"v[{r}:{r+n-1}]"
def s(r, n=1): return f"s{r}" if n == 1 else f"s[{r}:{r+n-1}]"

def gen(WA=20, WB=20, WC=22, VA=32, VB=24, VC=28, TI=16, NI=48, NC=48, RP=0, QT=0, OT=1, TLB=0, BO=1, BT=9, EW=0, EM=0, SH=1, DM=0, DA=0, DF=0, MFE=0, ST=1, GR=0, GF=0, GT=1, PZ=-1, PT=0, G1=0, G2=0, G1B=0, G1C=0, G2B=0, G2C=0, RH=0, PW=0, nt1='nt', KE=0, EI=0, TB=0, WM=1, QBD=0, NQ=48, WBL=0, DIRTY=0, OPT=0, osf='', nts='', W1F=1, TMA=40, TME=16, KF=4, T2=20, TM=12, TM1=16, T3=32, QD=0, D2=8, PS=0, PN=0, PB=16, GK=7, TH=99, RA=1, RX=2, DG=60, DQ=64, DP=0, QORD=0, MFG=1,
        dbg=False, FINE=0, NA=8, NT=100000, CODE_PF=1, ntw="nt", ntk="nt", DUR=0, FREM=0):
    A = Asm()
    hdr = HEADER.strip().split("\n")
    A('.amdgcn_target "amdgcn-amd-amdhsa--gfx950"')
    A(".text"); A(f".globl {NAME}_kernel"); A(".p2align 8"); A(f".type {NAME}_kernel,@function"); A(f"{NAME}_kernel:")
    sWV, sX8, sR = 3, 36, 37
    sKO, sT0, sT1, sT2, sT3 = 38, 39, 40, 41, 42
    sTAG, sCNT, sB, sS, sW = 43, 44, 45, 46, 47
    sM0, sM1, sM2 = 48, 50, 52
    sAB = 54; sJ = 55; sT4 = 56; sT5 = 57; sT6 = 58; sT7 = 59
    sST = 60
    sREM, sLO, sHI, sTQ = 94, 95, 93, 92
    if DUR: pass
    srdWS, srdX = 16, 28
    vL, vG, vN = 1, 2, 3
    WSN = WS_USED if not dbg else 0x400000
    out_of_line = []
    def stamp(idx):
        if dbg and not FINE: A(f"s_memrealtime {s(64+2*idx,2)}")
    def fine(sec, idx):
        if dbg and FINE == sec: A(f"s_memtime {s(64+2*idx,2)}")
    def stamp_flush():
        if dbg:
            A("s_waitcnt lgkmcnt(0)")
            A("s_mov_b64 exec, -1")
            A(f"v_writelane_b32 v255, s{sST+2}, 0")
            for i in range(1, 14): A(f"v_writelane_b32 v255, s{64+2*i}, {i}")
            A(f"s_memrealtime {s(sST,2)}" if not FINE else f"s_memtime {s(sST,2)}"); A("s_waitcnt lgkmcnt(0)"); A(f"v_writelane_b32 v255, s{sST}, 14")
            A(f"s_mul_i32 s{sST}, s2, 6"); A(f"s_add_u32 s{sST}, s{sST}, s{sWV}"); A(f"s_lshl_b32 s{sST}, s{sST}, 7"); A(f"s_add_u32 s{sST}, s{sST}, {DBG}")
            A("v_and_b32 v254, 63, v0"); A("v_lshlrev_b32 v254, 2, v254")
            A("s_mov_b64 exec, 0xffff")
            A(f"buffer_store_dword v255, v254, {s(srdWS,4)}, s{sST} offen")
    def lg(n): return 0 if dbg else min(n, 15)
    def setexec(m):
        lo, hi = m & 0xffffffff, m >> 32
        if m == (1 << 64) - 1: A("s_mov_b64 exec, -1")
        elif hi == 0 and lo < 0x80000000: A(f"s_mov_b64 exec, {hex(lo)}")
        else: A(f"s_mov_b32 exec_lo, {hex(lo)}"); A(f"s_mov_b32 exec_hi, {hex(hi)}")
    def srd_tail(r, nbytes):
        A(f"s_mov_b32 s{r+2}, {nbytes}"); A(f"s_mov_b32 s{r+3}, 0x20000")
    def backoff(n):
        while n > 0: A(f"s_sleep {min(n, 100)}"); n -= 100
    lab = [0]
    def spin(va, off, vt, n=1, sleep=0):
        lab[0] += 1; L = f"L_spin{lab[0]}"
        A(f"{L}:")
        if n == 1: A(f"ds_read_b32 v{vt}, v{va} offset:{off}")
        else: A(f"ds_read_b128 {v(vt,4)}, v{va} offset:{off}")
        A("s_waitcnt lgkmcnt(0)")
        if n == 4:
            A(f"v_min3_u32 v{vt+4}, v{vt}, v{vt+1}, v{vt+2}"); A(f"v_min_u32 v{vt+4}, v{vt+4}, v{vt+3}")
        A(f"v_cmp_eq_u32 vcc, 0, v{vt + (4 if n == 4 else 0)}")
        if sleep:
            A(f"s_cbranch_vccz {L}_ok"); A(f"s_sleep {sleep}"); A(f"s_branch {L}"); A(f"{L}_ok:")
        else:
            A(f"s_cbranch_vccnz {L}")
    def smul_add(dst, terms, const=0, tmp=sT7):
        first = True
        for (r, op, k) in terms:
            d = dst if first else tmp
            A(f"s_lshl_b32 s{d}, s{r}, {k}" if op == "shl" else f"s_mul_i32 s{d}, s{r}, {k}")
            if not first: A(f"s_add_u32 s{dst}, s{dst}, s{tmp}")
            first = False
        if const: A(f"s_add_u32 s{dst}, s{dst}, {const}")
    def tagcheck(rs, acc, tag=sTAG):
        A(f"v_xor_b32 v{acc}, s{tag}, v{rs[0]}")
        for r in rs[1:]: A(f"v_bitop3_b32 v{acc}, v{r}, s{tag}, v{acc} bitop3:0xbe")
        A(f"v_cmp_ne_u32 vcc, 0, v{acc}")
    def sentcheck(rs, acc):
        if len(rs) == 1: A(f"v_cmp_eq_u32 vcc, -1, v{rs[0]}"); return
        if len(rs) == 2: A(f"v_max_u32 v{acc}, v{rs[0]}, v{rs[1]}"); i = 2
        else: A(f"v_max3_u32 v{acc}, v{rs[0]}, v{rs[1]}, v{rs[2]}"); i = 3
        while i < len(rs):
            if i + 1 < len(rs): A(f"v_max3_u32 v{acc}, v{acc}, v{rs[i]}, v{rs[i+1]}"); i += 2
            else: A(f"v_max_u32 v{acc}, v{acc}, v{rs[i]}"); i += 1
        A(f"v_cmp_eq_u32 vcc, -1, v{acc}")
    def poll(lbl, loads, check, first_wait=0):
        A(f"s_waitcnt vmcnt({first_wait})")
        check()
        A(f"s_cbranch_vccnz {lbl}_re")
        A(f"{lbl}_ok:")
        def blk():
            A(f"{lbl}_re:")
            A(f"s_mov_b32 s{sCNT}, 0")
            A(f"{lbl}_re2:")
            loads()
            A(f"s_add_u32 s{sCNT}, s{sCNT}, 1"); A(f"s_cmp_gt_u32 s{sCNT}, {NT}")
            A("s_waitcnt vmcnt(0)")
            A(f"s_cbranch_scc1 {lbl}_ok")
            check()
            A(f"s_cbranch_vccnz {lbl}_re2")
            A(f"s_branch {lbl}_ok")
        out_of_line.append(blk)
    def ipoll(lbl, loads, body, gap=0):
        A(f"s_mov_b32 s{sCNT}, 0")
        A(f"s_branch {lbl}_m")
        A(f"{lbl}_re:")
        A(f"s_add_u32 s{sCNT}, s{sCNT}, 1"); A(f"s_cmp_gt_u32 s{sCNT}, {NT}"); A(f"s_cbranch_scc1 {lbl}_ok")
        backoff(gap)
        loads()
        A(f"{lbl}_m:")
        body()
        A(f"s_cbranch_vccnz {lbl}_re")
        A(f"{lbl}_ok:")
    def gather_sum(dst, srcs, acc, both=False):
        n = len(srcs)
        for i, q in enumerate(srcs):
            A(f"s_waitcnt vmcnt({n-1-i})")
            A(f"v_xor_b32 v{acc}, s{sTAG}, v{q+3}" if i == 0 else f"v_bitop3_b32 v{acc}, v{q+3}, s{sTAG}, v{acc} bitop3:0xbe")
            if both: A(f"v_bitop3_b32 v{acc}, v{q+1}, s{sTAG}, v{acc} bitop3:0xbe")
            if i == n - 1: A(f"v_cmp_ne_u32 vcc, 0, v{acc}")
            for c in (0, 2, 1, 3):
                A(f"v_dot2_f32_bf16 v{dst+c}, v{q + (c & 2)}, s{sHI if c & 1 else sLO}, {'0' if i == 0 else 'v%d' % (dst+c)}")
    def flagwait(lbl, va, so, vt, mask):
        A(f"s_mov_b32 s{sCNT}, 0"); setexec(mask)
        A(f"{lbl}:")
        A(f"buffer_load_dword v{vt}, v{va}, {s(srdWS,4)}, s{so} offen sc1")
        A(f"s_add_u32 s{sCNT}, s{sCNT}, 1"); A(f"s_cmp_gt_u32 s{sCNT}, {NT}")
        A("s_waitcnt vmcnt(0)")
        A(f"s_cbranch_scc1 {lbl}_x")
        A(f"v_cmp_ne_u32 vcc, s{sTAG}, v{vt}")
        A(f"s_cbranch_vccnz {lbl}")
        A(f"{lbl}_x:")
        A("s_mov_b64 exec, -1")
    def flagset(vt, so):
        A("s_waitcnt vmcnt(0)")
        A("s_mov_b64 exec, 1")
        A(f"v_mov_b32 v{vt}, 0"); A(f"v_mov_b32 v{vt+1}, s{sTAG}")
        A(f"buffer_store_dword v{vt+1}, v{vt}, {s(srdWS,4)}, s{so} offen sc1")
        A("s_mov_b64 exec, -1")
    def sum_pairs(dst, srcs):
        for i, q in enumerate(srcs):
            for c in range(4):
                A(f"v_dot2_f32_bf16 v{dst+c}, v{q + (c & 2)}, s{sHI if c & 1 else sLO}, {'0' if i == 0 else 'v%d' % (dst+c)}")
    def dot_consts():
        A(f"s_mov_b32 s{sLO}, 0x3f80"); A(f"s_mov_b32 s{sHI}, 0x3f800000")

    srdWM, srdWQ, srdK, srdV, srdW, srdW2, srdF = 8, 12, 20, 24, 4, 28, 4
    if dbg or DUR: A(f"s_memrealtime {s(sST+2,2)}")
    A(f"s_load_dwordx2 {s(srdK,2)}, s[0:1], 8")
    A(f"s_load_dwordx2 {s(srdWM,2)}, s[0:1], 72")
    A("s_cmp_ge_u32 s2, 256"); A("s_cbranch_scc1 L_end")
    A("v_lshrrev_b32 v1, 6, v0")
    A(f"s_and_b32 s{sX8}, s2, 7"); A(f"s_lshr_b32 s{sR}, s2, 3")
    A(f"v_readfirstlane_b32 s{sWV}, v1")
    A("v_and_b32 v1, 63, v0")
    A("v_lshrrev_b32 v2, 4, v1"); A("v_and_b32 v3, 15, v1")
    A(f"s_lshr_b32 s{sB}, s{sR}, 4"); A(f"s_and_b32 s{sS}, s{sR}, 15")
    sRHO = 35; P = dict(cl=34, rp=33)
    A(f"s_cmp_lg_u32 s{sWV}, 0"); A("s_cbranch_scc1 L_notloader")
    def prod_decode():
        A(f"s_bfe_u32 s{P['cl']}, s2, 0x40002"); A(f"s_and_b32 s{P['rp']}, s2, 3")

    Lr = Regs(4)
    lWM = Lr.a(4); lWQ = Lr.a(4); lK = Lr.a(4); lV = Lr.a(2); lW = Lr.a(4); lW1 = Lr.a(4); lT0 = Lr.a(); lT1 = Lr.a(); lF = Lr.a(); lOne = Lr.a(); lS = Lr.a(6, 4); lA = Lr.a(4)
    sRO = 32
    A("")
    prod_decode()
    A(f"v_xor_b32 v{lT0}, v{vG}, v{vN}"); A(f"v_lshlrev_b32 v{lT0}, 4, v{lT0}"); A(f"v_lshl_or_b32 v{lK}, v{vG}, 8, v{lT0}")
    for j in range(1, 4): A(f"v_xor_b32 v{lK+j}, {64*j}, v{lK}")
    A(f"v_and_b32 v{lT0}, 7, v{vL}"); A(f"v_lshlrev_b32 v{lT1}, 1, v{vG}"); A(f"v_xor_b32 v{lT0}, v{lT0}, v{lT1}"); A(f"v_lshlrev_b32 v{lT0}, 4, v{lT0}")
    A(f"v_lshrrev_b32 v{lT1}, 3, v{vL}")
    A(f"v_mad_u32_u24 v{lWM}, v{lT1}, s{sT4}, v{lT0}") if False else None
    A(f"v_mul_u32_u24 v{lWM}, 6144, v{lT1}"); A(f"v_add_u32 v{lWM}, v{lWM}, v{lT0}")
    for j in range(1, 4): A(f"v_add_u32 v{lWM+j}, {j*(8*6144-1024)}, v{lWM}")
    smul_add(sT0, [(P['rp'], "mul", 128*6144), (P['cl'], "shl", 7)])
    smul_add(sKO, [(sB, "shl", 26), (sX8, "shl", 23), (sS, "shl", 16)], 28672*256)
    smul_add(sT2, [(sR, "mul", RA), (sX8, "mul", RX)]); A(f"s_and_b32 s{sT2}, s{sT2}, 15"); A(f"s_lshl_b32 s{sT2}, s{sT2}, 12")
    srd_tail(srdWM, 512*6144); srd_tail(srdK, 65536)
    A(f"s_cmp_ge_u32 s{sR}, 24")
    A("s_cselect_b64 vcc, -1, 0")
    A(f"s_cselect_b32 s{sT1}, s{sT0}, s{sT2}"); A(f"s_cselect_b32 m0, {SM}, 0")
    A(f"s_mov_b32 s{sT5}, {65536*ST}")
    A(f"s_cselect_b32 s{sT5}, {32*6144}, s{sT5}"); A(f"s_cselect_b32 s{sT6}, -1, 0xffff"); A(f"s_cselect_b32 s{srdF+2}, s{srdWM+2}, s{srdK+2}")
    A(f"s_cselect_b32 s{sT3}, 0, 4"); A(f"s_lshr_b32 s{sT5}, s{sT5}, s{sT3}")
    for j in range(4): A(f"v_cndmask_b32 v{lA+j}, v{lK+j}, v{lWM+j}, vcc")
    A(f"s_mov_b32 s{srdF+3}, 0x20000")
    A("s_waitcnt lgkmcnt(0)")
    A(f"s_add_u32 s{srdK}, s{srdK}, s{sKO}"); A(f"s_addc_u32 s{srdK+1}, s{srdK+1}, 0")
    A(f"s_cmp_ge_u32 s{sR}, 24")
    A(f"s_cselect_b64 {s(srdF,2)}, {s(srdWM,2)}, {s(srdK,2)}")
    assert KF >= 4 and TI >= 16
    for gi in range(4):
        for j in range(4): A(f"buffer_load_dwordx4 v{lA+j}, {s(srdF,4)}, s{sT1} offen offset:{j*1024} {ntk} lds")
        if gi == 0: stamp(2)
        A(f"s_add_u32 s{sT1}, s{sT1}, s{sT5}"); A(f"s_and_b32 s{sT1}, s{sT1}, s{sT6}")
        if gi < 3: A("s_add_u32 m0, m0, 4096")
        if TB and gi == TB - 1:
            A(f"s_cmp_ge_u32 s{sR}, 24"); A("s_cbranch_scc1 L_l_go")
            A(f"s_waitcnt vmcnt({4*TB-1})")
            A("L_l_go:")
    A("s_setprio 3")
    A(f"s_load_dwordx2 {s(srdWQ,2)}, s[0:1], 24")
    A(f"s_load_dwordx2 {s(srdV,2)}, s[0:1], 16")
    A(f"v_lshlrev_b32 v{lF}, 4, v{vL}"); A(f"v_add_u32 v{lF}, {FL}, v{lF}")
    A(f"v_subrev_u32 v{lOne}, 4, v{vL}"); A(f"v_cmp_gt_u32 vcc, 8, v{lOne}"); A(f"v_cndmask_b32 v{lS}, 0, -1, vcc")
    for i in range(1, 4): A(f"v_mov_b32 v{lS+i}, v{lS}")
    A("s_mov_b64 exec, 0xffff")
    A(f"ds_write_b128 v{lF}, {v(lS,4)}")
    A("s_mov_b64 exec, -1")
    A(f"v_lshl_or_b32 v{lWQ}, v{lT1}, 13, v{lT0}")
    A(f"s_lshr_b32 s{sRHO}, s{sR}, 3")
    A(f"s_cmp_ge_u32 s{sR}, 24"); A(f"s_cselect_b32 s{sT2}, s{sT2}, s{sT1}")
    A("s_waitcnt lgkmcnt(0)")
    A("s_barrier")
    def group(srd, vr, so, wait, nt=ntk):
        for j in range(4):
            if wait is not None: A(f"s_waitcnt vmcnt({wait})")
            A(f"buffer_load_dwordx4 v{vr[j]}, {s(srd,4)}, s{so} offen offset:{j*1024} {nt} lds")
    def flag(off, cnt):
        A(f"s_waitcnt vmcnt({cnt})"); A(f"ds_write_b32 v{lF}, v{lOne} offset:{off}")
    kr = [lK+j for j in range(4)]
    def late_setup():
        for j in range(1, 4): A(f"v_add_u32 v{lWQ+j}, {j*(8*8192-1024)}, v{lWQ}")
        srd_tail(srdWQ, 512*8192)
        A(f"s_and_b32 s{sT3}, s{sR}, 7")
        smul_add(sT1, [(sRHO, "shl", 20), (sX8, "shl", 10), (sT3, "shl", 7)])
        A(f"v_mov_b32 v{lF}, {FL}"); A(f"v_mov_b32 v{lOne}, 1")
        A(f"s_lshr_b32 s{sT3}, s2, 2"); A(f"s_add_u32 s{sT3}, s{sT3}, {-16 if RP else 16}")
        smul_add(sRO, [(P['rp'], "mul", 128*6144), (sT3, "shl", 7)])
    def kbase():
        A(f"s_add_u32 s{srdK}, s{srdK}, s{sKO}"); A(f"s_addc_u32 s{srdK+1}, s{srdK+1}, 0")
    def pace(extra=0):
        if PS: A(f"s_sleep {PS}")
        n = PN + (extra if PS or PN else 0)
        while n >= 4: k = min(n // 4, 16); A(f"s_nop {k-1}"); n -= 4*k
    vr = [lV, lV+1, lV, lV+1]
    def kvloop(name, srd, vr, end, TT):
        A(f"{name}:")
        group(srd, vr, sT2, TT-1)
        A(f"s_add_u32 s{sT2}, s{sT2}, {4096*ST}"); A(f"s_and_b32 s{sT2}, s{sT2}, 0xffff")
        A("s_add_u32 m0, m0, 4096"); A(f"s_cmp_lt_u32 m0, {end}"); A(f"s_cbranch_scc1 {name}")
    def setup2():
        A(f"s_cmp_lt_u32 s{sR}, 16"); A(f"s_cselect_b32 s{sT4}, 32, 48")
        A(f"s_load_dwordx2 {s(srdW,2)}, s[0:1], s{sT4}")
        A(f"s_load_dwordx2 {s(srdW2,2)}, s[0:1], 56")
        if dbg: A(f"s_load_dwordx2 {s(srdWS,2)}, s[0:1], 96"); srd_tail(srdWS, WSN)
        A(f"s_add_u32 s{srdV}, s{srdV}, s{sKO}"); A(f"s_addc_u32 s{srdV+1}, s{srdV+1}, 0"); srd_tail(srdV, 65536)
        A(f"v_lshlrev_b32 v{lT0}, 1, v{vG}"); A(f"v_xor_b32 v{lT0}, v{lT0}, v{vN}"); A(f"v_lshlrev_b32 v{lT0}, 4, v{lT0}")
        A(f"v_lshl_or_b32 v{lV}, v{vG}, 8, v{lT0}"); A(f"v_xor_b32 v{lV+1}, 128, v{lV}")
        A(f"v_lshl_or_b32 v{lW}, v{vG}, 10, v{lT0}"); A(f"v_xor_b32 v{lT0}, 128, v{lW}")
        A(f"v_add_u32 v{lW+1}, 3072, v{lT0}"); A(f"v_add_u32 v{lW+2}, 6144, v{lW}"); A(f"v_add_u32 v{lW+3}, 9216, v{lT0}")
    wr = [lW+j for j in range(4)]
    def wo_setup():
        spin(lF, F_KR, lS, 4)
        srd_tail(srdW, 4096*1024)
        A(f"s_lshr_b32 s{sT1}, s{sR}, 2"); A(f"s_and_b32 s{sT3}, s{sR}, 3")
        smul_add(sT0, [(sX8, "shl", 19), (sT1, "shl", 17), (sT3, "shl", 8)])
        A("s_mov_b32 m0, 0")
    def wog(i):
        def f(w):
            group(srdW, wr, sT0, w, ntw)
            if i < 7: A(f"s_add_u32 s{sT0}, s{sT0}, 16384"); A("s_add_u32 m0, m0, 4096")
        return f
    def mlp_setup():
        A(f"v_and_b32 v{lT0}, 1, v{vG}"); A(f"v_lshlrev_b32 v{lT0}, 1, v{lT0}"); A(f"v_and_b32 v{lT1}, 3, v{vL}"); A(f"v_xor_b32 v{lT0}, v{lT0}, v{lT1}"); A(f"v_lshlrev_b32 v{lT0}, 4, v{lT0}")
        A(f"v_lshrrev_b32 v{lT1}, 2, v{vL}"); A(f"v_mul_u32_u24 v{lT1}, 3584, v{lT1}"); A(f"v_add_u32 v{lW1}, v{lT0}, v{lT1}")
        for j in range(1, 4): A(f"v_add_u32 v{lW1+j}, {j*(16*3584-1024)}, v{lW1}")
        srd_tail(srdW, 512*3584); srd_tail(srdW2, 1792*1024)
        spin(lF, F_KR, lS, 4)
        A(f"s_mul_i32 s{sJ}, s{sX8}, 7"); A(f"s_add_u32 s{sJ}, s{sJ}, s{sR}"); A(f"s_sub_u32 s{sJ}, s{sJ}, 16")
        A(f"s_lshl_b32 s{sT0}, s{sJ}, 6"); A(f"s_lshl_b32 s{sT1}, s{sJ}, 15")
        A("s_mov_b32 m0, 0")
    def w1g(i, nt=ntw):
        def f(w):
            group(srdW, [lW1+j for j in range(4)], sT0, w, nt)
            A(f"s_add_u32 s{sT0}, s{sT0}, {64*3584}"); A("s_add_u32 m0, m0, 4096")
        return f
    def w2g(i, nt=ntw):
        def f(w):
            group(srdW2, wr, sT1, w, nt)
            if i < 7:
                A(f"s_add_u32 s{sT1}, s{sT1}, 16384" if i % 2 == 0 else f"s_sub_u32 s{sT1}, s{sT1}, {16384-256}"); A("s_add_u32 m0, m0, 4096")
        return f
    def stream(sfx, seq, W, WV, NI=NI):
        seq = list(seq); n = 16; pend = [(16, F_M)] if seq[0] == "m" else []; kidx = 0 if pend else 4; g1 = [G1 + {'a': 0, 'b': G1B, 'c': G1C}[sfx]] if G1 else []; G2r = G2 + {'a': 0, 'b': G2B, 'c': G2C}[sfx] if G2 else 0; cnt = {"m": 0, "q": 0, "r": 0}
        i = 4
        while i < len(seq) or pend or g1:
            TT = TI if n < NI else W
            if PZ >= 0 and sfx == "c" and n == 16 + 4*PZ:
                flag(F_M, n - 16); stamp(7); pend.pop(0)
                spin(lF, F_MP, lS)
            while pend and n - pend[0][0] >= TT - 1:
                flag(pend[0][1], n - pend[0][0])
                if pend[0][1] == F_M: stamp(7)
                pend.pop(0)
            if n == NI and pend and n - pend[0][0] >= TI:
                flag(pend[0][1], n - pend[0][0])
                if pend[0][1] == F_M: stamp(7)
                pend.pop(0)
            if g1 and n - g1[0] >= min(TT, TI if n <= NI else W) - 1: flag(F_T1, n - g1[0]); g1.pop()
            if i >= len(seq) and not pend and not g1: break
            kind = seq[i] if i < len(seq) else "k"
            w = TT - 1 if n + 3 >= TT else None
            if kind == "k":
                A(f"s_mov_b32 m0, {kidx*4096}")
                group(srdK, kr, sT2, w)
                A(f"s_add_u32 s{sT2}, s{sT2}, {4096*ST}"); A(f"s_and_b32 s{sT2}, s{sT2}, 0xffff"); kidx += 1
            else:
                srd, vq, so, base, st, fo = {"m": (srdWM, lWM, sT0, SM, 6144, F_M), "q": (srdWQ, lWQ, sT1, S1, 8192, F_W), "r": (srdWM, lWM, sRO, SR, 6144, F_R)}[kind]
                A(f"s_mov_b32 m0, {base + 4096*cnt[kind]}")
                group(srd, [vq+j for j in range(4)], so, w, ntw)
                cnt[kind] += 1
                if cnt[kind] < 4: A(f"s_add_u32 s{so}, s{so}, {32*st}")
                else: pend.append((n + 4, fo))
            n += 4; i += 1
        A(f"s_mov_b32 m0, {kidx*4096}")
        assert kidx < 16
        stamp(1)
        kvloop("L_k3" + sfx, srdK, kr, LV, W)
        stamp(3)
        gv = min((W + 3) // 4, GK)
        assert WV >= W
        late_r = RP == 2 and sfx != "a"
        if late_r:
            if "m" in seq: spin(lF, F_MC, lS)
            for gi in range(4):
                A(f"s_mov_b32 m0, {SM + 4096*gi}")
                group(srdWM, [lWM+j for j in range(4)], sRO, W-1, ntw)
                if gi < 3: A(f"s_add_u32 s{sRO}, s{sRO}, {32*6144}")
            A(f"s_mov_b32 m0, {LV}")
            gk = max(gv - 4, 1)
            kvloop("L_v0" + sfx, srdV, vr, LV + gk*4096, W)
            flag(F_K, min(W-1, 16 + 4*gk))
            if gv > gk: kvloop("L_v1" + sfx, srdV, vr, LV + gv*4096, W)
            flag(F_R, min(W-1, 4*gv))
        else:
            kvloop("L_v1" + sfx, srdV, vr, LV + gv*4096, W)
            flag(F_K, min(W-1, 4*gv))
        stamp(4)
        assert gv < 8
        assert G2r <= 8
        if G2 and G2r > gv:
            kvloop("L_v7" + sfx, srdV, vr, LV + G2r*4096, W)
        if G2: A(f"ds_write_b32 v{lF}, v{lOne} offset:{F_T2}")
        if G2r < 8: kvloop("L_v2" + sfx, srdV, vr, SR, WV)
        if late_r:
            kvloop("L_v6" + sfx, srdV, vr, SM, WV)
            spin(lF, F_RC, lS)
        else:
            if "r" in seq: spin(lF, F_RC, lS)
            if "m" in seq: spin(lF, F_MC, lS)
        if EW and sfx == "a":
            if EW > 8: kvloop("L_v4" + sfx, srdV, vr, LV + EW*4096, WV)
            wo_setup()
            for i in range(8): wog(i)(WV - 1)
            A(f"s_mov_b32 m0, {LV + EW*4096}")
        if EM and sfx == "b":
            if EM > 8: kvloop("L_v4" + sfx, srdV, vr, LV + EM*4096, WV)
            A(f"s_cmp_eq_u32 s{sR}, 23"); A("s_cbranch_scc1 L_v5b")
            mlp_setup()
            for i in range(8): w1g(i)(TME - 1)
            A(f"s_mov_b32 m0, {LV + EM*4096}")
            A("L_v5b:")
        kvloop("L_v3" + sfx, srdV, vr, S0, WV)
        stamp(5)
    A("")
    late_setup(); setup2()
    A(f"s_cmp_ge_u32 s{sR}, 24"); A("s_cbranch_scc1 L_l_crit")
    A(f"s_cmp_lt_u32 s{sR}, 16"); A("s_cbranch_scc1 L_l_light")
    stream("b", "k"*KF + "qqqq" + "rrrr"*(RP == 1), WB, VB)
    A(f"s_sub_u32 s{sT0}, s{sR}, 16"); A(f"s_cmp_lt_u32 s{sT0}, 7"); A("s_cbranch_scc1 L_l_mlp")
    A("s_branch L_l_plain")
    A("L_l_light:")
    stream("a", "k"*KF + ("rrrrqqqq" if RH else "qqqq" + "rrrr"*(RP == 0)), WA, VA)
    A("s_branch L_l_t1")
    A("L_l_crit:")
    stream("c", "mmmm" + "k"*KF + "qqqq" + "rrrr"*(RP == 1), WC, VC, NC)
    if SH:
        A(f"s_cmp_eq_u32 s{sR}, 31"); A("s_cbranch_scc1 L_l_plain")
        A(f"s_sub_u32 s{sR}, s{sR}, 8")
        mlp_setup()
        A(f"s_add_u32 s{sT0}, s{sT0}, {(8-SH+1)*64*3584}")
        flag(F_V, 8)
        A("s_waitcnt vmcnt(0)"); A("s_barrier")
        A("s_barrier")
        backoff(DM)
        if PW == 2:
            A(f"s_and_b32 s{sT3}, s{sX8}, 1"); A(f"s_mul_i32 s{sT3}, s{sT3}, 6"); A(f"s_add_u32 s{sT3}, s{sT3}, s{sR}"); A(f"s_cmp_eq_u32 s{sT3}, 22"); A("s_cbranch_scc0 L_l_sh2")
            A(f"s_lshl_b32 s{sT0}, s{sJ}, 6"); A(f"s_and_b32 s{sT3}, s{sJ}, 1"); A(f"s_xor_b32 s{sT3}, s{sT3}, 1"); A(f"s_mul_i32 s{sT3}, s{sT3}, {4*64*3584}"); A(f"s_add_u32 s{sT0}, s{sT0}, s{sT3}")
            for i in range(4): w1g(i, nts)(TM1 - 1)
            A("L_l_sh2:")
        for i in range(SH - 1): w1g(i, nts)(TM1 - 1)
        for i in range(8): w2g(i, nts)(TMA - 1)
        A("s_branch L_l_end")
    A("L_l_plain:")
    flag(F_V, 8)
    A("s_waitcnt vmcnt(0)"); A("s_barrier")
    if DIRTY:
        A(f"s_cmp_eq_u32 s{sR}, 31"); A("s_cbranch_scc0 L_l_nd")
        A(f"s_load_dwordx2 {s(srdWS,2)}, s[0:1], 96"); srd_tail(srdWS, 0x4000000); A(f"v_lshlrev_b32 v{lT0}, 4, v{vL}")
        smul_add(sT0, [(sX8, "shl", 21)], 0x1000000); A("s_waitcnt lgkmcnt(0)")
        for i in range(DIRTY):
            A(f"buffer_store_dwordx4 {v(lS,4)}, v{lT0}, {s(srdWS,4)}, s{sT0} offen"); A(f"s_add_u32 s{sT0}, s{sT0}, 1024")
        A("L_l_nd:")
    if WBL:
        A(f"s_cmp_eq_u32 s{sR}, 31"); A("s_cbranch_scc0 L_l_end")
        backoff(WBL)
        A("buffer_wbl2 sc1"); A("s_waitcnt vmcnt(0)")
    A("L_l_end:")
    stamp_flush()
    A("s_endpgm")
    def post_v(name, groups, TT, marks):
        n = 0; gi = 0
        def rd(): A(f"ds_read_b128 {v(lS,4)}, v{lF} offset:{F_CR}")
        def ck():
            A("s_waitcnt lgkmcnt(0)")
            A(f"v_min3_u32 v{lS+4}, v{lS}, v{lS+1}, v{lS+2}"); A(f"v_min_u32 v{lS+4}, v{lS+4}, v{lS+3}"); A(f"v_cmp_eq_u32 vcc, 0, v{lS+4}")
        while gi < len(groups) and n - TT < -8: groups[gi](TT - 1); n += 4; gi += 1
        flag(F_V, n + 8)
        rd(); ck()
        while gi < len(groups) and n - TT < 0: groups[gi](TT - 1); n += 4; gi += 1
        g0 = gi
        A(f"s_cbranch_vccnz {name}_late")
        A(f"s_waitcnt vmcnt({n})")
        for g in range(g0, len(groups)):
            if g > g0: A(f"s_branch {name}_c{g}"); A(f"{name}_b{g}:")
            A("s_barrier")
            A(f"{name}_c{g}:")
            groups[g](T3 - 1)
        A(f"s_branch {name}_e")
        A(f"{name}_late:")
        A(f"s_waitcnt vmcnt({n})")
        for g in range(g0, len(groups)):
            if g > g0: ck(); A(f"s_cbranch_vccz {name}_b{g}")
            rd()
            groups[g](T3 - 1)
        A("s_barrier")
        A(f"{name}_e:")
        if marks: A("s_waitcnt vmcnt(0)"); A("s_barrier")
    A("")
    A("L_l_t1:")
    if EW: A("s_branch L_l_plain")
    wo_setup()
    if BT:
        for i in range(BT - 1): wog(i)(VA - 1)
        flag(F_V, 8 + 4*(BT-1))
        A(f"s_waitcnt vmcnt({4*(BT-1)})"); A("s_barrier")
        A("s_barrier")
        for i in range(BT - 1, 8): wog(i)(63)
        A("s_waitcnt vmcnt(0)"); A("s_barrier")
    else:
        post_v("L_pw", [wog(i) for i in range(8)], T2, [32])
    A("s_branch L_l_end")
    A("")
    A("L_l_mlp:")
    if not EM: mlp_setup()
    else: srd_tail(srdW2, 1792*1024)
    def w1s(i):
        def f(w): w1g(i)(min(w, TM1 - 1))
        return f
    def w2s(i):
        def f(w): w2g(i)(TMA - 1)
        return f
    flag(F_V, 8)
    def rd(): A(f"ds_read_b128 {v(lS,4)}, v{lF} offset:{F_CR}")
    def ck():
        A("s_waitcnt lgkmcnt(0)")
        A(f"v_max3_u32 v{lS+4}, v{lS}, v{lS+1}, v{lS+2}"); A(f"v_max_u32 v{lS+4}, v{lS+4}, v{lS+3}"); A(f"v_cmp_eq_u32 vcc, 0, v{lS+4}")
    if EI:
        rd(); ck()
        A("s_waitcnt vmcnt(0)")
        for g in range(8):
            if g: ck()
            A(f"s_cbranch_vccz L_m_b{g}")
            rd()
            w1g(g)(TME - 1)
        A("s_barrier"); A("s_barrier")
        A("s_branch L_m_w2")
        for g in range(8):
            if g: A(f"s_branch L_m_c{g}")
            A(f"L_m_b{g}:")
            A("s_barrier"); A("s_barrier")
            A(f"L_m_c{g}:")
            w1s(g)(63)
        A("L_m_w2:")
    else:
        if PW:
            A(f"s_and_b32 s{sT3}, s{sJ}, 1"); A(f"s_mul_i32 s{sT4}, s{sT3}, {4*64*3584}"); A(f"s_add_u32 s{sT0}, s{sT0}, s{sT4}")
            A(f"s_lshl_b32 m0, s{sT3}, 14"); A(f"s_lshl_b32 s{sT4}, s{sT4}, 1"); A(f"s_lshl_b32 s{sT3}, s{sT3}, 15")
        A("s_waitcnt vmcnt(0)"); A("s_barrier"); A("s_barrier")
        for i in range(8):
            w1g(i, nt1)(TM1 - 1)
            if PW and i == 3: A(f"s_sub_u32 s{sT0}, s{sT0}, s{sT4}"); A(f"s_sub_u32 m0, m0, s{sT3}")
        A("s_mov_b32 m0, 32768")
    for i in range(8): w2s(i)(0)
    A("s_waitcnt vmcnt(0)"); A("s_barrier")
    A("s_branch L_l_end")

    A("L_notloader:")
    A(f"s_load_dwordx2 {s(srdWS,2)}, s[0:1], 96")
    A(f"s_load_dwordx2 {s(srdX,2)}, s[0:1], 0")
    A(f"s_cmp_lg_u32 s{sWV}, 1"); A("s_cbranch_scc1 L_compute")

    H = Regs(4)
    srdC, srdCode = 4, 24
    hT0 = H.a(); hT1 = H.a(); hT2 = H.a(); hT3 = H.a()
    hE = H.a(); hC = H.a(2); hX0 = H.a(4, 4); hX1 = H.a(4, 4); hXa = H.a(); hXb = H.a()
    hTR = H.a(4); hA = H.a(16, 4); hB = H.a(64, 4); hBq = H.a(64, 4); hD = H.a(16, 4); hF = H.a(4, 4)
    hM = H.a(4); hU = H.a(12, 4); hL16 = H.a(); hAcc = H.a(); hDum = H.a(); hFl = H.a(); hOne = H.a()
    xn = H.a(4); hHa = H.a(); hHr = H.a(); hQa = H.a(); hGa = H.a(); hGr = H.a()
    hG, hN = vG, vN
    A("")
    A("s_setprio 2")
    A(f"s_load_dwordx2 {s(srdC,2)}, s[0:1], 64")
    A(f"s_lshr_b32 s{sRHO}, s{sR}, 3")
    prod_decode()
    def c_addr(t0, t1):
        A(f"v_and_b32 v{t0}, 1, v{vN}"); A(f"v_lshlrev_b32 v{t0}, 10, v{t0}")
        A(f"v_lshrrev_b32 v{t1}, 1, v{vN}"); A(f"v_lshl_or_b32 v{t0}, v{t1}, 5, v{t0}"); A(f"v_lshl_or_b32 v{t0}, v{vG}, 3, v{t0}")
    c_addr(hT0, hT1)
    A(f"v_lshlrev_b32 v{hL16}, 4, v{vL}"); A(f"v_mov_b32 v{hT2}, 0"); A(f"v_lshlrev_b32 v{hT3}, 2, v{vL}")
    srd_tail(srdWS, WSN); srd_tail(srdC, 2048); srd_tail(srdX, 2048)
    A(f"s_lshl_b32 s{sT0}, s{P['rp']}, 8"); A(f"s_lshl_b32 s{sT1}, s{sRHO}, 8")
    A("s_waitcnt lgkmcnt(0)")
    A(f"buffer_load_dword v{hE}, v{hT2}, {s(srdWS,4)}, 0 offen sc1")
    A(f"buffer_load_dwordx2 {v(hC,2)}, v{hT0}, {s(srdC,4)}, s{sT0} offen")
    A(f"buffer_load_dwordx4 {v(hX0,4)}, v{hL16}, {s(srdX,4)}, 0 offen")
    A(f"buffer_load_dwordx4 {v(hX1,4)}, v{hL16}, {s(srdX,4)}, 0 offen offset:1024")
    for i in range(4): A(f"v_mov_b32 v{hF+i}, -1")
    A(f"v_mov_b32 v{hFl}, {FL}"); A(f"v_mov_b32 v{hOne}, 1")
    A("")
    smul_add(sT0, [(sX8, "shl", 15), (sR, "shl", 10)], OPA)
    hTch = hBq
    if OT: A(f"buffer_load_dwordx4 {v(hTch,4)}, v{hL16}, {s(srdWS,4)}, s{sT0} offen")
    A(f"buffer_store_dwordx4 {v(hF,4)}, v{hL16}, {s(srdWS,4)}, s{sT0} offen")
    sQA = 32
    A(f"v_and_b32 v{hT0}, 1, v{hG}"); A(f"v_lshlrev_b32 v{hT0}, 13, v{hT0}"); A(f"v_lshrrev_b32 v{hT1}, 1, v{hG}"); A(f"v_lshl_or_b32 v{hT0}, v{hT1}, 6, v{hT0}")
    A(f"v_and_b32 v{hT1}, 1, v{hN}"); A(f"v_lshl_or_b32 v{hT0}, v{hT1}, 7, v{hT0}"); A(f"v_cmp_eq_u32 {s(sM0,2)}, 1, v{hT1}")
    A(f"v_lshrrev_b32 v{hT1}, 1, v{hN}"); A(f"v_lshl_or_b32 v{hQa}, v{hT1}, 3, v{hT0}")
    A(f"s_and_b32 s{sT4}, s{sR}, 7")
    smul_add(sQA, [(sX8, "shl", 14), (sRHO, "shl", 11), (sT4, "shl", 8)], QPA)
    if QT:
        A(f"buffer_load_dwordx2 {v(hU+8,2)}, v{hQa}, {s(srdWS,4)}, s{sQA} offen")
    A(f"s_cmp_lg_u32 s{sS}, 0"); A("s_cbranch_scc1 L_h_c2")
    smul_add(sT0, [(sX8, "shl", 10), (sB, "shl", 9)], STA)
    setexec(0xffffffff)
    if OT: A(f"buffer_load_dwordx4 {v(hTch+4,4)}, v{hL16}, {s(srdWS,4)}, s{sT0} offen")
    A(f"buffer_store_dwordx4 {v(hF,4)}, v{hL16}, {s(srdWS,4)}, s{sT0} offen")
    A("s_mov_b64 exec, -1")
    A("L_h_c2:")
    A(f"s_cmp_ge_u32 s{sR}, 16"); A("s_cbranch_scc1 L_h_c3")
    smul_add(sT0, [(sX8, "mul", YX), (sR, "shl", 9)], YA)
    A(f"s_mul_i32 s{sT1}, s{sR}, {16-512}"); A(f"s_add_u32 s{sT1}, s{sT1}, 8192")
    A(f"v_mov_b32 v{hT0}, v{hL16}"); A(f"v_writelane_b32 v{hT0}, s{sT1}, 32")
    setexec(0x1ffffffff)
    if OT: A(f"buffer_load_dwordx4 {v(hTch+8,4)}, v{hT0}, {s(srdWS,4)}, s{sT0} offen")
    A(f"buffer_store_dwordx4 {v(hF,4)}, v{hT0}, {s(srdWS,4)}, s{sT0} offen")
    A("s_mov_b64 exec, -1")
    A("L_h_c3:")
    if CODE_PF:
        A(f"s_getpc_b64 {s(srdCode,2)}")
        A("L_pc:")
        A(f"s_sub_u32 s{srdCode}, s{srdCode}, L_pc-{NAME}_kernel"); A(f"s_subb_u32 s{srdCode+1}, s{srdCode+1}, 0")
        srd_tail(srdCode, f"L_code_end-{NAME}_kernel")
        A(f"v_lshlrev_b32 v{hT1}, 7, v{vL}"); A(f"s_mul_i32 s{sT0}, s{sR}, 768")
        A("s_mov_b64 exec, 0x3f")
        A(f"buffer_load_dword v{hDum}, v{hT1}, {s(srdCode,4)}, s{sT0} offen")
        A("s_mov_b64 exec, -1")
    NPF = 1 if CODE_PF else 0
    def tr128_base(dst4, t0, t1, lbase):
        A(f"v_lshrrev_b32 v{t0}, 2, v{vL}"); A(f"v_bfe_u32 v{t1}, v{vL}, 3, 2")
        A(f"v_lshlrev_b32 v{t1}, 5, v{t1}"); A(f"v_lshl_or_b32 v{t0}, v{t0}, 7, v{t1}")
        A(f"v_and_b32 v{t1}, 3, v{vL}"); A(f"v_lshl_or_b32 v{t0}, v{t1}, 3, v{t0}")
        A(f"v_add_u32 v{dst4}, {lbase}, v{t0}")
        for t in range(1, 4): A(f"v_xor_b32 v{dst4+t}, {32*t}, v{dst4}")
    def tr128_read(dst, base4, off):
        for sg in range(4):
            for t in range(4):
                for u in range(2):
                    A(f"ds_read_b64_tr_b16 {v(dst + (sg*4 + t)*4 + 2*u, 2)}, v{base4+t} offset:{off + (32*sg + 16*u)*128}")
    A("s_barrier")
    tr128_base(hTR, hT0, hT1, SM)
    A(f"s_getreg_b32 s{sTQ}, hwreg(HW_REG_XCC_ID, 0, 3)")
    dot_consts()
    stamp(1)
    A(f"s_waitcnt vmcnt({2+1+OT+QT+NPF})")
    A(f"v_readfirstlane_b32 s{sTAG}, v{hE}")
    A(f"s_add_u32 s{sTAG}, s{sTAG}, 0x9E3779B1")
    A(f"s_add_u32 s{sTQ}, s{sTQ}, s{sTAG}")
    def mod_block(rC, rU, rA, rB, rD, rTR, rT0, rT1, rFl, rOne, crit):
        A(f"v_lshlrev_b32 v{rU+0}, 16, v{rC}"); A(f"v_and_b32 v{rU+1}, 0xffff0000, v{rC}")
        A(f"v_lshlrev_b32 v{rU+2}, 16, v{rC+1}"); A(f"v_and_b32 v{rU+3}, 0xffff0000, v{rC+1}")
        for i in range(4): A(f"v_mul_f32 v{rU+4+i}, {hex(f2u(-LOG2E))}, v{rU+i}")
        for i in range(4): A(f"v_exp_f32 v{rU+4+i}, v{rU+4+i}")
        for i in range(4): A(f"v_add_f32 v{rU+4+i}, 1.0, v{rU+4+i}")
        for i in range(4): A(f"v_rcp_f32 v{rU+4+i}, v{rU+4+i}")
        for i in range(4): A(f"v_mul_f32 v{rU+i}, v{rU+i}, v{rU+4+i}")
        A(f"v_cvt_pk_bf16_f32 v{rA}, v{rU}, v{rU+1}"); A(f"v_cvt_pk_bf16_f32 v{rA+1}, v{rU+2}, v{rU+3}")
        for sg in range(4):
            for q in range(4):
                sh = 4*sg + 2*(q >> 1)
                if sh: A(f"v_mov_b32_dpp v{rA+4*sg+q}, v{rA+(q&1)} row_shl:{sh} row_mask:0xf bank_mask:0xf bound_ctrl:1")
        smul_add(sT0, [(P['cl'], "shl", 11), (P['rp'], "shl", 9)], MODP)
        A(f"v_lshlrev_b32 v{rT0}, 3, v{vL}")
        A(f"v_mov_b32 v{rU+1}, s{sTAG}")
        if PT & (8 if crit else 16): A(f"buffer_load_dwordx2 {v(rD,2)}, v{rT0}, {s(srdWS,4)}, s{sT0} offen")
        spin(rFl, F_M if crit else F_R, rT1, sleep=0 if crit else 2)
        if crit: stamp(2)
        tr128_read(rB, rTR, 0)
        A(f"ds_write_b32 v{rFl}, v{rOne} offset:{F_MC if crit else F_RC}")
        if PT & (8 if crit else 16): A("s_waitcnt vmcnt(0)")
        for sg in range(4):
            A(f"s_waitcnt lgkmcnt({lg(25-8*sg)})")
            for t in range(4):
                A(f"v_mfma_f32_16x16x32_bf16 {v(rD+4*t,4)}, {v(rA+4*sg,4)}, {v(rB+(sg*4+t)*4,4)}, {'0' if sg == 0 else v(rD+4*t,4)}")
        for t in range(4): A(f"v_cvt_pk_bf16_f32 v{rU+2*t}, v{rD+4*t}, v{rD+4*t+1}")
        A(f"v_permlane16_swap_b32 v{rU}, v{rU+2}"); A(f"v_permlane16_swap_b32 v{rU+4}, v{rU+6}")
        A(f"v_permlane32_swap_b32 v{rU}, v{rU+4}")
        A(f"buffer_store_dwordx2 {v(rU,2)}, v{rT0}, {s(srdWS,4)}, s{sT0} offen sc1")
        if crit and PZ >= 0: A(f"ds_write_b32 v{rFl}, v{rOne} offset:{F_MP}")
        if crit: stamp(3)
    A("")
    A(f"s_cmp_lt_u32 s{sR}, 24"); A("s_cbranch_scc1 L_h_m1")
    mod_block(hC, hU, hA, hB, hD, hTR, hT0, hT1, hFl, hOne, True)
    if RH:
        A("s_branch L_h_m2")
        A("L_h_m1:")
        A(f"s_cmp_lt_u32 s{sR}, 16"); A("s_cbranch_scc0 L_h_m2")
        A(f"s_lshr_b32 s{P['cl']}, s2, 2"); A(f"s_add_u32 s{P['cl']}, s{P['cl']}, 16")
        for t in range(4): A(f"v_subrev_u32 v{hTR+t}, {SM-SR}, v{hTR+t}")
        A("s_waitcnt vmcnt(0)")
        mod_block(hC, hU, hA, hB, hD, hTR, hT0, hT1, hFl, hOne, False)
        for t in range(4): A(f"v_add_u32 v{hTR+t}, {SM-SR}, v{hTR+t}")
        A("s_branch L_h_m3")
        A("L_h_m2:")
        A("s_waitcnt vmcnt(0)")
        A("L_h_m3:")
    else:
        A("L_h_m1:")
    A(f"v_lshrrev_b32 v{hT0}, 5, v{vL}"); A(f"v_and_b32 v{hT1}, 31, v{vL}"); A(f"v_lshlrev_b32 v{hT1}, 4, v{hT1}"); A(f"v_lshl_or_b32 v{hGa}, v{hT0}, 11, v{hT1}")
    A(f"s_lshl_b32 s{sT0}, s{sRHO}, 12"); A(f"s_add_u32 s{sT0}, s{sT0}, {MODP}"); A(f"s_add_u32 s{sT1}, s{sT0}, {8*2048}")
    def modp_loads():
        for rp in range(4):
            A(f"buffer_load_dwordx4 {v(hB+4*rp,4)}, v{hGa}, {s(srdWS,4)}, s{sT0} offen offset:{rp*512} sc1")
            A(f"buffer_load_dwordx4 {v(hB+16+4*rp,4)}, v{hGa}, {s(srdWS,4)}, s{sT1} offen offset:{rp*512} sc1")
    A("")
    if not RH: A("s_waitcnt vmcnt(0)")
    spin(hFl, F_T1, hT1, sleep=1)
    stamp(10)
    modp_loads()
    def unpack(dst, src, n):
        for i in range(n):
            A(f"v_lshlrev_b32 v{dst+2*i}, 16, v{src+i}"); A(f"v_and_b32 v{dst+2*i+1}, 0xffff0000, v{src+i}")
    def allreduce64(regs, op, tmp):
        for pat in ("quad_perm:[1,0,3,2]", "quad_perm:[2,3,0,1]", "row_half_mirror", "row_mirror"):
            for r in regs: A(f"{op}_dpp v{r}, v{r}, v{r} {pat} row_mask:0xf bank_mask:0xf bound_ctrl:1")
        for sw in ("v_permlane16_swap_b32", "v_permlane32_swap_b32"):
            for i, r in enumerate(regs): A(f"v_mov_b32 v{tmp+i}, v{r}")
            for i, r in enumerate(regs): A(f"{sw} v{tmp+i}, v{r}")
            for i, r in enumerate(regs): A(f"{op} v{r}, v{r}, v{tmp+i}")
    xs = hB + 32
    A(f"s_lshl_b32 s{sT4}, s{sRHO}, 6"); A(f"v_and_b32 v{hT0}, 60, v{vL}"); A(f"v_add_u32 v{hT0}, s{sT4}, v{hT0}")
    for b, src in enumerate((hX0, hX1)):
        for i in range(4): A(f"ds_bpermute_b32 v{hD+4*b+i}, v{hT0}, v{src+i}")
    unpack(xs, hX0, 4); unpack(xs+8, hX1, 4)
    for b in range(2):
        A(f"v_add_f32 v{hM+b}, v{xs+8*b}, v{xs+8*b+1}")
        for i in range(2, 8): A(f"v_add_f32 v{hM+b}, v{hM+b}, v{xs+8*b+i}")
    allreduce64([hM, hM+1], "v_add_f32", hU)
    for b in range(2): A(f"v_mul_f32 v{hM+b}, {hex(f2u(1/512))}, v{hM+b}")
    for b in range(2):
        for i in range(8): A(f"v_sub_f32 v{xs+8*b+i}, v{xs+8*b+i}, v{hM+b}")
        A(f"v_mul_f32 v{hM+2+b}, v{xs+8*b}, v{xs+8*b}")
        for i in range(1, 8): A(f"v_fmac_f32 v{hM+2+b}, v{xs+8*b+i}, v{xs+8*b+i}")
    allreduce64([hM+2, hM+3], "v_add_f32", hU)
    for b in range(2): A(f"v_mov_b32 v{hU+b}, {hex(f2u(1e-5))}"); A(f"v_fmac_f32 v{hU+b}, {hex(f2u(1/512))}, v{hM+2+b}")
    for b in range(2): A(f"v_rsq_f32 v{hM+2+b}, v{hU+b}")
    A("s_waitcnt lgkmcnt(0)")
    A(f"v_and_b32 v{hT0}, 1, v{vL}"); A(f"v_cmp_eq_u32 vcc, 1, v{hT0}")
    for b in range(2):
        A(f"v_cndmask_b32 v{hD+4*b}, v{hD+4*b}, v{hD+4*b+1}, vcc"); A(f"v_cndmask_b32 v{hD+4*b+2}, v{hD+4*b+2}, v{hD+4*b+3}, vcc")
    A(f"v_and_b32 v{hT0}, 2, v{vL}"); A(f"v_cmp_eq_u32 vcc, 2, v{hT0}")
    A(f"v_cndmask_b32 v{hXa}, v{hD}, v{hD+2}, vcc"); A(f"v_cndmask_b32 v{hXb}, v{hD+4}, v{hD+6}, vcc")
    unpack(xn, hXa, 1); unpack(xn+2, hXb, 1)
    for b in range(2):
        for c in range(2):
            A(f"v_sub_f32 v{xn+2*b+c}, v{xn+2*b+c}, v{hM+b}"); A(f"v_mul_f32 v{xn+2*b+c}, v{xn+2*b+c}, v{hM+2+b}")
    spin(hFl, F_W, hT1)
    tr128_read(hBq, hTR, S1 - SM)
    def perm_pos(dst, src, t1, hi):
        A(f"v_bfe_u32 v{dst}, v{src}, 1, 2"); A(f"v_lshlrev_b32 v{dst}, {hi}, v{dst}")
        A(f"v_and_b32 v{t1}, 8, v{src}"); A(f"v_or_b32 v{dst}, v{dst}, v{t1}"); A(f"v_and_b32 v{t1}, 1, v{src}"); A(f"v_lshl_or_b32 v{dst}, v{t1}, 2, v{dst}")
    perm_pos(hT0, vL, hT1, 4); A(f"v_lshl_or_b32 v{hT0}, v{hG}, 6, v{hT0}"); A(f"v_add_u32 v{hHa}, {HS}, v{hT0}")
    A(f"v_bfe_u32 v{hT1}, v{vL}, 2, 1"); A(f"v_lshlrev_b32 v{hT1}, 8, v{hT1}"); A(f"v_lshl_or_b32 v{hT1}, v{hG}, 4, v{hT1}"); A(f"v_add_u32 v{hHr}, {HS}, v{hT1}")
    A(f"s_mov_b32 s{sT6}, s{sQA}"); A(f"s_add_u32 s{sT5}, s{sT6}, {QB}")
    A(f"v_lshlrev_b32 v{hT0}, 14, v{hG}"); A(f"v_lshl_or_b32 v{hGr}, v{hN}, 4, v{hT0}")
    A(f"s_lshr_b32 s{sT4}, s{sR}, 1"); A(f"s_and_b32 s{sT3}, s{sR}, 1")
    smul_add(sT2, [(sT4, "shl", 11), (sT3, "shl", 8)], MODP + 16*2048)
    A(f"v_mov_b32 v{hF+1}, s{sTQ}"); A(f"v_mov_b32 v{hF+3}, s{sTQ}")
    poll("L_h_p1", modp_loads, lambda: tagcheck([hB+4*i+k for i in range(8) for k in (1, 3)], hAcc))
    stamp(4)
    if dbg and not FINE: A(f"s_mov_b32 s80, s{sCNT}")
    A("")
    sum_pairs(hU, [hB+4*i for i in range(4)]); sum_pairs(hU+4, [hB+16+4*i for i in range(4)])
    for c in range(2):
        for b in range(2):
            A(f"v_add_f32 v{hU+4+2*c+b}, 1.0, v{hU+4+2*c+b}")
            A(f"v_fmac_f32 v{hU+2*c+b}, v{xn+2*b+c}, v{hU+4+2*c+b}")
    A(f"v_cvt_pk_bf16_f32 v{hU+8}, v{hU}, v{hU+2}"); A(f"v_cvt_pk_bf16_f32 v{hU+9}, v{hU+1}, v{hU+3}")
    A(f"ds_write_b32 v{hHa}, v{hU+8}"); A(f"ds_write_b32 v{hHa}, v{hU+9} offset:256")
    for sg in range(4): A(f"ds_read_b128 {v(hA+4*sg,4)}, v{hHr} offset:{64*sg}")
    for sg in range(4):
        A(f"s_waitcnt lgkmcnt({lg(3-sg)})")
        for t in range(4):
            A(f"v_mfma_f32_16x16x32_bf16 {v(hD+4*t,4)}, {v(hA+4*sg,4)}, {v(hBq+(sg*4+t)*4,4)}, {'0' if sg == 0 else v(hD+4*t,4)}")
    A(f"v_mov_b32 v{hT1}, s{sTAG}"); A(f"ds_write_b32 v{hFl}, v{hT1} offset:{TAGL-FL}")
    A(f"v_mov_b32 v{hF}, v{hD}"); A(f"v_mov_b32 v{hF+2}, v{hD+8}")
    A(f"v_mov_b32_dpp v{hF}, v{hD+4} quad_perm:[0,1,2,3] row_mask:0xc bank_mask:0xf")
    A(f"v_mov_b32_dpp v{hF+2}, v{hD+12} quad_perm:[0,1,2,3] row_mask:0xc bank_mask:0xf")
    A(f"v_mov_b32_dpp v{hU}, v{hF} quad_perm:[1,0,3,2] row_mask:0xf bank_mask:0xf bound_ctrl:1")
    A(f"v_mov_b32_dpp v{hU+1}, v{hF+2} quad_perm:[1,0,3,2] row_mask:0xf bank_mask:0xf bound_ctrl:1")
    A(f"v_cvt_pk_bf16_f32 v{hF}, v{hF}, v{hU}"); A(f"v_cvt_pk_bf16_f32 v{hF+2}, v{hU+1}, v{hF+2}")
    A(f"v_cndmask_b32 v{hF}, v{hF}, v{hF+2}, {s(sM0,2)}")
    A(f"buffer_store_dwordx2 {v(hF,2)}, v{hQa}, {s(srdWS,4)}, s{sT6} offen")
    A(f"ds_write_b32 v{hFl}, v{hOne} offset:{F_QP}")
    if not QBD: A(f"buffer_store_dwordx2 {v(hF,2)}, v{hQa}, {s(srdWS,4)}, s{sT5} offen sc1")
    stamp(5)
    A(f"s_cmp_ge_u32 s{sR}, 16"); A("s_cbranch_scc1 " + ("L_h_rest" if RP == 2 else "L_h_qb" if QBD else "L_h_end"))
    A("")
    hPr = hA
    def par_loads():
        for rp in range(4):
            A(f"buffer_load_dwordx4 {v(hPr+4*rp,4)}, v{hGr}, {s(srdWS,4)}, s{sT2} offen offset:{rp*512} sc1")
    backoff(DP)
    par_loads()
    if PT & 4:
        A(f"v_and_b32 v{hT0}, 7, v{vL}"); A(f"v_lshlrev_b32 v{hT0}, 12, v{hT0}")
        A(f"s_lshr_b32 s{sT3}, s{sR}, 2"); A(f"s_and_b32 s{sT4}, s{sR}, 3")
        smul_add(sT1, [(sT4, "shl", 15), (sX8, "shl", 9), (sT3, "shl", 7)], AP)
        A("s_mov_b64 exec, 0xff")
        A(f"buffer_load_dword v{hDum}, v{hT0}, {s(srdWS,4)}, s{sT1} offen")
        A("s_mov_b64 exec, -1")
    A(f"v_cmp_eq_u32 vcc, 2, v{hG}"); A(f"v_cndmask_b32 v{hT2}, 0, 1.0, vcc")
    A(f"v_lshlrev_b32 v{hT0}, 8, v{hG}"); A(f"v_lshl_or_b32 v{hT0}, v{hN}, 3, v{hT0}"); A(f"v_add_u32 v{hT3}, {PAR}, v{hT0}")
    perm_pos(hT0, hN, hT1, 6); A(f"v_and_b32 v{hT1}, 1, v{hG}"); A(f"v_lshl_or_b32 v{hT0}, v{hT1}, 4, v{hT0}")
    smul_add(sT0, [(sX8, "mul", YX), (sR, "shl", 9)], YA)
    poll("L_h_p2", par_loads, lambda: tagcheck([hPr+4*i+k for i in range(4) for k in (1, 3)], hAcc))
    stamp(6)
    if dbg and not FINE: A(f"s_mov_b32 s82, s{sCNT}")
    sum_pairs(hU, [hPr+4*i for i in range(4)])
    def round_pairs():
        A(f"v_cvt_pk_bf16_f32 v{hU+4}, v{hU}, v{hU+2}"); A(f"v_cvt_pk_bf16_f32 v{hU+5}, v{hU+1}, v{hU+3}")
        for b in range(2):
            A(f"v_lshlrev_b32 v{hU+b}, 16, v{hU+4+b}"); A(f"v_and_b32 v{hU+2+b}, 0xffff0000, v{hU+4+b}")
    round_pairs()
    for i in range(4): A(f"v_add_f32 v{hU+i}, v{hU+i}, v{hT2}")
    round_pairs()
    A(f"v_mov_b32 v{hU+6}, v{hU}"); A(f"v_mov_b32 v{hU+7}, v{hU+2}"); A(f"v_mov_b32 v{hU+8}, v{hU+1}"); A(f"v_mov_b32 v{hU+9}, v{hU+3}")
    A(f"ds_write_b64 v{hT3}, {v(hU+6,2)}"); A(f"ds_write_b64 v{hT3}, {v(hU+8,2)} offset:128")
    def qb_wait(lbl):
        A(f"s_mov_b32 s{sCNT}, 0")
        A(f"{lbl}:")
        A(f"ds_read_b128 {v(hD,4)}, v{hFl} offset:{F_Q}")
        A(f"s_add_u32 s{sCNT}, s{sCNT}, 1"); A(f"s_cmp_eq_u32 s{sCNT}, {NQ}"); A(f"s_cbranch_scc0 {lbl}_n")
        A(f"buffer_store_dwordx2 {v(hF,2)}, v{hQa}, {s(srdWS,4)}, s{sT5} offen sc1")
        A(f"{lbl}_n:")
        A("s_waitcnt lgkmcnt(0)")
        A(f"v_min3_u32 v{hD+4}, v{hD}, v{hD+1}, v{hD+2}"); A(f"v_min_u32 v{hD+4}, v{hD+4}, v{hD+3}"); A(f"v_cmp_eq_u32 vcc, 0, v{hD+4}")
        A(f"s_cbranch_vccz {lbl}_x"); A("s_sleep 2"); A(f"s_branch {lbl}")
        A(f"{lbl}_x:")
        A(f"v_max3_u32 v{hD+4}, v{hD}, v{hD+1}, v{hD+2}"); A(f"v_max_u32 v{hD+4}, v{hD+4}, v{hD+3}"); A(f"v_cmp_lt_u32 vcc, 1, v{hD+4}")
        A(f"s_cbranch_vccz {lbl}_y")
        A(f"buffer_store_dwordx2 {v(hF,2)}, v{hQa}, {s(srdWS,4)}, s{sT5} offen sc1")
        A(f"{lbl}_y:")
    if QBD: qb_wait("L_h_qw1")
    else: spin(hFl, F_Q, hD, 4, sleep=1)
    A(f"v_max3_u32 v{hD}, v{hD}, v{hD+1}, v{hD+2}"); A(f"v_max_u32 v{hD}, v{hD}, v{hD+3}")
    A(f"v_cmp_lt_u32 vcc, 1, v{hD}")
    A("s_cbranch_vccnz L_h_cprem")
    setexec(0xffffffff0000)
    for b in range(2): A(f"buffer_store_dword v{hU+4+b}, v{hT0}, {s(srdWS,4)}, s{sT0} offen offset:{256+32*b}")
    A("L_h_end:")
    A("s_waitcnt lgkmcnt(0)")
    stamp(7)
    stamp_flush()
    A("s_endpgm")
    if RP == 2:
        A("L_h_rest:")
        A(f"s_lshr_b32 s{P['cl']}, s2, 2"); A(f"s_sub_u32 s{P['cl']}, s{P['cl']}, 16")
        mod_block(hC, hU, hA, hB, hD, hTR, hT0, hT1, hFl, hOne, False)
        A("s_branch L_h_end")
    if QBD:
        A("L_h_qb:")
        qb_wait("L_h_qw2")
        A("s_branch L_h_end")
    A("L_h_cprem:")
    A(f"s_add_u32 s{sT0}, s{sT0}, {YBO}")
    setexec(0xffffffff0000)
    for b in range(2): A(f"buffer_store_dword v{hU+4+b}, v{hT0}, {s(srdWS,4)}, s{sT0} offen offset:{256+32*b} sc1")
    smul_add(sT0, [(sX8, "shl", 7), (sR, "shl", 2)], CF)
    flagset(hU, sT0)
    A("s_branch L_h_end")
    for blk in out_of_line: blk()
    out_of_line.clear()

    A("")
    A("L_compute:")
    R = Regs(4)
    srdO = 32
    vT0 = R.a(); vT1 = R.a(); vT2 = R.a(); vT3 = R.a(); vFl = R.a(); vH4 = R.a(); vC3 = R.a(); vFw = R.a(); vOne = R.a()
    vKa = R.a(4); vQa = R.a(); vVa = R.a(2); vTRV = R.a(); vMLw = R.a(); vMLr = R.a(); vPw = R.a(); vPr = R.a(); vOa = R.a(); vSa = R.a(); vL16 = R.a(); vQw = R.a(); vQg = R.a()
    vM = R.a(); vLs = R.a(); vMc = R.a(); vU = R.a(8, 4); vS = R.a(16, 4); vSt = R.a(2, 2)
    vKb = R.a(64, 4); vQ = R.a(48, 4); vO = R.a(8, 4); vX = R.a(24, 4); vG2 = R.a(32, 4)
    vP = vKb; vVb = vKb + 32
    A(f"s_sub_u32 s{sW}, s{sWV}, 2")
    A("s_waitcnt lgkmcnt(0)")
    A("s_barrier")
    if TLB:
        A(f"s_cmp_eq_u32 s{sR}, 23"); A("s_cbranch_scc0 L_c_notlb")
        A(f"s_cmp_eq_u32 s{sW}, 2"); A("s_cbranch_scc0 L_c_notlb")
        A("s_load_dwordx2 s[20:21], s[0:1], 16"); A("s_load_dwordx2 s[24:25], s[0:1], 32")
        A("s_load_dwordx2 s[4:5], s[0:1], 48"); A("s_load_dwordx2 s[8:9], s[0:1], 56")
        srd_tail(20, 0x8000000); srd_tail(24, 4096*1024); srd_tail(4, 512*3584); srd_tail(8, 1792*1024)
        A(f"v_lshlrev_b32 v{vT0}, 16, v{vL}"); A(f"v_and_b32 v{vT1}, 1, v{vG}"); A(f"v_lshlrev_b32 v{vT1}, 26, v{vT1}"); A(f"v_lshl_or_b32 v{vT1}, v{vN}, 16, v{vT1}")
        smul_add(sT0, [(sX8, "shl", 23)], 28672*256 + 65536 - 128); smul_add(sT1, [(sX8, "shl", 19)]); smul_add(sT2, [(sX8, "shl", 7)]); smul_add(sT3, [(sX8, "mul", 7*32768)])
        backoff(TLB)
        A("s_waitcnt lgkmcnt(0)")
        setexec(0xffffffff)
        A(f"buffer_load_dword v{vG2}, v{vT1}, s[20:23], s{sT0} offen")
        A(f"buffer_load_dword v{vG2+1}, v{vT0}, s[4:7], s{sT2} offen")
        A("s_mov_b64 exec, 0xff")
        A(f"buffer_load_dword v{vG2+2}, v{vT0}, s[24:27], s{sT1} offen")
        A("s_mov_b64 exec, 0xf")
        A(f"buffer_load_dword v{vG2+3}, v{vT0}, s[8:11], s{sT3} offen")
        A("s_mov_b64 exec, -1")
        A("L_c_notlb:")
    A(f"s_load_dwordx2 {s(srdO,2)}, s[0:1], 80")
    if DUR: A("s_load_dwordx2 s[88:89], s[0:1], 88")
    A(f"v_mov_b32 v{vFl}, {FL}"); A(f"v_mov_b32 v{vOne}, 1"); A(f"s_lshl_b32 s{sT0}, s{sW}, 2"); A(f"v_add_u32 v{vFw}, s{sT0}, v{vFl}")
    A(f"v_and_b32 v{vH4}, 3, v{vN}"); A(f"v_and_b32 v{vC3}, 3, v{vL}"); A(f"v_lshlrev_b32 v{vL16}, 4, v{vL}")
    A(f"v_xor_b32 v{vT0}, v{vG}, v{vN}"); A(f"v_lshlrev_b32 v{vT0}, 4, v{vT0}"); A(f"v_lshl_or_b32 v{vT0}, v{vN}, 8, v{vT0}")
    A(f"s_lshl_b32 s{sT0}, s{sW}, 14"); A(f"v_add_u32 v{vKa}, s{sT0}, v{vT0}")
    for sg in range(1, 4): A(f"v_xor_b32 v{vKa+sg}, {64*sg}, v{vKa}")
    A(f"v_mul_u32_u24 v{vT0}, 288, v{vH4}"); A(f"v_lshl_add_u32 v{vT0}, v{vG}, 4, v{vT0}"); A(f"v_add_u32 v{vQa}, {QL}, v{vT0}")
    A(f"v_lshrrev_b32 v{vT0}, 2, v{vL}"); A(f"v_and_b32 v{vT1}, 7, v{vT0}"); A(f"v_lshlrev_b32 v{vT1}, 5, v{vT1}"); A(f"v_lshl_or_b32 v{vT0}, v{vT0}, 8, v{vT1}")
    A(f"v_lshl_or_b32 v{vTRV}, v{vC3}, 3, v{vT0}")
    A(f"s_lshl_b32 s{sT0}, s{sW}, 6"); A(f"v_xor_b32 v{vT0}, s{sT0}, v{vTRV}"); A(f"v_add_u32 v{vVa}, {LV}, v{vT0}"); A(f"v_xor_b32 v{vVa+1}, 32, v{vVa}")
    A(f"v_lshlrev_b32 v{vT0}, 5, v{vH4}"); A(f"v_add_u32 v{vMLr}, {ML}, v{vT0}"); A(f"s_lshl_b32 s{sT0}, s{sW}, 3"); A(f"v_add_u32 v{vMLw}, s{sT0}, v{vMLr}")
    A(f"v_lshlrev_b32 v{vT0}, 6, v{vG}"); A(f"v_lshl_or_b32 v{vT0}, v{vH4}, 4, v{vT0}"); A(f"v_add_u32 v{vPr}, {PX}, v{vT0}")
    A(f"v_lshrrev_b32 v{vT0}, 3, v{vN}"); A(f"v_bfe_u32 v{vT1}, v{vN}, 2, 1"); A(f"v_lshlrev_b32 v{vT1}, 3, v{vT1}"); A(f"v_lshl_or_b32 v{vT0}, v{vT0}, 8, v{vT1}")
    A(f"s_lshl_b32 s{sT0}, s{sW}, 9"); A(f"v_add3_u32 v{vPw}, v{vT0}, s{sT0}, v{vPr}")
    A(f"v_lshlrev_b32 v{vOa}, 12, v{vH4}"); A(f"v_lshl_or_b32 v{vOa}, v{vG}, 8, v{vOa}"); A(f"v_lshlrev_b32 v{vSa}, 7, v{vH4}")
    A(f"s_mul_i32 s{sT5}, s{sW}, 288"); A(f"s_add_u32 s{sT5}, s{sT5}, {QL}")
    A(f"v_and_b32 v{vT0}, 31, v{vL}"); A(f"v_lshrrev_b32 v{vT1}, 5, v{vL}"); A(f"v_lshlrev_b32 v{vQg}, 4, v{vT0}"); A(f"v_lshl_or_b32 v{vQg}, v{vT1}, 11, v{vQg}")
    A(f"v_lshl_or_b32 v{vT0}, v{vT0}, 1, v{vT1}"); A(f"v_lshl_add_u32 v{vQw}, v{vT0}, 2, s{sT5}")
    A(f"v_cmp_gt_u32 {s(sM0,2)}, 4, v{vN}")
    A(f"s_cmp_eq_u32 s{sW}, 0"); A(f"s_cselect_b64 {s(sM1,2)}, 15, 0")
    sOA, sSA, sSC = 4, 5, 6
    smul_add(sOA, [(sX8, "shl", 15), (sB, "shl", 14), (sW, "shl", 10), (sS, "shl", 4)], OPA)
    smul_add(sSA, [(sX8, "shl", 10), (sB, "shl", 9), (sS, "shl", 3)], STA)
    A(f"s_mov_b32 s{sSC}, {hex(SC)}")
    dot_consts()
    A(f"s_getreg_b32 s{sTQ}, hwreg(HW_REG_XCC_ID, 0, 3)")
    srd_tail(srdWS, WSN); srd_tail(srdX, 2048); srd_tail(srdO, 2048)
    tSa = vX; tX = vX + 1; tCol = vX + 2; tAP = vX + 3; tPar = vX + 4; tY = vX + 8; tPa = vX + 10; tOut = vX + 11; tTR = vX + 12; tW = vX + 16; tYv = vX + 20
    mYa = vX; mSa = vX + 1; mXw = vX + 2; mXr = vX + 3; mBp = vX + 4; mMP = vX + 5; mA1 = vX + 6; mA2 = vX + 8; mMQ = vX + 16; mXr2 = vX + 18
    sA0, sA1, sA2, sA3, sA4, sA5, sA6, sA7, sA8, sA9 = 7, 8, 9, 10, 11, 12, 13, 14, 15, 26
    for i in range(12): A(f"v_mov_b32 v{vX+i}, 0")
    A("s_waitcnt lgkmcnt(0)")
    def rest_block():
        A(f"s_cmp_eq_u32 s{sW}, 1"); A("s_cbranch_scc0 L_c_roledone")
        srdC2 = 20; P['cl'], P['rp'] = 24, 25
        A(f"s_load_dwordx2 {s(srdC2,2)}, s[0:1], 64")
        A(f"s_lshr_b32 s{P['cl']}, s2, 2"); A(f"s_add_u32 s{P['cl']}, s{P['cl']}, {-16 if RP else 16}"); A(f"s_and_b32 s{P['rp']}, s2, 3")
        c_addr(vT0, vT1)
        A(f"v_mov_b32 v{vT1}, 0"); A(f"s_lshl_b32 s{sT0}, s{P['rp']}, 8")
        srd_tail(srdC2, 2048)
        A("s_waitcnt lgkmcnt(0)")
        A(f"buffer_load_dword v{vO+2}, v{vT1}, {s(srdWS,4)}, 0 offen sc1")
        A(f"buffer_load_dwordx2 {v(vO,2)}, v{vT0}, {s(srdC2,4)}, s{sT0} offen")
        tr128_base(vO+4, vT0, vT1, SM if RP == 2 else SR)
        A("s_waitcnt vmcnt(0)")
        A(f"v_readfirstlane_b32 s{sTAG}, v{vO+2}")
        A(f"s_add_u32 s{sTAG}, s{sTAG}, 0x9E3779B1")
        mod_block(vO, vU, vQ, vKb, vQ+16, vO+4, vT0, vT1, vFl, vOne, False)
    A(f"s_cmp_lt_u32 s{sR}, 16"); A("s_cbranch_scc0 L_c_nt1")
    A(f"s_and_b32 s{sAB}, s{sW}, 1"); A(f"s_lshr_b32 s{sT0}, s{sW}, 1"); A(f"s_lshr_b32 s{sT1}, s{sR}, 2"); A(f"s_and_b32 s{sT2}, s{sR}, 3")
    A(f"v_lshlrev_b32 v{tSa}, 5, v{vG}"); A(f"v_lshl_or_b32 v{tSa}, v{vH4}, 3, v{tSa}")
    smul_add(sA0, [(sX8, "shl", 15), (sAB, "shl", 14), (sT1, "shl", 12)], OPA)
    smul_add(sA1, [(sX8, "shl", 10), (sAB, "shl", 9), (sT1, "shl", 7)], STA)
    A(f"v_and_b32 v{vT0}, 7, v{vL}"); A(f"v_lshl_or_b32 v{tCol}, v{vT0}, 2, v{vG}")
    A(f"v_lshlrev_b32 v{tOut}, 1, v{tCol}")
    smul_add(sA7, [(sAB, "shl", 10), (sR, "shl", 6)])
    A(f"s_lshl_b32 s{sT3}, s{sT0}, 7"); A(f"v_xor_b32 v{tTR}, s{sT3}, v{vTRV}")
    for t in range(1, 4): A(f"v_xor_b32 v{tTR+t}, {32*t}, v{tTR}")
    A(f"v_lshrrev_b32 v{vT0}, 5, v{vL}"); A(f"v_and_b32 v{vT1}, 30, v{vL}"); A(f"v_lshlrev_b32 v{vT1}, 2, v{vT1}"); A(f"v_lshl_or_b32 v{tAP}, v{vT0}, 13, v{vT1}")
    smul_add(sA2, [(sT2, "shl", 15), (sT0, "shl", 14), (sAB, "shl", 12), (sX8, "shl", 9), (sT1, "shl", 7)], AP)
    smul_add(sA3, [(sR, "shl", 13), (sAB, "shl", 12)], AP)
    A(f"v_lshlrev_b32 v{vT0}, 6, v{vC3}"); A(f"v_bfe_u32 v{vT1}, v{vL}, 2, 1"); A(f"v_lshl_or_b32 v{vT0}, v{vT1}, 3, v{vT0}")
    A(f"v_and_b32 v{vT1}, 1, v{vG}"); A(f"v_lshl_or_b32 v{vT0}, v{vT1}, 4, v{vT0}"); A(f"v_lshrrev_b32 v{vT1}, 1, v{vG}"); A(f"v_lshl_or_b32 v{tY}, v{vT1}, 2, v{vT0}")
    A(f"v_lshrrev_b32 v{tY+1}, 1, v{vL}")
    smul_add(sA4, [(sX8, "mul", YX), (sR, "shl", 9), (sAB, "shl", 5)], YA)
    smul_add(sA5, [(sX8, "mul", YX), (sR, "shl", 4), (sAB, "shl", 3)], YA + 8192)
    A(f"s_lshl_b32 s{sT4}, s{sR}, 1"); A(f"s_add_u32 s{sA8}, s{sT4}, s{sAB}"); A(f"s_mul_i32 s{sA6}, s{sA8}, 7168"); A(f"s_add_u32 s{sA6}, s{sA6}, {MP}"); A(f"s_add_u32 s{sA9}, s{sA6}, 4096")
    A(f"s_sub_u32 s{sJ}, s{sX8}, s{sT4}"); A(f"s_and_b32 s{sJ}, s{sJ}, 7")
    smul_add(sT4, [(sAB, "shl", 7)], PAR); A(f"v_lshl_add_u32 v{tPa}, v{tCol}, 2, s{sT4}")
    if not RP and not RH: rest_block()
    A("s_branch L_c_roledone")
    A("L_c_nt1:")
    A(f"s_sub_u32 s{sT0}, s{sR}, 16"); A(f"s_mul_i32 s{sJ}, s{sX8}, 7"); A(f"s_add_u32 s{sJ}, s{sJ}, s{sT0}")
    A(f"v_lshrrev_b32 v{vT0}, 2, v{vN}"); A(f"v_lshlrev_b32 v{vT0}, 9, v{vT0}"); A(f"v_lshl_or_b32 v{vT0}, v{vG}, 6, v{vT0}"); A(f"v_lshl_or_b32 v{mYa}, v{vH4}, 4, v{vT0}")
    A(f"v_and_b32 v{vT0}, 31, v{vL}"); A(f"v_lshlrev_b32 v{mSa}, 3, v{vT0}")
    smul_add(sA1, [(sX8, "mul", YX)], YA + 8192); smul_add(sA0, [(sX8, "mul", YX), (sW, "shl", 11)], YA)
    A(f"v_and_b32 v{vT0}, 7, v{vN}"); A(f"v_mul_u32_u24 v{mXw}, {RS}, v{vT0}"); A(f"v_lshl_add_u32 v{mXw}, v{vG}, 4, v{mXw}"); smul_add(sT1, [(sW, "shl", 6)], RED); A(f"v_add_u32 v{mXw}, s{sT1}, v{mXw}")
    A(f"v_lshrrev_b32 v{vT0}, 3, v{vN}"); A(f"v_and_b32 v{vT1}, 1, v{vN}"); A(f"v_mul_u32_u24 v{vT0}, {8*RS+64}, v{vT0}"); A(f"v_mul_u32_u24 v{mXr}, {2*RS}, v{vT1}"); A(f"v_add_u32 v{mXr}, v{mXr}, v{vT0}")
    A(f"v_lshl_add_u32 v{mXr}, v{vG}, 4, v{mXr}"); A(f"v_bfe_u32 v{vT0}, v{vN}, 1, 2"); A(f"v_lshl_add_u32 v{mXr}, v{vT0}, 2, v{mXr}"); A(f"v_add_u32 v{mXr}, {RED}, v{mXr}"); A(f"v_add_u32 v{mXr2}, {4*RS}, v{mXr}")
    A(f"v_lshlrev_b32 v{mBp}, 6, v{vG}"); A(f"v_lshl_or_b32 v{mBp}, v{vT1}, 2, v{mBp}")
    A(f"v_lshrrev_b32 v{vT0}, 2, v{vL}"); A(f"v_lshlrev_b32 v{vT0}, 6, v{vT0}"); A(f"v_and_b32 v{vT2}, 1, v{vG}"); A(f"v_lshl_or_b32 v{vT0}, v{vT2}, 5, v{vT0}"); A(f"v_lshl_or_b32 v{vT0}, v{vC3}, 3, v{vT0}")
    A(f"s_lshl_b32 s{sT1}, s{sW}, 13"); A(f"v_add_u32 v{mA1}, s{sT1}, v{vT0}"); A(f"v_xor_b32 v{mA1+1}, 32, v{mA1}")
    A(f"s_add_u32 s{sT1}, s{sT1}, 32768"); A(f"v_add_u32 v{mA2}, s{sT1}, v{vTRV}")
    for t in range(1, 8): A(f"v_xor_b32 v{mA2+t}, {32*t}, v{mA2}")
    A(f"v_lshrrev_b32 v{vT0}, 2, v{vN}"); A(f"v_lshl_or_b32 v{vT0}, v{vT0}, 1, v{vT1}"); A(f"v_mul_u32_u24 v{mMP}, 7168, v{vT0}")
    A(f"v_bfe_u32 v{vT0}, v{vN}, 1, 1"); A(f"v_lshl_add_u32 v{mMP}, v{vT0}, 6, v{mMP}"); A(f"v_lshl_add_u32 v{mMP}, v{vG}, 4, v{mMP}")
    smul_add(sA3, [(sW, "mul", 4*14336), (sJ, "shl", 7)], MP)
    smul_add(sA4, [(sX8, "shl", 7), (sT0, "shl", 4), (sW, "shl", 2)], MF)
    A(f"s_mov_b32 s{sM2}, 0xcccccccc"); A(f"s_mov_b32 s{sM2+1}, 0xcccccccc")
    if RP == 1: rest_block()
    A("L_c_roledone:")
    A("")
    smul_add(sT0, [(sX8, "shl", 14), (sB, "shl", 13), (sW, "shl", 9)], QPA)
    A(f"s_add_u32 s{sT1}, s{sT0}, 4096")
    stamp(1)
    def k_only():
        for t in range(4):
            for sg in range(4): A(f"ds_read_b128 {v(vKb+(t*4+sg)*4,4)}, v{vKa+sg} offset:{t*4096}")
        A(f"ds_write_b32 v{vFw}, v{vOne} offset:{F_KR}")
    if G1 and G2: A("s_branch L_c_nt")
    A(f"s_cmp_lg_u32 s{sW}, 0"); A("s_cbranch_scc1 L_c_nt")
    if not G1:
        A("; poll back-off 1: the sa/ca partials cannot be complete earlier; a cross-XCD load that meets the producers' stores")
        backoff(DG)
        A(f"ds_write_b32 v{vFl}, v{vOne} offset:{F_T1}")
    if KE:
        A(f"s_mov_b32 s{sCNT}, 0"); A(f"s_mov_b32 s{sT3}, 0")
        A("L_c_t2:")
        A(f"ds_read_b32 v{vT0}, v{vFl} offset:{F_K}")
        A("s_sleep 2")
        A("s_waitcnt lgkmcnt(0)")
        A(f"v_readfirstlane_b32 s{sT4}, v{vT0}")
        A(f"s_cmp_gt_u32 s{sT4}, s{sT3}"); A("s_cbranch_scc0 L_c_t2n")
        k_only()
        A(f"s_mov_b32 s{sT3}, 1")
        A("L_c_t2n:")
        A(f"s_add_u32 s{sCNT}, s{sCNT}, 1"); A(f"s_cmp_lt_u32 s{sCNT}, {DQ * 64 // 230}"); A("s_cbranch_scc1 L_c_t2")
        A(f"ds_write_b32 v{vFl}, v{vOne} offset:{F_T2}")
        A(f"s_branch L_c_t3")
        A("L_c_nt:")
        A(f"s_mov_b32 s{sT3}, 0")
        A("L_c_t4:")
        A(f"ds_read_b32 v{vT0}, v{vFl} offset:{F_K}"); A(f"ds_read_b32 v{vT1}, v{vFl} offset:{F_T2}")
        A("s_waitcnt lgkmcnt(0)")
        A(f"v_readfirstlane_b32 s{sT4}, v{vT0}"); A(f"v_readfirstlane_b32 s{sT5}, v{vT1}")
        A(f"s_cmp_gt_u32 s{sT4}, s{sT3}"); A("s_cbranch_scc0 L_c_t4n")
        k_only()
        A(f"s_mov_b32 s{sT3}, 1")
        A("L_c_t4n:")
        A(f"s_cmp_lg_u32 s{sT5}, 0"); A("s_cbranch_scc1 L_c_t3")
        A("s_sleep 2"); A("s_branch L_c_t4")
        A("L_c_t3:")
    elif DQ:
        if not G2:
            A("; poll back-off 2: same for the q partials (a failed gather costs a full round trip behind the V loads)")
            backoff(DQ)
            A(f"ds_write_b32 v{vFl}, v{vOne} offset:{F_T2}")
        A("L_c_nt:")
        spin(vFl, F_T2, vT0, sleep=2)
    else:
        A("L_c_nt:")
        spin(vFl, F_K, vT1, sleep=2)
        k_only()
    spin(vFl, F_QP, vT0, sleep=1)
    A(f"ds_read_b32 v{vT0}, v{vFl} offset:{TAGL-FL}")
    def q_loads(Pq=vG2):
        for q, so in enumerate((sT0, sT1)):
            A(f"buffer_load_dwordx4 {v(Pq+4*q,4)}, v{vQg}, {s(srdWS,4)}, s{so} offen sc1")
    def k_reads():
        if not DQ: return
        if KE: A(f"s_cmp_lg_u32 s{sT3}, 0"); A("s_cbranch_scc1 L_c_kd")
        spin(vFl, F_K, vT1, sleep=1)
        k_only()
        if KE: A("L_c_kd:")
    qtags = [vG2+4*i+k for i in range(2) for k in (1, 3)]
    q_loads()
    A("s_waitcnt lgkmcnt(0)")
    A(f"v_readfirstlane_b32 s{sTAG}, v{vT0}")
    A(f"v_mov_b32 v{vT3}, 1")
    A(f"s_add_u32 s{sTQ}, s{sTQ}, s{sTAG}")
    if FREM: A(f"s_add_u32 s{sTQ}, s{sTQ}, 9")
    k_reads()
    A("s_waitcnt vmcnt(0)")
    tagcheck(qtags, vT0, sTQ)
    A("s_cbranch_vccnz L_c_qre")
    A("L_c_qok:")
    sum_pairs(vU, [vG2, vG2+4])
    def qretry():
        A("L_c_qre:")
        A(f"s_mov_b32 s{sCNT}, 0")
        A("L_c_qre2:")
        q_loads()
        A(f"s_add_u32 s{sCNT}, s{sCNT}, 1"); A(f"s_cmp_ge_u32 s{sCNT}, {NA}")
        A("s_waitcnt vmcnt(0)")
        A("s_cbranch_scc1 L_c_qB")
        tagcheck(qtags, vT0, sTQ)
        A("s_cbranch_vccnz L_c_qre2")
        A("s_branch L_c_qok")
        A("L_c_qB:")
        for so in (sT0, sT1): A(f"s_add_u32 s{so}, s{so}, {QB}")
        A("L_c_qB2:")
        q_loads()
        A(f"s_add_u32 s{sCNT}, s{sCNT}, 1"); A(f"s_cmp_gt_u32 s{sCNT}, {NT}")
        A("s_waitcnt vmcnt(0)")
        A("s_cbranch_scc1 L_c_qB3")
        for i, r in enumerate(qtags): A(f"v_subrev_u32 v{vU+i}, s{sTAG}, v{r}")
        A(f"v_max3_u32 v{vT0}, v{vU}, v{vU+1}, v{vU+2}"); A(f"v_max_u32 v{vT0}, v{vT0}, v{vU+3}")
        A(f"v_cmp_lt_u32 vcc, 7, v{vT0}")
        A("s_cbranch_vccnz L_c_qB2")
        A("L_c_qB3:")
        tagcheck(qtags, vT0, sTQ)
        A("s_cbranch_vccz L_c_qok")
        A(f"v_mov_b32 v{vT3}, 2")
        A("s_branch L_c_qok")
    out_of_line.append(qretry)
    A(f"v_permlane32_swap_b32 v{vU}, v{vU+2}"); A(f"v_permlane32_swap_b32 v{vU+1}, v{vU+3}")
    A(f"v_pk_add_f32 {v(vU,2)}, {v(vU,2)}, {v(vU+2,2)}")
    A(f"v_cvt_pk_bf16_f32 v{vT0}, v{vU}, v{vU+1}")
    A(f"ds_write_b32 v{vQw}, v{vT0}")
    A(f"ds_write_b32 v{vFw}, v{vT3} offset:{F_Q}")
    stamp(2)
    spin(vFl, F_Q, vU, 4)
    stamp(3); fine(2, 1)
    for sg in range(4): A(f"ds_read_b128 {v(vQ+sg*4,4)}, v{vQa} offset:{64*sg}")
    A(f"ds_write_b32 v{vFw}, v{vOne} offset:{F_CR}")
    A(f"v_max3_u32 v{vU}, v{vU}, v{vU+1}, v{vU+2}"); A(f"v_max_u32 v{vU}, v{vU}, v{vU+3}")
    A(f"v_readfirstlane_b32 s{sREM}, v{vU}")
    for sg in range(4):
        A(f"s_waitcnt lgkmcnt({lg(4-sg)})")
        for t in range(4):
            A(f"v_mfma_f32_16x16x32_bf16 {v(vS+4*t,4)}, {v(vKb+(t*4+sg)*4,4)}, {v(vQ+sg*4,4)}, {'0' if sg == 0 else v(vS+4*t,4)}")
    fine(2, 2)
    A("")
    for t in range(1, 4):
        for r in range(4): A(f"v_mov_b32_dpp v{vS+r}, v{vS+4*t+r} quad_perm:[0,1,2,3] row_mask:0xf bank_mask:{hex(1 << t)}")
    def red_all(r, op, t):
        for ro in (4, 8): A(f"{op}_dpp v{r}, v{r}, v{r} row_ror:{ro} row_mask:0xf bank_mask:0xf bound_ctrl:1")
        for sw in ("v_permlane16_swap_b32", "v_permlane32_swap_b32"):
            A(f"v_mov_b32 v{t}, v{r}"); A(f"{sw} v{t}, v{r}"); A(f"{op} v{r}, v{r}, v{t}")
    A(f"v_max3_f32 v{vM}, v{vS}, v{vS+1}, v{vS+2}"); A(f"v_max_f32 v{vM}, v{vM}, v{vS+3}")
    red_all(vM, "v_max_f32", vT0)
    A(f"v_mul_f32 v{vSt}, s{sSC}, v{vM}")
    for i in range(4): A(f"v_fma_f32 v{vS+i}, v{vS+i}, s{sSC}, -v{vSt}")
    for i in range(4): A(f"v_exp_f32 v{vS+i}, v{vS+i}")
    A(f"v_add_f32 v{vT0}, v{vS}, v{vS+1}"); A(f"v_add_f32 v{vT1}, v{vS+2}, v{vS+3}"); A(f"v_add_f32 v{vSt+1}, v{vT0}, v{vT1}")
    red_all(vSt+1, "v_add_f32", vT0)
    fine(2, 3)
    A("s_mov_b64 exec, 0xf")
    A(f"ds_write_b64 v{vMLw}, {v(vSt,2)}")
    A("s_mov_b64 exec, -1")
    A(f"s_mov_b32 s{sCNT}, 0")
    A("L_c_ml:")
    A(f"ds_read_b128 {v(vU,4)}, v{vMLr}"); A(f"ds_read_b128 {v(vU+4,4)}, v{vMLr} offset:16")
    A(f"s_add_u32 s{sCNT}, s{sCNT}, 1"); A(f"s_cmp_gt_u32 s{sCNT}, {NT}")
    A("s_waitcnt lgkmcnt(0)")
    A("s_cbranch_scc1 L_c_mlok")
    A(f"v_max3_u32 v{vT0}, v{vU+1}, v{vU+3}, v{vU+5}"); A(f"v_max_u32 v{vT0}, v{vT0}, v{vU+7}")
    A(f"v_cmp_eq_u32 vcc, -1, v{vT0}")
    A("s_cbranch_vccnz L_c_ml")
    A("L_c_mlok:")
    fine(2, 4)
    A(f"v_max3_f32 v{vMc}, v{vU}, v{vU+2}, v{vU+4}"); A(f"v_max_f32 v{vMc}, v{vMc}, v{vU+6}")
    for i in range(4): A(f"v_sub_f32 v{vU+2*i}, v{vU+2*i}, v{vMc}")
    A(f"v_sub_f32 v{vT0}, v{vSt}, v{vMc}")
    for i in range(4): A(f"v_exp_f32 v{vU+2*i}, v{vU+2*i}")
    A(f"v_exp_f32 v{vT0}, v{vT0}")
    A(f"v_mul_f32 v{vLs}, v{vU}, v{vU+1}")
    for i in range(1, 4): A(f"v_fmac_f32 v{vLs}, v{vU+2*i}, v{vU+2*i+1}")
    A(f"v_rcp_f32 v{vT1}, v{vLs}")
    A(f"v_mov_b32 v{vSt}, v{vMc}"); A(f"v_mov_b32 v{vSt+1}, v{vLs}")
    A(f"v_mul_f32 v{vT0}, v{vT0}, v{vT1}")
    for i in range(4): A(f"v_mul_f32 v{vS+i}, v{vS+i}, v{vT0}")
    A(f"v_cvt_pk_bf16_f32 v{vU}, v{vS}, v{vS+1}"); A(f"v_cvt_pk_bf16_f32 v{vU+1}, v{vS+2}, v{vS+3}")
    A(f"ds_write_b64 v{vPw}, {v(vU,2)}")
    A(f"ds_write_b32 v{vFw}, v{vOne} offset:{F_P}")
    A(f"s_cmp_gt_u32 s{sREM}, 1")
    A(f"s_mov_b64 exec, {s(sM1,2)}")
    A("s_cbranch_scc1 L_c_strem")
    A("s_cbranch_execz L_c_stdone")
    A(f"buffer_store_dwordx2 {v(vSt,2)}, v{vSa}, {s(srdWS,4)}, s{sSA} offen")
    A("L_c_stdone:")
    def strem():
        A("L_c_strem:")
        A(f"s_add_u32 s{sSA}, s{sSA}, {SB}"); A(f"s_add_u32 s{sOA}, s{sOA}, {OB}")
        A("s_cbranch_execz L_c_stdone")
        A(f"buffer_store_dwordx2 {v(vSt,2)}, v{vSa}, {s(srdWS,4)}, s{sSA} offen sc1")
        A("s_branch L_c_stdone")
    out_of_line.append(strem)
    A("s_mov_b64 exec, -1")
    stamp(4); fine(2, 5)
    A("")
    spin(vFl, F_P, vU, 4)
    fine(2, 7)
    for k in range(8): A(f"ds_read_b128 {v(vP+4*k,4)}, v{vPr} offset:{k*256}")
    spin(vFl, F_V, vT0)
    stamp(5); fine(2, 8)
    def vreads(k, dst):
        for t in range(2):
            for u in range(2):
                A(f"ds_read_b64_tr_b16 {v(dst+4*t+2*u,2)}, v{vVa+t} offset:{(32*k+16*u)*256}")
    for k in range(7): vreads(k, vVb+8*k)
    tSt = vG2; tA = vG2 + 8
    def st_loads():
        A(f"buffer_load_dwordx2 {v(tSt,2)}, v{tSa}, {s(srdWS,4)}, s{sA1} offen sc1")
    for k in range(7):
        A(f"s_waitcnt lgkmcnt({lg(4*(6-k))})")
        for t in range(2):
            A(f"v_mfma_f32_16x16x32_bf16 {v(vO+4*t,4)}, {v(vVb+8*k+4*t,4)}, {v(vP+4*k,4)}, {'0' if k == 0 else v(vO+4*t,4)}")
    A(f"s_cmp_gt_u32 s{sREM}, 1")
    fine(2, 9)
    A("s_barrier")
    fine(2, 10)
    vreads(7, vVb)
    A(f"s_waitcnt lgkmcnt({lg(2)})")
    A(f"v_mfma_f32_16x16x32_bf16 {v(vO,4)}, {v(vVb,4)}, {v(vP+28,4)}, {v(vO,4)}")
    A("s_waitcnt lgkmcnt(0)")
    A(f"v_mfma_f32_16x16x32_bf16 {v(vO+4,4)}, {v(vVb+4,4)}, {v(vP+28,4)}, {v(vO+4,4)}")
    stamp(6)
    A(f"s_mov_b64 exec, {s(sM0,2)}")
    for i in range(4): A(f"v_cvt_pk_bf16_f32 v{vU+i}, v{vO+2*i}, v{vO+2*i+1}")
    A("s_cbranch_scc1 L_c_orem")
    A(f"buffer_store_dwordx4 {v(vU,4)}, v{vOa}, {s(srdWS,4)}, s{sOA} offen")
    A("s_mov_b64 exec, -1")
    stamp(7); fine(2, 11)
    A(f"s_cmp_lt_u32 s{sR}, 16")
    A("s_cbranch_scc0 L_c_other")

    if BT: A("s_barrier")
    A("")
    tB = vKb; tD = vS
    def t1_loads():
        for k in range(4): A(f"buffer_load_dwordx4 {v(tA+4*k,4)}, v{vL16}, {s(srdWS,4)}, s{sA0} offen offset:{1024*k} sc1")
    def wo_reads():
        for k in range(4):
            for t in range(4):
                for u in range(2):
                    A(f"ds_read_b64_tr_b16 {v(tB+(k*4+t)*4+2*u,2)}, v{tTR+t} offset:{(32*k+16*u)*256}")
    def t1_mf(k, ts=(0, 2, 1, 3)):
        for t in ts:
            A(f"v_mfma_f32_16x16x32_bf16 {v(tD+4*t,4)}, {v(tA+4*k,4)}, {v(tB+(k*4+t)*4,4)}, {'0' if k == 0 else v(tD+4*t,4)}")
    def dp(op, r, pat): return f"{op}_dpp v{r}, v{r}, v{r} {pat} row_mask:0xf bank_mask:0xf bound_ctrl:1"
    def xg(r, op, t):
        o = [dp(op, r, "quad_perm:[1,0,3,2]"), None, dp(op, r, "quad_perm:[2,3,0,1]")]
        for sw in ("v_permlane16_swap_b32", "v_permlane32_swap_b32"):
            o += [f"v_mov_b32 v{t}, v{r}", None, f"{sw} v{t}, v{r}", f"{op} v{r}, v{r}, v{t}"]
        return o
    bc = [f"v_mov_b32_dpp v{tW+r}, v{vM} quad_perm:[{r},{r},{r},{r}] row_mask:0xf bank_mask:0xf bound_ctrl:1" for r in range(4)]
    sm = xg(vLs, "v_add_f32", vT1)
    wts = [f"v_max_f32_dpp v{vM}, v{tSt}, v{tSt} quad_perm:[1,0,3,2] row_mask:0xf bank_mask:0xf bound_ctrl:1", None] + xg(vM, "v_max_f32", vT1)[2:]
    wts += [f"v_sub_f32 v{vM}, v{tSt}, v{vM}", f"v_exp_f32 v{vM}, v{vM}", None, f"v_mul_f32 v{vM}, v{vM}, v{tSt+1}", None,
            f"v_add_f32_dpp v{vLs}, v{vM}, v{vM} quad_perm:[1,0,3,2] row_mask:0xf bank_mask:0xf bound_ctrl:1", bc[0], bc[1],
            sm[2], sm[3], bc[2], bc[3], sm[5], sm[6], sm[7], None, sm[9], sm[10], f"v_rcp_f32 v{vLs}, v{vLs}"]
    A("L_t1_w:")
    if PT & 1: A(f"buffer_load_dwordx2 {v(vG2+28,2)}, v{tAP}, {s(srdWS,4)}, s{sA2} offen")
    stamp(13)
    A(f"ds_read_b32 v{tPar}, v{tPa}"); A(f"ds_read_b32 v{tPar+1}, v{tPa} offset:512"); A(f"ds_read_b32 v{tPar+2}, v{tPa} offset:768")
    A(f"v_mov_b32 v{tYv+1}, s{sTAG}")
    A(f"v_and_b32 v{vT0}, 8, v{vL}"); A(f"v_cmp_ne_u32 {s(sM0,2)}, 0, v{vT0}")
    A(f"v_and_b32 v{vT0}, 16, v{vL}"); A(f"v_cmp_ne_u32 {s(sM1,2)}, 0, v{vT0}")
    A(f"s_cmp_gt_u32 s{sREM}, 1")
    if not EW: A("s_barrier")
    A("s_cbranch_scc1 L_t1rem")
    def so_loads(): st_loads(); t1_loads()
    so_loads()
    wo_reads()
    stamp(8)
    def t1_body():
        A("s_waitcnt vmcnt(3) lgkmcnt(0)")
        t1_mf(0, (0, 2))
        A("s_waitcnt vmcnt(0)")
        sentcheck([tA+3, tA+7, tA+11, tA+15, tSt+1], vT0)
        t1_mf(0, (1, 3))
    ipoll("L_t1p", so_loads, t1_body, GT)
    stamp(9); fine(3, 1)
    if dbg and not FINE: A(f"s_mov_b32 s88, s{sCNT}")
    wi = 0
    for k in range(1, 4):
        for t in (0, 2, 1, 3):
            cnt = 0
            while wi < len(wts) and cnt < 3:
                if wts[wi] is None: wi += 1; break
                A(wts[wi]); wi += 1; cnt += 1
            t1_mf(k, (t,))
    while wi < len(wts):
        if wts[wi]: A(wts[wi])
        wi += 1
    fine(3, 2)
    A(f"s_cmp_lt_u32 s{sW}, 2")
    for t in (0, 2, 1, 3):
        A(f"v_pk_mul_f32 {v(tD+4*t,2)}, {v(tD+4*t,2)}, {v(tW,2)}")
        A(f"v_pk_fma_f32 {v(tD+4*t,2)}, {v(tD+4*t+2,2)}, {v(tW+2,2)}, {v(tD+4*t,2)}")
        A(f"v_add_f32 v{vU+t}, v{tD+4*t}, v{tD+4*t+1}")
    def reduce4(u):
        A(f"v_permlane32_swap_b32 v{u}, v{u+2}"); A(f"v_permlane32_swap_b32 v{u+1}, v{u+3}")
        A(f"v_pk_add_f32 {v(u,2)}, {v(u,2)}, {v(u+2,2)}")
        A(f"v_permlane16_swap_b32 v{u}, v{u+1}")
        A(f"v_add_f32 v{u}, v{u}, v{u+1}")
    reduce4(vU)
    A(f"v_mul_f32 v{vU}, v{vU}, v{vLs}")
    A(f"v_mov_b32_dpp v{vU+1}, v{vU} quad_perm:[1,0,3,2] row_mask:0xf bank_mask:0xf bound_ctrl:1")
    setexec(0x5555555555555555)
    A(f"v_cvt_pk_bf16_f32 v{tYv}, v{vU}, v{vU+1}")
    A("s_barrier")
    A(f"buffer_store_dwordx2 {v(tYv,2)}, v{tAP}, {s(srdWS,4)}, s{sA2} offen sc1")
    A("s_mov_b64 exec, -1")
    stamp(10); fine(3, 3)
    A("s_cbranch_scc0 L_fin_end")
    A("")
    def red_loads():
        for q in range(4): A(f"buffer_load_dwordx4 {v(tA+4*q,4)}, v{vL16}, {s(srdWS,4)}, s{sA3} offen offset:{1024*q} sc1")
    A(f"buffer_load_ushort v{tX}, v{tOut}, {s(srdX,4)}, s{sA7} offen")
    A("s_waitcnt vmcnt(0)")
    red_loads()
    A(f"v_lshlrev_b32 v{tX}, 16, v{tX}")
    ipoll("L_rdp", red_loads, lambda: gather_sum(vU, [tA+4*q for q in range(4)], vT0, True), GR)
    stamp(11); fine(3, 4)
    reduce4(vU)
    A(f"v_add_f32_dpp v{vU}, v{vU}, v{vU} row_ror:8 row_mask:0xf bank_mask:0xf bound_ctrl:1")
    A(f"s_cmp_gt_u32 s{sREM}, 1")
    A(f"v_fmac_f32 v{tX}, v{tPar}, v{vU}")
    A(f"v_mul_f32 v{vU}, v{tX}, v{tPar+1}")
    A(f"v_mul_f32 v{vU+4}, v{tX}, v{tX}")
    A(f"v_mov_b32 v{vU+1}, v{vU}")
    A(f"v_cndmask_b32 v{vU+4}, v{tX}, v{vU+4}, {s(sM0,2)}")
    A(f"v_permlane16_swap_b32 v{vU}, v{vU+1}")
    A(f"v_add_f32_dpp v{vU+4}, v{vU+4}, v{vU+4} quad_perm:[1,0,3,2] row_mask:0xf bank_mask:0xf bound_ctrl:1")
    A(f"v_cvt_pk_bf16_f32 v{vU+2}, v{vU}, v{vU+1}")
    A(f"v_lshlrev_b32 v{vT0}, 16, v{vU+2}")
    A(f"v_add_f32_dpp v{vU+4}, v{vU+4}, v{vU+4} quad_perm:[2,3,0,1] row_mask:0xf bank_mask:0xf bound_ctrl:1")
    A(f"v_and_b32 v{vT1}, 0xffff0000, v{vU+2}")
    A(f"v_sub_f32 v{vU}, v{vU}, v{vT0}")
    A(f"v_add_f32_dpp v{vU+4}, v{vU+4}, v{vU+4} row_half_mirror row_mask:0xf bank_mask:0xf bound_ctrl:1")
    A(f"v_sub_f32 v{vU+1}, v{vU+1}, v{vT1}")
    A(f"v_mov_b32 v{vU+5}, v{vU+4}")
    A(f"v_cvt_pk_bf16_f32 v{vU+3}, v{vU}, v{vU+1}")
    A(f"v_permlane16_swap_b32 v{vU+5}, v{vU+4}")
    A(f"v_cndmask_b32 v{vU+2}, v{vU+2}, v{vU+3}, {s(sM1,2)}")
    A(f"v_add_f32 v{vU+4}, v{vU+4}, v{vU+5}")
    A("s_cbranch_scc1 L_yrem")
    setexec(0x00ff00ff00ff00ff)
    A(f"buffer_store_dword v{vU+2}, v{tY}, {s(srdWS,4)}, s{sA4} offen")
    A("s_mov_b64 exec, -1")
    A(f"v_mov_b32 v{vU+5}, v{vU+4}")
    A(f"v_permlane32_swap_b32 v{vU+5}, v{vU+4}")
    A(f"v_add_f32 v{vU+4}, v{vU+4}, v{vU+5}")
    A("s_mov_b64 exec, 0x101")
    A(f"buffer_store_dword v{vU+4}, v{tY+1}, {s(srdWS,4)}, s{sA5} offen")
    A("s_mov_b64 exec, -1")
    stamp(12); fine(3, 5)
    A(f"s_cmp_eq_u32 s{sJ}, s{sAB}"); A("s_cbranch_scc0 L_notfin")
    if OPT: A(f"buffer_load_ushort v{vT3}, v{tOut}, {s(srdO,4)}, s{sA7} offen")
    if MFG:
        smul_add(sT0, [(sX8, "shl", 7)], MF); A(f"v_lshlrev_b32 v{vT1}, 2, v{vL}")
        flagwait("L_mfw", vT1, sT0, vT0, 0xfffffff)
        backoff(DF)
    A("")
    A("L_fin:")
    def fin_loads():
        for q in range(7):
            A(f"buffer_load_dwordx4 {v(tB+4*q,4)}, v{vL16}, {s(srdWS,4)}, s{sA6 if q < 4 else sA9} offen offset:{1024*(q%4)} sc1")
    fin_loads()
    A(f"v_mov_b32 v{vT2}, 0")
    ipoll("L_fnp", fin_loads, lambda: gather_sum(vU, [tB+4*q for q in range(7)], vT0), GF)
    fine(3, 6)
    reduce4(vU)
    A(f"v_add_f32_dpp v{vU}, v{vU}, v{vU} row_ror:8 row_mask:0xf bank_mask:0xf bound_ctrl:1")
    A(f"v_fmac_f32 v{tX}, v{tPar+2}, v{vU}")
    A(f"v_mov_b32 v{vU+1}, v{tX}")
    A(f"v_permlane16_swap_b32 v{tX}, v{vU+1}")
    setexec(0x000000ff000000ff)
    A(f"v_cvt_pk_bf16_f32 v{vU+2}, v{tX}, v{vU+1}")
    A(f"buffer_store_dword v{vU+2}, v{tOut}, {s(srdO,4)}, s{sA7} offen {osf}")
    if DUR:
        A(f"s_memrealtime {s(sST,2)}"); A("s_mov_b32 s90, 256"); A("s_mov_b32 s91, 0x20000"); A("s_waitcnt lgkmcnt(0)")
        A("s_mov_b64 exec, 1"); A(f"s_not_b32 s{sST+2}, s{sST+2}"); A(f"v_mov_b32 v{vU+4}, s{sST+2}"); A(f"v_mov_b32 v{vU+5}, s{sST}")
        A(f"buffer_atomic_umax v{vU+4}, v{vT2}, s[88:91], 0 offen"); A(f"buffer_atomic_umax v{vU+5}, v{vT2}, s[88:91], 0 offen offset:4")
    A("L_fin_end:")
    stamp_flush()
    A("s_endpgm")
    A("")
    A("L_c_orem:")
    A(f"buffer_store_dwordx4 {v(vU,4)}, v{vOa}, {s(srdWS,4)}, s{sOA} offen sc1")
    smul_add(sT0, [(sX8, "shl", 9), (sR, "shl", 4), (sW, "shl", 2)], OF)
    flagset(vT0, sT0)
    A(f"s_cmp_lt_u32 s{sR}, 16"); A("s_cbranch_scc0 L_c_other")
    if BT: A("s_barrier")
    smul_add(sT0, [(sX8, "shl", 9), (sAB, "shl", 8)], OF); A(f"v_lshlrev_b32 v{vT1}, 2, v{vL}")
    flagwait("L_ofw", vT1, sT0, vT0, (1 << 64) - 1)
    A(f"s_add_u32 s{sA0}, s{sA0}, {OB}"); A(f"s_add_u32 s{sA1}, s{sA1}, {SB}")
    st_loads(); t1_loads()
    A("s_waitcnt vmcnt(0)")
    A("s_branch L_t1_w")
    A("L_t1rem:")
    wo_reads()
    A("s_waitcnt lgkmcnt(0)")
    t1_mf(0)
    A("s_branch L_t1p_ok")
    A("L_yrem:")
    A(f"s_add_u32 s{sA4}, s{sA4}, {YBO}"); A(f"s_add_u32 s{sA5}, s{sA5}, {YBO}")
    setexec(0x00ff00ff00ff00ff)
    A(f"buffer_store_dword v{vU+2}, v{tY}, {s(srdWS,4)}, s{sA4} offen sc1")
    A("s_mov_b64 exec, -1")
    A(f"v_mov_b32 v{vU+5}, v{vU+4}")
    A(f"v_permlane32_swap_b32 v{vU+5}, v{vU+4}")
    A(f"v_add_f32 v{vU+4}, v{vU+4}, v{vU+5}")
    A("s_mov_b64 exec, 0x101")
    A(f"buffer_store_dword v{vU+4}, v{tY+1}, {s(srdWS,4)}, s{sA5} offen sc1")
    smul_add(sT0, [(sX8, "shl", 7), (sA8, "shl", 2)], YF)
    flagset(vT0, sT0)
    A(f"s_cmp_eq_u32 s{sJ}, s{sAB}"); A("s_cbranch_scc0 L_notfin")
    A("s_branch L_fin")
    A("L_notfin:")
    A(f"s_cmp_eq_u32 s2, 4"); A("s_cbranch_scc0 L_fin_end")
    A(f"s_cmp_eq_u32 s{sW}, 0"); A("s_cbranch_scc0 L_fin_end")
    A("s_mov_b64 exec, 1"); A(f"v_mov_b32 v{vT2}, 0")
    A(f"buffer_store_dword v{tYv+1}, v{vT2}, {s(srdWS,4)}, 0 offen sc1")
    A("s_branch L_fin_end")
    for blk in out_of_line: blk()
    out_of_line.clear()

    A("")
    A("L_c_other:")
    if dbg and not FINE: A("s_waitcnt vmcnt(0)"); stamp(11)
    A(f"s_sub_u32 s{sT0}, s{sR}, 16"); A(f"s_cmp_lt_u32 s{sT0}, 7"); A("s_cbranch_scc0 L_fin_end")
    mW1 = vKb; mW2 = vKb + 32; mB = vQ; mD = vQ + 16; mSt = vQ + 24; mR = vS; mD2 = vQ + 36; mO = vQ + 40; mY = vQ + 28; mH = vG2
    sY0, sY1, sFW = 22, 23, 25
    def y_loads():
        A(f"buffer_load_dwordx4 {v(mY,4)}, v{mYa}, {s(srdWS,4)}, s{sA0} offen sc1")
        A(f"buffer_load_dwordx2 {v(mSt,2)}, v{mSa}, {s(srdWS,4)}, s{sA1} offen sc1")
    def cp_load(): A(f"buffer_load_dwordx4 {v(mY,4)}, v{mYa}, {s(srdWS,4)}, s{sA0} offen offset:256 sc1")
    A(f"s_cmp_gt_u32 s{sREM}, 1"); A("s_cbranch_scc1 L_mrem0")
    cp_load()
    if PT & 2: A(f"buffer_load_dwordx4 {v(vS,4)}, v{mMP}, {s(srdWS,4)}, s{sA3} offen")
    A("s_barrier")
    poll("L_mcp", cp_load, lambda: sentcheck([mY, mY+1, mY+2, mY+3], vT0))
    def mrem0():
        A("L_mrem0:")
        A("s_barrier")
        A(f"s_add_u32 s{sA0}, s{sA0}, {YBO}"); A(f"s_add_u32 s{sA1}, s{sA1}, {YBO}")
        smul_add(sFW, [(sX8, "shl", 7)], CF); A(f"v_lshlrev_b32 v{vT1}, 2, v{vL}")
        flagwait("L_cfw", vT1, sFW, vT0, 0xffff)
        cp_load()
        A("s_waitcnt vmcnt(0)")
        A("s_branch L_mcp_ok")
        A("L_mrem:")
        A(f"s_add_u32 s{sFW}, s{sFW}, {YF-CF}")
        flagwait("L_yfw", vT1, sFW, vT0, 0xffffffff)
        y_loads()
        A("s_waitcnt vmcnt(0)")
        A("s_branch L_myp_ok")
    out_of_line.append(mrem0)
    def shift(d): return "quad_perm:[0,1,2,3]" if d == 0 else (f"row_shr:{d}" if d > 0 else f"row_shl:{-d}")
    for sg in range(4):
        for q in range(4): A(f"v_mov_b32_dpp v{mB+4*sg+q}, v{mY+q} {shift(4 - 4*sg)} row_mask:0xf bank_mask:0xf bound_ctrl:1")
    A(f"v_mov_b32 v{mO+1}, s{sTAG}"); A(f"v_mov_b32 v{mO+3}, s{sTAG}")
    A(f"v_mov_b32 v{mMQ}, v{mMP}"); A(f"v_mov_b32 v{mMQ+1}, 0")
    for i in range(32): A(f"v_mov_b32 v{mH+i}, 0")
    A(f"v_cmp_gt_u32 {s(sM0,2)}, 8, v{vN}")
    A(f"s_cmp_gt_u32 s{sREM}, 1")
    A("s_barrier")
    stamp(12)
    for sg in range(4):
        for t in range(2):
            for u in range(2):
                A(f"ds_read_b64_tr_b16 {v(mW1+(t*4+sg)*4+2*u,2)}, v{mA1+t} offset:{(32*sg+16*u)*64}")
    for t in range(8):
        for u in range(2):
            A(f"ds_read_b64_tr_b16 {v(mW2+4*t+2*u,2)}, v{mA2+t} offset:{16*u*256}")
    A("s_cbranch_scc1 L_mrem")
    y_loads()
    stamp(8)
    ipoll("L_myp", y_loads, lambda: (A("s_waitcnt vmcnt(0)"), sentcheck([mY, mY+1, mY+2, mY+3, mSt, mSt+1], vT0)))
    stamp(9); fine(1, 1)
    va = []
    for ro in (2, 4, 8):
        va += [f"v_add_f32_dpp v{mSt+i}, v{mSt+i}, v{mSt+i} row_ror:{ro} row_mask:0xf bank_mask:0xf bound_ctrl:1" for i in range(2)]
    va += [f"v_mov_b32 v{mSt+2}, v{mSt}", f"v_mov_b32 v{mSt+3}, v{mSt+1}", f"v_permlane16_swap_b32 v{mSt+2}, v{mSt}", f"v_permlane16_swap_b32 v{mSt+3}, v{mSt+1}",
           f"v_pk_add_f32 {v(mSt,2)}, {v(mSt,2)}, {v(mSt+2,2)}",
           f"v_mul_f32 v{mSt}, {hex(f2u(1/512))}, v{mSt}", f"v_mul_f32 v{mSt+2}, {hex(f2u(1/512))}, v{mSt+1}",
           f"v_fma_f32 v{mSt+2}, -v{mSt}, v{mSt}, v{mSt+2}", f"v_max_f32 v{mSt+2}, 0, v{mSt+2}", f"v_add_f32 v{mSt+2}, {hex(f2u(1e-5))}, v{mSt+2}",
           f"v_rsq_f32 v{mSt+2}, v{mSt+2}"]
    def shl(sg):
        for q in range(4): A(f"v_mov_b32_dpp v{mB+4*sg+q}, v{mY+q} {shift(-4*sg)} row_mask:0xf bank_mask:0x1 bound_ctrl:1")
    def mf1(sg, t): A(f"v_mfma_f32_16x16x32_bf16 {v(mD+4*t,4)}, {v(mW1+(t*4+sg)*4,4)}, {v(mB+4*sg,4)}, {'0' if sg == 0 else v(mD+4*t,4)}")
    shl(0); A("s_waitcnt lgkmcnt(0)"); shl(1); mf1(0, 0); mf1(0, 1); shl(2); mf1(1, 0); mf1(1, 1); shl(3); mf1(2, 0); mf1(2, 1)
    A(va[0]); A(va[1]); mf1(3, 0); A(va[2]); A(va[3]); mf1(3, 1); vi = 4
    for _ in range(6): A(va[vi]); vi += 1
    fine(1, 2)
    A(f"s_mov_b64 exec, {s(sM0,2)}")
    for t in range(2): A(f"ds_write_b128 v{mXw}, {v(mD+4*t,4)} offset:{t*(8*RS+64)}")
    A("s_mov_b64 exec, -1")
    while vi < len(va): A(va[vi]); vi += 1
    A("s_waitcnt lgkmcnt(0)")
    fine(1, 3)
    A("s_barrier")
    fine(1, 4)
    for part in range(2):
        for cw in range(4): A(f"ds_read2_b32 {v(mR+8*part+2*cw,2)}, v{mXr + part*(mXr2-mXr)} offset0:{16*cw} offset1:{16*cw+RS//4}")
    A(f"s_waitcnt lgkmcnt({lg(4)})")
    A(f"v_pk_add_f32 {v(mR,2)}, {v(mR,2)}, {v(mR+2,2)}"); A(f"v_pk_add_f32 {v(mR+4,2)}, {v(mR+4,2)}, {v(mR+6,2)}")
    A(f"v_pk_add_f32 {v(mR,2)}, {v(mR,2)}, {v(mR+4,2)}")
    A(f"v_add_f32 v{mR+2}, v{mR}, v{mR+1}")
    A("s_waitcnt lgkmcnt(0)")
    A(f"v_pk_add_f32 {v(mR+8,2)}, {v(mR+8,2)}, {v(mR+10,2)}"); A(f"v_pk_add_f32 {v(mR+12,2)}, {v(mR+12,2)}, {v(mR+14,2)}")
    A(f"v_pk_add_f32 {v(mR+8,2)}, {v(mR+8,2)}, {v(mR+12,2)}")
    A(f"v_fma_f32 v{mR+2}, -v{mSt}, v{mR+8}, v{mR+2}")
    fine(1, 5)
    A(f"v_fma_f32 v{mR+2}, v{mR+2}, v{mSt+2}, v{mR+9}")
    A(f"v_mul_f32 v{mR+3}, {hex(f2u(-LOG2E))}, v{mR+2}")
    A(f"v_exp_f32 v{mR+3}, v{mR+3}")
    A(f"v_add_f32 v{mR+3}, 1.0, v{mR+3}"); A(f"v_rcp_f32 v{mR+3}, v{mR+3}")
    A(f"v_mul_f32 v{mR+2}, v{mR+2}, v{mR+3}")
    A(f"v_mov_b32_dpp v{mR+3}, v{mR+2} row_shl:2 row_mask:0xf bank_mask:0xf bound_ctrl:1")
    A(f"v_cvt_pk_bf16_f32 v{mR+4}, v{mR+2}, v{mR+3}")
    A(f"v_cndmask_b32 v{mR+4}, v{mR+4}, 0, {s(sM2,2)}")
    fine(1, 6)
    def bt(t):
        for q in range(4):
            d = 2*t - 4*q
            pat = "quad_perm:[0,1,2,3]" if d == 0 else (f"row_shr:{d}" if d > 0 else f"row_shl:{-d}")
            A(f"v_mov_b32_dpp v{mH+4*t+q}, v{mR+4} {pat} row_mask:0xf bank_mask:{hex(1 << (t >> 1))} bound_ctrl:1")
    def mf2(t): A(f"v_mfma_f32_16x16x32_bf16 {v(mD2,4)}, {v(mW2+4*t,4)}, {v(mH+4*t,4)}, {'0' if t == 0 else v(mD2,4)}")
    bt(0); bt(1)
    for t in range(8):
        mf2(t)
        if t + 2 < 8: bt(t + 2)
    fine(1, 7)
    if MFE == 2:
        A("s_mov_b64 exec, 1")
        A(f"buffer_store_dword v{mO+1}, v{mMQ+1}, {s(srdWS,4)}, s{sA4} offen")
        A("s_mov_b64 exec, -1")
    A(f"v_cvt_pk_bf16_f32 v{mO}, v{mD2}, v{mD2+1}"); A(f"v_cvt_pk_bf16_f32 v{mO+2}, v{mD2+2}, v{mD2+3}")
    A(f"buffer_store_dwordx4 {v(mO,4)}, v{mMQ}, {s(srdWS,4)}, s{sA3} offen sc1")
    if not MFE:
        A("s_mov_b64 exec, 1")
        A(f"buffer_store_dword v{mO+1}, v{mMQ+1}, {s(srdWS,4)}, s{sA4} offen")
    stamp(10); fine(1, 8)
    A("s_branch L_fin_end")
    for blk in out_of_line: blk()
    A("L_end:"); A("s_endpgm")
    A("L_code_end:")
    A('.section .rodata,"a"'); A(".p2align 6"); A(f".amdhsa_kernel {NAME}_kernel")
    nv = 256 if dbg else max(R.hi, H.hi, Lr.hi)
    nv_al = (nv + 3) // 4 * 4
    for l in (f"next_free_vgpr {nv}", "next_free_sgpr 96", f"accum_offset {nv_al}", "group_segment_fixed_size 0", "kernarg_size 104", "user_sgpr_count 2", "user_sgpr_kernarg_segment_ptr 1", "system_sgpr_workgroup_id_x 1", "float_denorm_mode_32 3"):
        A(".amdhsa_" + l)
    A(".end_amdhsa_kernel")
    bad = A.check_branches()
    for b in bad: print("BRANCH HAZARD", b, file=sys.stderr)
    print(f"compute regs {R.hi}, helper regs {H.hi}, loader regs {Lr.hi}, nops {A.nops}, instrs {sum(1 for i in A.ins if i.ws)}", file=sys.stderr)
    return "\n".join(hdr) + "\n" + A.text()

if __name__ == "__main__":
    out = sys.argv[1] if len(sys.argv) > 1 else "k.s"
    kw = {}
    for a in sys.argv[2:]:
        k, val = a.split("=")
        kw[k] = val.replace("_", " ") if k in STRK else int(val)
    open(out, "w").write(gen(**kw))
```
